```python
import torch

def _softmax(x, axis=-1):
    return torch.softmax(x, dim=axis)
def _gelu(x):
    return torch.nn.functional.gelu(x, approximate="tanh")
def _silu(x):
    return torch.nn.functional.silu(x)
def _sigmoid(x):
    return torch.sigmoid(x)
def _layernorm(x, axis=-1, eps=1e-5):
    m = x.mean(dim=axis, keepdim=True)
    v = x.var(dim=axis, keepdim=True, unbiased=False)
    return (x - m) / torch.sqrt(v + eps)
def _scatter_add(tgt, idx, src, axis=0):
    return tgt.clone().index_add_(axis, idx, src)
def _segment_sum(src, seg, n):
    out = torch.zeros((n,) + src.shape[1:], dtype=src.dtype)
    return out.index_add_(0, seg, src)
def _pad(x, pw):
    flat = tuple(v for pair in reversed(pw) for v in pair)
    return torch.nn.functional.pad(x, flat)

kernel_name = 'interleave_layers__grouped_kv_mqa__mixer_channel_mlp__prompt'

def setup_inputs():

    _w = (lambda a: (lambda t: t.to(torch.bfloat16) if t.is_floating_point() else t)(torch.as_tensor(a)))
    def _A_setup():
        B, S, D, H = 1, 2048, 640, 32
        Dh = D // H
        return {
            "x": _w((lambda *s: torch.randn(*s, dtype=torch.bfloat16) * 0.05)(B, S, D)),
            "wq": _w((lambda *s: torch.randn(*s, dtype=torch.bfloat16) * 0.05)(D, H * Dh)),
            "wk": _w((lambda *s: torch.randn(*s, dtype=torch.bfloat16) * 0.05)(D, Dh)),
            "wv": _w((lambda *s: torch.randn(*s, dtype=torch.bfloat16) * 0.05)(D, Dh)),
            "wo": _w((lambda *s: torch.randn(*s, dtype=torch.bfloat16) * 0.05)(H * Dh, D)),
        }
    _A_in = _A_setup()

    def _B_setup():
        B, S, D, F = 1, 2048, 640, 1728
        return {
            "x": _w((lambda *s: torch.randn(*s, dtype=torch.bfloat16) * 0.05)(B, S, D)),
            "w1": _w((lambda *s: torch.randn(*s, dtype=torch.bfloat16) * 3.2)(D, F) * (D ** -0.5)),
            "b1": _w((lambda *s: torch.randn(*s, dtype=torch.bfloat16) * 0.8)(F)),
            "w2": _w((lambda *s: torch.randn(*s, dtype=torch.bfloat16) * 0.4)(F, D) * (F ** -0.5)),
            "b2": _w((lambda *s: torch.randn(*s, dtype=torch.bfloat16) * 0.4)(D)),
        }
    _B_in = _B_setup()

    return {
        "A_x": _A_in["x"],
        "A_wq": _A_in["wq"],
        "A_wk": _A_in["wk"],
        "A_wv": _A_in["wv"],
        "A_wo": _A_in["wo"],
        "B_x": _B_in["x"],
        "B_w1": _B_in["w1"],
        "B_b1": _B_in["b1"],
        "B_w2": _B_in["w2"],
        "B_b2": _B_in["b2"],
    }

def reference(A_x, A_wq, A_wk, A_wv, A_wo, B_x, B_w1, B_b1, B_w2, B_b2):
    def _A_ref(x, wq, wk, wv, wo):
        B, S, D = x.shape
        H = 32
        Dh = D // H
        q = (lambda x, *d: x.permute(*d))((x @ wq).reshape(B, S, H, Dh), 0, 2, 1, 3)
        k = x @ wk
        v = x @ wv
        scores = torch.einsum("bhqd,bkd->bhqk", q, k) * (Dh ** -0.5)
        p = _softmax(scores, axis=-1)
        o = torch.einsum("bhqk,bkd->bhqd", p, v)
        return (lambda x, *d: x.permute(*d))(o, 0, 2, 1, 3).reshape(B, S, H * Dh) @ wo

    def _B_ref(x, w1, b1, w2, b2):
        y = _layernorm(x, axis=-1)
        h = _gelu(torch.einsum("bsd,df->bsf", y, w1) + b1)
        return torch.einsum("bsf,fd->bsd", h, w2) + b2

    x = A_x
    x = x + _A_ref(_layernorm(x, axis=-1), A_wq, A_wk, A_wv, A_wo)
    x = x + _B_ref(_layernorm(x, axis=-1), B_w1, B_b1, B_w2, B_b2)
    x = x + _A_ref(_layernorm(x, axis=-1), A_wq, A_wk, A_wv, A_wo)
    x = x + _B_ref(_layernorm(x, axis=-1), B_w1, B_b1, B_w2, B_b2)
    return x
```

```python
import re

def vr(i, n=1):
    return f"v{i}" if n == 1 else f"v[{i}:{i+n-1}]"
def sr(i, n=1):
    return f"s{i}" if n == 1 else f"s[{i}:{i+n-1}]"
def ar(i, n=1):
    return f"a{i}" if n == 1 else f"a[{i}:{i+n-1}]"

_REG = re.compile(r"\b([vsa])(?:(\d+)|\[(\d+):(\d+)\])")

def regs_of(tok):
    out = set()
    for m in _REG.finditer(tok):
        k = m.group(1)
        if m.group(2) is not None:
            out.add((k, int(m.group(2))))
        else:
            for i in range(int(m.group(3)), int(m.group(4)) + 1):
                out.add((k, i))
    for name in ("vcc", "exec", "m0", "scc"):
        if re.search(r"\b" + name + r"(_lo|_hi)?\b", tok):
            out.add((name, 0))
    return out

TRANS = ("v_exp_f32", "v_log_f32", "v_rcp_f32", "v_rsq_f32", "v_sqrt_f32", "v_sin_f32", "v_cos_f32",
         "v_exp_f16", "v_rcp_f16", "v_rcp_iflag_f32")

class Ins:
    __slots__ = ("text", "op", "ops", "dst", "src", "kind", "label", "target", "mods")
    def __init__(self, text):
        self.text = text
        self.label = None
        self.target = None
        t = text.strip()
        if t.endswith(":") and " " not in t:
            self.label = t[:-1]; self.op = ""; self.kind = "label"; self.dst = set(); self.src = set(); self.ops = []
            return
        if t.startswith(".") or t.startswith(";") or t == "":
            self.op = ""; self.kind = "dir"; self.dst = set(); self.src = set(); self.ops = []
            return
        t = t.split(";")[0].strip()
        parts = t.split(None, 1)
        op = parts[0]
        self.op = op
        rest = parts[1] if len(parts) > 1 else ""
        ops, cur, depth = [], "", 0
        for ch in rest:
            if ch == "[": depth += 1
            if ch == "]": depth -= 1
            if ch == "," and depth == 0:
                ops.append(cur.strip()); cur = ""
            else:
                cur += ch
        if cur.strip(): ops.append(cur.strip())
        self.ops = ops
        self.mods = rest
        dst, src = set(), set()
        base = re.sub(r"_(e32|e64|dpp|sdwa)$", "", op)
        if op.startswith("v_mfma") or op.startswith("v_smfmac"):
            self.kind = "mfma"
            dst = regs_of(ops[0]); src = regs_of(ops[1]) | regs_of(ops[2]) | regs_of(ops[3])
        elif op.startswith("v_cmp"):
            self.kind = "valu"
            dst = regs_of(ops[0]);
            for o in ops[1:]: src |= regs_of(o)
            if op.startswith("v_cmpx"): dst.add(("exec", 0))
        elif op.startswith("v_readfirstlane") or op.startswith("v_readlane"):
            self.kind = "valu"
            dst = regs_of(ops[0])
            for o in ops[1:]: src |= regs_of(o)
        elif op.startswith("v_permlane") and "swap" in op:
            self.kind = "valu"
            dst = regs_of(ops[0]) | regs_of(ops[1]); src = set(dst)
        elif op.startswith("v_"):
            self.kind = "valu"
            dst = regs_of(ops[0])
            k = 1
            if base in ("v_add_co_u32", "v_sub_co_u32", "v_addc_co_u32", "v_subb_co_u32", "v_subrev_co_u32", "v_div_scale_f32", "v_mad_u64_u32"):
                dst |= regs_of(ops[1]); k = 2
            for o in ops[k:]: src |= regs_of(o)
            if base in ("v_fmac_f32", "v_dot2c_f32_bf16", "v_pk_fmac_f16", "v_mac_f32") or "UNUSED_PRESERVE" in rest or op.endswith("_dpp") or "row_" in rest or base == "v_writelane_b32":
                src |= regs_of(ops[0])
            if base == "v_cndmask_b32" and len(ops) == 3:
                src.add(("vcc", 0))
        elif op.startswith("buffer_") or op.startswith("global_") or op.startswith("flat_"):
            self.kind = "vmem"
            if op in ("buffer_wbl2", "buffer_inv"):
                pass
            elif "_load" in op and not re.search(r"\blds\b", rest) and "load_lds" not in op:
                dst = regs_of(ops[0])
                for o in ops[1:]: src |= regs_of(o)
                if "d16" in op: src |= dst
            elif "atomic" in op and re.search(r"\bsc0\b", rest):
                dst = regs_of(ops[0])
                for o in ops: src |= regs_of(o)
            else:
                for o in ops: src |= regs_of(o)
                if re.search(r"\blds\b", rest) or "load_lds" in op: src.add(("m0", 0))
        elif op.startswith("ds_"):
            self.kind = "ds"
            if op.startswith("ds_read") or op.startswith("ds_bpermute") or op.startswith("ds_permute") or op.startswith("ds_swizzle") or "_rtn" in op:
                dst = regs_of(ops[0])
                for o in ops[1:]: src |= regs_of(o)
            else:
                for o in ops: src |= regs_of(o)
        elif op.startswith("s_"):
            self.kind = "salu"
            if op.startswith("s_load") or op.startswith("s_buffer_load") or op.startswith("s_memtime") or op.startswith("s_memrealtime"):
                self.kind = "smem"
                dst = regs_of(ops[0])
                for o in ops[1:]: src |= regs_of(o)
            elif op.startswith("s_cbranch") or op == "s_branch":
                self.kind = "branch"; self.target = ops[0]
            elif op in ("s_endpgm",):
                self.kind = "end"
            elif op in ("s_nop", "s_waitcnt", "s_barrier", "s_setprio", "s_sleep"):
                pass
            elif op.startswith("s_cmp") or op.startswith("s_bitcmp"):
                for o in ops: src |= regs_of(o)
                dst.add(("scc", 0))
            elif op.startswith("s_setreg"):
                for o in ops: src |= regs_of(o)
            else:
                dst = regs_of(ops[0])
                for o in ops[1:]: src |= regs_of(o)
                if "saveexec" in op: dst.add(("exec", 0)); src.add(("exec", 0))
        else:
            raise ValueError("unknown instruction: " + text)
        self.dst, self.src = dst, src

    def states(self):
        if self.kind in ("label", "dir"): return 0
        if self.op == "s_nop": return int(self.ops[0], 0) + 1
        return 1
    def passes(self):
        if "32x32x16" in self.op or "32x32x8" in self.op: return 8
        if "16x16x32" in self.op or "16x16x16" in self.op: return 4
        raise ValueError(self.op)

def vset(s): return {r for r in s if r[0] in ("v", "a")}
def sset(s): return {r for r in s if r[0] == "s" or r[0] == "vcc"}

def need(p, c):
    n = 0
    pv, cv = p.kind == "valu", c.kind == "valu"
    if p.kind == "mfma":
        P = p.passes()
        d = p.dst
        if c.kind == "mfma":
            cs = regs_of(c.ops[3]); ab = regs_of(c.ops[1]) | regs_of(c.ops[2])
            if d & ab: n = max(n, {4: 8, 8: 12}[P])
            if d & cs:
                if cs == d and c.passes() == P: pass
                else: n = max(n, {4: 6, 8: 10}[P])
            elif d & c.dst:
                n = max(n, {4: 6, 8: 10}[P])
        elif c.kind == "valu":
            if d & (c.src | c.dst): n = max(n, {4: 8, 8: 12}[P])
            cs = regs_of(p.ops[3])
            if cs & c.dst: n = max(n, {4: 3, 8: 7}[P])
        elif c.kind in ("vmem", "ds"):
            if d & (c.src | c.dst): n = max(n, {4: 8, 8: 12}[P])
    if pv:
        if c.kind == "mfma" and (vset(p.dst) & c.src): n = max(n, 2)
        if c.kind == "mfma" and ("exec", 0) in p.dst: n = max(n, 4)
        if c.kind == "vmem" and (sset(p.dst) & c.src): n = max(n, 5)
        if cv:
            if sset(p.dst) & c.src: n = max(n, 2)
            if c.op.startswith("v_readlane") or c.op.startswith("v_readfirstlane"):
                if vset(p.dst) & c.src: n = max(n, 1)
                if sset(p.dst) & c.src: n = max(n, 4)
            if c.op.startswith("v_permlane") and (vset(p.dst) & c.src): n = max(n, 2)
            if ("_dpp" in c.op or "row_" in c.mods or "quad_perm" in c.mods) and (vset(p.dst) & c.src): n = max(n, 2)
            if re.sub(r"_(e32|e64)$", "", p.op) in TRANS and (vset(p.dst) & c.src): n = max(n, 1)
            if ("sdwa" in p.op or "op_sel" in p.mods) and (vset(p.dst) & (c.src | c.dst)): n = max(n, 1)
            if ("exec", 0) in p.dst and ("_dpp" in c.op or "row_" in c.mods): n = max(n, 5)
            if ("exec", 0) in p.dst and (c.op.startswith("v_readlane") or c.op.startswith("v_readfirstlane") or c.op.startswith("v_permlane")): n = max(n, 4)
        if c.kind == "branch" and ("vccz" in c.op or "vccnz" in c.op) and ("vcc", 0) in p.dst: n = max(n, 5)
        if c.kind == "branch" and ("exec" in c.op) and ("exec", 0) in p.dst: n = max(n, 5)
        if c.kind in ("salu",) and (sset(p.dst) & c.src): n = max(n, 3)
    if p.kind == "salu":
        if ("m0", 0) in p.dst and ("m0", 0) in c.src and c.kind in ("vmem", "ds"): n = max(n, 1)
    if p.kind == "vmem" and ("store" in p.op or "atomic" in p.op) and re.search(r"x[34]\b", p.op):
        data = regs_of(p.ops[0])
        if c.kind == "valu" and (data & c.dst): n = max(n, 2)
        elif c.kind in ("vmem", "ds", "mfma") and (data & c.dst): n = max(n, 1)
    if p.kind == "ds" and p.op in ("ds_write_b128", "ds_write_b96"):
        data = regs_of(p.ops[1])
        if c.kind == "valu" and (data & c.dst): n = max(n, 2)
    return n

MAXW = 13

class Asm:
    def __init__(self):
        self.out = []
        self.nvm = 0
        self.nlg = 0
    def __call__(self, s):
        for line in s.split("\n"):
            line = line.strip()
            if line: self.out.append(line)
    def label(self, n): self.out.append(n + ":")
    def cmt(self, s): self.out.append("; " + s)
    def vm(self, s):
        self(s); self.nvm += 1; return self.nvm
    def wait_vm(self, tag, extra=""):
        n = self.nvm - tag
        assert 0 <= n, n
        n = min(n, 63)
        self(f"s_waitcnt vmcnt({n})" + extra)
    def lg(self, s):
        self(s); self.nlg += 1; return self.nlg
    def wait_lg(self, tag):
        n = self.nlg - tag
        assert n >= 0
        self(f"s_waitcnt lgkmcnt({min(n,15)})")

def fix_hazards(lines, verbose=False):
    ins = [Ins(l) for l in lines]
    total = 0
    while True:
        labels = {x.label: i for i, x in enumerate(ins) if x.label}
        preds = [[] for _ in ins]
        for i, x in enumerate(ins):
            if i + 1 < len(ins) and not (x.kind == "end" or x.op == "s_branch"):
                preds[i + 1].append(i)
            if x.kind == "branch":
                if x.target in labels: preds[labels[x.target]].append(i)
        extra = [0] * len(ins)
        nins = 0
        for ci, c in enumerate(ins):
            if c.kind in ("label", "dir") or c.op in ("s_nop", "s_waitcnt", "s_barrier"): continue
            worst = 0
            stack = [(p, 0) for p in preds[ci]]
            seen = {}
            while stack:
                pi, dist = stack.pop()
                if dist >= MAXW: continue
                if seen.get(pi, 99) <= dist: continue
                seen[pi] = dist
                p = ins[pi]
                if p.kind not in ("label", "dir"):
                    nd = need(p, c)
                    if nd > dist: worst = max(worst, nd - dist)
                for q in preds[pi]:
                    stack.append((q, dist + p.states() + extra[pi]))
            if worst > 0:
                extra[ci] = worst
                nins += 1
                if verbose: print(f"hazard: +{worst} before {c.text}")
        if nins == 0: break
        new = []
        for i, x in enumerate(ins):
            w = extra[i]
            while w > 0:
                k = min(w, 16); new.append(Ins(f"s_nop {k-1}")); w -= k
            new.append(x)
        ins = new
        total += nins
    return [x.text for x in ins], total
```

```python
import sys, math
sys.path.insert(0, "gen")
from asmdsl import *

S, D, F, H, DH = 2048, 640, 1728, 32, 20
KB = 1024
off = 0
def alloc(n, align=4096):
    global off
    off = (off + align - 1) // align * align
    o = off; off += n; return o
WQF = alloc(8 * 20 * 6 * KB)
WOF = alloc(8 * 20 * 5 * KB)
W1_NT = [7] * 12 + [6] * 4
W1_T0 = [sum(W1_NT[:i]) for i in range(16)]
W1_OFF = [sum(W1_NT[:i]) * 20 * KB for i in range(16)]
W1F = alloc(108 * 20 * KB + 8 * KB)
W2F = alloc(8 * 56 * 5 * KB)
CSQ = alloc(8 * 96 * 4)
BKV = alloc(3 * 16 * 4)
CS1 = alloc(1728 * 4)
QB = alloc(S * D * 2)
KVB = alloc(64 * 4096)
KMAX = alloc(2 * 128 * 4)
OB = alloc(S * D * 2)
X1 = alloc(S * D * 2)
X2 = alloc(S * D * 2)
X3 = alloc(S * D * 2)
HB = alloc(S * F * 2 + 4096)
WS_USED = off
WS_BYTES = 268435456
XBYTES = S * D * 2

ARG = dict(A_x=0, wq=8, wk=16, wv=24, wo=32, B_x=40, w1=48, b1=56, w2=64, b2=72, out=80, dbg=88, ws=96)
LOG2E = 1.4426950408889634
import struct
def f2u(x): return struct.unpack("<I", struct.pack("<f", x))[0]

def srd(a, s, ptr_pair, off, nbytes):
    if off:
        a(f"s_add_u32 s{s}, s{ptr_pair}, {off}")
        a(f"s_addc_u32 s{s+1}, s{ptr_pair+1}, 0")
    else:
        a(f"s_mov_b32 s{s}, s{ptr_pair}")
        a(f"s_mov_b32 s{s+1}, s{ptr_pair+1}")
    a(f"s_mov_b32 s{s+2}, {nbytes}")
    a(f"s_mov_b32 s{s+3}, 0x20000")

def kernel_begin(a, name, nwg):
    a(f".globl {name}")
    a(".p2align 8")
    a(f".type {name},@function")
    a.out.append(f"{name}:")
    a(f"s_cmp_ge_u32 s2, {nwg}")
    a(f"s_cbranch_scc1 {name}_exit")
def kernel_end(a, name):
    a.label(f"{name}_exit")
    a("s_endpgm")
def descriptor(name, vgpr, sgpr=96):
    vg = (vgpr + 7) // 8 * 8
    return f""".amdhsa_kernel {name}
  .amdhsa_next_free_vgpr {vg}
  .amdhsa_next_free_sgpr {sgpr}
  .amdhsa_accum_offset {min(vg,256)}
  .amdhsa_group_segment_fixed_size 0
  .amdhsa_kernarg_size 104
  .amdhsa_user_sgpr_count 2
  .amdhsa_user_sgpr_kernarg_segment_ptr 1
  .amdhsa_system_sgpr_workgroup_id_x 1
  .amdhsa_float_denorm_mode_32 3
  .amdhsa_float_denorm_mode_16_64 3
.end_amdhsa_kernel
"""

def gen_prep():
    a = Asm(); name = "prep_kernel"
    kernel_begin(a, name, 252)
    a("s_load_dwordx2 s[4:5], s[0:1], 96")
    a("s_load_dwordx2 s[6:7], s[0:1], 8")
    a("s_load_dwordx4 s[24:27], s[0:1], 16")
    a("s_load_dwordx2 s[28:29], s[0:1], 32")
    a("s_load_dwordx2 s[30:31], s[0:1], 48")
    a("s_load_dwordx2 s[32:33], s[0:1], 64")
    a("v_and_b32 v1, 63, v0")
    a("v_lshrrev_b32 v2, 6, v0")
    a("v_readfirstlane_b32 s34, v2")
    a("v_and_b32 v3, 15, v1")
    a("v_lshrrev_b32 v4, 4, v1")
    a("v_lshlrev_b32 v5, 4, v1")
    a("s_waitcnt lgkmcnt(0)")
    srd(a, 8, 4, 0, WS_BYTES)
    def gather(frag_regs, voff, srdn, rowbytes, soff_base_sgpr, nfr, ks_stride_bytes):
        for f in range(nfr):
            for jj in range(8):
                a(f"s_add_u32 s40, s{soff_base_sgpr}, {f*ks_stride_bytes + jj*rowbytes}")
                a(f"buffer_load_ushort v{64+8*f+jj}, v{voff}, s[{srdn}:{srdn+3}], s40 offen")
    def pack(nfr):
        a("s_waitcnt vmcnt(0)")
        for f in range(nfr):
            for q in range(4):
                a(f"v_lshl_or_b32 v{32+4*f+q}, v{64+8*f+2*q+1}, 16, v{64+8*f+2*q}")
    def colsum_and_store(dst_soff_sgpr, dst_ks_stride, cs_off_sgpr):
        a("v_mov_b32 v24, 0x3f803f80\nv_mov_b32 v25, 0x3f803f80\nv_mov_b32 v26, 0x3f803f80\nv_mov_b32 v27, 0x3f803f80")
        pack(5)
        for f in range(5):
            a(f"s_add_u32 s40, s{dst_soff_sgpr}, {f*dst_ks_stride}")
            a(f"buffer_store_dwordx4 v[{32+4*f}:{35+4*f}], v5, s[8:11], s40 offen")
            a(f"v_mfma_f32_16x16x32_bf16 v[28:31], v[{32+4*f}:{35+4*f}], v[24:27], " + ("0" if f == 0 else "v[28:31]"))
        a("v_lshlrev_b32 v6, 4, v4")
        a("s_lshl_b32 s41, s34, 6")
        a("v_add_u32 v6, s41, v6")
        a("v_cmp_eq_u32 vcc, 0, v3")
        a("s_and_saveexec_b64 s[42:43], vcc")
        a("ds_write_b128 v6, v[28:31]")
        a("s_mov_b64 exec, s[42:43]")
        a("s_waitcnt lgkmcnt(0)")
        a("s_barrier")
        a("v_lshlrev_b32 v6, 2, v0")
        a("v_cmp_gt_u32 vcc, 16, v0")
        a("s_and_saveexec_b64 s[42:43], vcc")
        a(f"s_cbranch_execz {name}_exit")
        a("ds_read_b32 v7, v6\nds_read_b32 v8, v6 offset:64\nds_read_b32 v9, v6 offset:128\nds_read_b32 v10, v6 offset:192")
        a("s_waitcnt lgkmcnt(0)")
        a("v_add_f32 v7, v7, v8\nv_add_f32 v9, v9, v10\nv_add_f32 v7, v7, v9")
        a(f"buffer_store_dword v7, v6, s[8:11], s{cs_off_sgpr} offen")
        a("s_waitcnt vmcnt(0)")
        a("s_endpgm")

    a("s_cmp_lt_u32 s2, 40\ns_cbranch_scc1 prep_wq")
    a("s_cmp_lt_u32 s2, 43\ns_cbranch_scc1 prep_kv")
    a("s_cmp_lt_u32 s2, 151\ns_cbranch_scc1 prep_w1")
    a("s_branch prep_plain")
    a.label("prep_wq")
    srd(a, 12, 6, 0, D * D * 2)
    a("s_mul_i32 s35, s2, 52429\ns_lshr_b32 s35, s35, 18")
    a("s_mul_i32 s36, s35, 5\ns_sub_u32 s36, s2, s36")
    a("v_mul_u32_u24 v7, 10240, v4")
    a("s_lshl_b32 s37, s2, 5")
    a("v_lshl_add_u32 v7, v3, 1, v7\nv_add_u32 v7, s37, v7")
    a(f"s_mul_i32 s38, s34, {5*32*1280}")
    gather(32, 7, 12, 1280, 38, 5, 32 * 1280)
    a(f"s_mul_i32 s44, s35, {120*KB}\ns_mul_i32 s45, s34, {30*KB}\ns_add_u32 s44, s44, s45\ns_lshl_b32 s45, s36, 10\ns_add_u32 s44, s44, s45\ns_add_u32 s44, s44, {WQF}")
    a(f"s_mul_i32 s46, s35, 384\ns_lshl_b32 s45, s36, 6\ns_add_u32 s46, s46, s45\ns_add_u32 s46, s46, {CSQ}")
    colsum_and_store(44, 6 * KB, 46)
    a.label("prep_kv")
    srd(a, 12, 24, 0, D * DH * 2)
    srd(a, 16, 26, 0, D * DH * 2)
    a("s_sub_u32 s35, s2, 40")
    for r in range(64, 104): a(f"v_mov_b32 v{r}, 0")
    BIG = 0x40000000
    a("v_and_b32 v8, 3, v3\nv_lshrrev_b32 v9, 2, v3")
    a("s_cmp_eq_u32 s35, 0\ns_cbranch_scc1 prep_kv0")
    a("s_cmp_eq_u32 s35, 1\ns_cbranch_scc1 prep_kv1")
    a(f"v_mov_b32 v10, {BIG}\nv_mov_b32 v11, {BIG}")
    a("v_lshlrev_b32 v12, 1, v3\nv_add_u32 v12, 32, v12")
    a("v_cmp_gt_u32 vcc, 4, v3\nv_cndmask_b32 v10, v10, v12, vcc")
    a("v_lshlrev_b32 v12, 1, v8")
    a("v_add_u32 v13, 16, v12\nv_add_u32 v14, 36, v12")
    a("v_cmp_eq_u32 vcc, 1, v9\nv_cndmask_b32 v11, v11, v13, vcc")
    a("v_cmp_eq_u32 vcc, 2, v9\nv_cndmask_b32 v11, v11, v14, vcc")
    a(f"v_mov_b32 v12, {BIG}\nv_cmp_lt_u32 vcc, 1, v8\nv_cndmask_b32 v11, v11, v12, vcc")
    a("s_branch prep_kvgo")
    a.label("prep_kv0")
    a(f"v_lshlrev_b32 v10, 1, v3\nv_mov_b32 v11, {BIG}")
    a("s_branch prep_kvgo")
    a.label("prep_kv1")
    a(f"v_mov_b32 v10, {BIG}")
    a("v_mov_b32 v11, 0\nv_cmp_eq_u32 vcc, 1, v9\nv_cndmask_b32 v11, v11, 10, vcc")
    a("v_cmp_eq_u32 vcc, 2, v9\nv_cndmask_b32 v11, v11, 4, vcc")
    a("v_cmp_eq_u32 vcc, 3, v9\nv_cndmask_b32 v11, v11, 14, vcc")
    a("v_add_u32 v11, v11, v8\nv_lshlrev_b32 v11, 1, v11")
    a.label("prep_kvgo")
    a("v_mul_u32_u24 v12, 320, v4")
    a("v_add_u32 v10, v10, v12\nv_add_u32 v11, v11, v12")
    a(f"s_mul_i32 s38, s34, {5*32*40}")
    a(f"v_cmp_gt_u32 vcc, {BIG}, v10\ns_and_saveexec_b64 s[48:49], vcc")
    a("s_cbranch_execz prep_kv_skipk")
    gather(32, 10, 12, 40, 38, 5, 32 * 40)
    a.label("prep_kv_skipk")
    a("s_mov_b64 exec, s[48:49]")
    a(f"v_cmp_gt_u32 vcc, {BIG}, v11\ns_and_saveexec_b64 s[48:49], vcc")
    a("s_cbranch_execz prep_kv_skipv")
    gather(32, 11, 16, 40, 38, 5, 32 * 40)
    a.label("prep_kv_skipv")
    a("s_mov_b64 exec, s[48:49]")
    a(f"s_mul_i32 s44, s35, {120*KB}\ns_mul_i32 s45, s34, {30*KB}\ns_add_u32 s44, s44, s45\ns_add_u32 s44, s44, {WQF + 5*KB}")
    a(f"s_mul_i32 s46, s35, 384\ns_add_u32 s46, s46, {CSQ + 5*64}")
    colsum_and_store(44, 6 * KB, 46)
    a.label("prep_w1")
    srd(a, 12, 30, 0, D * F * 2)
    a("s_sub_u32 s35, s2, 43")
    a("s_mul_i32 s36, s35, 9363\ns_lshr_b32 s36, s36, 16")
    a("s_mul_i32 s37, s36, 7\ns_sub_u32 s37, s35, s37")
    a(f"s_mul_i32 s44, s36, {140*KB}")
    a(f"s_mov_b32 s47, {7*KB}")
    a("s_cmp_lt_u32 s35, 84\ns_cbranch_scc1 prep_w1a")
    a("s_sub_u32 s45, s35, 84\ns_mul_i32 s36, s45, 10923\ns_lshr_b32 s36, s36, 16")
    a("s_mul_i32 s37, s36, 6\ns_sub_u32 s37, s45, s37")
    a(f"s_mul_i32 s44, s36, {120*KB}\ns_add_u32 s44, s44, {12*140*KB}")
    a(f"s_mov_b32 s47, {6*KB}")
    a.label("prep_w1a")
    a("v_mul_u32_u24 v7, 27648, v4")
    a("s_lshl_b32 s39, s35, 5")
    a("v_lshl_add_u32 v7, v3, 1, v7\nv_add_u32 v7, s39, v7")
    a(f"s_mul_i32 s38, s34, {5*32*3456}")
    gather(32, 7, 12, 3456, 38, 5, 32 * 3456)
    a("s_mul_i32 s45, s34, 5\ns_mul_i32 s45, s45, s47\ns_add_u32 s44, s44, s45\ns_lshl_b32 s45, s37, 10\ns_add_u32 s44, s44, s45")
    a(f"s_add_u32 s44, s44, {W1F}")
    a(f"s_lshl_b32 s46, s35, 6\ns_add_u32 s46, s46, {CS1}")
    a("v_mov_b32 v24, 0x3f803f80\nv_mov_b32 v25, 0x3f803f80\nv_mov_b32 v26, 0x3f803f80\nv_mov_b32 v27, 0x3f803f80")
    pack(5)
    for f in range(5):
        a(f"buffer_store_dwordx4 v[{32+4*f}:{35+4*f}], v5, s[8:11], s44 offen")
        a("s_add_u32 s44, s44, s47")
        a(f"v_mfma_f32_16x16x32_bf16 v[28:31], v[{32+4*f}:{35+4*f}], v[24:27], " + ("0" if f == 0 else "v[28:31]"))
    a("v_lshlrev_b32 v6, 4, v4\ns_lshl_b32 s41, s34, 6\nv_add_u32 v6, s41, v6")
    a("v_cmp_eq_u32 vcc, 0, v3\ns_and_saveexec_b64 s[42:43], vcc")
    a("ds_write_b128 v6, v[28:31]")
    a("s_mov_b64 exec, s[42:43]\ns_waitcnt lgkmcnt(0)\ns_barrier")
    a("v_lshlrev_b32 v6, 2, v0\nv_cmp_gt_u32 vcc, 16, v0\ns_and_saveexec_b64 s[42:43], vcc")
    a(f"s_cbranch_execz {name}_exit")
    a("ds_read_b32 v7, v6\nds_read_b32 v8, v6 offset:64\nds_read_b32 v9, v6 offset:128\nds_read_b32 v10, v6 offset:192")
    a("s_waitcnt lgkmcnt(0)")
    a("v_add_f32 v7, v7, v8\nv_add_f32 v9, v9, v10\nv_add_f32 v7, v7, v9")
    a("buffer_store_dword v7, v6, s[8:11], s46 offen")
    a("s_waitcnt vmcnt(0)\ns_endpgm")
    a.label("prep_plain")
    a("s_sub_u32 s35, s2, 151\ns_lshl_b32 s35, s35, 2\ns_add_u32 s35, s35, s34")
    a("s_cmp_lt_u32 s35, 120\ns_cbranch_scc1 prep_wo")
    a("s_sub_u32 s35, s35, 120")
    a("s_cmp_ge_u32 s35, 280\ns_cbranch_scc1 prep_bias")
    srd(a, 12, 32, 0, F * D * 2)
    a(f"s_mov_b32 s50, {W2F}\ns_mov_b32 s51, {280*KB}")
    a("s_branch prep_pl2")
    a.label("prep_wo")
    srd(a, 12, 28, 0, D * D * 2)
    a(f"s_mov_b32 s50, {WOF}\ns_mov_b32 s51, {100*KB}")
    a.label("prep_pl2")
    a("s_mul_i32 s36, s35, 1639\ns_lshr_b32 s36, s36, 16")
    a("s_mul_i32 s37, s36, 40\ns_sub_u32 s37, s35, s37")
    a("s_mul_i32 s38, s37, 52429\ns_lshr_b32 s38, s38, 18")
    a("s_mul_i32 s39, s38, 5\ns_sub_u32 s39, s37, s39")
    a("v_mul_u32_u24 v7, 10240, v4")
    a("s_lshl_b32 s45, s37, 5")
    a("v_lshl_add_u32 v7, v3, 1, v7\nv_add_u32 v7, s45, v7")
    a(f"s_mul_i32 s44, s38, s51\ns_add_u32 s44, s44, s50\ns_mul_i32 s45, s36, {40*KB}\ns_add_u32 s44, s44, s45\ns_lshl_b32 s45, s39, 10\ns_add_u32 s44, s44, s45")
    for half in range(2):
        a(f"s_mul_i32 s38, s36, {8*32*1280}\ns_add_u32 s38, s38, {half*4*32*1280}")
        if half == 1:
            a(f"s_cmp_eq_u32 s50, {WOF}\ns_cbranch_scc0 prep_pl3")
            a("s_cmp_eq_u32 s36, 2\ns_cbranch_scc1 prep_done")
            a.label("prep_pl3")
        gather(32, 7, 12, 1280, 38, 4, 32 * 1280)
        pack(4)
        for f in range(4):
            a(f"s_add_u32 s40, s44, {(half*4+f)*5*KB}")
            a(f"buffer_store_dwordx4 v[{32+4*f}:{35+4*f}], v5, s[8:11], s40 offen")
        a("s_waitcnt vmcnt(0)")
    a.label("prep_done")
    a("s_endpgm")
    a.label("prep_bias")
    a("s_cmp_eq_u32 s35, 280\ns_cbranch_scc0 prep_done2")
    a("v_mov_b32 v7, 0")
    for idx in (32 + 6, 32 + 10, 32 + 12):
        a(f"v_cmp_eq_u32 vcc, {idx}, v1\nv_cndmask_b32 v7, v7, 1.0, vcc")
    a("v_lshlrev_b32 v6, 2, v1\nv_cmp_gt_u32 vcc, 48, v1\ns_and_saveexec_b64 s[42:43], vcc")
    a(f"s_mov_b32 s40, {BKV}\nbuffer_store_dword v7, v6, s[8:11], s40 offen")
    a("s_waitcnt vmcnt(0)")
    a.label("prep_done2")
    a("s_endpgm")
    kernel_end(a, name)
    return a.out, descriptor(name, 112), (name, 256, 256, 1024)

def lane_setup(a):
    a("v_and_b32 v1, 63, v0")
    a("v_lshrrev_b32 v2, 6, v0")
    a("v_readfirstlane_b32 s34, v2")
    a("v_and_b32 v3, 15, v1")
    a("v_lshrrev_b32 v4, 4, v1")
    a("v_lshlrev_b32 v5, 4, v1")

def stats_finalize(a, accS, accQ, vRho, vMu, tmp, double_ln, extra_scale=None):
    t0, t1, t2, t3 = tmp, tmp + 1, tmp + 2, tmp + 3
    a(f"v_and_b32 v{t0}, 3, v1")
    a(f"v_mov_b32 v{t1}, v{accQ}")
    for r in (1, 2, 3):
        a(f"v_cmp_eq_u32 vcc, {r}, v{t0}")
        a(f"v_cndmask_b32 v{t1}, v{t1}, v{accQ+r}, vcc")
    a(f"v_lshrrev_b32 v{t2}, 2, v3\nv_lshlrev_b32 v{t2}, 4, v{t2}\nv_add_u32 v{t2}, v{t2}, v3\nv_lshlrev_b32 v{t2}, 2, v{t2}")
    a(f"ds_bpermute_b32 v{t1}, v{t2}, v{t1}")
    a(f"v_mul_f32 v{t0}, {f2u(1.0/D):#x}, v{accS}")
    a("s_waitcnt lgkmcnt(0)")
    a(f"v_mul_f32 v{t1}, {f2u(1.0/D):#x}, v{t1}")
    a(f"v_fma_f32 v{t1}, -v{t0}, v{t0}, v{t1}")
    a(f"v_max_f32 v{t1}, 0, v{t1}")
    a(f"v_add_f32 v{t2}, {f2u(1e-5):#x}, v{t1}")
    a(f"v_rsq_f32 v{t2}, v{t2}")
    if double_ln:
        a(f"v_mul_f32 v{t3}, v{t2}, v{t2}")
        a(f"v_mul_f32 v{t3}, v{t3}, v{t1}")
        a(f"v_add_f32 v{t3}, {f2u(1e-5):#x}, v{t3}")
        a(f"v_rsq_f32 v{t3}, v{t3}")
        a(f"v_mul_f32 v{t2}, v{t2}, v{t3}")
    a(f"v_mov_b32 v{vRho}, v{t2}")
    a(f"v_mul_f32 v{vMu}, v{t0}, v{t2}")

def unpack2(a, dlo, dhi, src):
    a(f"v_lshlrev_b32 v{dlo}, 16, v{src}")
    a(f"v_and_b32 v{dhi}, 0xffff0000, v{src}")

VB = 64
VA = 160
VACC = 208
VST = 232
VONE = 240
VTAB = 8

def gemm64(kind, layer):
    a = Asm(); name = f"{kind}{layer}_kernel"
    kernel_begin(a, name, 256)
    a("s_load_dwordx2 s[4:5], s[0:1], 96")
    a("s_load_dwordx2 s[6:7], s[0:1], 0")
    if kind == "fc2":
        a("s_load_dwordx2 s[28:29], s[0:1], 72")
        a("s_load_dwordx2 s[30:31], s[0:1], 80")
    lane_setup(a)
    a("s_and_b32 s35, s2, 31\ns_lshr_b32 s36, s2, 5")
    a("s_waitcnt lgkmcnt(0)")
    srd(a, 8, 4, 0, WS_BYTES)
    if kind == "qkv":
        if layer == 1: srd(a, 12, 6, 0, XBYTES)
        else: srd(a, 12, 4, X2, XBYTES)
        rowb, nks, WF, slice_stride, gstride = 1280, 20, WQF, 120 * KB, 6
    elif kind == "wo":
        srd(a, 12, 4, OB, XBYTES)
        if layer == 1: srd(a, 16, 6, 0, XBYTES)
        else: srd(a, 16, 4, X2, XBYTES)
        srd(a, 20, 4, X1 if layer == 1 else X3, XBYTES)
        rowb, nks, WF, slice_stride, gstride = 1280, 20, WOF, 100 * KB, 5
    else:
        srd(a, 12, 4, HB, S * F * 2)
        srd(a, 16, 4, X1 if layer == 1 else X3, XBYTES)
        if layer == 1: srd(a, 20, 4, X2, XBYTES)
        else: srd(a, 20, 30, 0, XBYTES)
        srd(a, 24, 28, 0, D * 2)
        rowb, nks, WF, slice_stride, gstride = 3456, 54, W2F, 280 * KB, 5
    a("s_lshl_b32 s37, s35, 6\ns_lshl_b32 s38, s34, 4\ns_add_u32 s37, s37, s38")
    a("v_add_u32 v6, s37, v3")
    a(f"s_mov_b32 s39, {rowb}\nv_mul_lo_u32 v7, v6, s39\nv_lshl_add_u32 v7, v4, 4, v7")
    a("v_mul_u32_u24 v56, 1280, v6\nv_lshl_add_u32 v56, v4, 3, v56\ns_mul_i32 s40, s36, 160\nv_add_u32 v56, s40, v56")
    a(f"s_mul_i32 s41, s36, {slice_stride}\ns_mul_i32 s42, s34, {gstride*KB}\ns_add_u32 s41, s41, s42\ns_add_u32 s41, s41, {WF}")
    a("v_add_u32 v57, 0x10000, v5")
    if kind == "qkv":
        a("v_mov_b32 v240, 0x3f803f80\nv_mov_b32 v241, 0x3f803f80\nv_mov_b32 v242, 0x3f803f80\nv_mov_b32 v243, 0x3f803f80")

    def body(NT, kvtile):
        nst = (nks + 3) // 4
        RING = 6 if kind == "fc2" else 5
        tags = {}
        def issue_stage(s):
            slot = s % RING
            a(f"s_mul_i32 s43, s34, {NT*KB}\ns_add_u32 m0, s43, {slot*4*NT*KB}")
            a(f"s_add_u32 s44, s41, {s*4*gstride*KB}")
            for i in range(NT):
                if i == 4:
                    a("s_add_u32 m0, m0, 4096\ns_add_u32 s44, s44, 4096")
                a.vm(f"buffer_load_dwordx4 v5, s[8:11], s44 offen offset:{(i%4)*1024} lds")
            for q in range(4):
                ks = 4 * s + q
                if ks < nks:
                    r = VB + (slot * 4 + q) * 4
                    t = a.vm(f"buffer_load_dwordx4 v[{r}:{r+3}], v7, s[12:15], 0 offen offset:{ks*64}")
            tags[s] = a.nvm
        npre = min(nst, RING - 1 if kind == "fc2" else RING)
        for s in range(npre): issue_stage(s)
        if kind == "qkv":
            a(f"s_mul_i32 s45, s36, 384\ns_add_u32 s45, s45, {CSQ}\nv_lshlrev_b32 v58, 4, v4")
            for i in range(NT):
                a.vm(f"buffer_load_dwordx4 v[{VTAB+4*i}:{VTAB+4*i+3}], v58, s[8:11], s45 offen offset:{i*64}")
            if kvtile:
                a(f"s_lshl_b32 s46, s36, 6\ns_add_u32 s46, s46, {BKV}")
                a.vm(f"buffer_load_dwordx4 v[{VTAB+24}:{VTAB+27}], v58, s[8:11], s46 offen")
        else:
            for i in range(NT):
                a.vm(f"buffer_load_dwordx2 v[{VTAB+2*i}:{VTAB+2*i+1}], v56, s[16:19], 0 offen offset:{i*32}")
            if kind == "fc2":
                a("v_lshlrev_b32 v58, 3, v4\nv_add_u32 v58, s40, v58")
                for i in range(NT):
                    a.vm(f"buffer_load_dwordx2 v[{VTAB+16+2*i}:{VTAB+16+2*i+1}], v58, s[24:27], 0 offen offset:{i*32}")
        tab_tag = a.nvm
        first = True
        def rdA(ks, buf):
            slot = (ks // 4) % RING
            base = (slot * 4 + ks % 4) * NT * KB
            t = None
            for i in range(NT):
                o = base + i * KB
                r = VA + (buf * 6 + i) * 4
                if o < 65536: t = a.lg(f"ds_read_b128 v[{r}:{r+3}], v5 offset:{o}")
                else: t = a.lg(f"ds_read_b128 v[{r}:{r+3}], v57 offset:{o-65536}")
            return t
        for s in range(nst):
            a.wait_vm(tags[s])
            a("s_barrier")
            if kind == "fc2" and s + npre < nst:
                issue_stage(s + npre)
            kss = [k for k in range(4 * s, 4 * s + 4) if k < nks]
            t = rdA(kss[0], kss[0] % 2)
            for n, ks in enumerate(kss):
                tn = None
                if n + 1 < len(kss): tn = rdA(kss[n + 1], kss[n + 1] % 2)
                a.wait_lg(t)
                slot = (ks // 4) % RING
                rb = VB + (slot * 4 + ks % 4) * 4
                for i in range(NT):
                    ra = VA + ((ks % 2) * 6 + i) * 4
                    c = "0" if ks == 0 else f"v[{VACC+4*i}:{VACC+4*i+3}]"
                    a(f"v_mfma_f32_16x16x32_bf16 v[{VACC+4*i}:{VACC+4*i+3}], v[{ra}:{ra+3}], v[{rb}:{rb+3}], {c}")
                if kind == "qkv":
                    c = "0" if ks == 0 else f"v[{VST}:{VST+3}]"
                    a(f"v_mfma_f32_16x16x32_bf16 v[{VST}:{VST+3}], v[{VONE}:{VONE+3}], v[{rb}:{rb+3}], {c}")
                    c = "0" if ks == 0 else f"v[{VST+4}:{VST+7}]"
                    a(f"v_mfma_f32_16x16x32_bf16 v[{VST+4}:{VST+7}], v[{rb}:{rb+3}], v[{rb}:{rb+3}], {c}")
                t = tn
        a.wait_vm(tab_tag)
        if kind == "qkv":
            stats_finalize(a, VST, VST + 4, 60, 61, 44, False)
            qs = DH ** -0.5 * LOG2E
            a(f"v_mul_f32 v62, {f2u(qs):#x}, v60\nv_mul_f32 v63, {f2u(qs):#x}, v61")
            srd(a, 20, 4, QB, XBYTES)
            for i in range(5):
                for r in range(4):
                    a(f"v_mul_f32 v{48+r}, v63, v{VTAB+4*i+r}")
                    a(f"v_fma_f32 v{48+r}, v62, v{VACC+4*i+r}, -v{48+r}")
                a(f"v_cvt_pk_bf16_f32 v52, v48, v49\nv_cvt_pk_bf16_f32 v53, v50, v51")
                a.vm(f"buffer_store_dwordx2 v[52:53], v56, s[20:23], 0 offen offset:{i*32}")
                a("s_nop 0")
            if kvtile:
                i = 5
                for r in range(4):
                    a(f"v_fma_f32 v{48+r}, -v61, v{VTAB+4*i+r}, v{VTAB+24+r}")
                    a(f"v_fma_f32 v{48+r}, v60, v{VACC+4*i+r}, v{48+r}")
                a(f"v_cvt_pk_bf16_f32 v52, v48, v49\nv_cvt_pk_bf16_f32 v53, v50, v51")
                a("v_lshrrev_b32 v44, 5, v6\nv_lshlrev_b32 v44, 12, v44")
                a("v_and_b32 v45, 31, v6")
                a(f"s_mov_b32 s47, {KVB}")
                a("v_mul_f32 v46, v48, v48\nv_fmac_f32 v46, v49, v49\nv_fmac_f32 v46, v50, v50\nv_fmac_f32 v46, v51, v51")
                a("s_cmp_eq_u32 s36, 0\ns_cbranch_scc1 %s_kvA" % name)
                a("s_cmp_eq_u32 s36, 1\ns_cbranch_scc1 %s_kvB" % name)
                a("v_lshlrev_b32 v47, 3, v45\nv_add_u32 v47, v47, v44\nv_add_u32 v47, 1024, v47")
                a("v_add_u32 v54, 256, v47\nv_cmp_eq_u32 vcc, 3, v4\nv_cndmask_b32 v47, v47, v54, vcc")
                a("v_cmp_eq_u32 vcc, 0, v4\nv_cmp_eq_u32 s[48:49], 3, v4\ns_or_b64 vcc, vcc, s[48:49]")
                a("s_and_saveexec_b64 s[50:51], vcc")
                a.vm("buffer_store_dwordx2 v[52:53], v47, s[8:11], s47 offen")
                a("s_andn2_b64 exec, s[50:51], exec")
                def vaddr(dst, rho_base_expr_reg):
                    a("v_bfe_u32 v54, v45, 4, 1\nv_lshlrev_b32 v54, 10, v54")
                    a("v_bfe_u32 v55, v45, 2, 1\nv_lshlrev_b32 v55, 9, v55\nv_add_u32 v54, v54, v55")
                    a("v_bfe_u32 v55, v45, 3, 1\nv_lshlrev_b32 v55, 3, v55\nv_add_u32 v54, v54, v55")
                    a("v_and_b32 v55, 3, v45\nv_lshlrev_b32 v55, 1, v55\nv_add_u32 v54, v54, v55")
                    a(f"v_add_u32 v54, v54, v44\nv_add_u32 v54, 2048, v54")
                    a(f"v_lshl_add_u32 v{dst}, v{rho_base_expr_reg}, 4, v54")
                def vstore(addr):
                    a.vm(f"buffer_store_short v52, v{addr}, s[8:11], s47 offen")
                    a.vm(f"buffer_store_short_d16_hi v52, v{addr}, s[8:11], s47 offen offset:16")
                    a.vm(f"buffer_store_short v53, v{addr}, s[8:11], s47 offen offset:32")
                    a.vm(f"buffer_store_short_d16_hi v53, v{addr}, s[8:11], s47 offen offset:48")
                a("v_lshlrev_b32 v47, 2, v4\nv_add_u32 v47, 12, v47")
                vaddr(47, 47)
                vstore(47)
                a("s_mov_b64 exec, s[50:51]")
                a("v_cmp_eq_u32 vcc, 0, v4\nv_cndmask_b32 v46, 0, v46, vcc")
                a(f"s_mov_b32 s52, {KMAX + 512}")
                a("s_branch %s_kmax" % name)
                a.label(f"{name}_kvB")
                a("v_lshlrev_b32 v47, 2, v4")
                vaddr(47, 47)
                vstore(47)
                a("s_branch %s_done" % name)
                a.label(f"{name}_kvA")
                a("v_lshrrev_b32 v47, 1, v4\nv_lshlrev_b32 v47, 5, v47\nv_add_u32 v47, v47, v45\nv_lshlrev_b32 v47, 4, v47")
                a("v_and_b32 v54, 1, v4\nv_lshl_add_u32 v47, v54, 3, v47\nv_add_u32 v47, v47, v44")
                a.vm("buffer_store_dwordx2 v[52:53], v47, s[8:11], s47 offen")
                a("v_xor_b32 v54, 16, v1\nv_lshlrev_b32 v54, 2, v54\nds_bpermute_b32 v55, v54, v46\ns_waitcnt lgkmcnt(0)\nv_add_f32 v46, v46, v55")
                a("v_xor_b32 v54, 32, v1\nv_lshlrev_b32 v54, 2, v54\nds_bpermute_b32 v55, v54, v46\ns_waitcnt lgkmcnt(0)\nv_add_f32 v46, v46, v55")
                a(f"s_mov_b32 s52, {KMAX}")
                a.label(f"{name}_kmax")
                for sh in (8, 4, 2, 1):
                    a(f"v_max_f32_dpp v46, v46, v46 row_ror:{sh} row_mask:0xf bank_mask:0xf")
                a("v_xor_b32 v54, 16, v1\nv_lshlrev_b32 v54, 2, v54\nds_bpermute_b32 v55, v54, v46\ns_waitcnt lgkmcnt(0)\nv_max_f32 v46, v46, v55")
                a("v_xor_b32 v54, 32, v1\nv_lshlrev_b32 v54, 2, v54\nds_bpermute_b32 v55, v54, v46\ns_waitcnt lgkmcnt(0)\nv_max_f32 v46, v46, v55")
                a("s_lshl_b32 s53, s35, 2\ns_add_u32 s53, s53, s34\ns_lshl_b32 s53, s53, 2\ns_add_u32 s52, s52, s53")
                a("v_mov_b32 v54, 0\nv_cmp_eq_u32 vcc, 0, v1\ns_and_saveexec_b64 s[50:51], vcc")
                a.vm("buffer_store_dword v46, v54, s[8:11], s52 offen")
                a("s_mov_b64 exec, s[50:51]")
                a.label(f"{name}_done")
        else:
            for i in range(NT):
                unpack2(a, 48, 49, VTAB + 2 * i); unpack2(a, 50, 51, VTAB + 2 * i + 1)
                if kind == "fc2":
                    unpack2(a, 44, 45, VTAB + 16 + 2 * i); unpack2(a, 46, 47, VTAB + 16 + 2 * i + 1)
                    for r in range(4): a(f"v_add_f32 v{44+r}, v{44+r}, v{VACC+4*i+r}")
                    for r in range(4): a(f"v_add_f32 v{48+r}, v{48+r}, v{44+r}")
                else:
                    for r in range(4): a(f"v_add_f32 v{48+r}, v{48+r}, v{VACC+4*i+r}")
                a(f"v_cvt_pk_bf16_f32 v52, v48, v49\nv_cvt_pk_bf16_f32 v53, v50, v51")
                a.vm(f"buffer_store_dwordx2 v[52:53], v56, s[20:23], 0 offen offset:{i*32}")
                a("s_nop 0")
        a("s_waitcnt vmcnt(0)")
        a("s_endpgm")
    if kind == "qkv":
        a(f"s_cmp_lt_u32 s36, 3\ns_cbranch_scc1 {name}_nt6")
        save = (a.nvm, a.nlg)
        body(5, False)
        a.label(f"{name}_nt6")
        a.nvm, a.nlg = save
        body(6, True)
        lds = 120 * KB
    else:
        body(5, False)
        lds = 120 * KB if kind == "fc2" else 100 * KB
    kernel_end(a, name)
    return a.out, descriptor(name, 256), (name, 256, 256, lds)

def gen_fc1(layer):
    a = Asm(); name = f"fca{layer}_kernel"
    kernel_begin(a, name, 256)
    a("s_load_dwordx2 s[4:5], s[0:1], 96")
    a("s_load_dwordx2 s[28:29], s[0:1], 56")
    lane_setup(a)
    a("s_and_b32 s35, s2, 15\ns_lshr_b32 s36, s2, 4")
    a("s_waitcnt lgkmcnt(0)")
    srd(a, 8, 4, 0, WS_BYTES)
    srd(a, 12, 4, X1 if layer == 1 else X3, XBYTES)
    srd(a, 20, 4, HB, S * F * 2)
    srd(a, 24, 28, 0, F * 2)
    a("s_lshl_b32 s37, s35, 7\ns_lshl_b32 s38, s34, 4\ns_add_u32 s37, s37, s38")
    a("v_add_u32 v6, s37, v3")
    a("v_mul_u32_u24 v7, 1280, v6\nv_lshl_add_u32 v7, v4, 4, v7")
    a("v_add_u32 v57, 0x10000, v5\nv_add_u32 v59, 0x20000, v5")
    a("v_mov_b32 v240, 0x3f803f80\nv_mov_b32 v241, 0x3f803f80\nv_mov_b32 v242, 0x3f803f80\nv_mov_b32 v243, 0x3f803f80")
    VB1, VA1, VACC1, VST1 = 64, 144, 200, 232
    def body(NT):
        if NT == 7:
            a(f"s_mul_i32 s41, s36, {140*KB}\ns_mul_i32 s45, s36, 7")
        else:
            a(f"s_sub_u32 s42, s36, 12\ns_mul_i32 s41, s42, {120*KB}\ns_add_u32 s41, s41, {12*140*KB}\ns_mul_i32 s45, s42, 6\ns_add_u32 s45, s45, 84")
        a(f"s_add_u32 s41, s41, {W1F}\ns_lshl_b32 s42, s34, 10\ns_add_u32 s41, s41, s42")
        Ftot = 20 * NT
        rounds = (Ftot + 7) // 8
        rtag = {}
        btag = {}
        a("s_lshl_b32 s43, s34, 10")
        nb = 0
        for r in range(rounds):
            a(f"s_add_u32 m0, s43, {r*8*KB}\ns_add_u32 s44, s41, {r*8*KB}")
            a.vm("buffer_load_dwordx4 v5, s[8:11], s44 offen lds")
            rtag[r] = a.nvm
            want = min(20, (r + 1) * 20 // rounds + 1)
            while nb < want:
                a.vm(f"buffer_load_dwordx4 v[{VB1+4*nb}:{VB1+4*nb+3}], v7, s[12:15], 0 offen offset:{nb*64}")
                btag[nb] = a.nvm; nb += 1
        assert nb == 20
        a(f"s_lshl_b32 s46, s45, 6\ns_add_u32 s46, s46, {CS1}\nv_lshlrev_b32 v58, 4, v4")
        for i in range(NT):
            a.vm(f"buffer_load_dwordx4 v[{8+4*i}:{8+4*i+3}], v58, s[8:11], s46 offen offset:{i*64}")
        a("s_lshl_b32 s47, s45, 5\nv_lshlrev_b32 v60, 3, v4\nv_add_u32 v60, s47, v60")
        for i in range(NT):
            a.vm(f"buffer_load_dwordx2 v[{36+2*i}:{36+2*i+1}], v60, s[24:27], 0 offen offset:{i*32}")
        tab = a.nvm
        def rdA(ks):
            t = None
            for i in range(NT):
                o = (ks * NT + i) * KB
                r = VA1 + ((ks % 2) * 7 + i) * 4
                base, oo = (5, o) if o < 65536 else ((57, o - 65536) if o < 131072 else (59, o - 131072))
                t = a.lg(f"ds_read_b128 v[{r}:{r+3}], v{base} offset:{oo}")
            return t
        stages = [(0, 4), (4, 8), (8, 12), (12, 16), (16, 20)]
        for (k0, k1) in stages:
            need_round = (k1 * NT + 7) // 8 - 1
            a.wait_vm(max(rtag[need_round], btag[k1 - 1]))
            a("s_barrier")
            t = rdA(k0)
            for ks in range(k0, k1):
                tn = rdA(ks + 1) if ks + 1 < k1 else None
                a.wait_lg(t)
                rb = VB1 + 4 * ks
                for i in range(NT):
                    ra = VA1 + ((ks % 2) * 7 + i) * 4
                    c = "0" if ks == 0 else f"v[{VACC1+4*i}:{VACC1+4*i+3}]"
                    a(f"v_mfma_f32_16x16x32_bf16 v[{VACC1+4*i}:{VACC1+4*i+3}], v[{ra}:{ra+3}], v[{rb}:{rb+3}], {c}")
                c = "0" if ks == 0 else f"v[{VST1}:{VST1+3}]"
                a(f"v_mfma_f32_16x16x32_bf16 v[{VST1}:{VST1+3}], v[{VONE}:{VONE+3}], v[{rb}:{rb+3}], {c}")
                c = "0" if ks == 0 else f"v[{VST1+4}:{VST1+7}]"
                a(f"v_mfma_f32_16x16x32_bf16 v[{VST1+4}:{VST1+7}], v[{rb}:{rb+3}], v[{rb}:{rb+3}], {c}")
                t = tn
        a.wait_vm(tab)
        stats_finalize(a, VST1, VST1 + 4, 61, 62, 52, True)
        a("s_mov_b32 s48, 3456\nv_mul_lo_u32 v63, v6, s48\nv_add_u32 v63, v63, v60")
        c0 = -2.0 * math.sqrt(2.0 / math.pi) * LOG2E
        c1 = c0 * 0.044715
        a(f"s_mov_b32 s49, {f2u(c0):#x}\ns_mov_b32 s50, {f2u(c1):#x}")
        for i in range(NT):
            unpack2(a, 52, 53, 36 + 2 * i); unpack2(a, 54, 55, 36 + 2 * i + 1)
            for r in range(4):
                a(f"v_fma_f32 v{52+r}, -v62, v{8+4*i+r}, v{52+r}")
                a(f"v_fma_f32 v{52+r}, v61, v{VACC1+4*i+r}, v{52+r}")
            for r in range(4):
                a(f"v_mul_f32 v{144+r}, v{52+r}, v{52+r}")
                a(f"v_mov_b32 v{148+r}, s49")
                a(f"v_fmac_f32 v{148+r}, s50, v{144+r}")
                a(f"v_mul_f32 v{148+r}, v{148+r}, v{52+r}")
            for r in range(4): a(f"v_exp_f32 v{148+r}, v{148+r}")
            for r in range(4): a(f"v_add_f32 v{148+r}, 1.0, v{148+r}")
            for r in range(4): a(f"v_rcp_f32 v{148+r}, v{148+r}")
            for r in range(4): a(f"v_mul_f32 v{52+r}, v{52+r}, v{148+r}")
            a(f"v_cvt_pk_bf16_f32 v{152+2*(i%2)}, v52, v53\nv_cvt_pk_bf16_f32 v{153+2*(i%2)}, v54, v55")
            a.vm(f"buffer_store_dwordx2 v[{152+2*(i%2)}:{153+2*(i%2)}], v63, s[20:23], 0 offen offset:{i*32}")
        a("s_waitcnt vmcnt(0)\ns_endpgm")
    a(f"s_cmp_lt_u32 s36, 12\ns_cbranch_scc0 {name}_nt6")
    save = (a.nvm, a.nlg)
    body(7)
    a.label(f"{name}_nt6")
    a.nvm, a.nlg = save
    body(6)
    kernel_end(a, name)
    return a.out, descriptor(name, 256), (name, 256, 512, 144 * KB)

def gen_attn(layer):
    a = Asm(); name = f"attn{layer}_kernel"
    kernel_begin(a, name, 256)
    a("s_load_dwordx2 s[4:5], s[0:1], 96")
    lane_setup(a)
    a("v_and_b32 v3, 31, v1\nv_lshrrev_b32 v4, 5, v1")
    a("s_waitcnt lgkmcnt(0)")
    srd(a, 8, 4, 0, WS_BYTES)
    srd(a, 12, 4, KVB, 64 * 4096)
    srd(a, 16, 4, QB, XBYTES)
    srd(a, 20, 4, OB, XBYTES)
    a("s_lshl_b32 s35, s2, 3\ns_add_u32 s35, s35, s34\ns_mul_i32 s36, s35, 1280")
    Q1, Q2 = 8, 12
    KF = 16
    VF = 32
    P = 48
    SA, SB = 64, 80
    O = 96
    NCH, RING = 8, 4
    a("s_lshl_b32 s37, s34, 12")
    def dma(c):
        a(f"s_add_u32 m0, s37, {(c % RING) * 32768}")
        a(f"s_add_u32 s38, s37, {c * 32768}")
        for i in range(4):
            a(f"buffer_load_dwordx4 v5, s[12:15], s38 offen offset:{i*1024} lds")
    for c in range(3): dma(c)
    a("v_mul_u32_u24 v6, 40, v3\nv_lshl_add_u32 v7, v4, 4, v6")
    a(f"buffer_load_dwordx4 v[{Q1}:{Q1+3}], v7, s[16:19], s36 offen")
    a(f"buffer_load_dwordx2 v[{Q2}:{Q2+1}], v6, s[16:19], s36 offen offset:32")
    a(f"v_lshlrev_b32 v56, 3, v1\ns_mov_b32 s39, {KMAX}")
    a("buffer_load_dwordx2 v[58:59], v56, s[8:11], s39 offen")
    a("buffer_load_dwordx2 v[60:61], v56, s[8:11], s39 offen offset:512")
    a("s_waitcnt vmcnt(0)")
    a("v_max_f32 v58, v58, v59\nv_max_f32 v60, v60, v61")
    for sh in (8, 4, 2, 1):
        a(f"v_max_f32_dpp v58, v58, v58 row_ror:{sh} row_mask:0xf bank_mask:0xf")
        a(f"v_max_f32_dpp v60, v60, v60 row_ror:{sh} row_mask:0xf bank_mask:0xf")
    for x in (16, 32):
        a(f"v_xor_b32 v56, {x}, v1\nv_lshlrev_b32 v56, 2, v56")
        a("ds_bpermute_b32 v59, v56, v58\nds_bpermute_b32 v61, v56, v60\ns_waitcnt lgkmcnt(0)")
        a("v_max_f32 v58, v58, v59\nv_max_f32 v60, v60, v61")
    a("v_mov_b32 v59, 0\nv_mov_b32 v61, 0")
    for r in range(4):
        unpack2(a, 56, 57, Q1 + r)
        a("v_fmac_f32 v59, v56, v56\nv_fmac_f32 v59, v57, v57")
    for r in range(2):
        unpack2(a, 56, 57, Q2 + r)
        a("v_fmac_f32 v61, v56, v56\nv_fmac_f32 v61, v57, v57")
    a("v_xor_b32 v56, 32, v1\nv_lshlrev_b32 v56, 2, v56\nds_bpermute_b32 v57, v56, v59\ns_waitcnt lgkmcnt(0)\nv_add_f32 v59, v59, v57")
    a("v_mul_f32 v59, v59, v58\nv_mul_f32 v61, v61, v60\nv_sqrt_f32 v59, v59\nv_sqrt_f32 v61, v61")
    a("v_add_f32 v59, v59, v61")
    a(f"v_mul_f32 v59, {f2u(1.02):#x}, v59")
    a("v_sub_f32 v59, 0, v59\nv_cvt_pk_bf16_f32 v59, v59, v59\nv_and_b32 v59, 0xffff, v59")
    a(f"v_cmp_eq_u32 vcc, 1, v4\nv_cndmask_b32 v{Q2}, v{Q2}, v59, vcc\nv_cndmask_b32 v{Q2+1}, v{Q2+1}, 0, vcc")
    a("v_lshlrev_b32 v6, 3, v1")
    a("v_add_u32 v56, 0x10000, v5\nv_add_u32 v57, 0x10000, v6")
    def rdK(tile, buf):
        o = tile * 4096
        b16, b8 = (5, 6) if o < 65536 else (56, 57)
        o &= 65535
        a(f"ds_read_b128 v[{KF+8*buf}:{KF+8*buf+3}], v{b16} offset:{o}")
        a(f"ds_read_b64 v[{KF+8*buf+4}:{KF+8*buf+5}], v{b8} offset:{o+1024}")
    def rdV(tile, buf):
        o = tile * 4096
        b16 = 5 if o < 65536 else 56
        o &= 65535
        a(f"ds_read_b128 v[{VF+8*buf}:{VF+8*buf+3}], v{b16} offset:{o+2048}")
        a(f"ds_read_b128 v[{VF+8*buf+4}:{VF+8*buf+7}], v{b16} offset:{o+3072}")
    def qk(buf, Sd):
        a(f"v_mfma_f32_32x32x16_bf16 v[{Sd}:{Sd+15}], v[{KF+8*buf}:{KF+8*buf+3}], v[{Q1}:{Q1+3}], 0")
        a(f"v_mfma_f32_32x32x8_bf16 v[{Sd}:{Sd+15}], v[{KF+8*buf+4}:{KF+8*buf+5}], v[{Q2}:{Q2+1}], v[{Sd}:{Sd+15}]")
    for r in range(16): a(f"v_mov_b32 v{O+r}, 0")
    a("s_barrier")
    rdK(0, 0); rdV(0, 0)
    a("s_waitcnt lgkmcnt(0)")
    qk(0, SA)
    rdK(1, 1)
    for g in range(64):
        Sc, Sn = (SA, SB) if g % 2 == 0 else (SB, SA)
        kb = (g + 1) % 2
        vb = g % 2
        c = g // 8
        if g % 8 == 6 and c + 1 < NCH:
            a("s_waitcnt vmcnt(4)" if c + 2 < NCH else "s_waitcnt vmcnt(0)")
            a("s_barrier")
            if c + 3 < NCH: dma(c + 3)
        if g + 1 < 64:
            a("s_waitcnt lgkmcnt(0)")
            a(f"v_mfma_f32_32x32x16_bf16 v[{Sn}:{Sn+15}], v[{KF+8*kb}:{KF+8*kb+3}], v[{Q1}:{Q1+3}], 0")
        else:
            a("s_waitcnt lgkmcnt(0)")
        for r in range(4): a(f"v_exp_f32 v{Sc+r}, v{Sc+r}")
        if g + 1 < 64:
            a(f"v_mfma_f32_32x32x8_bf16 v[{Sn}:{Sn+15}], v[{KF+8*kb+4}:{KF+8*kb+5}], v[{Q2}:{Q2+1}], v[{Sn}:{Sn+15}]")
        if g + 2 < 64: rdK((g + 2) % 32, g % 2)
        if g + 1 < 64: rdV((g + 1) % 32, (g + 1) % 2)
        for r in range(4, 8): a(f"v_exp_f32 v{Sc+r}, v{Sc+r}")
        for q in range(4): a(f"v_cvt_pk_bf16_f32 v{P+q}, v{Sc+2*q}, v{Sc+2*q+1}")
        for r in range(8, 10): a(f"v_exp_f32 v{Sc+r}, v{Sc+r}")
        a(f"v_mfma_f32_32x32x16_bf16 v[{O}:{O+15}], v[{VF+8*vb}:{VF+8*vb+3}], v[{P}:{P+3}], v[{O}:{O+15}]")
        for r in range(10, 16): a(f"v_exp_f32 v{Sc+r}, v{Sc+r}")
        for q in range(4): a(f"v_cvt_pk_bf16_f32 v{P+4+q}, v{Sc+8+2*q}, v{Sc+8+2*q+1}")
        a("s_nop 1")
        a(f"v_mfma_f32_32x32x16_bf16 v[{O}:{O+15}], v[{VF+8*vb+4}:{VF+8*vb+7}], v[{P+4}:{P+7}], v[{O}:{O+15}]")
    a(f"v_rcp_f32 v56, v{O+10}")
    for r in range(10): a(f"v_mul_f32 v{O+r}, v{O+r}, v56")
    for q in range(5): a(f"v_cvt_pk_bf16_f32 v{P+q}, v{O+2*q}, v{O+2*q+1}")
    a("v_mul_u32_u24 v6, 40, v3\nv_mul_u32_u24 v7, 20, v4\nv_add_u32 v6, v6, v7")
    a(f"buffer_store_dwordx4 v[{P}:{P+3}], v6, s[20:23], s36 offen")
    a(f"buffer_store_dword v{P+4}, v6, s[20:23], s36 offen offset:16")
    a("s_waitcnt vmcnt(0)\ns_endpgm")
    kernel_end(a, name)
    return a.out, descriptor(name, 128), (name, 256, 512, 128 * KB)

def build(path, kernels):
    hdr = []
    for k in kernels:
        name, grid, block, lds = k[2]
        hdr.append(f"; @launch kernel={name} grid=({grid},1,1) block=({block},1,1) lds={lds}")
    body = ['.amdgcn_target "amdgcn-amd-amdhsa--gfx950"', ".text"]
    descs = []
    seen = set()
    nfix = 0
    for k in kernels:
        if k[2][0] in seen: continue
        seen.add(k[2][0])
        lines, n = fix_hazards(k[0])
        nfix += n
        body += lines
        descs.append(k[1])
    txt = "\n".join(hdr) + "\n" + "\n".join(body) + '\n.section .rodata,"a"\n' + "".join(".p2align 6\n" + d for d in descs)
    open(path, "w").write(txt)
    print("written", path, len(txt), "bytes; hazard nops inserted at", nfix, "sites")

if __name__ == "__main__":
    ks = [gen_prep()]
    for layer in (1, 2):
        ks += [gemm64("qkv", layer), gen_attn(layer), gemm64("wo", layer), gen_fc1(layer), gemm64("fc2", layer)]
    build(sys.argv[1] if len(sys.argv) > 1 else "v1.s", ks)
    import json
    json.dump(dict(WQF=WQF, WOF=WOF, W1F=W1F, W2F=W2F, CSQ=CSQ, BKV=BKV, CS1=CS1, QB=QB, KVB=KVB, KMAX=KMAX, OB=OB, X1=X1, X2=X2, X3=X3, HB=HB), open("layout.json", "w"))
```

```python
import sys, math, json, struct
sys.path.insert(0, "gen")
from asmdsl import *

S, D, F, H, DH = 2048, 640, 1728, 32, 20
KB = 1024
PROFILE = "prof" in sys.argv or "profld" in sys.argv
PROFLD = "profld" in sys.argv
off = 0
def alloc(n, align=4096):
    global off
    off = (off + align - 1) // align * align
    o = off; off += n; return o
SL = 770
RING = 112
SLP = 784
FQ, FO, F1, F2 = 0, 120, 220, 500
WST = alloc(8 * SL * KB + 16 * KB)
CSQ = alloc(8 * 96 * 4)
BKV = alloc(3 * 16 * 4)
CS1 = alloc(8 * 224 * 4)
FLAGS = alloc(16384 + 4 * 16384 + 4096, 4096)
KVF = FLAGS
XF = FLAGS + 16384
XID = FLAGS + 16384 + 4 * 16384
FLAG_BYTES = 16384 + 4 * 16384 + 4096
KVB = [alloc(64 * 4096), alloc(64 * 4096)]
KMAX = [alloc(1024), alloc(1024)]
OB = [alloc(S * D * 2), alloc(S * D * 2)]
X1 = [alloc(S * D * 2), alloc(S * D * 2)]
HB = [alloc(S * F * 2), alloc(S * F * 2)]
X2 = alloc(S * D * 2)
XF0 = alloc(S * D * 2)
TSB = alloc(256 * 64 * 4)
WS_BYTES = 268435456
XBYTES = S * D * 2
LOG2E = 1.4426950408889634
def f2u(x): return struct.unpack("<I", struct.pack("<f", x))[0]
KVL = RING * KB
LDS_BYTES = 160 * KB
SPIN_MAX = 200000

def srd(a, s, ptr_pair, off, nbytes):
    if off:
        a(f"s_add_u32 s{s}, s{ptr_pair}, {off}")
        a(f"s_addc_u32 s{s+1}, s{ptr_pair+1}, 0")
    else:
        a(f"s_mov_b32 s{s}, s{ptr_pair}")
        a(f"s_mov_b32 s{s+1}, s{ptr_pair+1}")
    a(f"s_mov_b32 s{s+2}, {nbytes}")
    a(f"s_mov_b32 s{s+3}, 0x20000")
def srd_dyn(a, s, ptr_pair, off_sgpr, nbytes):
    a(f"s_add_u32 s{s}, s{ptr_pair}, s{off_sgpr}")
    a(f"s_addc_u32 s{s+1}, s{ptr_pair+1}, 0")
    a(f"s_mov_b32 s{s+2}, {nbytes}")
    a(f"s_mov_b32 s{s+3}, 0x20000")

def kernel_begin(a, name, nwg):
    a(f".globl {name}")
    a(".p2align 8")
    a(f".type {name},@function")
    a.out.append(f"{name}:")
    a(f"s_cmp_ge_u32 s2, {nwg}")
    a(f"s_cbranch_scc1 {name}_exit")
def kernel_end(a, name):
    a.label(f"{name}_exit")
    a("s_endpgm")
def descriptor(name, vgpr, sgpr=102):
    vg = (vgpr + 7) // 8 * 8
    return f""".amdhsa_kernel {name}
  .amdhsa_next_free_vgpr {vg}
  .amdhsa_next_free_sgpr {sgpr}
  .amdhsa_accum_offset {min(vg,256)}
  .amdhsa_group_segment_fixed_size 0
  .amdhsa_kernarg_size 104
  .amdhsa_user_sgpr_count 2
  .amdhsa_user_sgpr_kernarg_segment_ptr 1
  .amdhsa_system_sgpr_workgroup_id_x 1
  .amdhsa_float_denorm_mode_32 3
  .amdhsa_float_denorm_mode_16_64 3
.end_amdhsa_kernel
"""

def gen_prep():
    a = Asm(); name = "prep_kernel"
    kernel_begin(a, name, 256)
    a("s_load_dwordx2 s[52:53], s[0:1], 0")
    a("s_load_dwordx2 s[4:5], s[0:1], 96")
    a("s_load_dwordx2 s[6:7], s[0:1], 8")
    a("s_load_dwordx4 s[24:27], s[0:1], 16")
    a("s_load_dwordx2 s[28:29], s[0:1], 32")
    a("s_load_dwordx2 s[30:31], s[0:1], 48")
    a("s_load_dwordx2 s[32:33], s[0:1], 64")
    a("v_and_b32 v1, 63, v0")
    a("v_lshrrev_b32 v2, 6, v0")
    a("v_readfirstlane_b32 s34, v2")
    a("v_and_b32 v3, 15, v1")
    a("v_lshrrev_b32 v4, 4, v1")
    a("v_lshlrev_b32 v5, 4, v1")
    a("s_waitcnt lgkmcnt(0)")
    srd(a, 8, 4, 0, WS_BYTES)
    srd(a, 12, 52, 0, XBYTES)
    a("s_lshl_b32 s35, s2, 2\ns_add_u32 s35, s35, s34")
    a("v_mul_u32_u24 v7, 1280, v3\nv_lshl_add_u32 v7, v4, 4, v7")
    for q in range(3):
        a(f"s_add_u32 s36, s35, {q*1024}")
        a("s_mul_i32 s37, s36, 3277\ns_lshr_b32 s37, s37, 16")
        a("s_mul_i32 s38, s37, 20\ns_sub_u32 s38, s36, s38")
        a("s_mul_i32 s39, s37, 20480\ns_lshl_b32 s38, s38, 6\ns_add_u32 s39, s39, s38")
        a(f"buffer_load_dwordx4 v[{16+4*q}:{19+4*q}], v7, s[12:15], s39 offen")
        a(f"s_lshl_b32 s{54+q}, s36, 10\ns_add_u32 s{54+q}, s{54+q}, {XF0}")
    a("s_waitcnt vmcnt(0)")
    for q in range(3):
        if q == 2:
            a("s_cmp_lt_u32 s35, 512\ns_cbranch_scc0 prep_xdone")
        a(f"buffer_store_dwordx4 v[{16+4*q}:{19+4*q}], v5, s[8:11], s{54+q} offen")
    a.label("prep_xdone")
    a("s_cmp_ge_u32 s2, 252\ns_cbranch_scc1 prep_done")
    def gather(voff, srdn, rowbytes, soff_base_sgpr, nfr, ks_stride_bytes):
        for f in range(nfr):
            for jj in range(8):
                a(f"s_add_u32 s40, s{soff_base_sgpr}, {f*ks_stride_bytes + jj*rowbytes}")
                a(f"buffer_load_ushort v{64+8*f+jj}, v{voff}, s[{srdn}:{srdn+3}], s40 offen")
    def pack(nfr):
        a("s_waitcnt vmcnt(0)")
        for f in range(nfr):
            for q in range(4):
                a(f"v_lshl_or_b32 v{32+4*f+q}, v{64+8*f+2*q+1}, 16, v{64+8*f+2*q}")
    def colsum_and_store(dst_soff_sgpr, dst_ks_stride, cs_off_sgpr):
        a("v_mov_b32 v24, 0x3f803f80\nv_mov_b32 v25, 0x3f803f80\nv_mov_b32 v26, 0x3f803f80\nv_mov_b32 v27, 0x3f803f80")
        pack(5)
        for f in range(5):
            a(f"s_add_u32 s40, s{dst_soff_sgpr}, {f*dst_ks_stride}")
            a(f"buffer_store_dwordx4 v[{32+4*f}:{35+4*f}], v5, s[8:11], s40 offen")
            a(f"v_mfma_f32_16x16x32_bf16 v[28:31], v[{32+4*f}:{35+4*f}], v[24:27], " + ("0" if f == 0 else "v[28:31]"))
        a("v_lshlrev_b32 v6, 4, v4")
        a("s_lshl_b32 s41, s34, 6")
        a("v_add_u32 v6, s41, v6")
        a("v_cmp_eq_u32 vcc, 0, v3")
        a("s_and_saveexec_b64 s[42:43], vcc")
        a("ds_write_b128 v6, v[28:31]")
        a("s_mov_b64 exec, s[42:43]")
        a("s_waitcnt lgkmcnt(0)")
        a("s_barrier")
        a("v_lshlrev_b32 v6, 2, v0")
        a("v_cmp_gt_u32 vcc, 16, v0")
        a("s_and_saveexec_b64 s[42:43], vcc")
        a(f"s_cbranch_execz {name}_exit")
        a("ds_read_b32 v7, v6\nds_read_b32 v8, v6 offset:64\nds_read_b32 v9, v6 offset:128\nds_read_b32 v10, v6 offset:192")
        a("s_waitcnt lgkmcnt(0)")
        a("v_add_f32 v7, v7, v8\nv_add_f32 v9, v9, v10\nv_add_f32 v7, v7, v9")
        a(f"buffer_store_dword v7, v6, s[8:11], s{cs_off_sgpr} offen")
        a("s_waitcnt vmcnt(0)")
        a("s_endpgm")
    a("s_cmp_lt_u32 s2, 40\ns_cbranch_scc1 prep_wq")
    a("s_cmp_lt_u32 s2, 43\ns_cbranch_scc1 prep_kv")
    a("s_cmp_lt_u32 s2, 151\ns_cbranch_scc1 prep_w1")
    a("s_branch prep_plain")
    a.label("prep_wq")
    srd(a, 12, 6, 0, D * D * 2)
    a("s_mul_i32 s35, s2, 52429\ns_lshr_b32 s35, s35, 18")
    a("s_mul_i32 s36, s35, 5\ns_sub_u32 s36, s2, s36")
    a("v_mul_u32_u24 v7, 10240, v4")
    a("s_lshl_b32 s37, s2, 5")
    a("v_lshl_add_u32 v7, v3, 1, v7\nv_add_u32 v7, s37, v7")
    a(f"s_mul_i32 s38, s34, {5*32*1280}")
    gather(7, 12, 1280, 38, 5, 32 * 1280)
    a(f"s_mul_i32 s44, s35, {SL*KB}\ns_mul_i32 s45, s34, {30*KB}\ns_add_u32 s44, s44, s45\ns_lshl_b32 s45, s36, 10\ns_add_u32 s44, s44, s45\ns_add_u32 s44, s44, {WST + FQ*KB}")
    a(f"s_mul_i32 s46, s35, 384\ns_lshl_b32 s45, s36, 6\ns_add_u32 s46, s46, s45\ns_add_u32 s46, s46, {CSQ}")
    colsum_and_store(44, 6 * KB, 46)
    a.label("prep_kv")
    srd(a, 12, 24, 0, D * DH * 2)
    srd(a, 16, 26, 0, D * DH * 2)
    a("s_sub_u32 s35, s2, 40")
    for r in range(64, 104): a(f"v_mov_b32 v{r}, 0")
    BIG = 0x40000000
    a("v_and_b32 v8, 3, v3\nv_lshrrev_b32 v9, 2, v3")
    a("s_cmp_eq_u32 s35, 0\ns_cbranch_scc1 prep_kv0")
    a("s_cmp_eq_u32 s35, 1\ns_cbranch_scc1 prep_kv1")
    a(f"v_mov_b32 v10, {BIG}\nv_mov_b32 v11, {BIG}")
    a("v_lshlrev_b32 v12, 1, v3\nv_add_u32 v12, 32, v12")
    a("v_cmp_gt_u32 vcc, 4, v3\nv_cndmask_b32 v10, v10, v12, vcc")
    a("v_lshlrev_b32 v12, 1, v8")
    a("v_add_u32 v13, 16, v12\nv_add_u32 v14, 36, v12")
    a("v_cmp_eq_u32 vcc, 1, v9\nv_cndmask_b32 v11, v11, v13, vcc")
    a("v_cmp_eq_u32 vcc, 2, v9\nv_cndmask_b32 v11, v11, v14, vcc")
    a(f"v_mov_b32 v12, {BIG}\nv_cmp_lt_u32 vcc, 1, v8\nv_cndmask_b32 v11, v11, v12, vcc")
    a("s_branch prep_kvgo")
    a.label("prep_kv0")
    a(f"v_lshlrev_b32 v10, 1, v3\nv_mov_b32 v11, {BIG}")
    a("s_branch prep_kvgo")
    a.label("prep_kv1")
    a(f"v_mov_b32 v10, {BIG}")
    a("v_mov_b32 v11, 0\nv_cmp_eq_u32 vcc, 1, v9\nv_cndmask_b32 v11, v11, 10, vcc")
    a("v_cmp_eq_u32 vcc, 2, v9\nv_cndmask_b32 v11, v11, 4, vcc")
    a("v_cmp_eq_u32 vcc, 3, v9\nv_cndmask_b32 v11, v11, 14, vcc")
    a("v_add_u32 v11, v11, v8\nv_lshlrev_b32 v11, 1, v11")
    a.label("prep_kvgo")
    a("v_mul_u32_u24 v12, 320, v4")
    a("v_add_u32 v10, v10, v12\nv_add_u32 v11, v11, v12")
    a(f"s_mul_i32 s38, s34, {5*32*40}")
    a(f"v_cmp_gt_u32 vcc, {BIG}, v10\ns_and_saveexec_b64 s[48:49], vcc")
    a("s_cbranch_execz prep_kv_skipk")
    gather(10, 12, 40, 38, 5, 32 * 40)
    a.label("prep_kv_skipk")
    a("s_mov_b64 exec, s[48:49]")
    a(f"v_cmp_gt_u32 vcc, {BIG}, v11\ns_and_saveexec_b64 s[48:49], vcc")
    a("s_cbranch_execz prep_kv_skipv")
    gather(11, 16, 40, 38, 5, 32 * 40)
    a.label("prep_kv_skipv")
    a("s_mov_b64 exec, s[48:49]")
    a(f"s_mul_i32 s44, s35, {SL*KB}\ns_mul_i32 s45, s34, {30*KB}\ns_add_u32 s44, s44, s45\ns_add_u32 s44, s44, {WST + (FQ+5)*KB}")
    a(f"s_mul_i32 s46, s35, 384\ns_add_u32 s46, s46, {CSQ + 5*64}")
    colsum_and_store(44, 6 * KB, 46)
    a.label("prep_w1")
    srd(a, 12, 30, 0, D * F * 2)
    a("s_sub_u32 s35, s2, 43")
    a("s_mul_i32 s36, s35, 2428\ns_lshr_b32 s36, s36, 16")
    a("s_mul_i32 s37, s36, 27\ns_sub_u32 s37, s35, s37")
    a("s_lshl_b32 s36, s36, 1")
    a("s_cmp_ge_u32 s37, 14\ns_cbranch_scc0 prep_w1a")
    a("s_add_u32 s36, s36, 1\ns_sub_u32 s37, s37, 14")
    a.label("prep_w1a")
    a("v_mul_u32_u24 v7, 27648, v4")
    a("s_lshl_b32 s39, s35, 5")
    a("v_lshl_add_u32 v7, v3, 1, v7\nv_add_u32 v7, s39, v7")
    a(f"s_mul_i32 s38, s34, {5*32*3456}")
    gather(7, 12, 3456, 38, 5, 32 * 3456)
    a(f"s_mul_i32 s44, s36, {SL*KB}\ns_mul_i32 s45, s34, {5*14*KB}\ns_add_u32 s44, s44, s45\ns_lshl_b32 s45, s37, 10\ns_add_u32 s44, s44, s45\ns_add_u32 s44, s44, {WST + F1*KB}")
    a(f"s_mul_i32 s46, s36, 896\ns_lshl_b32 s45, s37, 6\ns_add_u32 s46, s46, s45\ns_add_u32 s46, s46, {CS1}")
    colsum_and_store(44, 14 * KB, 46)
    a.label("prep_plain")
    a("s_sub_u32 s35, s2, 151\ns_lshl_b32 s35, s35, 2\ns_add_u32 s35, s35, s34")
    a("s_cmp_lt_u32 s35, 120\ns_cbranch_scc1 prep_wo")
    a("s_sub_u32 s35, s35, 120")
    a("s_cmp_ge_u32 s35, 280\ns_cbranch_scc1 prep_bias")
    srd(a, 12, 32, 0, F * D * 2)
    a(f"s_mov_b32 s50, {WST + F2*KB}\ns_mov_b32 s51, 6\ns_mov_b32 s52, 2")
    a("s_branch prep_pl2")
    a.label("prep_wo")
    srd(a, 12, 28, 0, D * D * 2)
    a(f"s_mov_b32 s50, {WST + FO*KB}\ns_mov_b32 s51, 2\ns_mov_b32 s52, 0")
    a.label("prep_pl2")
    a("s_mul_i32 s36, s35, 1639\ns_lshr_b32 s36, s36, 16")
    a("s_mul_i32 s37, s36, 40\ns_sub_u32 s37, s35, s37")
    a("s_mul_i32 s38, s37, 52429\ns_lshr_b32 s38, s38, 18")
    a("s_mul_i32 s39, s38, 5\ns_sub_u32 s39, s37, s39")
    a("v_mul_u32_u24 v7, 10240, v4")
    a("s_lshl_b32 s45, s37, 5")
    a("v_lshl_add_u32 v7, v3, 1, v7\nv_add_u32 v7, s45, v7")
    a(f"s_mul_i32 s44, s38, {SL*KB}\ns_add_u32 s44, s44, s50\ns_mul_i32 s45, s36, {40*KB}\ns_add_u32 s44, s44, s45\ns_lshl_b32 s45, s39, 10\ns_add_u32 s44, s44, s45")
    for half in range(2):
        a(f"s_mul_i32 s38, s36, {8*32*1280}\ns_add_u32 s38, s38, {half*4*32*1280}")
        gather(7, 12, 1280, 38, 4, 32 * 1280)
        pack(4)
        for f in range(4):
            if half == 1:
                a(f"s_cmp_eq_u32 s36, s51\ns_cbranch_scc0 prep_st{f}")
                a(f"s_cmp_gt_u32 s52, {f}\ns_cbranch_scc0 prep_done")
                a.label(f"prep_st{f}")
            a(f"s_add_u32 s40, s44, {(half*4+f)*5*KB}")
            a(f"buffer_store_dwordx4 v[{32+4*f}:{35+4*f}], v5, s[8:11], s40 offen")
        a("s_waitcnt vmcnt(0)")
    a.label("prep_done")
    a("s_waitcnt vmcnt(0)")
    a("s_endpgm")
    a.label("prep_bias")
    a("v_mov_b32 v8, 0\nv_mov_b32 v9, 0\nv_mov_b32 v10, 0\nv_mov_b32 v11, 0")
    a("v_lshlrev_b32 v6, 4, v0")
    nz = FLAG_BYTES // 4096
    for r in range(nz):
        a(f"s_mov_b32 s40, {FLAGS + r*4096}\nbuffer_store_dwordx4 v[8:11], v6, s[8:11], s40 offen")
    a("s_cmp_eq_u32 s35, 280\ns_cbranch_scc0 prep_done2")
    a("v_mov_b32 v7, 0")
    for idx in (32 + 6, 32 + 10, 32 + 12):
        a(f"v_cmp_eq_u32 vcc, {idx}, v1\nv_cndmask_b32 v7, v7, 1.0, vcc")
    a("v_lshlrev_b32 v6, 2, v1\nv_cmp_gt_u32 vcc, 48, v1\ns_and_saveexec_b64 s[42:43], vcc")
    a(f"s_mov_b32 s40, {BKV}\nbuffer_store_dword v7, v6, s[8:11], s40 offen")
    a.label("prep_done2")
    a("s_waitcnt vmcnt(0)")
    a("s_endpgm")
    kernel_end(a, name)
    return a.out, descriptor(name, 112), (name, 256, 256, 1024)

VB, VA, VST, VSO, VONE, RES = 64, 144, 36, 44, 52, 246

class Prof:
    n = 0
LDTS = [False]
def ts(a, label, loader=False):
    if not PROFILE: return
    if PROFLD != loader: return
    i = Prof.n; Prof.n += 1
    assert i < 26, i
    a(f"s_memtime s[98:99]\ns_waitcnt lgkmcnt(0)\ns_mov_b32 s{70+i}, s98")
    TSN.append(label)
TSN = []

def unpack2(a, dlo, dhi, src):
    a(f"v_lshlrev_b32 v{dlo}, 16, v{src}")
    a(f"v_and_b32 v{dhi}, 0xffff0000, v{src}")

uid = [0]
def newlab(p):
    uid[0] += 1
    return f"{p}_{uid[0]}"

def await_flags(a, mask, off_sgpr, vtmp=56):
    L, Dn = newlab("poll"), newlab("polld")
    a(f"v_lshlrev_b32 v{vtmp}, 2, v1")
    a(f"s_mov_b64 s[42:43], exec\ns_mov_b64 exec, {mask:#x}\ns_mov_b32 s44, 0")
    a.label(L)
    a(f"buffer_load_dword v{vtmp+1}, v{vtmp}, s[8:11], s{off_sgpr} offen sc1")
    a("s_add_u32 s44, s44, 1")
    a("s_waitcnt vmcnt(0)")
    a(f"v_cmp_eq_u32 vcc, 0, v{vtmp+1}")
    a(f"s_cmp_eq_u64 vcc, 0\ns_cbranch_scc1 {Dn}")
    a(f"s_cmp_gt_u32 s44, {SPIN_MAX}\ns_cbranch_scc1 {Dn}")
    a(f"s_sleep 1\ns_branch {L}")
    a.label(Dn)
    a("s_mov_b64 exec, s[42:43]")

def set_flag(a, off_sgpr, vtmp=56, second=None):
    L1, L2 = newlab("sf"), newlab("sf")
    a("s_waitcnt vmcnt(0)")
    a(f"v_mov_b32 v{vtmp}, 0\nv_mov_b32 v{vtmp+1}, 1")
    a("s_mov_b64 s[42:43], exec\ns_mov_b64 exec, 1")
    a(f"s_cmp_eq_u32 s59, 1\ns_cbranch_scc1 {L1}")
    a(f"buffer_store_dword v{vtmp+1}, v{vtmp}, s[8:11], s{off_sgpr} offen sc1")
    if second is not None: a(f"buffer_store_dword v{vtmp+1}, v{vtmp}, s[8:11], s{second} offen sc1")
    a(f"s_branch {L2}")
    a.label(L1)
    a(f"buffer_store_dword v{vtmp+1}, v{vtmp}, s[8:11], s{off_sgpr} offen")
    if second is not None: a(f"buffer_store_dword v{vtmp+1}, v{vtmp}, s[8:11], s{second} offen")
    a.label(L2)
    a("s_mov_b64 exec, s[42:43]")

def xstore(a, text):
    L1, L2 = newlab("xs"), newlab("xs")
    a(f"s_cmp_eq_u32 s59, 1\ns_cbranch_scc1 {L1}")
    a(text.replace("@SC", "sc1"))
    a(f"s_branch {L2}")
    a.label(L1)
    a(text.replace("@SC", ""))
    a.label(L2)

def xf_off(a, dst, kind, extra_sgpr=None, extra_imm=0):
    a(f"s_lshl_b32 s{dst}, s37, 13\ns_lshl_b32 s45, s35, 8\ns_add_u32 s{dst}, s{dst}, s45")
    a(f"s_and_b32 s45, s34, 3\ns_lshl_b32 s45, s45, 6\ns_add_u32 s{dst}, s{dst}, s45")
    a(f"s_add_u32 s{dst}, s{dst}, {XF + kind*16384 + extra_imm}")
    if extra_sgpr is not None: a(f"s_add_u32 s{dst}, s{dst}, s{extra_sgpr}")

class Ring:
    def __init__(self):
        self.I = RING
        self.q = [f for f in range(0, RING, 16) for _ in range(4)]
    def drained(self): self.q = []
def loader_issue(a, frm, upto, ring=None):
    assert frm % 16 == 0 and upto % 16 == 0
    skip = None
    for f in range(frm, upto, 16):
        if f == SLP or (f > SLP and f == frm):
            skip = newlab("ldsk")
            a(f"s_cmp_eq_u32 s37, 1\ns_cbranch_scc1 {skip}")
        a(f"s_add_u32 m0, s69, {(f % RING) * KB}")
        a(f"s_add_u32 s44, s60, {(f % SLP) * KB}")
        for q in range(4):
            if "noW" not in sys.argv: a(f"buffer_load_dwordx4 v5, s[8:11], s44 offen offset:{q*1024} lds")
            if ring is not None and f < SLP: ring.q.append(f)
    if skip: a.label(skip)

def touch(a, ring, frag0, n, per_wave_sgpr=69):
    a("v_lshlrev_b32 v58, 7, v1")
    a(f"s_mul_i32 s45, s69, {2*n}\ns_sub_u32 s45, s45, s69\ns_add_u32 s45, s45, s60")
    for i in range(n):
        a(f"s_add_u32 s44, s45, {(frag0 + 8*i) * KB}")
        a(f"buffer_load_dword v59, v58, s[8:11], s44 offen")
        if ring is not None: ring.q.append(None)

def loader_bp(a, ring, need, consumed, cap=None):
    if LDTS[0] and Prof.n < 22: ts(a, "w0", True)
    if need is not None:
        assert need <= ring.I, (need, ring.I)
        last = -1
        for i, f in enumerate(ring.q):
            if f is not None and f < need: last = i
        if last >= 0:
            n = len(ring.q) - 1 - last
            a(f"s_waitcnt vmcnt({min(n,63)})")
            ring.q = ring.q[last + 1:]
    if LDTS[0] and Prof.n < 22: ts(a, "vm", True)
    a("s_barrier")
    if LDTS[0] and Prof.n < 22: ts(a, "bar", True)
    if consumed >= SL: consumed = SLP
    upto = (consumed + RING) // 16 * 16
    if cap is not None: upto = min(upto, (cap + 15) // 16 * 16)
    if upto > ring.I:
        loader_issue(a, ring.I, upto, ring)
        ring.I = upto

def stats_finalize(a, accS, accQ, vRho, vMu, tmp, double_ln):
    t0, t1, t2, t3 = tmp, tmp + 1, tmp + 2, tmp + 3
    a(f"v_and_b32 v{t0}, 3, v1")
    a(f"v_mov_b32 v{t1}, v{accQ}")
    for r in (1, 2, 3):
        a(f"v_cmp_eq_u32 vcc, {r}, v{t0}")
        a(f"v_cndmask_b32 v{t1}, v{t1}, v{accQ+r}, vcc")
    a(f"v_lshrrev_b32 v{t2}, 2, v3\nv_lshlrev_b32 v{t2}, 4, v{t2}\nv_add_u32 v{t2}, v{t2}, v3\nv_lshlrev_b32 v{t2}, 2, v{t2}")
    a(f"ds_bpermute_b32 v{t1}, v{t2}, v{t1}")
    a(f"v_mul_f32 v{t0}, {f2u(1.0/D):#x}, v{accS}")
    a("s_waitcnt lgkmcnt(0)")
    a(f"v_mul_f32 v{t1}, {f2u(1.0/D):#x}, v{t1}")
    a(f"v_fma_f32 v{t1}, -v{t0}, v{t0}, v{t1}")
    a(f"v_max_f32 v{t1}, 0, v{t1}")
    a(f"v_add_f32 v{t2}, {f2u(1e-5):#x}, v{t1}")
    a(f"v_rsq_f32 v{t2}, v{t2}")
    if double_ln:
        a(f"v_mul_f32 v{t3}, v{t2}, v{t2}")
        a(f"v_mul_f32 v{t3}, v{t3}, v{t1}")
        a(f"v_add_f32 v{t3}, {f2u(1e-5):#x}, v{t3}")
        a(f"v_rsq_f32 v{t3}, v{t3}")
        a(f"v_mul_f32 v{t2}, v{t2}, v{t3}")
    a(f"v_mov_b32 v{vRho}, v{t2}")
    a(f"v_mul_f32 v{vMu}, v{t0}, v{t2}")

def set_bases(a, delta):
    a(f"s_and_b32 s45, s34, 1\ns_mul_i32 s44, s45, {delta*KB}\nv_add_u32 v6, s44, v5\nv_add_u32 v7, 0x10000, v6")
    a(f"s_xor_b32 s45, s45, 1\ns_mul_i32 s44, s45, {(RING-delta)*KB}\nv_add_u32 v2, s44, v5")
def rdA(a, f0, delta, reg):
    o = f0 % RING
    if o + delta < RING:
        ob = o * KB
        base = 6 if ob < 65536 else 7
        return a.lg(f"ds_read_b128 v[{reg}:{reg+3}], v{base} offset:{ob % 65536}")
    return a.lg(f"ds_read_b128 v[{reg}:{reg+3}], v2 offset:{(o - (RING - delta)) * KB}")

def make_units(nA, segs, G):
    return [(i, t0, min(nA, t0 + G), si) for si, (i0, i1) in enumerate(segs) for i in range(i0, i1) for t0 in range(0, nA, G)]

def kloop2(a, fbase, span, delta, nA, segs, breg, acc0, acc1, stats, G, before=None, after=None):
    units = make_units(nA, segs, G)
    def read1(u, buf, k):
        i, t0, t1, si = u
        if "noR" in sys.argv and i > 0: return a.nlg
        return rdA(a, fbase + i * span + t0 + k, delta, VA + (buf * G + k) * 4)
    a("s_barrier")
    pend = [read1(units[0], 0, k) for k in range(units[0][2] - units[0][1])]
    for n, u in enumerate(units):
        i, t0, t1, si = u
        nu = units[n + 1] if n + 1 < len(units) else None
        if nu is not None and nu[3] != si: a("s_barrier")
        if t0 == 0 and before: before(i)
        b0, b1 = breg(i)
        def m(d, A, B):
            c = "0" if i == 0 else f"v[{d}:{d+3}]"
            if "noM" in sys.argv and i > 0: return
            a(f"v_mfma_f32_16x16x32_bf16 v[{d}:{d+3}], v[{A}:{A+3}], v[{B}:{B+3}], {c}")
        nn = (nu[2] - nu[1]) if nu is not None else 0
        nxt = []
        for t in range(t0, t1):
            ra = VA + ((n % 2) * G + t - t0) * 4
            a.wait_lg(pend[t - t0])
            m(acc0 + 4 * t, ra, b0)
            if len(nxt) < nn: nxt.append(read1(nu, (n + 1) % 2, len(nxt)))
            m(acc1 + 4 * t, ra, b1)
            if len(nxt) < nn and (t - t0) % 2 == 0 and nn > (t1 - t0): nxt.append(read1(nu, (n + 1) % 2, len(nxt)))
        while len(nxt) < nn: nxt.append(read1(nu, (n + 1) % 2, len(nxt)))
        if stats and t1 == nA:
            m(VST, VONE, b0); m(VST + 4, b0, b0)
            if stats == 2: m(VSO, VONE, b1); m(VSO + 4, b1, b1)
        pend = nxt
        if t1 == nA and after: after(i)

def loader_kloop2(a, ring, fbase, span, nA, segs, G):
    units = make_units(nA, segs, G)
    cap = None if "nocap" in sys.argv else fbase + segs[-1][1] * span
    loader_bp(a, ring, fbase + segs[0][1] * span, fbase, cap)
    for n, u in enumerate(units):
        nu = units[n + 1] if n + 1 < len(units) else None
        if nu is not None and nu[3] != u[3]:
            loader_bp(a, ring, fbase + segs[nu[3]][1] * span, fbase + u[0] * span, cap)

def store_tiles(a, srcs, ntiles, vaddr16, vaddr8, srd_, soff, imm_stride, sc, tmp=56):
    st = []
    i = 0
    while i < ntiles:
        if i + 1 < ntiles:
            t = tmp + 4 * ((i // 2) % 2)
            a(f"v_mov_b32 v{t}, v{srcs[i]}\nv_mov_b32 v{t+1}, v{srcs[i]+1}\nv_mov_b32 v{t+2}, v{srcs[i+1]}\nv_mov_b32 v{t+3}, v{srcs[i+1]+1}")
            a(f"v_permlane16_swap_b32 v{t}, v{t+2}\nv_permlane16_swap_b32 v{t+1}, v{t+3}")
            st.append(f"buffer_store_dwordx4 v[{t}:{t+3}], v{vaddr16}, s[{srd_}:{srd_+3}], {soff} offen offset:{i*imm_stride} {sc}")
            i += 2
        else:
            st.append(f"buffer_store_dwordx2 v[{srcs[i]}:{srcs[i]+1}], v{vaddr8}, s[{srd_}:{srd_+3}], {soff} offen offset:{i*imm_stride} {sc}")
            i += 1
    if sc == "@SC": xstore(a, "\n".join(st))
    else: a("\n".join(st))

def frag_addr(a, v16, v8, Tsgpr, tmp):
    a(f"v_lshrrev_b32 v{v8}, 1, v4\nv_lshlrev_b32 v{v8}, 8, v{v8}\nv_lshl_add_u32 v{v8}, v3, 4, v{v8}")
    a(f"s_lshl_b32 s45, s{Tsgpr}, 9\nv_add_u32 v{v8}, s45, v{v8}")
    a(f"v_and_b32 v{tmp}, 1, v4\nv_lshl_add_u32 v{v16}, v{tmp}, 9, v{v8}\nv_lshl_add_u32 v{v8}, v{tmp}, 3, v{v8}")

def gen_main():
    a = Asm(); name = "main_kernel"
    kernel_begin(a, name, 256)
    a("s_load_dwordx2 s[4:5], s[0:1], 96")
    a("s_load_dwordx2 s[6:7], s[0:1], 0")
    a("s_load_dwordx2 s[24:25], s[0:1], 56")
    a("s_load_dwordx4 s[28:31], s[0:1], 72")
    a("v_and_b32 v1, 63, v0")
    a("v_lshrrev_b32 v2, 6, v0")
    a("v_readfirstlane_b32 s34, v2")
    a("v_and_b32 v3, 15, v1\nv_lshrrev_b32 v4, 4, v1\nv_lshlrev_b32 v5, 4, v1")
    a("s_and_b32 s35, s2, 31\ns_lshr_b32 s36, s2, 5\ns_mov_b32 s37, 0")
    a("s_waitcnt lgkmcnt(0)")
    a("s_mov_b32 s26, s28\ns_mov_b32 s27, s29\ns_mov_b32 s28, s30\ns_mov_b32 s29, s31")
    srd(a, 8, 4, 0, WS_BYTES)
    a("s_lshl_b32 s67, s35, 2\ns_and_b32 s38, s34, 3\ns_add_u32 s67, s67, s38\ns_lshl_b32 s66, s67, 4\ns_xor_b32 s65, s67, 1\ns_mul_i32 s68, s36, 5")
    a(f"s_lshl_b32 s69, s38, 12\ns_mul_i32 s60, s36, {SL*KB}\ns_add_u32 s60, s60, s69\ns_add_u32 s60, s60, {WST}")
    a("s_mov_b32 s59, 0\ns_getreg_b32 s58, hwreg(HW_REG_XCC_ID, 0, 4)\ns_add_u32 s58, s58, 1")
    a("s_cmp_eq_u32 s34, 0\ns_cbranch_scc0 pro_x")
    a(f"s_lshl_b32 s40, s35, 5\ns_lshl_b32 s41, s36, 2\ns_add_u32 s40, s40, s41\ns_add_u32 s40, s40, {XID}\nv_mov_b32 v8, 0\nv_mov_b32 v9, s58")
    a("s_mov_b64 s[42:43], exec\ns_mov_b64 exec, 1\nbuffer_store_dword v9, v8, s[8:11], s40 offen sc1\ns_mov_b64 exec, s[42:43]")
    a.label("pro_x")
    ts(a, "start")
    a("s_cmp_ge_u32 s34, 4\ns_cbranch_scc0 pro_c")
    loader_issue(a, 0, RING)
    a("s_branch pro_d")
    a.label("pro_c")
    a("v_add_u32 v6, s66, v3")
    a("v_mul_u32_u24 v56, 1280, v6\nv_lshl_add_u32 v56, v4, 3, v56\ns_mul_i32 s40, s36, 160\nv_add_u32 v56, s40, v56")
    srd(a, 12, 6, 0, XBYTES)
    for i in range(5):
        a(f"buffer_load_dwordx2 v[{RES+2*i}:{RES+2*i+1}], v56, s[12:15], 0 offen offset:{i*32}")
    a.label("pro_d")
    a.label("layer_top")
    ring = Ring()
    ld = Asm()
    def tile_offs(base_imm, layer_stride, tile_bytes, ksplit):
        a(f"s_mul_i32 s40, s67, {tile_bytes}\ns_mul_i32 s41, s65, {tile_bytes}")
        if layer_stride:
            a(f"s_mul_i32 s45, s37, {layer_stride}\ns_add_u32 s45, s45, {base_imm}")
        else:
            a(f"s_mov_b32 s45, {base_imm}")
        if ksplit:
            a("s_and_b32 s44, s34, 1\ns_lshl_b32 s44, s44, 10\ns_add_u32 s45, s45, s44")
        a("s_add_u32 s40, s40, s45\ns_add_u32 s41, s41, s45")
    class BL:
        def __init__(self, stride, nslots): self.stride, self.n, self.tag, self.cur = stride, nslots, {}, 0
        def regs(self, i): r = VB + 8 * (i % self.n); return (r, r + 4)
        def load(self, i):
            o = i * self.stride
            if o - self.cur > 4095 - 1023 * 0 or o - self.cur >= 4096:
                d = (o - self.cur) // 4096 * 4096
                a(f"s_add_u32 s40, s40, {d}\ns_add_u32 s41, s41, {d}"); self.cur += d
            r0, r1 = self.regs(i)
            if "noB" in sys.argv and i >= 2:
                self.tag[i] = a.nvm; return
            a.vm(f"buffer_load_dwordx4 v[{r0}:{r0+3}], v5, s[8:11], s40 offen offset:{o - self.cur} sc1")
            self.tag[i] = a.vm(f"buffer_load_dwordx4 v[{r1}:{r1+3}], v5, s[8:11], s41 offen offset:{o - self.cur} sc1")
    def flag_line(dst, kind, tile_sgpr=None, pair=False, layer_delta=0):
        a(f"s_lshl_b32 s{dst}, s37, 13")
        if pair: a(f"s_and_b32 s45, s67, -2\ns_lshl_b32 s45, s45, 6")
        else: a(f"s_lshl_b32 s45, s{tile_sgpr}, 6")
        a(f"s_add_u32 s{dst}, s{dst}, s45\ns_add_u32 s{dst}, s{dst}, {XF + kind*16384 + layer_delta}")
    def reduce_pair(acc0, acc1, NT, stats):
        a(f"s_and_b32 s45, s34, 3\ns_lshl_b32 s44, s45, 13\ns_add_u32 s44, s44, {KVL}\nv_add_u32 v56, s44, v5")
        for t in range(NT): a(f"ds_write_b128 v56, v[{acc1+4*t}:{acc1+4*t+3}] offset:{t*1024}")
        if stats:
            a(f"ds_write_b128 v56, v[{VSO}:{VSO+3}] offset:{6*1024}\nds_write_b128 v56, v[{VSO+4}:{VSO+7}] offset:{7*1024}")
        a(f"s_xor_b32 s45, s45, 1\ns_lshl_b32 s44, s45, 13\ns_add_u32 s44, s44, {KVL}\nv_add_u32 v57, s44, v5")
        a("s_waitcnt lgkmcnt(0)\ns_barrier")
        for t in range(NT): a(f"ds_read_b128 v[{VA+4*t}:{VA+4*t+3}], v57 offset:{t*1024}")
        if stats:
            a(f"ds_read_b128 v[{VSO}:{VSO+3}], v57 offset:{6*1024}\nds_read_b128 v[{VSO+4}:{VSO+7}], v57 offset:{7*1024}")
        a("s_waitcnt lgkmcnt(0)")
        for t in range(NT * 4): a(f"v_add_f32 v{acc0+t}, v{acc0+t}, v{VA+t}")
        if stats:
            for t in range(8): a(f"v_add_f32 v{VST+t}, v{VST+t}, v{VSO+t}")
    ones = lambda: a("v_mov_b32 v52, 0x3f803f80\nv_mov_b32 v53, 0x3f803f80\nv_mov_b32 v54, 0x3f803f80\nv_mov_b32 v55, 0x3f803f80")
    A0, A1 = 192, 216
    a("s_cmp_ge_u32 s34, 4\ns_cbranch_scc1 ld_qkv")
    a.nvm = 0; a.nlg = 0
    a(f"s_mul_i32 s45, s36, 384\ns_add_u32 s45, s45, {CSQ}\nv_lshlrev_b32 v58, 4, v4")
    for i in range(6): a(f"buffer_load_dwordx4 v[{8+4*i}:{8+4*i+3}], v58, s[8:11], s45 offen offset:{i*64}")
    a(f"s_min_u32 s46, s36, 2\ns_lshl_b32 s46, s46, 6\ns_add_u32 s46, s46, {BKV}")
    a(f"buffer_load_dwordx4 v[32:35], v58, s[8:11], s46 offen")
    ones(); set_bases(a, 6)
    a("s_cmp_eq_u32 s37, 0\ns_cbranch_scc1 qkv_l0")
    flag_line(46, 3, pair=True, layer_delta=-8192)
    await_flags(a, 0x00FF00FF, 46)
    a.label("qkv_l0")
    ts(a, "qkv_ready")
    tile_offs(XF0, X2 - XF0, 20480, True)
    bl = BL(2048, 10)
    for i in range(10): bl.load(i)
    segs = [(0, 2), (2, 4), (4, 6), (6, 8), (8, 10)]
    kloop2(a, FQ, 12, 6, 6, segs, bl.regs, A0, A1, 2, 6, before=lambda i: a.wait_vm(bl.tag[i]))
    ld.label("ld_qkv")
    loader_kloop2(ld, ring, FQ, 12, 6, segs, 6)
    ts(a, "qkv_kloop")
    reduce_pair(A0, A1, 6, True)
    loader_bp(ld, ring, None, FO)
    stats_finalize(a, VST, VST + 4, 60, 61, 56, False)
    qs = DH ** -0.5 * LOG2E
    a(f"v_mul_f32 v62, {f2u(qs):#x}, v60\nv_mul_f32 v63, {f2u(qs):#x}, v61")
    a("s_and_b32 s38, s34, 3\ns_lshl_b32 s38, s38, 4\nv_add_u32 v44, s38, v3\nv_mul_u32_u24 v44, 192, v44")
    a(f"v_add_u32 v44, {KVL + 32*KB}, v44")
    for i in range(5):
        for r in range(4):
            a(f"v_mul_f32 v{48+r}, v63, v{8+4*i+r}")
            a(f"v_fma_f32 v{48+r}, v62, v{A0+4*i+r}, -v{48+r}")
        a(f"v_cvt_pk_bf16_f32 v52, v48, v49\nv_cvt_pk_bf16_f32 v53, v50, v51")
        a(f"v_add_u32 v45, {4*i}, v4\nv_mul_u32_u24 v46, 52, v45\nv_lshrrev_b32 v46, 8, v46\nv_add_u32 v45, v45, v46\nv_lshl_add_u32 v45, v45, 3, v44")
        a("ds_write_b64 v45, v[52:53]")
    a("s_cmp_lt_u32 s36, 3\ns_cbranch_scc0 qkv_nokv")
    i = 5
    for r in range(4):
        a(f"v_fma_f32 v{48+r}, -v61, v{8+4*i+r}, v{32+r}")
        a(f"v_fma_f32 v{48+r}, v60, v{A0+4*i+r}, v{48+r}")
    a("v_cvt_pk_bf16_f32 v52, v48, v49\nv_cvt_pk_bf16_f32 v53, v50, v51")
    a("s_and_b32 s38, s34, 1")
    a(f"s_and_b32 s41, s34, 3\ns_lshl_b32 s41, s41, 10\ns_add_u32 s41, s41, {KVL + 44*KB}")
    a(f"s_lshr_b32 s47, s67, 1\ns_lshl_b32 s47, s47, 12\ns_mul_i32 s48, s37, {KVB[1]-KVB[0]}\ns_add_u32 s47, s47, s48\ns_add_u32 s47, s47, {KVB[0]}")
    def vwrite(rowoff, hstride):
        a(f"v_bfe_u32 v54, v3, 2, 1\nv_mul_u32_u24 v54, {hstride}, v54")
        a("v_bfe_u32 v55, v3, 3, 1\nv_lshl_add_u32 v54, v55, 3, v54")
        a("v_and_b32 v55, 3, v3\nv_lshl_add_u32 v54, v55, 1, v54")
        a(f"v_add3_u32 v54, v54, v{rowoff}, s41")
        a("ds_write_b16 v54, v52\nds_write_b16_d16_hi v54, v52 offset:16\nds_write_b16 v54, v53 offset:32\nds_write_b16_d16_hi v54, v53 offset:48")
    a("s_cmp_eq_u32 s36, 0\ns_cbranch_scc1 qkv_kvA")
    a("s_cmp_eq_u32 s36, 1\ns_cbranch_scc1 qkv_kvB")
    a("v_lshlrev_b32 v47, 3, v3\nv_add_u32 v47, s41, v47\nv_add_u32 v54, 128, v47\nv_cmp_eq_u32 vcc, 3, v4\nv_cndmask_b32 v47, v47, v54, vcc")
    a("v_cmp_eq_u32 vcc, 0, v4\nv_cmp_eq_u32 s[48:49], 3, v4\ns_or_b64 vcc, vcc, s[48:49]")
    a("s_and_saveexec_b64 s[50:51], vcc")
    a("ds_write_b64 v47, v[52:53]")
    a("s_andn2_b64 exec, s[50:51], exec")
    a("v_lshlrev_b32 v47, 6, v4\nv_add_u32 v47, 192, v47")
    vwrite(47, 128)
    a("s_mov_b64 exec, s[50:51]")
    a("v_and_b32 v47, 7, v1\nv_lshlrev_b32 v47, 4, v47\nv_bfe_u32 v54, v1, 3, 2")
    a("s_lshl_b32 s49, s38, 7\ns_add_u32 s49, s49, 1024\ns_lshl_b32 s50, s38, 10\ns_add_u32 s50, s50, 2304")
    a("v_mov_b32 v55, s49\ns_add_u32 s51, s49, 256\nv_mov_b32 v50, s51\nv_cmp_eq_u32 vcc, 1, v54\nv_cndmask_b32 v55, v55, v50, vcc")
    a("v_mov_b32 v50, s50\nv_cmp_eq_u32 vcc, 2, v54\nv_cndmask_b32 v55, v55, v50, vcc")
    a("s_add_u32 s51, s50, 512\nv_mov_b32 v50, s51\nv_cmp_eq_u32 vcc, 3, v54\nv_cndmask_b32 v55, v55, v50, vcc")
    a("v_add_u32 v47, v47, v55")
    a("s_branch qkv_kvout")
    a.label("qkv_kvB")
    a("v_lshlrev_b32 v47, 6, v4")
    vwrite(47, 256)
    a("v_lshlrev_b32 v47, 4, v3\nv_and_b32 v54, 1, v4\nv_lshl_add_u32 v47, v54, 9, v47\ns_lshl_b32 s49, s38, 10\ns_add_u32 s49, s49, 2048\nv_add_u32 v47, s49, v47")
    a("s_branch qkv_kvout")
    a.label("qkv_kvA")
    a("v_lshrrev_b32 v47, 1, v4\nv_lshlrev_b32 v47, 8, v47\nv_lshl_add_u32 v47, v3, 4, v47\nv_and_b32 v54, 1, v4\nv_lshl_add_u32 v47, v54, 3, v47\nv_add_u32 v47, s41, v47")
    a("ds_write_b64 v47, v[52:53]")
    a("s_lshl_b32 s49, s38, 8\nv_lshlrev_b32 v47, 4, v3\nv_and_b32 v54, 1, v4\nv_lshl_add_u32 v47, v54, 9, v47\nv_add_u32 v47, s49, v47")
    a.label("qkv_kvout")
    a("v_add_u32 v54, s41, v5")
    a("s_waitcnt lgkmcnt(0)")
    a("s_mov_b64 s[50:51], exec\ns_mov_b64 exec, 0xffffffff")
    a("ds_read_b128 v[48:51], v54\ns_waitcnt lgkmcnt(0)")
    a("buffer_store_dwordx4 v[48:51], v47, s[8:11], s47 offen sc1")
    a("s_mov_b64 exec, s[50:51]")
    a.label("qkv_nokv")
    a("s_waitcnt vmcnt(0) lgkmcnt(0)")
    a("s_barrier")
    ld("s_barrier")
    ld("s_branch att_top")
    a("s_cmp_eq_u32 s34, 0\ns_cbranch_scc0 att_top")
    a("s_cmp_lt_u32 s36, 3\ns_cbranch_scc0 att_top")
    a(f"s_lshl_b32 s46, s37, 13\ns_lshr_b32 s45, s35, 3\ns_lshl_b32 s45, s45, 11\ns_add_u32 s46, s46, s45\ns_add_u32 s46, s46, {KVF}\nv_lshlrev_b32 v56, 8, v1\nv_mov_b32 v57, 1")
    a("s_mov_b64 s[42:43], exec\ns_mov_b64 exec, 0xff")
    a("buffer_atomic_add v57, v56, s[8:11], s46 offen")
    a("s_mov_b64 exec, s[42:43]")
    a.label("att_top")
    ts(a, "qkv_done")
    QB_, KV0, P, SA, SB, O = 8, 32, 64, 72, 88, 104
    def Q1(i): return QB_ + 6 * i
    def Q2(i): return QB_ + 6 * i + 4
    def K1(b): return KV0 + 16 * b
    def K2(b): return KV0 + 16 * b + 4
    def V1(b): return KV0 + 16 * b + 8
    a("v_and_b32 v6, 31, v1\nv_lshrrev_b32 v7, 5, v1\nv_lshlrev_b32 v170, 3, v1")
    a("s_and_b32 s38, s34, 3\ns_lshr_b32 s39, s34, 2")
    a("v_lshrrev_b32 v171, 2, v6\nv_mul_u32_u24 v171, 192, v171\nv_and_b32 v172, 3, v6\nv_mul_u32_u24 v172, 48, v172\nv_add_u32 v171, v171, v172")
    for i in range(4):
        a(f"s_add_u32 s40, s38, {i}\ns_and_b32 s40, s40, 3\ns_lshl_b32 s41, s39, 2\ns_add_u32 s40, s40, s41\ns_mul_i32 s40, s40, {8*192}\ns_add_u32 s40, s40, {KVL + 32*KB}")
        a(f"v_add_u32 v173, s40, v171\nv_lshl_add_u32 v174, v7, 4, v173")
        a(f"ds_read_b128 v[{Q1(i)}:{Q1(i)+3}], v174\nds_read_b64 v[{Q2(i)}:{Q2(i)+1}], v173 offset:32")
    for r in range(64): a(f"v_mov_b32 v{O+r}, 0")
    a("s_cmp_lt_u32 s34, 4\ns_cbranch_scc0 att_kvw")
    Lp, Ld = newlab("kvp"), newlab("kvpd")
    a(f"s_lshl_b32 s46, s37, 13\ns_lshl_b32 s45, s34, 11\ns_add_u32 s46, s46, s45\ns_and_b32 s45, s2, 7\ns_lshl_b32 s45, s45, 8\ns_add_u32 s46, s46, s45\ns_add_u32 s46, s46, {KVF}\nv_mov_b32 v175, 0\ns_mov_b32 s44, 0")
    a("s_mov_b64 s[42:43], exec\ns_mov_b64 exec, 1")
    a.label(Lp)
    a("buffer_load_dword v176, v175, s[8:11], s46 offen sc1")
    a("s_add_u32 s44, s44, 1\ns_waitcnt vmcnt(0)")
    a("v_readfirstlane_b32 s45, v176")
    a(f"s_cmp_ge_u32 s45, 24\ns_cbranch_scc1 {Ld}")
    a(f"s_cmp_gt_u32 s44, {SPIN_MAX}\ns_cbranch_scc1 {Ld}")
    a(f"s_sleep 2\ns_branch {Lp}")
    a.label(Ld)
    a("s_mov_b64 exec, s[42:43]")
    a.label("att_kvw")
    a("s_waitcnt lgkmcnt(0)")
    a("v_cmp_eq_u32 vcc, 1, v7")
    for i in range(4):
        a(f"v_cndmask_b32 v{Q2(i)}, v{Q2(i)}, 0, vcc\nv_cndmask_b32 v{Q2(i)+1}, v{Q2(i)+1}, 0, vcc")
    a("s_barrier")
    ts(a, "kv_ready")
    a(f"s_mul_i32 s47, s37, {KVB[1]-KVB[0]}\ns_add_u32 s47, s47, {KVB[0]}\ns_lshl_b32 s48, s38, 16\ns_add_u32 s47, s47, s48")
    def ldK(b):
        a(f"buffer_load_dwordx4 v[{K1(b)}:{K1(b)+3}], v5, s[8:11], s47 offen sc1")
        a(f"buffer_load_dwordx2 v[{K2(b)}:{K2(b)+1}], v170, s[8:11], s47 offen offset:1024 sc1")
    def ldV(b, h):
        a(f"buffer_load_dwordx4 v[{V1(b)+4*h}:{V1(b)+4*h+3}], v5, s[8:11], s47 offen offset:{2048+1024*h} sc1")
    def qk1(Sd, b, i): a(f"v_mfma_f32_32x32x16_bf16 v[{Sd}:{Sd+15}], v[{K1(b)}:{K1(b)+3}], v[{Q1(i)}:{Q1(i)+3}], 0")
    def qk2(Sd, b, i): a(f"v_mfma_f32_32x32x8_bf16 v[{Sd}:{Sd+15}], v[{K2(b)}:{K2(b)+1}], v[{Q2(i)}:{Q2(i)+1}], v[{Sd}:{Sd+15}]")
    def pv(i, b, h): a(f"v_mfma_f32_32x32x16_bf16 v[{O+16*i}:{O+16*i+15}], v[{V1(b)+4*h}:{V1(b)+4*h+3}], v[{P+4*h}:{P+4*h+3}], v[{O+16*i}:{O+16*i+15}]")
    ldK(0); ldV(0, 0); ldV(0, 1)
    a("s_add_u32 s47, s47, 4096")
    ldK(1)
    for r in range(4, 8): a(f"v_mov_b32 v{P+r}, 0\nv_mov_b32 v{V1(1)+r}, 0\nv_mov_b32 v{SB+8+r}, 0")
    a("s_waitcnt vmcnt(4)")
    qk1(SA, 0, 0); qk2(SA, 0, 0)
    a("s_mov_b32 s49, 0")
    a("s_cmp_eq_u32 s37, 0\ns_cbranch_scc0 att_nochk")
    a(f"s_lshl_b32 s46, s35, 5\ns_add_u32 s46, s46, {XID}")
    await_flags(a, 0xFF, 46, vtmp=175)
    a("s_mov_b64 s[42:43], exec\ns_mov_b64 exec, 0xff\nv_cmp_ne_u32 vcc, s58, v176\ns_cmp_eq_u64 vcc, 0\ns_cselect_b32 s59, 1, 0\ns_mov_b64 exec, s[42:43]")
    if "noxcd" in sys.argv: a("s_mov_b32 s59, 0")
    a.label("att_nochk")
    a("s_nop 7")
    ts(a, "att_start")
    a.label("att_loop")
    ex = lambda Sc, r: a(f"v_exp_f32 v{Sc+r}, v{Sc+r}")
    cv = lambda Sc, q: a(f"v_cvt_pk_bf16_f32 v{P+q}, v{Sc+2*q}, v{Sc+2*q+1}")
    for kk in range(2):
        b = kk
        for q in range(4):
            u = kk * 4 + q
            Sc, Sn = (SA, SB) if u % 2 == 0 else (SB, SA)
            pq, pb = (q - 1) % 4, (b if q > 0 else 1 - b)
            nq, nb = (q + 1) % 4, (b if q < 3 else 1 - b)
            ex(Sc, 0); ex(Sc, 1); cv(Sn, 6); cv(Sn, 7); ex(Sc, 2); ex(Sc, 3)
            if q == 3: a("s_waitcnt vmcnt(2)")
            qk1(Sn, nb, nq)
            ex(Sc, 4); ex(Sc, 5); cv(Sc, 0); cv(Sc, 1); ex(Sc, 6); ex(Sc, 7)
            qk2(Sn, nb, nq)
            if q == 3:
                a("s_add_u32 s47, s47, 4096")
                ldK(b)
            ex(Sc, 8); ex(Sc, 9); cv(Sc, 2); cv(Sc, 3); ex(Sc, 10); ex(Sc, 11)
            pv(pq, pb, 1)
            if q == 0: ldV(1 - b, 0)
            if q == 1: ldV(1 - b, 1)
            ex(Sc, 12); ex(Sc, 13); cv(Sc, 4); cv(Sc, 5); ex(Sc, 14); ex(Sc, 15)
            if q == 0: a("s_waitcnt vmcnt(3)")
            pv(q, b, 0)
    a("s_add_u32 s49, s49, 1\ns_cmp_lt_u32 s49, 8\ns_cbranch_scc1 att_loop")
    cv(SB, 6); cv(SB, 7)
    pv(3, 1, 1)
    ts(a, "att_loop_end")
    a(f"s_mul_i32 s40, s34, 3072\ns_add_u32 s40, s40, {KVL}\nv_add_u32 v171, s40, v5")
    def wr(r, buf):
        for z in range(3):
            a(f"ds_write_b128 v171, v[{O+16*r+4*z}:{O+16*r+4*z+3}] offset:{buf*24576 + z*1024}")
    def rd(r, buf):
        a(f"s_sub_u32 s41, s38, {r}\ns_and_b32 s41, s41, 3\ns_lshl_b32 s45, s39, 2\ns_add_u32 s41, s41, s45\ns_mul_i32 s41, s41, 3072\ns_add_u32 s41, s41, {KVL}\nv_add_u32 v172, s41, v5")
        for z in range(3):
            a(f"ds_read_b128 v[{72+4*z}:{72+4*z+3}], v172 offset:{buf*24576 + z*1024}")
        a("s_waitcnt lgkmcnt(0)")
        for z in range(11): a(f"v_add_f32 v{O+z}, v{O+z}, v{72+z}")
    a("s_waitcnt vmcnt(0)")
    wr(1, 0); a("s_waitcnt lgkmcnt(0)\ns_barrier")
    wr(2, 1); rd(1, 0); a("s_barrier")
    wr(3, 0); rd(2, 1); a("s_barrier")
    rd(3, 0)
    ts(a, "att_red")
    a(f"v_rcp_f32 v173, v{O+10}")
    for r in range(10): a(f"v_mul_f32 v{O+r}, v{O+r}, v173")
    for q in range(5): a(f"v_cvt_pk_bf16_f32 v{P+q}, v{O+2*q}, v{O+2*q+1}")
    a(f"s_mul_i32 s40, s34, 1280\ns_add_u32 s40, s40, {KVL + 24576}")
    a("v_lshrrev_b32 v171, 2, v6\nv_mul_u32_u24 v171, 160, v171\nv_and_b32 v172, 3, v6\nv_mul_u32_u24 v172, 40, v172\nv_mul_u32_u24 v173, 20, v7\nv_add3_u32 v171, v171, v172, v173")
    a("v_add_u32 v171, s40, v171")
    for q in range(5): a(f"ds_write_b32 v171, v{P+q} offset:{4*q}")
    a("v_and_b32 v172, 7, v1\nv_lshrrev_b32 v173, 3, v1")
    a("v_mul_u32_u24 v174, 160, v172\nv_lshl_add_u32 v174, v173, 4, v174\nv_add_u32 v174, s40, v174")
    a("s_waitcnt lgkmcnt(0)")
    a("ds_read_b128 v[72:75], v174\nds_read_b128 v[76:79], v174 offset:128")
    a("s_and_b32 s41, s34, 1\ns_lshl_b32 s41, s41, 7\nv_lshlrev_b32 v172, 4, v172\nv_lshl_add_u32 v172, v173, 8, v172\nv_add_u32 v172, s41, v172")
    a(f"s_lshl_b32 s41, s35, 2\ns_lshr_b32 s45, s34, 1\ns_add_u32 s48, s41, s45\ns_mul_i32 s41, s48, 20480\ns_mul_i32 s45, s36, 2560\ns_add_u32 s41, s41, s45\ns_mul_i32 s45, s37, {OB[1]-OB[0]}\ns_add_u32 s41, s41, s45\ns_add_u32 s41, s41, {OB[0]}")
    a("s_waitcnt lgkmcnt(0)")
    xstore(a, "buffer_store_dwordx4 v[72:75], v172, s[8:11], s41 offen @SC\ns_mov_b64 s[42:43], exec\ns_mov_b64 exec, 0xffff\nbuffer_store_dwordx4 v[76:79], v172, s[8:11], s41 offen offset:2048 @SC\ns_mov_b64 exec, s[42:43]")
    flag_line(46, 0, tile_sgpr=48)
    a("s_lshl_b32 s45, s36, 3\ns_add_u32 s46, s46, s45\ns_and_b32 s45, s34, 1\ns_lshl_b32 s45, s45, 2\ns_add_u32 s46, s46, s45")
    set_flag(a, 46, vtmp=175)
    ts(a, "att_done")
    a("s_cmp_ge_u32 s34, 4\ns_cbranch_scc1 ld_wo")
    a.nvm = 0; a.nlg = 0
    set_bases(a, 5)
    flag_line(46, 0, pair=True)
    await_flags(a, 0xFFFFFFFF, 46)
    ts(a, "wo_ready")
    tile_offs(OB[0], OB[1] - OB[0], 20480, True)
    bl = BL(2048, 10)
    for i in range(10): bl.load(i)
    segs = [(0, 5), (5, 10)]
    kloop2(a, FO, 10, 5, 5, segs, bl.regs, A0, A1, 0, 5, before=lambda i: a.wait_vm(bl.tag[i]))
    ld.label("ld_wo")
    ring.drained()
    loader_kloop2(ld, ring, FO, 10, 5, segs, 5)
    ts(a, "wo_kloop")
    reduce_pair(A0, A1, 5, False)
    loader_bp(ld, ring, None, F1)
    frag_addr(a, 60, 61, 68, 62)
    tile_offs(X1[0], X1[1] - X1[0], 20480, False)
    for i in range(5):
        unpack2(a, 48, 49, RES + 2 * i); unpack2(a, 50, 51, RES + 2 * i + 1)
        for r in range(4): a(f"v_add_f32 v{48+r}, v{48+r}, v{A0+4*i+r}")
        a(f"v_cvt_pk_bf16_f32 v{RES+2*i}, v48, v49\nv_cvt_pk_bf16_f32 v{RES+2*i+1}, v50, v51")
    store_tiles(a, [RES + 2 * i for i in range(5)], 5, 60, 61, 8, "s40", 512, "@SC", tmp=48)
    flag_line(46, 1, tile_sgpr=67)
    a("s_lshl_b32 s45, s36, 2\ns_add_u32 s46, s46, s45")
    set_flag(a, 46)
    ts(a, "wo_done")
    a.nvm = 0; a.nlg = 0
    a("s_lshr_b32 s52, s36, 1\ns_mul_i32 s52, s52, 27\ns_and_b32 s53, s36, 1\ns_mul_i32 s53, s53, 14\ns_add_u32 s52, s52, s53")
    a("s_and_b32 s53, s34, 1\ns_mul_i32 s53, s53, 7\ns_add_u32 s52, s52, s53")
    srd(a, 20, 24, 0, F * 2)
    a("s_lshl_b32 s47, s52, 5\nv_lshlrev_b32 v60, 3, v4\nv_add_u32 v60, s47, v60")
    B1R = 232
    for i in range(7): a(f"buffer_load_dwordx2 v[{B1R+2*i}:{B1R+2*i+1}], v60, s[20:23], 0 offen offset:{i*32}")
    a(f"s_mul_i32 s45, s36, 896\ns_lshl_b32 s44, s53, 6\ns_add_u32 s45, s45, s44\ns_add_u32 s45, s45, {CS1}\nv_lshlrev_b32 v58, 4, v4")
    for i in range(7): a(f"buffer_load_dwordx4 v[{8+4*i}:{8+4*i+3}], v58, s[8:11], s45 offen offset:{i*64}")
    ones(); set_bases(a, 7)
    flag_line(46, 1, pair=True)
    await_flags(a, 0x00FF00FF, 46)
    ts(a, "fc1_ready")
    tile_offs(X1[0], X1[1] - X1[0], 20480, False)
    bl = BL(1024, 10)
    for i in range(10): bl.load(i)
    segs = [(2 * s_, 2 * s_ + 2) for s_ in range(10)]
    C0, C1 = 176, 204
    kloop2(a, F1, 14, 7, 7, segs, bl.regs, C0, C1, 1, 4, before=lambda i: a.wait_vm(bl.tag[i]),
           after=lambda i: bl.load(i + 10) if i + 10 < 20 else None)
    ld.label("ld_fc1")
    loader_kloop2(ld, ring, F1, 14, 7, segs, 4)
    ts(a, "fc1_kloop")
    stats_finalize(a, VST, VST + 4, 60, 61, 56, True)
    a(f"s_and_b32 s45, s34, 3\ns_lshl_b32 s44, s45, 9\ns_add_u32 s44, s44, {KVL}\nv_lshlrev_b32 v56, 3, v1\nv_add_u32 v57, s44, v56")
    a("ds_write_b64 v57, v[60:61]")
    a(f"s_xor_b32 s45, s45, 1\ns_lshl_b32 s44, s45, 9\ns_add_u32 s44, s44, {KVL}\nv_add_u32 v57, s44, v56")
    a("s_waitcnt lgkmcnt(0)\ns_barrier")
    loader_bp(ld, ring, None, F2)
    a("ds_read_b64 v[62:63], v57")
    frag_addr(a, 58, 59, 52, 56)
    tile_offs(HB[0], HB[1] - HB[0], 55296, False)
    c0 = -2.0 * math.sqrt(2.0 / math.pi) * LOG2E
    c1 = c0 * 0.044715
    a(f"v_mov_b32 v40, {f2u(c0):#x}\nv_mov_b32 v41, v40\nv_mov_b32 v42, {f2u(c1):#x}\nv_mov_b32 v43, v42\nv_mov_b32 v46, 1.0\nv_mov_b32 v47, 1.0")
    a("s_waitcnt lgkmcnt(0)")
    def gelu_tile(i, acc, dst):
        unpack2(a, 52, 53, B1R + 2 * i); unpack2(a, 54, 55, B1R + 2 * i + 1)
        for h in range(2): a(f"v_pk_fma_f32 v[{52+2*h}:{53+2*h}], v[38:39], v[{8+4*i+2*h}:{8+4*i+2*h+1}], v[{52+2*h}:{53+2*h}]")
        for h in range(2): a(f"v_pk_fma_f32 v[{52+2*h}:{53+2*h}], v[36:37], v[{acc+4*i+2*h}:{acc+4*i+2*h+1}], v[{52+2*h}:{53+2*h}]")
        for h in range(2): a(f"v_pk_mul_f32 v[{144+2*h}:{145+2*h}], v[{52+2*h}:{53+2*h}], v[{52+2*h}:{53+2*h}]")
        for h in range(2): a(f"v_pk_fma_f32 v[{144+2*h}:{145+2*h}], v[{144+2*h}:{145+2*h}], v[42:43], v[40:41]")
        for h in range(2): a(f"v_pk_mul_f32 v[{144+2*h}:{145+2*h}], v[{144+2*h}:{145+2*h}], v[{52+2*h}:{53+2*h}]")
        for r in range(4): a(f"v_exp_f32 v{144+r}, v{144+r}")
        for h in range(2): a(f"v_pk_add_f32 v[{144+2*h}:{145+2*h}], v[{144+2*h}:{145+2*h}], v[46:47]")
        for r in range(4): a(f"v_rcp_f32 v{144+r}, v{144+r}")
        for h in range(2): a(f"v_pk_mul_f32 v[{52+2*h}:{53+2*h}], v[{52+2*h}:{53+2*h}], v[{144+2*h}:{145+2*h}]")
        a(f"v_cvt_pk_bf16_f32 v{dst}, v52, v53\nv_cvt_pk_bf16_f32 v{dst+1}, v54, v55")
    for tilesel in range(2):
        acc, rho, mu, so = (C0, 60, 61, "s40") if tilesel == 0 else (C1, 62, 63, "s41")
        a(f"v_mov_b32 v36, v{rho}\nv_mov_b32 v37, v{rho}\nv_sub_f32 v38, 0, v{mu}\nv_mov_b32 v39, v38")
        for p in range(3):
            t = 152 + 4 * (p % 2)
            gelu_tile(2 * p, acc, t); gelu_tile(2 * p + 1, acc, t + 2)
            a(f"v_permlane16_swap_b32 v{t}, v{t+2}\nv_permlane16_swap_b32 v{t+1}, v{t+3}")
            xstore(a, f"buffer_store_dwordx4 v[{t}:{t+3}], v58, s[8:11], {so} offen offset:{p*1024} @SC")
        sk = newlab("fc1sk")
        a(f"s_and_b32 s45, s36, s34\ns_bitcmp1_b32 s45, 0\ns_cbranch_scc1 {sk}")
        gelu_tile(6, acc, 160)
        xstore(a, f"buffer_store_dwordx2 v[160:161], v59, s[8:11], {so} offen offset:3072 @SC")
        a.label(sk)
    flag_line(46, 2, tile_sgpr=67)
    flag_line(47, 2, tile_sgpr=65)
    a("s_lshl_b32 s45, s36, 3\ns_and_b32 s44, s34, 1\ns_lshl_b32 s44, s44, 2\ns_add_u32 s45, s45, s44\ns_add_u32 s46, s46, s45\ns_add_u32 s47, s47, s45")
    set_flag(a, 46, second=47)
    ts(a, "fc1_done")
    a.nvm = 0; a.nlg = 0
    srd(a, 20, 26, 0, D * 2)
    a("v_lshlrev_b32 v58, 3, v4\ns_mul_i32 s40, s36, 160\nv_add_u32 v58, s40, v58")
    for i in range(5): a(f"buffer_load_dwordx2 v[{8+2*i}:{9+2*i}], v58, s[20:23], 0 offen offset:{i*32}")
    set_bases(a, 5)
    flag_line(46, 2, pair=True)
    await_flags(a, 0xFFFFFFFF, 46)
    ts(a, "fc2_ready")
    tile_offs(HB[0], HB[1] - HB[0], 55296, True)
    bl = BL(2048, 10)
    for i in range(10): bl.load(i)
    segs = [(2 * s_, min(27, 2 * s_ + 2)) for s_ in range(14)]
    kloop2(a, F2, 10, 5, 5, segs, bl.regs, A0, A1, 0, 5, before=lambda i: a.wait_vm(bl.tag[i]),
           after=lambda i: bl.load(i + 10) if i + 10 < 27 else None)
    ld.label("ld_fc2")
    LDTS[0] = True
    loader_kloop2(ld, ring, F2, 10, 5, segs, 5)
    ts(a, "fc2_kloop")
    reduce_pair(A0, A1, 5, False)
    loader_bp(ld, ring, None, SL)
    assert ring.I == SLP + RING
    for i in range(5):
        unpack2(a, 48, 49, RES + 2 * i); unpack2(a, 50, 51, RES + 2 * i + 1)
        unpack2(a, 52, 53, 8 + 2 * i); unpack2(a, 54, 55, 8 + 2 * i + 1)
        for r in range(4): a(f"v_add_f32 v{52+r}, v{52+r}, v{A0+4*i+r}")
        for r in range(4): a(f"v_add_f32 v{48+r}, v{48+r}, v{52+r}")
        a(f"v_cvt_pk_bf16_f32 v{RES+2*i}, v48, v49\nv_cvt_pk_bf16_f32 v{RES+2*i+1}, v50, v51")
    a("s_cmp_eq_u32 s37, 0\ns_cbranch_scc0 fc2_last")
    frag_addr(a, 60, 61, 68, 62)
    tile_offs(X2, 0, 20480, False)
    store_tiles(a, [RES + 2 * i for i in range(5)], 5, 60, 61, 8, "s40", 512, "@SC", tmp=48)
    flag_line(46, 3, tile_sgpr=67)
    a("s_lshl_b32 s45, s36, 2\ns_add_u32 s46, s46, s45")
    set_flag(a, 46)
    a("s_branch fc2_fin")
    a.label("fc2_last")
    srd(a, 16, 28, 0, XBYTES)
    a("v_add_u32 v62, s66, v3\nv_mul_u32_u24 v60, 1280, v62\ns_mul_i32 s40, s36, 160\nv_add_u32 v60, s40, v60")
    a("v_lshl_add_u32 v61, v4, 3, v60")
    a("v_and_b32 v62, 1, v4\nv_lshl_add_u32 v60, v62, 5, v60\nv_lshrrev_b32 v62, 1, v4\nv_lshl_add_u32 v60, v62, 4, v60")
    store_tiles(a, [RES + 2 * i for i in range(5)], 5, 60, 61, 16, "0", 32, "", tmp=48)
    a.label("fc2_fin")
    ts(a, "fc2_done")
    a("s_branch layer_end")
    ld("s_branch layer_end")
    a.out += ld.out
    a.label("layer_end")
    if PROFILE:
        a(f"s_cmp_eq_u32 s34, {4 if PROFLD else 0}\ns_cbranch_scc0 prof_skip")
        a(f"s_lshl_b32 s40, s2, 8\ns_lshl_b32 s41, s37, 7\ns_add_u32 s40, s40, s41\ns_add_u32 s40, s40, {TSB}\nv_mov_b32 v8, 0\ns_mov_b64 s[42:43], exec\ns_mov_b64 exec, 1")
        for i in range(Prof.n):
            a(f"v_mov_b32 v9, s{70+i}\nbuffer_store_dword v9, v8, s[8:11], s40 offen offset:{4*i}\ns_nop 0")
        a("s_mov_b64 exec, s[42:43]")
        a.label("prof_skip")
    a(f"s_add_u32 s37, s37, 1\ns_cmp_lt_u32 s37, 2\ns_cbranch_scc1 layer_top")
    a("s_waitcnt vmcnt(0)")
    a("s_endpgm")
    kernel_end(a, name)
    return a.out, descriptor(name, 256), (name, 256, 512, LDS_BYTES)

def build(path, kernels):
    hdr = []
    for k in kernels:
        name, grid, block, lds = k[2]
        hdr.append(f"; @launch kernel={name} grid=({grid},1,1) block=({block},1,1) lds={lds}")
    body = ['.amdgcn_target "amdgcn-amd-amdhsa--gfx950"', ".text"]
    descs = []
    nfix = 0
    for k in kernels:
        lines, n = fix_hazards(k[0])
        nfix += n
        body += lines
        descs.append(k[1])
    txt = "\n".join(hdr) + "\n" + "\n".join(body) + '\n.section .rodata,"a"\n' + "".join(".p2align 6\n" + d for d in descs)
    open(path, "w").write(txt)
    print("written", path, len(txt), "bytes; hazard nops at", nfix, "sites")

if __name__ == "__main__":
    out = [x for x in sys.argv[1:] if x.endswith(".s")]
    build(out[0] if out else "v7.s", [gen_prep(), gen_main()])
    json.dump(dict(WST=WST, CSQ=CSQ, BKV=BKV, CS1=CS1, KVB=KVB, KMAX=KMAX, OB=OB, X1=X1, X2=X2, HB=HB, TSB=TSB, XF=XF, KVF=KVF, TSN=TSN, ver=3, XF0=XF0), open("layout.json", "w"))
```

```python
import sys, math, json, struct
sys.path.insert(0, "gen")
from asmdsl import *

S, D, F, H, DH = 2048, 640, 1728, 32, 20
KB = 1024
PROFILE = "prof" in sys.argv or "profld" in sys.argv
PROFLD = "profld" in sys.argv
off = 0
def alloc(n, align=4096):
    global off
    off = (off + align - 1) // align * align
    o = off; off += n; return o
SL = 770
RING = 112
SLP = 784
FQ, FO, F1, F2 = 0, 120, 220, 500
WST = alloc(8 * SL * KB + 16 * KB)
CSQ = alloc(8 * 96 * 4)
BKV = alloc(3 * 16 * 4)
CS1 = alloc(8 * 224 * 4)
FLAGS = alloc(16384 + 4 * 16384 + 4096, 4096)
KVF = FLAGS
XF = FLAGS + 16384
XID = FLAGS + 16384 + 4 * 16384
FLAG_BYTES = 16384 + 4 * 16384 + 4096
KVB = [alloc(64 * 4096), alloc(64 * 4096)]
KMAX = [alloc(1024), alloc(1024)]
OB = [alloc(S * D * 2), alloc(S * D * 2)]
X1 = [alloc(S * D * 2), alloc(S * D * 2)]
HB = [alloc(S * F * 2), alloc(S * F * 2)]
X2 = alloc(S * D * 2)
XF0 = alloc(S * D * 2)
TSB = alloc(256 * 64 * 4)
WS_BYTES = 268435456
XBYTES = S * D * 2
LOG2E = 1.4426950408889634
def f2u(x): return struct.unpack("<I", struct.pack("<f", x))[0]
KVL = RING * KB
LDS_BYTES = 160 * KB
SPIN_MAX = 200000

def srd(a, s, ptr_pair, off, nbytes):
    if off:
        a(f"s_add_u32 s{s}, s{ptr_pair}, {off}")
        a(f"s_addc_u32 s{s+1}, s{ptr_pair+1}, 0")
    else:
        a(f"s_mov_b32 s{s}, s{ptr_pair}")
        a(f"s_mov_b32 s{s+1}, s{ptr_pair+1}")
    a(f"s_mov_b32 s{s+2}, {nbytes}")
    a(f"s_mov_b32 s{s+3}, 0x20000")
def srd_dyn(a, s, ptr_pair, off_sgpr, nbytes):
    a(f"s_add_u32 s{s}, s{ptr_pair}, s{off_sgpr}")
    a(f"s_addc_u32 s{s+1}, s{ptr_pair+1}, 0")
    a(f"s_mov_b32 s{s+2}, {nbytes}")
    a(f"s_mov_b32 s{s+3}, 0x20000")

def kernel_begin(a, name, nwg):
    a(f".globl {name}")
    a(".p2align 8")
    a(f".type {name},@function")
    a.out.append(f"{name}:")
    a(f"s_cmp_ge_u32 s2, {nwg}")
    a(f"s_cbranch_scc1 {name}_exit")
def kernel_end(a, name):
    a.label(f"{name}_exit")
    a("s_endpgm")
def descriptor(name, vgpr, sgpr=102):
    vg = (vgpr + 7) // 8 * 8
    return f""".amdhsa_kernel {name}
  .amdhsa_next_free_vgpr {vg}
  .amdhsa_next_free_sgpr {sgpr}
  .amdhsa_accum_offset {min(vg,256)}
  .amdhsa_group_segment_fixed_size 0
  .amdhsa_kernarg_size 104
  .amdhsa_user_sgpr_count 2
  .amdhsa_user_sgpr_kernarg_segment_ptr 1
  .amdhsa_system_sgpr_workgroup_id_x 1
  .amdhsa_float_denorm_mode_32 3
  .amdhsa_float_denorm_mode_16_64 3
.end_amdhsa_kernel
"""

def gen_prep():
    a = Asm(); name = "prep_kernel"
    kernel_begin(a, name, 256)
    a("s_load_dwordx2 s[52:53], s[0:1], 0")
    a("s_load_dwordx2 s[4:5], s[0:1], 96")
    a("s_load_dwordx2 s[6:7], s[0:1], 8")
    a("s_load_dwordx4 s[24:27], s[0:1], 16")
    a("s_load_dwordx2 s[28:29], s[0:1], 32")
    a("s_load_dwordx2 s[30:31], s[0:1], 48")
    a("s_load_dwordx2 s[32:33], s[0:1], 64")
    a("v_and_b32 v1, 63, v0")
    a("v_lshrrev_b32 v2, 6, v0")
    a("v_readfirstlane_b32 s34, v2")
    a("v_and_b32 v3, 15, v1")
    a("v_lshrrev_b32 v4, 4, v1")
    a("v_lshlrev_b32 v5, 4, v1")
    a("s_waitcnt lgkmcnt(0)")
    srd(a, 8, 4, 0, WS_BYTES)
    if "cpf2" in sys.argv:
        a("s_cmp_eq_u32 s34, 3\ns_cbranch_scc0 prep_cpf")
        a("s_getpc_b64 s[40:41]")
        a.label("prep_pc")
        a("s_add_u32 s40, s40, main_kernel-prep_pc\ns_addc_u32 s41, s41, 0")
        a("v_lshlrev_b32 v8, 6, v1")
        for i in range(8):
            a(f"global_load_dword v{110}, v8, s[40:41]")
            a("v_add_u32 v8, 4096, v8")
        a.label("prep_cpf")
    srd(a, 12, 52, 0, XBYTES)
    a("s_lshl_b32 s35, s2, 2\ns_add_u32 s35, s35, s34")
    a("v_mul_u32_u24 v7, 1280, v3\nv_lshl_add_u32 v7, v4, 4, v7")
    for q in range(3):
        a(f"s_add_u32 s36, s35, {q*1024}")
        a("s_mul_i32 s37, s36, 3277\ns_lshr_b32 s37, s37, 16")
        a("s_mul_i32 s38, s37, 20\ns_sub_u32 s38, s36, s38")
        a("s_mul_i32 s39, s37, 20480\ns_lshl_b32 s38, s38, 6\ns_add_u32 s39, s39, s38")
        a(f"buffer_load_dwordx4 v[{16+4*q}:{19+4*q}], v7, s[12:15], s39 offen")
        a(f"s_lshl_b32 s{54+q}, s36, 10\ns_add_u32 s{54+q}, s{54+q}, {XF0}")
    a("s_waitcnt vmcnt(0)")
    for q in range(3):
        if q == 2:
            a("s_cmp_lt_u32 s35, 512\ns_cbranch_scc0 prep_xdone")
        a(f"buffer_store_dwordx4 v[{16+4*q}:{19+4*q}], v5, s[8:11], s{54+q} offen")
    a.label("prep_xdone")
    a("s_cmp_ge_u32 s2, 252\ns_cbranch_scc1 prep_done")
    def gather(voff, srdn, rowbytes, soff_base_sgpr, nfr, ks_stride_bytes):
        for f in range(nfr):
            for jj in range(8):
                a(f"s_add_u32 s40, s{soff_base_sgpr}, {f*ks_stride_bytes + jj*rowbytes}")
                a(f"buffer_load_ushort v{64+8*f+jj}, v{voff}, s[{srdn}:{srdn+3}], s40 offen")
    def pack(nfr):
        a("s_waitcnt vmcnt(0)")
        for f in range(nfr):
            for q in range(4):
                a(f"v_lshl_or_b32 v{32+4*f+q}, v{64+8*f+2*q+1}, 16, v{64+8*f+2*q}")
    def colsum_and_store(dst_soff_sgpr, dst_ks_stride, cs_off_sgpr):
        a("v_mov_b32 v24, 0x3f803f80\nv_mov_b32 v25, 0x3f803f80\nv_mov_b32 v26, 0x3f803f80\nv_mov_b32 v27, 0x3f803f80")
        pack(5)
        for f in range(5):
            a(f"s_add_u32 s40, s{dst_soff_sgpr}, {f*dst_ks_stride}")
            a(f"buffer_store_dwordx4 v[{32+4*f}:{35+4*f}], v5, s[8:11], s40 offen")
            a(f"v_mfma_f32_16x16x32_bf16 v[28:31], v[{32+4*f}:{35+4*f}], v[24:27], " + ("0" if f == 0 else "v[28:31]"))
        a("v_lshlrev_b32 v6, 4, v4")
        a("s_lshl_b32 s41, s34, 6")
        a("v_add_u32 v6, s41, v6")
        a("v_cmp_eq_u32 vcc, 0, v3")
        a("s_and_saveexec_b64 s[42:43], vcc")
        a("ds_write_b128 v6, v[28:31]")
        a("s_mov_b64 exec, s[42:43]")
        a("s_waitcnt lgkmcnt(0)")
        a("s_barrier")
        a("v_lshlrev_b32 v6, 2, v0")
        a("v_cmp_gt_u32 vcc, 16, v0")
        a("s_and_saveexec_b64 s[42:43], vcc")
        a(f"s_cbranch_execz {name}_exit")
        a("ds_read_b32 v7, v6\nds_read_b32 v8, v6 offset:64\nds_read_b32 v9, v6 offset:128\nds_read_b32 v10, v6 offset:192")
        a("s_waitcnt lgkmcnt(0)")
        a("v_add_f32 v7, v7, v8\nv_add_f32 v9, v9, v10\nv_add_f32 v7, v7, v9")
        a(f"buffer_store_dword v7, v6, s[8:11], s{cs_off_sgpr} offen")
        a("s_waitcnt vmcnt(0)")
        a("s_endpgm")
    a("s_cmp_lt_u32 s2, 40\ns_cbranch_scc1 prep_wq")
    a("s_cmp_lt_u32 s2, 43\ns_cbranch_scc1 prep_kv")
    a("s_cmp_lt_u32 s2, 151\ns_cbranch_scc1 prep_w1")
    a("s_branch prep_plain")
    a.label("prep_wq")
    srd(a, 12, 6, 0, D * D * 2)
    a("s_mul_i32 s35, s2, 52429\ns_lshr_b32 s35, s35, 18")
    a("s_mul_i32 s36, s35, 5\ns_sub_u32 s36, s2, s36")
    a("v_mul_u32_u24 v7, 10240, v4")
    a("s_lshl_b32 s37, s2, 5")
    a("v_lshl_add_u32 v7, v3, 1, v7\nv_add_u32 v7, s37, v7")
    a(f"s_mul_i32 s38, s34, {5*32*1280}")
    gather(7, 12, 1280, 38, 5, 32 * 1280)
    a(f"s_mul_i32 s44, s35, {SL*KB}\ns_mul_i32 s45, s34, {30*KB}\ns_add_u32 s44, s44, s45\ns_lshl_b32 s45, s36, 10\ns_add_u32 s44, s44, s45\ns_add_u32 s44, s44, {WST + FQ*KB}")
    a(f"s_mul_i32 s46, s35, 384\ns_lshl_b32 s45, s36, 6\ns_add_u32 s46, s46, s45\ns_add_u32 s46, s46, {CSQ}")
    colsum_and_store(44, 6 * KB, 46)
    a.label("prep_kv")
    srd(a, 12, 24, 0, D * DH * 2)
    srd(a, 16, 26, 0, D * DH * 2)
    a("s_sub_u32 s35, s2, 40")
    for r in range(64, 104): a(f"v_mov_b32 v{r}, 0")
    BIG = 0x40000000
    a("v_and_b32 v8, 3, v3\nv_lshrrev_b32 v9, 2, v3")
    a("s_cmp_eq_u32 s35, 0\ns_cbranch_scc1 prep_kv0")
    a("s_cmp_eq_u32 s35, 1\ns_cbranch_scc1 prep_kv1")
    a(f"v_mov_b32 v10, {BIG}\nv_mov_b32 v11, {BIG}")
    a("v_lshlrev_b32 v12, 1, v3\nv_add_u32 v12, 32, v12")
    a("v_cmp_gt_u32 vcc, 4, v3\nv_cndmask_b32 v10, v10, v12, vcc")
    a("v_lshlrev_b32 v12, 1, v8")
    a("v_add_u32 v13, 16, v12\nv_add_u32 v14, 36, v12")
    a("v_cmp_eq_u32 vcc, 1, v9\nv_cndmask_b32 v11, v11, v13, vcc")
    a("v_cmp_eq_u32 vcc, 2, v9\nv_cndmask_b32 v11, v11, v14, vcc")
    a(f"v_mov_b32 v12, {BIG}\nv_cmp_lt_u32 vcc, 1, v8\nv_cndmask_b32 v11, v11, v12, vcc")
    a("s_branch prep_kvgo")
    a.label("prep_kv0")
    a(f"v_lshlrev_b32 v10, 1, v3\nv_mov_b32 v11, {BIG}")
    a("s_branch prep_kvgo")
    a.label("prep_kv1")
    a(f"v_mov_b32 v10, {BIG}")
    a("v_mov_b32 v11, 0\nv_cmp_eq_u32 vcc, 1, v9\nv_cndmask_b32 v11, v11, 10, vcc")
    a("v_cmp_eq_u32 vcc, 2, v9\nv_cndmask_b32 v11, v11, 4, vcc")
    a("v_cmp_eq_u32 vcc, 3, v9\nv_cndmask_b32 v11, v11, 14, vcc")
    a("v_add_u32 v11, v11, v8\nv_lshlrev_b32 v11, 1, v11")
    a.label("prep_kvgo")
    a("v_mul_u32_u24 v12, 320, v4")
    a("v_add_u32 v10, v10, v12\nv_add_u32 v11, v11, v12")
    a(f"s_mul_i32 s38, s34, {5*32*40}")
    a(f"v_cmp_gt_u32 vcc, {BIG}, v10\ns_and_saveexec_b64 s[48:49], vcc")
    a("s_cbranch_execz prep_kv_skipk")
    gather(10, 12, 40, 38, 5, 32 * 40)
    a.label("prep_kv_skipk")
    a("s_mov_b64 exec, s[48:49]")
    a(f"v_cmp_gt_u32 vcc, {BIG}, v11\ns_and_saveexec_b64 s[48:49], vcc")
    a("s_cbranch_execz prep_kv_skipv")
    gather(11, 16, 40, 38, 5, 32 * 40)
    a.label("prep_kv_skipv")
    a("s_mov_b64 exec, s[48:49]")
    a(f"s_mul_i32 s44, s35, {SL*KB}\ns_mul_i32 s45, s34, {30*KB}\ns_add_u32 s44, s44, s45\ns_add_u32 s44, s44, {WST + (FQ+5)*KB}")
    a(f"s_mul_i32 s46, s35, 384\ns_add_u32 s46, s46, {CSQ + 5*64}")
    colsum_and_store(44, 6 * KB, 46)
    a.label("prep_w1")
    srd(a, 12, 30, 0, D * F * 2)
    a("s_sub_u32 s35, s2, 43")
    a("s_mul_i32 s36, s35, 2428\ns_lshr_b32 s36, s36, 16")
    a("s_mul_i32 s37, s36, 27\ns_sub_u32 s37, s35, s37")
    a("s_lshl_b32 s36, s36, 1")
    a("s_cmp_ge_u32 s37, 14\ns_cbranch_scc0 prep_w1a")
    a("s_add_u32 s36, s36, 1\ns_sub_u32 s37, s37, 14")
    a.label("prep_w1a")
    a("v_mul_u32_u24 v7, 27648, v4")
    a("s_lshl_b32 s39, s35, 5")
    a("v_lshl_add_u32 v7, v3, 1, v7\nv_add_u32 v7, s39, v7")
    a(f"s_mul_i32 s38, s34, {5*32*3456}")
    gather(7, 12, 3456, 38, 5, 32 * 3456)
    a(f"s_mul_i32 s44, s36, {SL*KB}\ns_mul_i32 s45, s34, {5*14*KB}\ns_add_u32 s44, s44, s45\ns_lshl_b32 s45, s37, 10\ns_add_u32 s44, s44, s45\ns_add_u32 s44, s44, {WST + F1*KB}")
    a(f"s_mul_i32 s46, s36, 896\ns_lshl_b32 s45, s37, 6\ns_add_u32 s46, s46, s45\ns_add_u32 s46, s46, {CS1}")
    colsum_and_store(44, 14 * KB, 46)
    a.label("prep_plain")
    a("s_sub_u32 s35, s2, 151\ns_lshl_b32 s35, s35, 2\ns_add_u32 s35, s35, s34")
    a("s_cmp_lt_u32 s35, 120\ns_cbranch_scc1 prep_wo")
    a("s_sub_u32 s35, s35, 120")
    a("s_cmp_ge_u32 s35, 280\ns_cbranch_scc1 prep_bias")
    srd(a, 12, 32, 0, F * D * 2)
    a(f"s_mov_b32 s50, {WST + F2*KB}\ns_mov_b32 s51, 6\ns_mov_b32 s52, 2")
    a("s_branch prep_pl2")
    a.label("prep_wo")
    srd(a, 12, 28, 0, D * D * 2)
    a(f"s_mov_b32 s50, {WST + FO*KB}\ns_mov_b32 s51, 2\ns_mov_b32 s52, 0")
    a.label("prep_pl2")
    a("s_mul_i32 s36, s35, 1639\ns_lshr_b32 s36, s36, 16")
    a("s_mul_i32 s37, s36, 40\ns_sub_u32 s37, s35, s37")
    a("s_mul_i32 s38, s37, 52429\ns_lshr_b32 s38, s38, 18")
    a("s_mul_i32 s39, s38, 5\ns_sub_u32 s39, s37, s39")
    a("v_mul_u32_u24 v7, 10240, v4")
    a("s_lshl_b32 s45, s37, 5")
    a("v_lshl_add_u32 v7, v3, 1, v7\nv_add_u32 v7, s45, v7")
    a(f"s_mul_i32 s44, s38, {SL*KB}\ns_add_u32 s44, s44, s50\ns_mul_i32 s45, s36, {40*KB}\ns_add_u32 s44, s44, s45\ns_lshl_b32 s45, s39, 10\ns_add_u32 s44, s44, s45")
    for half in range(2):
        a(f"s_mul_i32 s38, s36, {8*32*1280}\ns_add_u32 s38, s38, {half*4*32*1280}")
        gather(7, 12, 1280, 38, 4, 32 * 1280)
        pack(4)
        for f in range(4):
            if half == 1:
                a(f"s_cmp_eq_u32 s36, s51\ns_cbranch_scc0 prep_st{f}")
                a(f"s_cmp_gt_u32 s52, {f}\ns_cbranch_scc0 prep_done")
                a.label(f"prep_st{f}")
            a(f"s_add_u32 s40, s44, {(half*4+f)*5*KB}")
            a(f"buffer_store_dwordx4 v[{32+4*f}:{35+4*f}], v5, s[8:11], s40 offen")
        a("s_waitcnt vmcnt(0)")
    a.label("prep_done")
    a("s_waitcnt vmcnt(0)")
    a("s_endpgm")
    a.label("prep_bias")
    a("v_mov_b32 v8, 0\nv_mov_b32 v9, 0\nv_mov_b32 v10, 0\nv_mov_b32 v11, 0")
    a("v_lshlrev_b32 v6, 4, v0")
    nz = FLAG_BYTES // 4096
    for r in range(nz):
        a(f"s_mov_b32 s40, {FLAGS + r*4096}\nbuffer_store_dwordx4 v[8:11], v6, s[8:11], s40 offen")
    a("s_cmp_eq_u32 s35, 280\ns_cbranch_scc0 prep_done2")
    a("v_mov_b32 v7, 0")
    for idx in (32 + 6, 32 + 10, 32 + 12):
        a(f"v_cmp_eq_u32 vcc, {idx}, v1\nv_cndmask_b32 v7, v7, 1.0, vcc")
    a("v_lshlrev_b32 v6, 2, v1\nv_cmp_gt_u32 vcc, 48, v1\ns_and_saveexec_b64 s[42:43], vcc")
    a(f"s_mov_b32 s40, {BKV}\nbuffer_store_dword v7, v6, s[8:11], s40 offen")
    a.label("prep_done2")
    a("s_waitcnt vmcnt(0)")
    a("s_endpgm")
    kernel_end(a, name)
    return a.out, descriptor(name, 112), (name, 256, 256, 1024)

VB, VA, VST, VSO, VONE, RES = 64, 144, 36, 44, 52, 246

class Prof:
    n = 0
LDTS = [False]
def ts(a, label, loader=False):
    if not PROFILE: return
    if PROFLD != loader: return
    i = Prof.n; Prof.n += 1
    assert i < 26, i
    a(f"s_memtime s[98:99]\ns_waitcnt lgkmcnt(0)\ns_mov_b32 s{70+i}, s98")
    TSN.append(label)
TSN = []

def unpack2(a, dlo, dhi, src):
    a(f"v_lshlrev_b32 v{dlo}, 16, v{src}")
    a(f"v_and_b32 v{dhi}, 0xffff0000, v{src}")

uid = [0]
def newlab(p):
    uid[0] += 1
    return f"{p}_{uid[0]}"

def await_flags(a, mask, off_sgpr, vtmp=56):
    L, Dn = newlab("poll"), newlab("polld")
    a(f"v_lshlrev_b32 v{vtmp}, 2, v1")
    a(f"s_mov_b64 s[42:43], exec\ns_mov_b64 exec, {mask:#x}\ns_mov_b32 s44, 0")
    a.label(L)
    a(f"buffer_load_dword v{vtmp+1}, v{vtmp}, s[8:11], s{off_sgpr} offen sc1")
    a("s_add_u32 s44, s44, 1")
    a("s_waitcnt vmcnt(0)")
    a(f"v_cmp_eq_u32 vcc, 0, v{vtmp+1}")
    a(f"s_cmp_eq_u64 vcc, 0\ns_cbranch_scc1 {Dn}")
    a(f"s_cmp_gt_u32 s44, {SPIN_MAX}\ns_cbranch_scc1 {Dn}")
    a(f"s_sleep 1\ns_branch {L}")
    a.label(Dn)
    a("s_mov_b64 exec, s[42:43]")

def set_flag(a, off_sgpr, vtmp=56, second=None):
    L1, L2 = newlab("sf"), newlab("sf")
    a("s_waitcnt vmcnt(0)")
    a(f"v_mov_b32 v{vtmp}, 0\nv_mov_b32 v{vtmp+1}, 1")
    a("s_mov_b64 s[42:43], exec\ns_mov_b64 exec, 1")
    a(f"s_cmp_eq_u32 s59, 1\ns_cbranch_scc1 {L1}")
    a(f"buffer_store_dword v{vtmp+1}, v{vtmp}, s[8:11], s{off_sgpr} offen sc1")
    if second is not None: a(f"buffer_store_dword v{vtmp+1}, v{vtmp}, s[8:11], s{second} offen sc1")
    a(f"s_branch {L2}")
    a.label(L1)
    a(f"buffer_store_dword v{vtmp+1}, v{vtmp}, s[8:11], s{off_sgpr} offen")
    if second is not None: a(f"buffer_store_dword v{vtmp+1}, v{vtmp}, s[8:11], s{second} offen")
    a.label(L2)
    a("s_mov_b64 exec, s[42:43]")

def xstore(a, text):
    L1, L2 = newlab("xs"), newlab("xs")
    a(f"s_cmp_eq_u32 s59, 1\ns_cbranch_scc1 {L1}")
    a(text.replace("@SC", "sc1"))
    a(f"s_branch {L2}")
    a.label(L1)
    a(text.replace("@SC", ""))
    a.label(L2)

def xf_off(a, dst, kind, extra_sgpr=None, extra_imm=0):
    a(f"s_lshl_b32 s{dst}, s37, 13\ns_lshl_b32 s45, s35, 8\ns_add_u32 s{dst}, s{dst}, s45")
    a(f"s_and_b32 s45, s34, 3\ns_lshl_b32 s45, s45, 6\ns_add_u32 s{dst}, s{dst}, s45")
    a(f"s_add_u32 s{dst}, s{dst}, {XF + kind*16384 + extra_imm}")
    if extra_sgpr is not None: a(f"s_add_u32 s{dst}, s{dst}, s{extra_sgpr}")

class Ring:
    def __init__(self):
        self.I = RING
        self.q = [f for f in range(0, RING, 16) for _ in range(4)]
    def drained(self): self.q = []
def loader_issue(a, frm, upto, ring=None):
    assert frm % 16 == 0 and upto % 16 == 0
    skip = None
    for f in range(frm, upto, 16):
        if f == SLP or (f > SLP and f == frm):
            skip = newlab("ldsk")
            a(f"s_cmp_eq_u32 s37, 1\ns_cbranch_scc1 {skip}")
        a(f"s_add_u32 m0, s69, {(f % RING) * KB}")
        a(f"s_add_u32 s44, s60, {(f % SLP) * KB}")
        for q in range(4):
            if "noW" not in sys.argv: a(f"buffer_load_dwordx4 v5, s[8:11], s44 offen offset:{q*1024} lds")
            if ring is not None and f < SLP: ring.q.append(f)
    if skip: a.label(skip)

def touch(a, ring, frag0, n, per_wave_sgpr=69):
    a("v_lshlrev_b32 v58, 7, v1")
    a(f"s_mul_i32 s45, s69, {2*n}\ns_sub_u32 s45, s45, s69\ns_add_u32 s45, s45, s60")
    for i in range(n):
        a(f"s_add_u32 s44, s45, {(frag0 + 8*i) * KB}")
        a(f"buffer_load_dword v59, v58, s[8:11], s44 offen")
        if ring is not None: ring.q.append(None)

def loader_bp(a, ring, need, consumed, cap=None):
    if LDTS[0] and Prof.n < 22: ts(a, "w0", True)
    if need is not None:
        assert need <= ring.I, (need, ring.I)
        last = -1
        for i, f in enumerate(ring.q):
            if f is not None and f < need: last = i
        if last >= 0:
            n = len(ring.q) - 1 - last
            a(f"s_waitcnt vmcnt({min(n,63)})")
            ring.q = ring.q[last + 1:]
    if LDTS[0] and Prof.n < 22: ts(a, "vm", True)
    a("s_barrier")
    if LDTS[0] and Prof.n < 22: ts(a, "bar", True)
    if consumed >= SL: consumed = SLP
    upto = (consumed + RING) // 16 * 16
    if cap is not None: upto = min(upto, (cap + 15) // 16 * 16)
    if upto > ring.I:
        loader_issue(a, ring.I, upto, ring)
        ring.I = upto

def stats_finalize(a, accS, accQ, vRho, vMu, tmp, double_ln):
    t0, t1, t2, t3 = tmp, tmp + 1, tmp + 2, tmp + 3
    a(f"v_and_b32 v{t0}, 3, v1")
    a(f"v_mov_b32 v{t1}, v{accQ}")
    for r in (1, 2, 3):
        a(f"v_cmp_eq_u32 vcc, {r}, v{t0}")
        a(f"v_cndmask_b32 v{t1}, v{t1}, v{accQ+r}, vcc")
    a(f"v_lshrrev_b32 v{t2}, 2, v3\nv_lshlrev_b32 v{t2}, 4, v{t2}\nv_add_u32 v{t2}, v{t2}, v3\nv_lshlrev_b32 v{t2}, 2, v{t2}")
    a(f"ds_bpermute_b32 v{t1}, v{t2}, v{t1}")
    a(f"v_mul_f32 v{t0}, {f2u(1.0/D):#x}, v{accS}")
    a("s_waitcnt lgkmcnt(0)")
    a(f"v_mul_f32 v{t1}, {f2u(1.0/D):#x}, v{t1}")
    a(f"v_fma_f32 v{t1}, -v{t0}, v{t0}, v{t1}")
    a(f"v_max_f32 v{t1}, 0, v{t1}")
    a(f"v_add_f32 v{t2}, {f2u(1e-5):#x}, v{t1}")
    a(f"v_rsq_f32 v{t2}, v{t2}")
    if double_ln:
        a(f"v_mul_f32 v{t3}, v{t2}, v{t2}")
        a(f"v_mul_f32 v{t3}, v{t3}, v{t1}")
        a(f"v_add_f32 v{t3}, {f2u(1e-5):#x}, v{t3}")
        a(f"v_rsq_f32 v{t3}, v{t3}")
        a(f"v_mul_f32 v{t2}, v{t2}, v{t3}")
    a(f"v_mov_b32 v{vRho}, v{t2}")
    a(f"v_mul_f32 v{vMu}, v{t0}, v{t2}")

def set_bases(a, delta):
    a(f"s_and_b32 s45, s34, 1\ns_mul_i32 s44, s45, {delta*KB}\nv_add_u32 v6, s44, v5\nv_add_u32 v7, 0x10000, v6")
    a(f"s_xor_b32 s45, s45, 1\ns_mul_i32 s44, s45, {(RING-delta)*KB}\nv_add_u32 v2, s44, v5")
def rdA(a, f0, delta, reg):
    o = f0 % RING
    if o + delta < RING:
        ob = o * KB
        base = 6 if ob < 65536 else 7
        return a.lg(f"ds_read_b128 v[{reg}:{reg+3}], v{base} offset:{ob % 65536}")
    return a.lg(f"ds_read_b128 v[{reg}:{reg+3}], v2 offset:{(o - (RING - delta)) * KB}")

def make_units(nA, segs, G):
    return [(i, t0, min(nA, t0 + G), si) for si, (i0, i1) in enumerate(segs) for i in range(i0, i1) for t0 in range(0, nA, G)]

def kloop2(a, fbase, span, delta, nA, segs, breg, acc0, acc1, stats, G, before=None, after=None):
    units = make_units(nA, segs, G)
    def read1(u, buf, k):
        i, t0, t1, si = u
        if "noR" in sys.argv and i > 0: return a.nlg
        return rdA(a, fbase + i * span + t0 + k, delta, VA + (buf * G + k) * 4)
    a("s_barrier")
    pend = [read1(units[0], 0, k) for k in range(units[0][2] - units[0][1])]
    for n, u in enumerate(units):
        i, t0, t1, si = u
        nu = units[n + 1] if n + 1 < len(units) else None
        if nu is not None and nu[3] != si: a("s_barrier")
        if t0 == 0 and before: before(i)
        b0, b1 = breg(i)
        def m(d, A, B):
            c = "0" if i == 0 else f"v[{d}:{d+3}]"
            if "noM" in sys.argv and i > 0: return
            a(f"v_mfma_f32_16x16x32_bf16 v[{d}:{d+3}], v[{A}:{A+3}], v[{B}:{B+3}], {c}")
        nn = (nu[2] - nu[1]) if nu is not None else 0
        nxt = []
        for t in range(t0, t1):
            ra = VA + ((n % 2) * G + t - t0) * 4
            a.wait_lg(pend[t - t0])
            m(acc0 + 4 * t, ra, b0)
            if len(nxt) < nn: nxt.append(read1(nu, (n + 1) % 2, len(nxt)))
            m(acc1 + 4 * t, ra, b1)
            if len(nxt) < nn and (t - t0) % 2 == 0 and nn > (t1 - t0): nxt.append(read1(nu, (n + 1) % 2, len(nxt)))
        while len(nxt) < nn: nxt.append(read1(nu, (n + 1) % 2, len(nxt)))
        if stats and t1 == nA:
            m(VST, VONE, b0); m(VST + 4, b0, b0)
            if stats == 2: m(VSO, VONE, b1); m(VSO + 4, b1, b1)
        pend = nxt
        if t1 == nA and after: after(i)

def loader_kloop2(a, ring, fbase, span, nA, segs, G):
    units = make_units(nA, segs, G)
    cap = None if "nocap" in sys.argv else fbase + segs[-1][1] * span
    loader_bp(a, ring, fbase + segs[0][1] * span, fbase, cap)
    for n, u in enumerate(units):
        nu = units[n + 1] if n + 1 < len(units) else None
        if nu is not None and nu[3] != u[3]:
            loader_bp(a, ring, fbase + segs[nu[3]][1] * span, fbase + u[0] * span, cap)

def store_tiles(a, srcs, ntiles, vaddr16, vaddr8, srd_, soff, imm_stride, sc, tmp=56):
    st = []
    i = 0
    while i < ntiles:
        if i + 1 < ntiles:
            t = tmp + 4 * ((i // 2) % 2)
            a(f"v_mov_b32 v{t}, v{srcs[i]}\nv_mov_b32 v{t+1}, v{srcs[i]+1}\nv_mov_b32 v{t+2}, v{srcs[i+1]}\nv_mov_b32 v{t+3}, v{srcs[i+1]+1}")
            a(f"v_permlane16_swap_b32 v{t}, v{t+2}\nv_permlane16_swap_b32 v{t+1}, v{t+3}")
            st.append(f"buffer_store_dwordx4 v[{t}:{t+3}], v{vaddr16}, s[{srd_}:{srd_+3}], {soff} offen offset:{i*imm_stride} {sc}")
            i += 2
        else:
            st.append(f"buffer_store_dwordx2 v[{srcs[i]}:{srcs[i]+1}], v{vaddr8}, s[{srd_}:{srd_+3}], {soff} offen offset:{i*imm_stride} {sc}")
            i += 1
    if sc == "@SC": xstore(a, "\n".join(st))
    else: a("\n".join(st))

def frag_addr(a, v16, v8, Tsgpr, tmp):
    a(f"v_lshrrev_b32 v{v8}, 1, v4\nv_lshlrev_b32 v{v8}, 8, v{v8}\nv_lshl_add_u32 v{v8}, v3, 4, v{v8}")
    a(f"s_lshl_b32 s45, s{Tsgpr}, 9\nv_add_u32 v{v8}, s45, v{v8}")
    a(f"v_and_b32 v{tmp}, 1, v4\nv_lshl_add_u32 v{v16}, v{tmp}, 9, v{v8}\nv_lshl_add_u32 v{v8}, v{tmp}, 3, v{v8}")

def code_prefetch(a, first, last, wave, nkb=32):
    L = newlab("cpf")
    a(f"s_cmp_eq_u32 s34, {wave}\ns_cbranch_scc0 {L}")
    a(f"s_getpc_b64 s[40:41]")
    here = newlab("pc"); a.label(here)
    a(f"s_sub_u32 s40, s40, {here}-{first}\ns_subb_u32 s41, s41, 0")
    a("v_lshlrev_b32 v8, 6, v1")
    for i in range(nkb // 4):
        a(f"global_load_dword v{10+i}, v8, s[40:41]")
        a("v_add_u32 v8, 4096, v8")
    a.label(L)

def gen_main():
    a = Asm(); name = "main_kernel"
    kernel_begin(a, name, 256)
    a("s_load_dwordx2 s[4:5], s[0:1], 96")
    a("s_load_dwordx2 s[6:7], s[0:1], 0")
    a("s_load_dwordx2 s[24:25], s[0:1], 56")
    a("s_load_dwordx4 s[28:31], s[0:1], 72")
    a("v_and_b32 v1, 63, v0")
    a("v_lshrrev_b32 v2, 6, v0")
    a("v_readfirstlane_b32 s34, v2")
    a("v_and_b32 v3, 15, v1\nv_lshrrev_b32 v4, 4, v1\nv_lshlrev_b32 v5, 4, v1")
    a("s_and_b32 s35, s2, 31\ns_lshr_b32 s36, s2, 5\ns_mov_b32 s37, 0")
    a("s_waitcnt lgkmcnt(0)")
    a("s_mov_b32 s26, s28\ns_mov_b32 s27, s29\ns_mov_b32 s28, s30\ns_mov_b32 s29, s31")
    srd(a, 8, 4, 0, WS_BYTES)
    a("s_lshl_b32 s67, s35, 2\ns_and_b32 s38, s34, 3\ns_add_u32 s67, s67, s38\ns_lshl_b32 s66, s67, 4\ns_xor_b32 s65, s67, 1\ns_mul_i32 s68, s36, 5")
    a(f"s_lshl_b32 s69, s38, 12\ns_mul_i32 s60, s36, {SL*KB}\ns_add_u32 s60, s60, s69\ns_add_u32 s60, s60, {WST}")
    a("s_mov_b32 s59, 0\ns_getreg_b32 s58, hwreg(HW_REG_XCC_ID, 0, 4)\ns_add_u32 s58, s58, 1")
    a("s_cmp_eq_u32 s34, 0\ns_cbranch_scc0 pro_x")
    a(f"s_lshl_b32 s40, s35, 5\ns_lshl_b32 s41, s36, 2\ns_add_u32 s40, s40, s41\ns_add_u32 s40, s40, {XID}\nv_mov_b32 v8, 0\nv_mov_b32 v9, s58")
    a("s_mov_b64 s[42:43], exec\ns_mov_b64 exec, 1\nbuffer_store_dword v9, v8, s[8:11], s40 offen sc1\ns_mov_b64 exec, s[42:43]")
    a.label("pro_x")
    ts(a, "start")
    if "cpf" in sys.argv:
        code_prefetch(a, "main_kernel", "main_kernel_exit", 7)
    a("s_cmp_ge_u32 s34, 4\ns_cbranch_scc0 pro_c")
    loader_issue(a, 0, RING)
    a("s_branch pro_d")
    a.label("pro_c")
    a("v_add_u32 v6, s66, v3")
    a("v_mul_u32_u24 v56, 1280, v6\nv_lshl_add_u32 v56, v4, 3, v56\ns_mul_i32 s40, s36, 160\nv_add_u32 v56, s40, v56")
    srd(a, 12, 6, 0, XBYTES)
    for i in range(5):
        a(f"buffer_load_dwordx2 v[{RES+2*i}:{RES+2*i+1}], v56, s[12:15], 0 offen offset:{i*32}")
    a.label("pro_d")
    a.label("layer_top")
    ring = Ring()
    ld = Asm()
    def tile_offs(base_imm, layer_stride, tile_bytes, ksplit):
        a(f"s_mul_i32 s40, s67, {tile_bytes}\ns_mul_i32 s41, s65, {tile_bytes}")
        if layer_stride:
            a(f"s_mul_i32 s45, s37, {layer_stride}\ns_add_u32 s45, s45, {base_imm}")
        else:
            a(f"s_mov_b32 s45, {base_imm}")
        if ksplit:
            a("s_and_b32 s44, s34, 1\ns_lshl_b32 s44, s44, 10\ns_add_u32 s45, s45, s44")
        a("s_add_u32 s40, s40, s45\ns_add_u32 s41, s41, s45")
    class BL:
        def __init__(self, stride, nslots): self.stride, self.n, self.tag, self.cur = stride, nslots, {}, 0
        def regs(self, i): r = VB + 8 * (i % self.n); return (r, r + 4)
        def load(self, i):
            o = i * self.stride
            if o - self.cur > 4095 - 1023 * 0 or o - self.cur >= 4096:
                d = (o - self.cur) // 4096 * 4096
                a(f"s_add_u32 s40, s40, {d}\ns_add_u32 s41, s41, {d}"); self.cur += d
            r0, r1 = self.regs(i)
            if "noB" in sys.argv and i >= 2:
                self.tag[i] = a.nvm; return
            a.vm(f"buffer_load_dwordx4 v[{r0}:{r0+3}], v5, s[8:11], s40 offen offset:{o - self.cur} sc1")
            self.tag[i] = a.vm(f"buffer_load_dwordx4 v[{r1}:{r1+3}], v5, s[8:11], s41 offen offset:{o - self.cur} sc1")
    def flag_line(dst, kind, tile_sgpr=None, pair=False, layer_delta=0):
        a(f"s_lshl_b32 s{dst}, s37, 13")
        if pair: a(f"s_and_b32 s45, s67, -2\ns_lshl_b32 s45, s45, 6")
        else: a(f"s_lshl_b32 s45, s{tile_sgpr}, 6")
        a(f"s_add_u32 s{dst}, s{dst}, s45\ns_add_u32 s{dst}, s{dst}, {XF + kind*16384 + layer_delta}")
    def reduce_pair(acc0, acc1, NT, stats):
        a(f"s_and_b32 s45, s34, 3\ns_lshl_b32 s44, s45, 13\ns_add_u32 s44, s44, {KVL}\nv_add_u32 v56, s44, v5")
        for t in range(NT): a(f"ds_write_b128 v56, v[{acc1+4*t}:{acc1+4*t+3}] offset:{t*1024}")
        if stats:
            a(f"ds_write_b128 v56, v[{VSO}:{VSO+3}] offset:{6*1024}\nds_write_b128 v56, v[{VSO+4}:{VSO+7}] offset:{7*1024}")
        a(f"s_xor_b32 s45, s45, 1\ns_lshl_b32 s44, s45, 13\ns_add_u32 s44, s44, {KVL}\nv_add_u32 v57, s44, v5")
        a("s_waitcnt lgkmcnt(0)\ns_barrier")
        for t in range(NT): a(f"ds_read_b128 v[{VA+4*t}:{VA+4*t+3}], v57 offset:{t*1024}")
        if stats:
            a(f"ds_read_b128 v[{VSO}:{VSO+3}], v57 offset:{6*1024}\nds_read_b128 v[{VSO+4}:{VSO+7}], v57 offset:{7*1024}")
        a("s_waitcnt lgkmcnt(0)")
        for t in range(NT * 4): a(f"v_add_f32 v{acc0+t}, v{acc0+t}, v{VA+t}")
        if stats:
            for t in range(8): a(f"v_add_f32 v{VST+t}, v{VST+t}, v{VSO+t}")
    ones = lambda: a("v_mov_b32 v52, 0x3f803f80\nv_mov_b32 v53, 0x3f803f80\nv_mov_b32 v54, 0x3f803f80\nv_mov_b32 v55, 0x3f803f80")
    A0, A1 = 192, 216
    a("s_cmp_ge_u32 s34, 4\ns_cbranch_scc1 ld_qkv")
    a.nvm = 0; a.nlg = 0
    a(f"s_mul_i32 s45, s36, 384\ns_add_u32 s45, s45, {CSQ}\nv_lshlrev_b32 v58, 4, v4")
    for i in range(6): a(f"buffer_load_dwordx4 v[{8+4*i}:{8+4*i+3}], v58, s[8:11], s45 offen offset:{i*64}")
    a(f"s_min_u32 s46, s36, 2\ns_lshl_b32 s46, s46, 6\ns_add_u32 s46, s46, {BKV}")
    a(f"buffer_load_dwordx4 v[32:35], v58, s[8:11], s46 offen")
    ones(); set_bases(a, 6)
    a("s_cmp_eq_u32 s37, 0\ns_cbranch_scc1 qkv_l0")
    flag_line(46, 3, pair=True, layer_delta=-8192)
    await_flags(a, 0x00FF00FF, 46)
    a.label("qkv_l0")
    ts(a, "qkv_ready")
    tile_offs(XF0, X2 - XF0, 20480, True)
    bl = BL(2048, 10)
    for i in range(10): bl.load(i)
    segs = [(0, 2), (2, 4), (4, 6), (6, 8), (8, 10)]
    kloop2(a, FQ, 12, 6, 6, segs, bl.regs, A0, A1, 2, 6, before=lambda i: a.wait_vm(bl.tag[i]))
    ld.label("ld_qkv")
    loader_kloop2(ld, ring, FQ, 12, 6, segs, 6)
    ts(a, "qkv_kloop")
    reduce_pair(A0, A1, 6, True)
    loader_bp(ld, ring, None, FO)
    stats_finalize(a, VST, VST + 4, 60, 61, 56, False)
    qs = DH ** -0.5 * LOG2E
    a(f"v_mul_f32 v62, {f2u(qs):#x}, v60\nv_mul_f32 v63, {f2u(qs):#x}, v61")
    a("s_and_b32 s38, s34, 3\ns_lshl_b32 s38, s38, 4\nv_add_u32 v44, s38, v3\nv_mul_u32_u24 v44, 192, v44")
    a(f"v_add_u32 v44, {KVL + 32*KB}, v44")
    for i in range(5):
        for r in range(4):
            a(f"v_mul_f32 v{48+r}, v63, v{8+4*i+r}")
            a(f"v_fma_f32 v{48+r}, v62, v{A0+4*i+r}, -v{48+r}")
        a(f"v_cvt_pk_bf16_f32 v52, v48, v49\nv_cvt_pk_bf16_f32 v53, v50, v51")
        a(f"v_add_u32 v45, {4*i}, v4\nv_mul_u32_u24 v46, 52, v45\nv_lshrrev_b32 v46, 8, v46\nv_add_u32 v45, v45, v46\nv_lshl_add_u32 v45, v45, 3, v44")
        a("ds_write_b64 v45, v[52:53]")
    a("s_cmp_lt_u32 s36, 3\ns_cbranch_scc0 qkv_nokv")
    i = 5
    for r in range(4):
        a(f"v_fma_f32 v{48+r}, -v61, v{8+4*i+r}, v{32+r}")
        a(f"v_fma_f32 v{48+r}, v60, v{A0+4*i+r}, v{48+r}")
    a("v_cvt_pk_bf16_f32 v52, v48, v49\nv_cvt_pk_bf16_f32 v53, v50, v51")
    a("s_and_b32 s38, s34, 1")
    a(f"s_and_b32 s41, s34, 3\ns_lshl_b32 s41, s41, 10\ns_add_u32 s41, s41, {KVL + 44*KB}")
    a(f"s_lshr_b32 s47, s67, 1\ns_lshl_b32 s47, s47, 12\ns_mul_i32 s48, s37, {KVB[1]-KVB[0]}\ns_add_u32 s47, s47, s48\ns_add_u32 s47, s47, {KVB[0]}")
    def vwrite(rowoff, hstride):
        a(f"v_bfe_u32 v54, v3, 2, 1\nv_mul_u32_u24 v54, {hstride}, v54")
        a("v_bfe_u32 v55, v3, 3, 1\nv_lshl_add_u32 v54, v55, 3, v54")
        a("v_and_b32 v55, 3, v3\nv_lshl_add_u32 v54, v55, 1, v54")
        a(f"v_add3_u32 v54, v54, v{rowoff}, s41")
        a("ds_write_b16 v54, v52\nds_write_b16_d16_hi v54, v52 offset:16\nds_write_b16 v54, v53 offset:32\nds_write_b16_d16_hi v54, v53 offset:48")
    a("s_cmp_eq_u32 s36, 0\ns_cbranch_scc1 qkv_kvA")
    a("s_cmp_eq_u32 s36, 1\ns_cbranch_scc1 qkv_kvB")
    a("v_lshlrev_b32 v47, 3, v3\nv_add_u32 v47, s41, v47\nv_add_u32 v54, 128, v47\nv_cmp_eq_u32 vcc, 3, v4\nv_cndmask_b32 v47, v47, v54, vcc")
    a("v_cmp_eq_u32 vcc, 0, v4\nv_cmp_eq_u32 s[48:49], 3, v4\ns_or_b64 vcc, vcc, s[48:49]")
    a("s_and_saveexec_b64 s[50:51], vcc")
    a("ds_write_b64 v47, v[52:53]")
    a("s_andn2_b64 exec, s[50:51], exec")
    a("v_lshlrev_b32 v47, 6, v4\nv_add_u32 v47, 192, v47")
    vwrite(47, 128)
    a("s_mov_b64 exec, s[50:51]")
    a("v_and_b32 v47, 7, v1\nv_lshlrev_b32 v47, 4, v47\nv_bfe_u32 v54, v1, 3, 2")
    a("s_lshl_b32 s49, s38, 7\ns_add_u32 s49, s49, 1024\ns_lshl_b32 s50, s38, 10\ns_add_u32 s50, s50, 2304")
    a("v_mov_b32 v55, s49\ns_add_u32 s51, s49, 256\nv_mov_b32 v50, s51\nv_cmp_eq_u32 vcc, 1, v54\nv_cndmask_b32 v55, v55, v50, vcc")
    a("v_mov_b32 v50, s50\nv_cmp_eq_u32 vcc, 2, v54\nv_cndmask_b32 v55, v55, v50, vcc")
    a("s_add_u32 s51, s50, 512\nv_mov_b32 v50, s51\nv_cmp_eq_u32 vcc, 3, v54\nv_cndmask_b32 v55, v55, v50, vcc")
    a("v_add_u32 v47, v47, v55")
    a("s_branch qkv_kvout")
    a.label("qkv_kvB")
    a("v_lshlrev_b32 v47, 6, v4")
    vwrite(47, 256)
    a("v_lshlrev_b32 v47, 4, v3\nv_and_b32 v54, 1, v4\nv_lshl_add_u32 v47, v54, 9, v47\ns_lshl_b32 s49, s38, 10\ns_add_u32 s49, s49, 2048\nv_add_u32 v47, s49, v47")
    a("s_branch qkv_kvout")
    a.label("qkv_kvA")
    a("v_lshrrev_b32 v47, 1, v4\nv_lshlrev_b32 v47, 8, v47\nv_lshl_add_u32 v47, v3, 4, v47\nv_and_b32 v54, 1, v4\nv_lshl_add_u32 v47, v54, 3, v47\nv_add_u32 v47, s41, v47")
    a("ds_write_b64 v47, v[52:53]")
    a("s_lshl_b32 s49, s38, 8\nv_lshlrev_b32 v47, 4, v3\nv_and_b32 v54, 1, v4\nv_lshl_add_u32 v47, v54, 9, v47\nv_add_u32 v47, s49, v47")
    a.label("qkv_kvout")
    a("v_add_u32 v54, s41, v5")
    a("s_waitcnt lgkmcnt(0)")
    a("s_mov_b64 s[50:51], exec\ns_mov_b64 exec, 0xffffffff")
    a("ds_read_b128 v[48:51], v54\ns_waitcnt lgkmcnt(0)")
    a("buffer_store_dwordx4 v[48:51], v47, s[8:11], s47 offen sc1")
    a("s_mov_b64 exec, s[50:51]")
    a.label("qkv_nokv")
    a("s_waitcnt vmcnt(0) lgkmcnt(0)")
    a("s_barrier")
    ld("s_barrier")
    ld("s_branch att_top")
    a("s_cmp_eq_u32 s34, 0\ns_cbranch_scc0 att_top")
    a("s_cmp_lt_u32 s36, 3\ns_cbranch_scc0 att_top")
    a(f"s_lshl_b32 s46, s37, 13\ns_lshr_b32 s45, s35, 3\ns_lshl_b32 s45, s45, 11\ns_add_u32 s46, s46, s45\ns_add_u32 s46, s46, {KVF}\nv_lshlrev_b32 v56, 8, v1\nv_mov_b32 v57, 1")
    a("s_mov_b64 s[42:43], exec\ns_mov_b64 exec, 0xff")
    a("buffer_atomic_add v57, v56, s[8:11], s46 offen")
    a("s_mov_b64 exec, s[42:43]")
    a.label("att_top")
    ts(a, "qkv_done")
    QB_, KV0, P, SA, SB, O = 8, 32, 64, 72, 88, 104
    def Q1(i): return QB_ + 6 * i
    def Q2(i): return QB_ + 6 * i + 4
    def K1(b): return KV0 + 16 * b
    def K2(b): return KV0 + 16 * b + 4
    def V1(b): return KV0 + 16 * b + 8
    a("v_and_b32 v6, 31, v1\nv_lshrrev_b32 v7, 5, v1\nv_lshlrev_b32 v170, 3, v1")
    a("s_and_b32 s38, s34, 3\ns_lshr_b32 s39, s34, 2")
    a("v_lshrrev_b32 v171, 2, v6\nv_mul_u32_u24 v171, 192, v171\nv_and_b32 v172, 3, v6\nv_mul_u32_u24 v172, 48, v172\nv_add_u32 v171, v171, v172")
    for i in range(4):
        a(f"s_add_u32 s40, s38, {i}\ns_and_b32 s40, s40, 3\ns_lshl_b32 s41, s39, 2\ns_add_u32 s40, s40, s41\ns_mul_i32 s40, s40, {8*192}\ns_add_u32 s40, s40, {KVL + 32*KB}")
        a(f"v_add_u32 v173, s40, v171\nv_lshl_add_u32 v174, v7, 4, v173")
        a(f"ds_read_b128 v[{Q1(i)}:{Q1(i)+3}], v174\nds_read_b64 v[{Q2(i)}:{Q2(i)+1}], v173 offset:32")
    for r in range(64): a(f"v_mov_b32 v{O+r}, 0")
    a("s_cmp_lt_u32 s34, 4\ns_cbranch_scc0 att_kvw")
    Lp, Ld = newlab("kvp"), newlab("kvpd")
    a(f"s_lshl_b32 s46, s37, 13\ns_lshl_b32 s45, s34, 11\ns_add_u32 s46, s46, s45\ns_and_b32 s45, s2, 7\ns_lshl_b32 s45, s45, 8\ns_add_u32 s46, s46, s45\ns_add_u32 s46, s46, {KVF}\nv_mov_b32 v175, 0\ns_mov_b32 s44, 0")
    a("s_mov_b64 s[42:43], exec\ns_mov_b64 exec, 1")
    a.label(Lp)
    a("buffer_load_dword v176, v175, s[8:11], s46 offen sc1")
    a("s_add_u32 s44, s44, 1\ns_waitcnt vmcnt(0)")
    a("v_readfirstlane_b32 s45, v176")
    a(f"s_cmp_ge_u32 s45, 24\ns_cbranch_scc1 {Ld}")
    a(f"s_cmp_gt_u32 s44, {SPIN_MAX}\ns_cbranch_scc1 {Ld}")
    a(f"s_sleep 2\ns_branch {Lp}")
    a.label(Ld)
    a("s_mov_b64 exec, s[42:43]")
    a.label("att_kvw")
    a("s_waitcnt lgkmcnt(0)")
    a("v_cmp_eq_u32 vcc, 1, v7")
    for i in range(4):
        a(f"v_cndmask_b32 v{Q2(i)}, v{Q2(i)}, 0, vcc\nv_cndmask_b32 v{Q2(i)+1}, v{Q2(i)+1}, 0, vcc")
    a("s_barrier")
    ts(a, "kv_ready")
    a(f"s_mul_i32 s47, s37, {KVB[1]-KVB[0]}\ns_add_u32 s47, s47, {KVB[0]}\ns_lshl_b32 s48, s38, 16\ns_add_u32 s47, s47, s48")
    def ldK(b):
        a(f"buffer_load_dwordx4 v[{K1(b)}:{K1(b)+3}], v5, s[8:11], s47 offen sc1")
        a(f"buffer_load_dwordx2 v[{K2(b)}:{K2(b)+1}], v170, s[8:11], s47 offen offset:1024 sc1")
    def ldV(b, h):
        a(f"buffer_load_dwordx4 v[{V1(b)+4*h}:{V1(b)+4*h+3}], v5, s[8:11], s47 offen offset:{2048+1024*h} sc1")
    def qk1(Sd, b, i): a(f"v_mfma_f32_32x32x16_bf16 v[{Sd}:{Sd+15}], v[{K1(b)}:{K1(b)+3}], v[{Q1(i)}:{Q1(i)+3}], 0")
    def qk2(Sd, b, i): a(f"v_mfma_f32_32x32x8_bf16 v[{Sd}:{Sd+15}], v[{K2(b)}:{K2(b)+1}], v[{Q2(i)}:{Q2(i)+1}], v[{Sd}:{Sd+15}]")
    def pv(i, b, h): a(f"v_mfma_f32_32x32x16_bf16 v[{O+16*i}:{O+16*i+15}], v[{V1(b)+4*h}:{V1(b)+4*h+3}], v[{P+4*h}:{P+4*h+3}], v[{O+16*i}:{O+16*i+15}]")
    ldK(0); ldV(0, 0); ldV(0, 1)
    a("s_add_u32 s47, s47, 4096")
    ldK(1)
    for r in range(4, 8): a(f"v_mov_b32 v{P+r}, 0\nv_mov_b32 v{V1(1)+r}, 0\nv_mov_b32 v{SB+8+r}, 0")
    a("s_waitcnt vmcnt(4)")
    qk1(SA, 0, 0); qk2(SA, 0, 0)
    a("s_mov_b32 s49, 0")
    a("s_cmp_eq_u32 s37, 0\ns_cbranch_scc0 att_nochk")
    a(f"s_lshl_b32 s46, s35, 5\ns_add_u32 s46, s46, {XID}")
    await_flags(a, 0xFF, 46, vtmp=175)
    a("s_mov_b64 s[42:43], exec\ns_mov_b64 exec, 0xff\nv_cmp_ne_u32 vcc, s58, v176\ns_cmp_eq_u64 vcc, 0\ns_cselect_b32 s59, 1, 0\ns_mov_b64 exec, s[42:43]")
    if "noxcd" in sys.argv: a("s_mov_b32 s59, 0")
    a.label("att_nochk")
    a("s_nop 7")
    ts(a, "att_start")
    a.label("att_loop")
    ex = lambda Sc, r: a(f"v_exp_f32 v{Sc+r}, v{Sc+r}")
    cv = lambda Sc, q: a(f"v_cvt_pk_bf16_f32 v{P+q}, v{Sc+2*q}, v{Sc+2*q+1}")
    for kk in range(2):
        b = kk
        for q in range(4):
            u = kk * 4 + q
            Sc, Sn = (SA, SB) if u % 2 == 0 else (SB, SA)
            pq, pb = (q - 1) % 4, (b if q > 0 else 1 - b)
            nq, nb = (q + 1) % 4, (b if q < 3 else 1 - b)
            ex(Sc, 0); ex(Sc, 1); cv(Sn, 6); cv(Sn, 7); ex(Sc, 2); ex(Sc, 3)
            if q == 3: a("s_waitcnt vmcnt(2)")
            qk1(Sn, nb, nq)
            ex(Sc, 4); ex(Sc, 5); cv(Sc, 0); cv(Sc, 1); ex(Sc, 6); ex(Sc, 7)
            qk2(Sn, nb, nq)
            if q == 3:
                a("s_add_u32 s47, s47, 4096")
                ldK(b)
            ex(Sc, 8); ex(Sc, 9); cv(Sc, 2); cv(Sc, 3); ex(Sc, 10); ex(Sc, 11)
            pv(pq, pb, 1)
            if q == 0: ldV(1 - b, 0)
            if q == 1: ldV(1 - b, 1)
            ex(Sc, 12); ex(Sc, 13); cv(Sc, 4); cv(Sc, 5); ex(Sc, 14); ex(Sc, 15)
            if q == 0: a("s_waitcnt vmcnt(3)")
            pv(q, b, 0)
    a("s_add_u32 s49, s49, 1\ns_cmp_lt_u32 s49, 8\ns_cbranch_scc1 att_loop")
    cv(SB, 6); cv(SB, 7)
    pv(3, 1, 1)
    ts(a, "att_loop_end")
    a(f"s_mul_i32 s40, s34, 3072\ns_add_u32 s40, s40, {KVL}\nv_add_u32 v171, s40, v5")
    def wr(r, buf):
        for z in range(3):
            a(f"ds_write_b128 v171, v[{O+16*r+4*z}:{O+16*r+4*z+3}] offset:{buf*24576 + z*1024}")
    def rd(r, buf):
        a(f"s_sub_u32 s41, s38, {r}\ns_and_b32 s41, s41, 3\ns_lshl_b32 s45, s39, 2\ns_add_u32 s41, s41, s45\ns_mul_i32 s41, s41, 3072\ns_add_u32 s41, s41, {KVL}\nv_add_u32 v172, s41, v5")
        for z in range(3):
            a(f"ds_read_b128 v[{72+4*z}:{72+4*z+3}], v172 offset:{buf*24576 + z*1024}")
        a("s_waitcnt lgkmcnt(0)")
        for z in range(11): a(f"v_add_f32 v{O+z}, v{O+z}, v{72+z}")
    a("s_waitcnt vmcnt(0)")
    wr(1, 0); a("s_waitcnt lgkmcnt(0)\ns_barrier")
    wr(2, 1); rd(1, 0); a("s_barrier")
    wr(3, 0); rd(2, 1); a("s_barrier")
    rd(3, 0)
    ts(a, "att_red")
    a(f"v_rcp_f32 v173, v{O+10}")
    for r in range(10): a(f"v_mul_f32 v{O+r}, v{O+r}, v173")
    for q in range(5): a(f"v_cvt_pk_bf16_f32 v{P+q}, v{O+2*q}, v{O+2*q+1}")
    a(f"s_mul_i32 s40, s34, 1280\ns_add_u32 s40, s40, {KVL + 24576}")
    a("v_lshrrev_b32 v171, 2, v6\nv_mul_u32_u24 v171, 160, v171\nv_and_b32 v172, 3, v6\nv_mul_u32_u24 v172, 40, v172\nv_mul_u32_u24 v173, 20, v7\nv_add3_u32 v171, v171, v172, v173")
    a("v_add_u32 v171, s40, v171")
    for q in range(5): a(f"ds_write_b32 v171, v{P+q} offset:{4*q}")
    a("v_and_b32 v172, 7, v1\nv_lshrrev_b32 v173, 3, v1")
    a("v_mul_u32_u24 v174, 160, v172\nv_lshl_add_u32 v174, v173, 4, v174\nv_add_u32 v174, s40, v174")
    a("s_waitcnt lgkmcnt(0)")
    a("ds_read_b128 v[72:75], v174\nds_read_b128 v[76:79], v174 offset:128")
    a("s_and_b32 s41, s34, 1\ns_lshl_b32 s41, s41, 7\nv_lshlrev_b32 v172, 4, v172\nv_lshl_add_u32 v172, v173, 8, v172\nv_add_u32 v172, s41, v172")
    a(f"s_lshl_b32 s41, s35, 2\ns_lshr_b32 s45, s34, 1\ns_add_u32 s48, s41, s45\ns_mul_i32 s41, s48, 20480\ns_mul_i32 s45, s36, 2560\ns_add_u32 s41, s41, s45\ns_mul_i32 s45, s37, {OB[1]-OB[0]}\ns_add_u32 s41, s41, s45\ns_add_u32 s41, s41, {OB[0]}")
    a("s_waitcnt lgkmcnt(0)")
    xstore(a, "buffer_store_dwordx4 v[72:75], v172, s[8:11], s41 offen @SC\ns_mov_b64 s[42:43], exec\ns_mov_b64 exec, 0xffff\nbuffer_store_dwordx4 v[76:79], v172, s[8:11], s41 offen offset:2048 @SC\ns_mov_b64 exec, s[42:43]")
    flag_line(46, 0, tile_sgpr=48)
    a("s_lshl_b32 s45, s36, 3\ns_add_u32 s46, s46, s45\ns_and_b32 s45, s34, 1\ns_lshl_b32 s45, s45, 2\ns_add_u32 s46, s46, s45")
    set_flag(a, 46, vtmp=175)
    ts(a, "att_done")
    a("s_cmp_ge_u32 s34, 4\ns_cbranch_scc1 ld_wo")
    a.nvm = 0; a.nlg = 0
    set_bases(a, 5)
    flag_line(46, 0, pair=True)
    await_flags(a, 0xFFFFFFFF, 46)
    ts(a, "wo_ready")
    tile_offs(OB[0], OB[1] - OB[0], 20480, True)
    bl = BL(2048, 10)
    for i in range(10): bl.load(i)
    segs = [(0, 5), (5, 10)]
    kloop2(a, FO, 10, 5, 5, segs, bl.regs, A0, A1, 0, 5, before=lambda i: a.wait_vm(bl.tag[i]))
    ld.label("ld_wo")
    ring.drained()
    loader_kloop2(ld, ring, FO, 10, 5, segs, 5)
    ts(a, "wo_kloop")
    reduce_pair(A0, A1, 5, False)
    loader_bp(ld, ring, None, F1)
    frag_addr(a, 60, 61, 68, 62)
    tile_offs(X1[0], X1[1] - X1[0], 20480, False)
    for i in range(5):
        unpack2(a, 48, 49, RES + 2 * i); unpack2(a, 50, 51, RES + 2 * i + 1)
        for r in range(4): a(f"v_add_f32 v{48+r}, v{48+r}, v{A0+4*i+r}")
        a(f"v_cvt_pk_bf16_f32 v{RES+2*i}, v48, v49\nv_cvt_pk_bf16_f32 v{RES+2*i+1}, v50, v51")
    store_tiles(a, [RES + 2 * i for i in range(5)], 5, 60, 61, 8, "s40", 512, "@SC", tmp=48)
    flag_line(46, 1, tile_sgpr=67)
    a("s_lshl_b32 s45, s36, 2\ns_add_u32 s46, s46, s45")
    set_flag(a, 46)
    ts(a, "wo_done")
    a.nvm = 0; a.nlg = 0
    a("s_lshr_b32 s52, s36, 1\ns_mul_i32 s52, s52, 27\ns_and_b32 s53, s36, 1\ns_mul_i32 s53, s53, 14\ns_add_u32 s52, s52, s53")
    a("s_and_b32 s53, s34, 1\ns_mul_i32 s53, s53, 7\ns_add_u32 s52, s52, s53")
    srd(a, 20, 24, 0, F * 2)
    a("s_lshl_b32 s47, s52, 5\nv_lshlrev_b32 v60, 3, v4\nv_add_u32 v60, s47, v60")
    B1R = 232
    for i in range(7): a(f"buffer_load_dwordx2 v[{B1R+2*i}:{B1R+2*i+1}], v60, s[20:23], 0 offen offset:{i*32}")
    a(f"s_mul_i32 s45, s36, 896\ns_lshl_b32 s44, s53, 6\ns_add_u32 s45, s45, s44\ns_add_u32 s45, s45, {CS1}\nv_lshlrev_b32 v58, 4, v4")
    for i in range(7): a(f"buffer_load_dwordx4 v[{8+4*i}:{8+4*i+3}], v58, s[8:11], s45 offen offset:{i*64}")
    ones(); set_bases(a, 7)
    flag_line(46, 1, pair=True)
    await_flags(a, 0x00FF00FF, 46)
    ts(a, "fc1_ready")
    tile_offs(X1[0], X1[1] - X1[0], 20480, False)
    bl = BL(1024, 10)
    for i in range(10): bl.load(i)
    segs = [(2 * s_, 2 * s_ + 2) for s_ in range(10)]
    C0, C1 = 176, 204
    kloop2(a, F1, 14, 7, 7, segs, bl.regs, C0, C1, 1, 4, before=lambda i: a.wait_vm(bl.tag[i]),
           after=lambda i: bl.load(i + 10) if i + 10 < 20 else None)
    ld.label("ld_fc1")
    loader_kloop2(ld, ring, F1, 14, 7, segs, 4)
    ts(a, "fc1_kloop")
    stats_finalize(a, VST, VST + 4, 60, 61, 56, True)
    a(f"s_and_b32 s45, s34, 3\ns_lshl_b32 s44, s45, 9\ns_add_u32 s44, s44, {KVL}\nv_lshlrev_b32 v56, 3, v1\nv_add_u32 v57, s44, v56")
    a("ds_write_b64 v57, v[60:61]")
    a(f"s_xor_b32 s45, s45, 1\ns_lshl_b32 s44, s45, 9\ns_add_u32 s44, s44, {KVL}\nv_add_u32 v57, s44, v56")
    a("s_waitcnt lgkmcnt(0)\ns_barrier")
    loader_bp(ld, ring, None, F2)
    a("ds_read_b64 v[62:63], v57")
    frag_addr(a, 58, 59, 52, 56)
    tile_offs(HB[0], HB[1] - HB[0], 55296, False)
    c0 = -2.0 * math.sqrt(2.0 / math.pi) * LOG2E
    c1 = c0 * 0.044715
    a(f"v_mov_b32 v40, {f2u(c0):#x}\nv_mov_b32 v41, v40\nv_mov_b32 v42, {f2u(c1):#x}\nv_mov_b32 v43, v42\nv_mov_b32 v46, 1.0\nv_mov_b32 v47, 1.0")
    a("s_waitcnt lgkmcnt(0)")
    def gelu_tile(i, acc, dst):
        unpack2(a, 52, 53, B1R + 2 * i); unpack2(a, 54, 55, B1R + 2 * i + 1)
        for h in range(2): a(f"v_pk_fma_f32 v[{52+2*h}:{53+2*h}], v[38:39], v[{8+4*i+2*h}:{8+4*i+2*h+1}], v[{52+2*h}:{53+2*h}]")
        for h in range(2): a(f"v_pk_fma_f32 v[{52+2*h}:{53+2*h}], v[36:37], v[{acc+4*i+2*h}:{acc+4*i+2*h+1}], v[{52+2*h}:{53+2*h}]")
        for h in range(2): a(f"v_pk_mul_f32 v[{144+2*h}:{145+2*h}], v[{52+2*h}:{53+2*h}], v[{52+2*h}:{53+2*h}]")
        for h in range(2): a(f"v_pk_fma_f32 v[{144+2*h}:{145+2*h}], v[{144+2*h}:{145+2*h}], v[42:43], v[40:41]")
        for h in range(2): a(f"v_pk_mul_f32 v[{144+2*h}:{145+2*h}], v[{144+2*h}:{145+2*h}], v[{52+2*h}:{53+2*h}]")
        for r in range(4): a(f"v_exp_f32 v{144+r}, v{144+r}")
        for h in range(2): a(f"v_pk_add_f32 v[{144+2*h}:{145+2*h}], v[{144+2*h}:{145+2*h}], v[46:47]")
        for r in range(4): a(f"v_rcp_f32 v{144+r}, v{144+r}")
        for h in range(2): a(f"v_pk_mul_f32 v[{52+2*h}:{53+2*h}], v[{52+2*h}:{53+2*h}], v[{144+2*h}:{145+2*h}]")
        a(f"v_cvt_pk_bf16_f32 v{dst}, v52, v53\nv_cvt_pk_bf16_f32 v{dst+1}, v54, v55")
    for tilesel in range(2):
        acc, rho, mu, so = (C0, 60, 61, "s40") if tilesel == 0 else (C1, 62, 63, "s41")
        a(f"v_mov_b32 v36, v{rho}\nv_mov_b32 v37, v{rho}\nv_sub_f32 v38, 0, v{mu}\nv_mov_b32 v39, v38")
        for p in range(3):
            t = 152 + 4 * (p % 2)
            gelu_tile(2 * p, acc, t); gelu_tile(2 * p + 1, acc, t + 2)
            a(f"v_permlane16_swap_b32 v{t}, v{t+2}\nv_permlane16_swap_b32 v{t+1}, v{t+3}")
            xstore(a, f"buffer_store_dwordx4 v[{t}:{t+3}], v58, s[8:11], {so} offen offset:{p*1024} @SC")
        sk = newlab("fc1sk")
        a(f"s_and_b32 s45, s36, s34\ns_bitcmp1_b32 s45, 0\ns_cbranch_scc1 {sk}")
        gelu_tile(6, acc, 160)
        xstore(a, f"buffer_store_dwordx2 v[160:161], v59, s[8:11], {so} offen offset:3072 @SC")
        a.label(sk)
    flag_line(46, 2, tile_sgpr=67)
    flag_line(47, 2, tile_sgpr=65)
    a("s_lshl_b32 s45, s36, 3\ns_and_b32 s44, s34, 1\ns_lshl_b32 s44, s44, 2\ns_add_u32 s45, s45, s44\ns_add_u32 s46, s46, s45\ns_add_u32 s47, s47, s45")
    set_flag(a, 46, second=47)
    ts(a, "fc1_done")
    a.nvm = 0; a.nlg = 0
    srd(a, 20, 26, 0, D * 2)
    a("v_lshlrev_b32 v58, 3, v4\ns_mul_i32 s40, s36, 160\nv_add_u32 v58, s40, v58")
    for i in range(5): a(f"buffer_load_dwordx2 v[{8+2*i}:{9+2*i}], v58, s[20:23], 0 offen offset:{i*32}")
    set_bases(a, 5)
    flag_line(46, 2, pair=True)
    await_flags(a, 0xFFFFFFFF, 46)
    ts(a, "fc2_ready")
    tile_offs(HB[0], HB[1] - HB[0], 55296, True)
    bl = BL(2048, 10)
    for i in range(10): bl.load(i)
    segs = [(2 * s_, min(27, 2 * s_ + 2)) for s_ in range(14)]
    kloop2(a, F2, 10, 5, 5, segs, bl.regs, A0, A1, 0, 5, before=lambda i: a.wait_vm(bl.tag[i]),
           after=lambda i: bl.load(i + 10) if i + 10 < 27 else None)
    ld.label("ld_fc2")
    LDTS[0] = True
    loader_kloop2(ld, ring, F2, 10, 5, segs, 5)
    ts(a, "fc2_kloop")
    reduce_pair(A0, A1, 5, False)
    loader_bp(ld, ring, None, SL)
    assert ring.I == SLP + RING
    for i in range(5):
        unpack2(a, 48, 49, RES + 2 * i); unpack2(a, 50, 51, RES + 2 * i + 1)
        unpack2(a, 52, 53, 8 + 2 * i); unpack2(a, 54, 55, 8 + 2 * i + 1)
        for r in range(4): a(f"v_add_f32 v{52+r}, v{52+r}, v{A0+4*i+r}")
        for r in range(4): a(f"v_add_f32 v{48+r}, v{48+r}, v{52+r}")
        a(f"v_cvt_pk_bf16_f32 v{RES+2*i}, v48, v49\nv_cvt_pk_bf16_f32 v{RES+2*i+1}, v50, v51")
    a("s_cmp_eq_u32 s37, 0\ns_cbranch_scc0 fc2_last")
    frag_addr(a, 60, 61, 68, 62)
    tile_offs(X2, 0, 20480, False)
    store_tiles(a, [RES + 2 * i for i in range(5)], 5, 60, 61, 8, "s40", 512, "@SC", tmp=48)
    flag_line(46, 3, tile_sgpr=67)
    a("s_lshl_b32 s45, s36, 2\ns_add_u32 s46, s46, s45")
    set_flag(a, 46)
    a("s_branch fc2_fin")
    a.label("fc2_last")
    srd(a, 16, 28, 0, XBYTES)
    a("v_add_u32 v62, s66, v3\nv_mul_u32_u24 v60, 1280, v62\ns_mul_i32 s40, s36, 160\nv_add_u32 v60, s40, v60")
    a("v_lshl_add_u32 v61, v4, 3, v60")
    a("v_and_b32 v62, 1, v4\nv_lshl_add_u32 v60, v62, 5, v60\nv_lshrrev_b32 v62, 1, v4\nv_lshl_add_u32 v60, v62, 4, v60")
    store_tiles(a, [RES + 2 * i for i in range(5)], 5, 60, 61, 16, "0", 32, "", tmp=48)
    a.label("fc2_fin")
    ts(a, "fc2_done")
    a("s_branch layer_end")
    ld("s_branch layer_end")
    a.out += ld.out
    a.label("layer_end")
    if PROFILE:
        a(f"s_cmp_eq_u32 s34, {4 if PROFLD else 0}\ns_cbranch_scc0 prof_skip")
        a(f"s_lshl_b32 s40, s2, 8\ns_lshl_b32 s41, s37, 7\ns_add_u32 s40, s40, s41\ns_add_u32 s40, s40, {TSB}\nv_mov_b32 v8, 0\ns_mov_b64 s[42:43], exec\ns_mov_b64 exec, 1")
        for i in range(Prof.n):
            a(f"v_mov_b32 v9, s{70+i}\nbuffer_store_dword v9, v8, s[8:11], s40 offen offset:{4*i}\ns_nop 0")
        a("s_mov_b64 exec, s[42:43]")
        a.label("prof_skip")
    a(f"s_add_u32 s37, s37, 1\ns_cmp_lt_u32 s37, 2\ns_cbranch_scc1 layer_top")
    a("s_waitcnt vmcnt(0)")
    a("s_endpgm")
    kernel_end(a, name)
    return a.out, descriptor(name, 256), (name, 256, 512, LDS_BYTES)

def build(path, kernels):
    hdr = []
    for k in kernels:
        name, grid, block, lds = k[2]
        hdr.append(f"; @launch kernel={name} grid=({grid},1,1) block=({block},1,1) lds={lds}")
    body = ['.amdgcn_target "amdgcn-amd-amdhsa--gfx950"', ".text"]
    descs = []
    nfix = 0
    for k in kernels:
        lines, n = fix_hazards(k[0])
        nfix += n
        body += lines
        descs.append(k[1])
    txt = "\n".join(hdr) + "\n" + "\n".join(body) + '\n.section .rodata,"a"\n' + "".join(".p2align 6\n" + d for d in descs)
    open(path, "w").write(txt)
    print("written", path, len(txt), "bytes; hazard nops at", nfix, "sites")

if __name__ == "__main__":
    out = [x for x in sys.argv[1:] if x.endswith(".s")]
    build(out[0] if out else "v7.s", [gen_prep(), gen_main()])
    json.dump(dict(WST=WST, CSQ=CSQ, BKV=BKV, CS1=CS1, KVB=KVB, KMAX=KMAX, OB=OB, X1=X1, X2=X2, HB=HB, TSB=TSB, XF=XF, KVF=KVF, TSN=TSN, ver=3, XF0=XF0), open("layout.json", "w"))
```

```python
import sys, math, json, struct
sys.path.insert(0, "gen")
from asmdsl import *

S, D, F, H, DH = 2048, 640, 1728, 32, 20
KB = 1024
PROFSEG = "profseg" in sys.argv
PROFILE = "prof" in sys.argv or "profld" in sys.argv or PROFSEG
PROFLD = "profld" in sys.argv
off = 0
def alloc(n, align=4096):
    global off
    off = (off + align - 1) // align * align
    o = off; off += n; return o
SL = 770
RING = 112
SLP = 784
FQ, FO, F1, F2 = 0, 120, 220, 500
WST = alloc(8 * SL * KB + 16 * KB)
CSQ = alloc(8 * 96 * 4)
BKV = alloc(3 * 16 * 4)
CS1 = alloc(8 * 224 * 4)
FLAGS = alloc(16384 + 4 * 16384 + 4096, 4096)
KVF = FLAGS
XF = FLAGS + 16384
XID = FLAGS + 16384 + 4 * 16384
FLAG_BYTES = 16384 + 4 * 16384 + 4096
KVB = [alloc(64 * 4096), alloc(64 * 4096)]
KMAX = [alloc(1024), alloc(1024)]
OB = [alloc(S * D * 2), alloc(S * D * 2)]
X1 = [alloc(S * D * 2), alloc(S * D * 2)]
HB = [alloc(S * F * 2), alloc(S * F * 2)]
X2 = alloc(S * D * 2)
XF0 = alloc(S * D * 2)
TSB = alloc(256 * 64 * 4)
WS_BYTES = 268435456
XBYTES = S * D * 2
LOG2E = 1.4426950408889634
def f2u(x): return struct.unpack("<I", struct.pack("<f", x))[0]
KVL = RING * KB
LDS_BYTES = 160 * KB
SPIN_MAX = 200000

def srd(a, s, ptr_pair, off, nbytes):
    if off:
        a(f"s_add_u32 s{s}, s{ptr_pair}, {off}")
        a(f"s_addc_u32 s{s+1}, s{ptr_pair+1}, 0")
    else:
        a(f"s_mov_b32 s{s}, s{ptr_pair}")
        a(f"s_mov_b32 s{s+1}, s{ptr_pair+1}")
    a(f"s_mov_b32 s{s+2}, {nbytes}")
    a(f"s_mov_b32 s{s+3}, 0x20000")
def srd_dyn(a, s, ptr_pair, off_sgpr, nbytes):
    a(f"s_add_u32 s{s}, s{ptr_pair}, s{off_sgpr}")
    a(f"s_addc_u32 s{s+1}, s{ptr_pair+1}, 0")
    a(f"s_mov_b32 s{s+2}, {nbytes}")
    a(f"s_mov_b32 s{s+3}, 0x20000")

def kernel_begin(a, name, nwg):
    a(f".globl {name}")
    a(".p2align 8")
    a(f".type {name},@function")
    a.out.append(f"{name}:")
    a(f"s_cmp_ge_u32 s2, {nwg}")
    a(f"s_cbranch_scc1 {name}_exit")
def kernel_end(a, name):
    a.label(f"{name}_exit")
    a("s_endpgm")
def descriptor(name, vgpr, sgpr=102):
    vg = (vgpr + 7) // 8 * 8
    return f""".amdhsa_kernel {name}
  .amdhsa_next_free_vgpr {vg}
  .amdhsa_next_free_sgpr {sgpr}
  .amdhsa_accum_offset {min(vg,256)}
  .amdhsa_group_segment_fixed_size 0
  .amdhsa_kernarg_size 104
  .amdhsa_user_sgpr_count 2
  .amdhsa_user_sgpr_kernarg_segment_ptr 1
  .amdhsa_system_sgpr_workgroup_id_x 1
  .amdhsa_float_denorm_mode_32 3
  .amdhsa_float_denorm_mode_16_64 3
.end_amdhsa_kernel
"""

PSC = " sc1" if "psc1" in sys.argv else (" nt" if "pnt" in sys.argv else (" sc0 sc1" if "psc01" in sys.argv else ""))
def gen_prep():
    a = Asm(); name = "prep_kernel"
    kernel_begin(a, name, 256)
    a("s_load_dwordx2 s[52:53], s[0:1], 0")
    a("s_load_dwordx2 s[4:5], s[0:1], 96")
    a("s_load_dwordx2 s[6:7], s[0:1], 8")
    a("s_load_dwordx4 s[24:27], s[0:1], 16")
    a("s_load_dwordx2 s[28:29], s[0:1], 32")
    a("s_load_dwordx2 s[30:31], s[0:1], 48")
    a("s_load_dwordx2 s[32:33], s[0:1], 64")
    a("v_and_b32 v1, 63, v0")
    a("v_lshrrev_b32 v2, 6, v0")
    a("v_readfirstlane_b32 s34, v2")
    a("v_and_b32 v3, 15, v1")
    a("v_lshrrev_b32 v4, 4, v1")
    a("v_lshlrev_b32 v5, 4, v1")
    a("s_waitcnt lgkmcnt(0)")
    srd(a, 8, 4, 0, WS_BYTES)
    if "cpf2" in sys.argv:
        a("s_cmp_eq_u32 s34, 3\ns_cbranch_scc0 prep_cpf")
        a("s_getpc_b64 s[40:41]")
        a.label("prep_pc")
        a("s_add_u32 s40, s40, main_kernel-prep_pc\ns_addc_u32 s41, s41, 0")
        a("v_lshlrev_b32 v8, 6, v1")
        for i in range(8):
            a(f"global_load_dword v{110}, v8, s[40:41]")
            a("v_add_u32 v8, 4096, v8")
        a.label("prep_cpf")
    srd(a, 12, 52, 0, XBYTES)
    a("s_lshl_b32 s35, s2, 2\ns_add_u32 s35, s35, s34")
    a("v_mul_u32_u24 v7, 1280, v3\nv_lshl_add_u32 v7, v4, 4, v7")
    for q in range(3):
        a(f"s_add_u32 s36, s35, {q*1024}")
        a("s_mul_i32 s37, s36, 3277\ns_lshr_b32 s37, s37, 16")
        a("s_mul_i32 s38, s37, 20\ns_sub_u32 s38, s36, s38")
        a("s_mul_i32 s39, s37, 20480\ns_lshl_b32 s38, s38, 6\ns_add_u32 s39, s39, s38")
        a(f"buffer_load_dwordx4 v[{16+4*q}:{19+4*q}], v7, s[12:15], s39 offen")
        a(f"s_lshl_b32 s{54+q}, s36, 10\ns_add_u32 s{54+q}, s{54+q}, {XF0}")
    a("s_mov_b32 s57, s35")
    xs_n = [0]
    def xstores():
        L = f"prep_xd{xs_n[0]}"; xs_n[0] += 1
        for q in range(3):
            if q == 2: a(f"s_cmp_lt_u32 s57, 512\ns_cbranch_scc0 {L}")
            a(f"buffer_store_dwordx4 v[{16+4*q}:{19+4*q}], v5, s[8:11], s{54+q} offen" + PSC)
        a.label(L)
    a("s_cmp_ge_u32 s2, 252\ns_cbranch_scc0 prep_go")
    a("s_waitcnt vmcnt(0)")
    xstores()
    a("s_branch prep_done")
    a.label("prep_go")
    def gather(voff, srdn, rowbytes, soff_base_sgpr, nfr, ks_stride_bytes):
        for f in range(nfr):
            for jj in range(8):
                a(f"s_add_u32 s40, s{soff_base_sgpr}, {f*ks_stride_bytes + jj*rowbytes}")
                a(f"buffer_load_ushort v{64+8*f+jj}, v{voff}, s[{srdn}:{srdn+3}], s40 offen")
    def pack(nfr):
        a("s_waitcnt vmcnt(0)")
        xstores()
        for f in range(nfr):
            for q in range(4):
                a(f"v_lshl_or_b32 v{32+4*f+q}, v{64+8*f+2*q+1}, 16, v{64+8*f+2*q}")
    def colsum_and_store(dst_soff_sgpr, dst_ks_stride, cs_off_sgpr):
        a("v_mov_b32 v132, 0x3f803f80\nv_mov_b32 v133, 0x3f803f80\nv_mov_b32 v134, 0x3f803f80\nv_mov_b32 v135, 0x3f803f80")
        pack(5)
        for f in range(5):
            a(f"s_add_u32 s40, s{dst_soff_sgpr}, {f*dst_ks_stride}")
            a(f"buffer_store_dwordx4 v[{32+4*f}:{35+4*f}], v5, s[8:11], s40 offen" + PSC)
            a(f"v_mfma_f32_16x16x32_bf16 v[28:31], v[{32+4*f}:{35+4*f}], v[132:135], " + ("0" if f == 0 else "v[28:31]"))
        a("v_lshlrev_b32 v6, 4, v4")
        a("s_lshl_b32 s41, s34, 6")
        a("v_add_u32 v6, s41, v6")
        a("v_cmp_eq_u32 vcc, 0, v3")
        a("s_and_saveexec_b64 s[42:43], vcc")
        a("ds_write_b128 v6, v[28:31]")
        a("s_mov_b64 exec, s[42:43]")
        a("s_waitcnt lgkmcnt(0)")
        a("s_barrier")
        a("v_lshlrev_b32 v6, 2, v0")
        a("v_cmp_gt_u32 vcc, 16, v0")
        a("s_and_saveexec_b64 s[42:43], vcc")
        a(f"s_cbranch_execz {name}_exit")
        a("ds_read_b32 v7, v6\nds_read_b32 v8, v6 offset:64\nds_read_b32 v9, v6 offset:128\nds_read_b32 v10, v6 offset:192")
        a("s_waitcnt lgkmcnt(0)")
        a("v_add_f32 v7, v7, v8\nv_add_f32 v9, v9, v10\nv_add_f32 v7, v7, v9")
        a(f"buffer_store_dword v7, v6, s[8:11], s{cs_off_sgpr} offen")
        a("s_waitcnt vmcnt(0)")
        a("s_endpgm")
    a("s_cmp_lt_u32 s2, 40\ns_cbranch_scc1 prep_wq")
    a("s_cmp_lt_u32 s2, 43\ns_cbranch_scc1 prep_kv")
    a("s_cmp_lt_u32 s2, 151\ns_cbranch_scc1 prep_w1")
    a("s_branch prep_plain")
    a.label("prep_wq")
    srd(a, 12, 6, 0, D * D * 2)
    a("s_mul_i32 s35, s2, 52429\ns_lshr_b32 s35, s35, 18")
    a("s_mul_i32 s36, s35, 5\ns_sub_u32 s36, s2, s36")
    a("v_mul_u32_u24 v7, 10240, v4")
    a("s_lshl_b32 s37, s2, 5")
    a("v_lshl_add_u32 v7, v3, 1, v7\nv_add_u32 v7, s37, v7")
    a(f"s_mul_i32 s38, s34, {5*32*1280}")
    gather(7, 12, 1280, 38, 5, 32 * 1280)
    a(f"s_mul_i32 s44, s35, {SL*KB}\ns_mul_i32 s45, s34, {30*KB}\ns_add_u32 s44, s44, s45\ns_lshl_b32 s45, s36, 10\ns_add_u32 s44, s44, s45\ns_add_u32 s44, s44, {WST + FQ*KB}")
    a(f"s_mul_i32 s46, s35, 384\ns_lshl_b32 s45, s36, 6\ns_add_u32 s46, s46, s45\ns_add_u32 s46, s46, {CSQ}")
    colsum_and_store(44, 6 * KB, 46)
    a.label("prep_kv")
    srd(a, 12, 24, 0, D * DH * 2)
    srd(a, 16, 26, 0, D * DH * 2)
    a("s_sub_u32 s35, s2, 40")
    for r in range(64, 104): a(f"v_mov_b32 v{r}, 0")
    BIG = 0x40000000
    a("v_and_b32 v8, 3, v3\nv_lshrrev_b32 v9, 2, v3")
    a("s_cmp_eq_u32 s35, 0\ns_cbranch_scc1 prep_kv0")
    a("s_cmp_eq_u32 s35, 1\ns_cbranch_scc1 prep_kv1")
    a(f"v_mov_b32 v10, {BIG}\nv_mov_b32 v11, {BIG}")
    a("v_lshlrev_b32 v12, 1, v3\nv_add_u32 v12, 32, v12")
    a("v_cmp_gt_u32 vcc, 4, v3\nv_cndmask_b32 v10, v10, v12, vcc")
    a("v_lshlrev_b32 v12, 1, v8")
    a("v_add_u32 v13, 16, v12\nv_add_u32 v14, 36, v12")
    a("v_cmp_eq_u32 vcc, 1, v9\nv_cndmask_b32 v11, v11, v13, vcc")
    a("v_cmp_eq_u32 vcc, 2, v9\nv_cndmask_b32 v11, v11, v14, vcc")
    a(f"v_mov_b32 v12, {BIG}\nv_cmp_lt_u32 vcc, 1, v8\nv_cndmask_b32 v11, v11, v12, vcc")
    a("s_branch prep_kvgo")
    a.label("prep_kv0")
    a(f"v_lshlrev_b32 v10, 1, v3\nv_mov_b32 v11, {BIG}")
    a("s_branch prep_kvgo")
    a.label("prep_kv1")
    a(f"v_mov_b32 v10, {BIG}")
    a("v_mov_b32 v11, 0\nv_cmp_eq_u32 vcc, 1, v9\nv_cndmask_b32 v11, v11, 10, vcc")
    a("v_cmp_eq_u32 vcc, 2, v9\nv_cndmask_b32 v11, v11, 4, vcc")
    a("v_cmp_eq_u32 vcc, 3, v9\nv_cndmask_b32 v11, v11, 14, vcc")
    a("v_add_u32 v11, v11, v8\nv_lshlrev_b32 v11, 1, v11")
    a.label("prep_kvgo")
    a("v_mul_u32_u24 v12, 320, v4")
    a("v_add_u32 v10, v10, v12\nv_add_u32 v11, v11, v12")
    a(f"s_mul_i32 s38, s34, {5*32*40}")
    a(f"v_cmp_gt_u32 vcc, {BIG}, v10\ns_and_saveexec_b64 s[48:49], vcc")
    a("s_cbranch_execz prep_kv_skipk")
    gather(10, 12, 40, 38, 5, 32 * 40)
    a.label("prep_kv_skipk")
    a("s_mov_b64 exec, s[48:49]")
    a(f"v_cmp_gt_u32 vcc, {BIG}, v11\ns_and_saveexec_b64 s[48:49], vcc")
    a("s_cbranch_execz prep_kv_skipv")
    gather(11, 16, 40, 38, 5, 32 * 40)
    a.label("prep_kv_skipv")
    a("s_mov_b64 exec, s[48:49]")
    a(f"s_mul_i32 s44, s35, {SL*KB}\ns_mul_i32 s45, s34, {30*KB}\ns_add_u32 s44, s44, s45\ns_add_u32 s44, s44, {WST + (FQ+5)*KB}")
    a(f"s_mul_i32 s46, s35, 384\ns_add_u32 s46, s46, {CSQ + 5*64}")
    colsum_and_store(44, 6 * KB, 46)
    a.label("prep_w1")
    srd(a, 12, 30, 0, D * F * 2)
    a("s_sub_u32 s35, s2, 43")
    a("s_mul_i32 s36, s35, 2428\ns_lshr_b32 s36, s36, 16")
    a("s_mul_i32 s37, s36, 27\ns_sub_u32 s37, s35, s37")
    a("s_lshl_b32 s36, s36, 1")
    a("s_cmp_ge_u32 s37, 14\ns_cbranch_scc0 prep_w1a")
    a("s_add_u32 s36, s36, 1\ns_sub_u32 s37, s37, 14")
    a.label("prep_w1a")
    a("v_mul_u32_u24 v7, 27648, v4")
    a("s_lshl_b32 s39, s35, 5")
    a("v_lshl_add_u32 v7, v3, 1, v7\nv_add_u32 v7, s39, v7")
    a(f"s_mul_i32 s38, s34, {5*32*3456}")
    gather(7, 12, 3456, 38, 5, 32 * 3456)
    a(f"s_mul_i32 s44, s36, {SL*KB}\ns_mul_i32 s45, s34, {5*14*KB}\ns_add_u32 s44, s44, s45\ns_lshl_b32 s45, s37, 10\ns_add_u32 s44, s44, s45\ns_add_u32 s44, s44, {WST + F1*KB}")
    a(f"s_mul_i32 s46, s36, 896\ns_lshl_b32 s45, s37, 6\ns_add_u32 s46, s46, s45\ns_add_u32 s46, s46, {CS1}")
    colsum_and_store(44, 14 * KB, 46)
    a.label("prep_plain")
    a("s_sub_u32 s35, s2, 151\ns_lshl_b32 s35, s35, 2\ns_add_u32 s35, s35, s34")
    a("s_cmp_lt_u32 s35, 120\ns_cbranch_scc1 prep_wo")
    a("s_sub_u32 s35, s35, 120")
    a("s_cmp_ge_u32 s35, 280\ns_cbranch_scc1 prep_bias")
    srd(a, 12, 32, 0, F * D * 2)
    a(f"s_mov_b32 s50, {WST + F2*KB}\ns_mov_b32 s51, 6\ns_mov_b32 s52, 2")
    a("s_branch prep_pl2")
    a.label("prep_wo")
    srd(a, 12, 28, 0, D * D * 2)
    a(f"s_mov_b32 s50, {WST + FO*KB}\ns_mov_b32 s51, 2\ns_mov_b32 s52, 0")
    a.label("prep_pl2")
    a("s_mul_i32 s36, s35, 1639\ns_lshr_b32 s36, s36, 16")
    a("s_mul_i32 s37, s36, 40\ns_sub_u32 s37, s35, s37")
    a("s_mul_i32 s38, s37, 52429\ns_lshr_b32 s38, s38, 18")
    a("s_mul_i32 s39, s38, 5\ns_sub_u32 s39, s37, s39")
    a("v_mul_u32_u24 v7, 10240, v4")
    a("s_lshl_b32 s45, s37, 5")
    a("v_lshl_add_u32 v7, v3, 1, v7\nv_add_u32 v7, s45, v7")
    a(f"s_mul_i32 s44, s38, {SL*KB}\ns_add_u32 s44, s44, s50\ns_mul_i32 s45, s36, {40*KB}\ns_add_u32 s44, s44, s45\ns_lshl_b32 s45, s39, 10\ns_add_u32 s44, s44, s45")
    a(f"s_mul_i32 s38, s36, {8*32*1280}")
    gather(7, 12, 1280, 38, 8, 32 * 1280)
    pack(8)
    for f in range(8):
        if f >= 4:
            a(f"s_cmp_eq_u32 s36, s51\ns_cbranch_scc0 prep_st{f}")
            a(f"s_cmp_gt_u32 s52, {f-4}\ns_cbranch_scc0 prep_done")
            a.label(f"prep_st{f}")
        a(f"s_add_u32 s40, s44, {f*5*KB}")
        a(f"buffer_store_dwordx4 v[{32+4*f}:{35+4*f}], v5, s[8:11], s40 offen" + PSC)
    a.label("prep_done")
    a("s_waitcnt vmcnt(0)")
    a("s_endpgm")
    a.label("prep_bias")
    a("s_waitcnt vmcnt(0)")
    xstores()
    a("v_mov_b32 v8, 0\nv_mov_b32 v9, 0\nv_mov_b32 v10, 0\nv_mov_b32 v11, 0")
    a("v_lshlrev_b32 v6, 4, v0")
    nz = FLAG_BYTES // 4096
    for r in range(nz):
        a(f"s_mov_b32 s40, {FLAGS + r*4096}\nbuffer_store_dwordx4 v[8:11], v6, s[8:11], s40 offen")
    a("s_cmp_eq_u32 s35, 280\ns_cbranch_scc0 prep_done2")
    a("v_mov_b32 v7, 0")
    for idx in (32 + 6, 32 + 10, 32 + 12, 32 + 13):
        a(f"v_cmp_eq_u32 vcc, {idx}, v1\nv_cndmask_b32 v7, v7, 1.0, vcc")
    a("v_lshlrev_b32 v6, 2, v1\nv_cmp_gt_u32 vcc, 48, v1\ns_and_saveexec_b64 s[42:43], vcc")
    a(f"s_mov_b32 s40, {BKV}\nbuffer_store_dword v7, v6, s[8:11], s40 offen")
    a.label("prep_done2")
    a("s_waitcnt vmcnt(0)")
    a("s_endpgm")
    kernel_end(a, name)
    return a.out, descriptor(name, 144), (name, 256, 256, 1024)

VB, VA, VST, VSO, VONE, RES = 64, 144, 36, 44, 52, 246

class Prof:
    n = 0
LDTS = [False]
SEGTS = [False]
def ts(a, label, loader=False, seg=False):
    if not PROFILE: return
    if PROFLD != loader: return
    if PROFSEG != seg: return
    if Prof.n >= 26: return
    i = Prof.n; Prof.n += 1
    assert i < 26, i
    a(f"s_memtime s[98:99]\ns_waitcnt lgkmcnt(0)\ns_mov_b32 s{70+i}, s98")
    TSN.append(label)
TSN = []

def unpack2(a, dlo, dhi, src):
    a(f"v_lshlrev_b32 v{dlo}, 16, v{src}")
    a(f"v_and_b32 v{dhi}, 0xffff0000, v{src}")

uid = [0]
def newlab(p):
    uid[0] += 1
    return f"{p}_{uid[0]}"

def await_flags(a, mask, off_sgpr, vtmp=56):
    L, Dn = newlab("poll"), newlab("polld")
    a(f"v_lshlrev_b32 v{vtmp}, 2, v1")
    a(f"s_mov_b64 s[42:43], exec\ns_mov_b64 exec, {mask:#x}\ns_mov_b32 s44, 0")
    a.label(L)
    a(f"buffer_load_dword v{vtmp+1}, v{vtmp}, s[8:11], s{off_sgpr} offen sc1")
    a("s_add_u32 s44, s44, 1")
    a("s_waitcnt vmcnt(0)")
    a(f"v_cmp_eq_u32 vcc, 0, v{vtmp+1}")
    a(f"s_cmp_eq_u64 vcc, 0\ns_cbranch_scc1 {Dn}")
    a(f"s_cmp_gt_u32 s44, {SPIN_MAX}\ns_cbranch_scc1 {Dn}")
    a(f"s_sleep 1\ns_branch {L}")
    a.label(Dn)
    a("s_mov_b64 exec, s[42:43]")

def set_flag(a, off_sgpr, vtmp=56, second=None):
    L1, L2 = newlab("sf"), newlab("sf")
    a("s_waitcnt vmcnt(0)")
    a(f"v_mov_b32 v{vtmp}, 0\nv_mov_b32 v{vtmp+1}, 1")
    a("s_mov_b64 s[42:43], exec\ns_mov_b64 exec, 1")
    a(f"s_cmp_eq_u32 s59, 1\ns_cbranch_scc1 {L1}")
    a(f"buffer_store_dword v{vtmp+1}, v{vtmp}, s[8:11], s{off_sgpr} offen sc1")
    if second is not None: a(f"buffer_store_dword v{vtmp+1}, v{vtmp}, s[8:11], s{second} offen sc1")
    a(f"s_branch {L2}")
    a.label(L1)
    a(f"buffer_store_dword v{vtmp+1}, v{vtmp}, s[8:11], s{off_sgpr} offen")
    if second is not None: a(f"buffer_store_dword v{vtmp+1}, v{vtmp}, s[8:11], s{second} offen")
    a.label(L2)
    a("s_mov_b64 exec, s[42:43]")

def xstore(a, text):
    L1, L2 = newlab("xs"), newlab("xs")
    a(f"s_cmp_eq_u32 s59, 1\ns_cbranch_scc1 {L1}")
    a(text.replace("@SC", "sc1"))
    a(f"s_branch {L2}")
    a.label(L1)
    a(text.replace("@SC", ""))
    a.label(L2)

def xf_off(a, dst, kind, extra_sgpr=None, extra_imm=0):
    a(f"s_lshl_b32 s{dst}, s37, 13\ns_lshl_b32 s45, s35, 8\ns_add_u32 s{dst}, s{dst}, s45")
    a(f"s_and_b32 s45, s34, 3\ns_lshl_b32 s45, s45, 6\ns_add_u32 s{dst}, s{dst}, s45")
    a(f"s_add_u32 s{dst}, s{dst}, {XF + kind*16384 + extra_imm}")
    if extra_sgpr is not None: a(f"s_add_u32 s{dst}, s{dst}, s{extra_sgpr}")

class Ring:
    def __init__(self):
        self.I = RING
        self.q = [f for f in range(0, RING, 16) for _ in range(4)]
    def drained(self): self.q = []
def loader_issue(a, frm, upto, ring=None):
    assert frm % 16 == 0 and upto % 16 == 0
    skip = None
    for f in range(frm, upto, 16):
        if f == SLP or (f > SLP and f == frm):
            skip = newlab("ldsk")
            a(f"s_cmp_eq_u32 s37, 1\ns_cbranch_scc1 {skip}")
        a(f"s_add_u32 m0, s69, {(f % RING) * KB}")
        a(f"s_add_u32 s44, s60, {(f % SLP) * KB}")
        for q in range(4):
            if "noW" not in sys.argv: a(f"buffer_load_dwordx4 v5, s[8:11], s44 offen offset:{q*1024} lds")
            if ring is not None and f < SLP: ring.q.append(f)
    if skip: a.label(skip)

def touch(a, ring, frag0, n, per_wave_sgpr=69):
    a("v_lshlrev_b32 v58, 7, v1")
    a(f"s_mul_i32 s45, s69, {2*n}\ns_sub_u32 s45, s45, s69\ns_add_u32 s45, s45, s60")
    for i in range(n):
        a(f"s_add_u32 s44, s45, {(frag0 + 8*i) * KB}")
        a(f"buffer_load_dword v59, v58, s[8:11], s44 offen")
        if ring is not None: ring.q.append(None)

def loader_bp(a, ring, need, consumed, cap=None):
    if LDTS[0] and Prof.n < 22: ts(a, "w0", True)
    if need is not None:
        assert need <= ring.I, (need, ring.I)
        last = -1
        for i, f in enumerate(ring.q):
            if f is not None and f < need: last = i
        if last >= 0:
            n = len(ring.q) - 1 - last
            a(f"s_waitcnt vmcnt({min(n,63)})")
            ring.q = ring.q[last + 1:]
    if LDTS[0] and Prof.n < 22: ts(a, "vm", True)
    a("s_barrier")
    if LDTS[0] and Prof.n < 22: ts(a, "bar", True)
    if consumed >= SL: consumed = SLP
    upto = (consumed + RING) // 16 * 16
    if cap is not None: upto = min(upto, (cap + 15) // 16 * 16)
    if upto > ring.I:
        loader_issue(a, ring.I, upto, ring)
        ring.I = upto

def stats_finalize(a, accS, accQ, vRho, vMu, tmp, double_ln):
    t0, t1, t2, t3 = tmp, tmp + 1, tmp + 2, tmp + 3
    a(f"v_and_b32 v{t0}, 3, v1")
    a(f"v_mov_b32 v{t1}, v{accQ}")
    for r in (1, 2, 3):
        a(f"v_cmp_eq_u32 vcc, {r}, v{t0}")
        a(f"v_cndmask_b32 v{t1}, v{t1}, v{accQ+r}, vcc")
    a(f"v_lshrrev_b32 v{t2}, 2, v3\nv_lshlrev_b32 v{t2}, 4, v{t2}\nv_add_u32 v{t2}, v{t2}, v3\nv_lshlrev_b32 v{t2}, 2, v{t2}")
    a(f"ds_bpermute_b32 v{t1}, v{t2}, v{t1}")
    a(f"v_mul_f32 v{t0}, {f2u(1.0/D):#x}, v{accS}")
    a("s_waitcnt lgkmcnt(0)")
    a(f"v_mul_f32 v{t1}, {f2u(1.0/D):#x}, v{t1}")
    a(f"v_fma_f32 v{t1}, -v{t0}, v{t0}, v{t1}")
    a(f"v_max_f32 v{t1}, 0, v{t1}")
    a(f"v_add_f32 v{t2}, {f2u(1e-5):#x}, v{t1}")
    a(f"v_rsq_f32 v{t2}, v{t2}")
    if double_ln:
        a(f"v_mul_f32 v{t3}, v{t2}, v{t2}")
        a(f"v_mul_f32 v{t3}, v{t3}, v{t1}")
        a(f"v_add_f32 v{t3}, {f2u(1e-5):#x}, v{t3}")
        a(f"v_rsq_f32 v{t3}, v{t3}")
        a(f"v_mul_f32 v{t2}, v{t2}, v{t3}")
    a(f"v_mov_b32 v{vRho}, v{t2}")
    a(f"v_mul_f32 v{vMu}, v{t0}, v{t2}")

def set_bases(a, delta):
    a(f"s_and_b32 s45, s34, 1\ns_mul_i32 s44, s45, {delta*KB}\nv_add_u32 v6, s44, v5\nv_add_u32 v7, 0x10000, v6")
    a(f"s_xor_b32 s45, s45, 1\ns_mul_i32 s44, s45, {(RING-delta)*KB}\nv_add_u32 v2, s44, v5")
def rdA(a, f0, delta, reg):
    o = f0 % RING
    if o + delta < RING:
        ob = o * KB
        base = 6 if ob < 65536 else 7
        return a.lg(f"ds_read_b128 v[{reg}:{reg+3}], v{base} offset:{ob % 65536}")
    return a.lg(f"ds_read_b128 v[{reg}:{reg+3}], v2 offset:{(o - (RING - delta)) * KB}")

def make_units(nA, segs, G):
    return [(i, t0, min(nA, t0 + G), si) for si, (i0, i1) in enumerate(segs) for i in range(i0, i1) for t0 in range(0, nA, G)]

def kloop2(a, fbase, span, delta, nA, segs, breg, acc0, acc1, stats, G, before=None, after=None):
    units = make_units(nA, segs, G)
    def read1(u, buf, k):
        i, t0, t1, si = u
        if "noR" in sys.argv and i > 0: return a.nlg
        return rdA(a, fbase + i * span + t0 + k, delta, VA + (buf * G + k) * 4)
    a("s_barrier")
    pend = [read1(units[0], 0, k) for k in range(units[0][2] - units[0][1])]
    for n, u in enumerate(units):
        i, t0, t1, si = u
        nu = units[n + 1] if n + 1 < len(units) else None
        if nu is not None and nu[3] != si:
            if SEGTS[0]: ts(a, "preb", seg=True)
            a("s_barrier")
            if SEGTS[0]: ts(a, "bar", seg=True)
        if t0 == 0 and before: before(i)
        if SEGTS[0] and nu is not None and nu[3] != si: ts(a, "vm", seg=True)
        b0, b1 = breg(i)
        def m(d, A, B):
            c = "0" if i == 0 else f"v[{d}:{d+3}]"
            if "noM" in sys.argv and i > 0: return
            a(f"v_mfma_f32_16x16x32_bf16 v[{d}:{d+3}], v[{A}:{A+3}], v[{B}:{B+3}], {c}")
        nn = (nu[2] - nu[1]) if nu is not None else 0
        nxt = []
        for t in range(t0, t1):
            ra = VA + ((n % 2) * G + t - t0) * 4
            a.wait_lg(pend[t - t0])
            m(acc0 + 4 * t, ra, b0)
            if len(nxt) < nn: nxt.append(read1(nu, (n + 1) % 2, len(nxt)))
            m(acc1 + 4 * t, ra, b1)
            if len(nxt) < nn and (t - t0) % 2 == 0 and nn > (t1 - t0): nxt.append(read1(nu, (n + 1) % 2, len(nxt)))
        while len(nxt) < nn: nxt.append(read1(nu, (n + 1) % 2, len(nxt)))
        if stats and t1 == nA:
            m(VST, VONE, b0); m(VST + 4, b0, b0)
            if stats == 2: m(VSO, VONE, b1); m(VSO + 4, b1, b1)
        pend = nxt
        if t1 == nA and after: after(i)

def loader_kloop2(a, ring, fbase, span, nA, segs, G):
    units = make_units(nA, segs, G)
    cap = None if "nocap" in sys.argv else fbase + segs[-1][1] * span
    loader_bp(a, ring, fbase + segs[0][1] * span, fbase, cap)
    for n, u in enumerate(units):
        nu = units[n + 1] if n + 1 < len(units) else None
        if nu is not None and nu[3] != u[3]:
            loader_bp(a, ring, fbase + segs[nu[3]][1] * span, fbase + u[0] * span, cap)

def store_tiles(a, srcs, ntiles, vaddr16, vaddr8, srd_, soff, imm_stride, sc, tmp=56):
    st = []
    i = 0
    while i < ntiles:
        if i + 1 < ntiles:
            t = tmp + 4 * ((i // 2) % 2)
            a(f"v_mov_b32 v{t}, v{srcs[i]}\nv_mov_b32 v{t+1}, v{srcs[i]+1}\nv_mov_b32 v{t+2}, v{srcs[i+1]}\nv_mov_b32 v{t+3}, v{srcs[i+1]+1}")
            a(f"v_permlane16_swap_b32 v{t}, v{t+2}\nv_permlane16_swap_b32 v{t+1}, v{t+3}")
            st.append(f"buffer_store_dwordx4 v[{t}:{t+3}], v{vaddr16}, s[{srd_}:{srd_+3}], {soff} offen offset:{i*imm_stride} {sc}")
            i += 2
        else:
            st.append(f"buffer_store_dwordx2 v[{srcs[i]}:{srcs[i]+1}], v{vaddr8}, s[{srd_}:{srd_+3}], {soff} offen offset:{i*imm_stride} {sc}")
            i += 1
    if sc == "@SC": xstore(a, "\n".join(st))
    else: a("\n".join(st))

def frag_addr(a, v16, v8, Tsgpr, tmp):
    a(f"v_lshrrev_b32 v{v8}, 1, v4\nv_lshlrev_b32 v{v8}, 8, v{v8}\nv_lshl_add_u32 v{v8}, v3, 4, v{v8}")
    a(f"s_lshl_b32 s45, s{Tsgpr}, 9\nv_add_u32 v{v8}, s45, v{v8}")
    a(f"v_and_b32 v{tmp}, 1, v4\nv_lshl_add_u32 v{v16}, v{tmp}, 9, v{v8}\nv_lshl_add_u32 v{v8}, v{tmp}, 3, v{v8}")

def code_prefetch(a, first, last, wave, nkb=32):
    L = newlab("cpf")
    a(f"s_cmp_eq_u32 s34, {wave}\ns_cbranch_scc0 {L}")
    a(f"s_getpc_b64 s[40:41]")
    here = newlab("pc"); a.label(here)
    a(f"s_sub_u32 s40, s40, {here}-{first}\ns_subb_u32 s41, s41, 0")
    a("v_lshlrev_b32 v8, 6, v1")
    for i in range(nkb // 4):
        a(f"global_load_dword v{10+i}, v8, s[40:41]")
        a("v_add_u32 v8, 4096, v8")
    a.label(L)

def gen_main():
    a = Asm(); name = "main_kernel"
    kernel_begin(a, name, 256)
    a("s_load_dwordx2 s[4:5], s[0:1], 96")
    a("s_load_dwordx2 s[6:7], s[0:1], 0")
    a("s_load_dwordx2 s[24:25], s[0:1], 56")
    a("s_load_dwordx4 s[28:31], s[0:1], 72")
    a("v_and_b32 v1, 63, v0")
    a("v_lshrrev_b32 v2, 6, v0")
    a("v_readfirstlane_b32 s34, v2")
    a("v_and_b32 v3, 15, v1\nv_lshrrev_b32 v4, 4, v1\nv_lshlrev_b32 v5, 4, v1")
    a("s_and_b32 s35, s2, 31\ns_lshr_b32 s36, s2, 5\ns_mov_b32 s37, 0")
    a("s_waitcnt lgkmcnt(0)")
    a("s_mov_b32 s26, s28\ns_mov_b32 s27, s29\ns_mov_b32 s28, s30\ns_mov_b32 s29, s31")
    srd(a, 8, 4, 0, WS_BYTES)
    a("s_lshl_b32 s67, s35, 2\ns_and_b32 s38, s34, 3\ns_add_u32 s67, s67, s38\ns_lshl_b32 s66, s67, 4\ns_xor_b32 s65, s67, 1\ns_mul_i32 s68, s36, 5")
    a(f"s_lshl_b32 s69, s38, 12\ns_mul_i32 s60, s36, {SL*KB}\ns_add_u32 s60, s60, s69\ns_add_u32 s60, s60, {WST}")
    a("s_mov_b32 s59, 0\ns_getreg_b32 s58, hwreg(HW_REG_XCC_ID, 0, 4)\ns_add_u32 s58, s58, 1")
    a("s_cmp_eq_u32 s34, 0\ns_cbranch_scc0 pro_x")
    a(f"s_lshl_b32 s40, s35, 5\ns_lshl_b32 s41, s36, 2\ns_add_u32 s40, s40, s41\ns_add_u32 s40, s40, {XID}\nv_mov_b32 v8, 0\nv_mov_b32 v9, s58")
    a("s_mov_b64 s[42:43], exec\ns_mov_b64 exec, 1\nbuffer_store_dword v9, v8, s[8:11], s40 offen sc1\ns_mov_b64 exec, s[42:43]")
    a.label("pro_x")
    ts(a, "start")
    if "cpf" in sys.argv:
        code_prefetch(a, "main_kernel", "main_kernel_exit", 7)
    a("s_cmp_ge_u32 s34, 4\ns_cbranch_scc0 pro_c")
    loader_issue(a, 0, RING)
    a("s_branch pro_d")
    a.label("pro_c")
    a("v_add_u32 v6, s66, v3")
    a("v_mul_u32_u24 v56, 1280, v6\nv_lshl_add_u32 v56, v4, 3, v56\ns_mul_i32 s40, s36, 160\nv_add_u32 v56, s40, v56")
    srd(a, 12, 6, 0, XBYTES)
    for i in range(5):
        a(f"buffer_load_dwordx2 v[{RES+2*i}:{RES+2*i+1}], v56, s[12:15], 0 offen offset:{i*32}")
    a.label("pro_d")
    a.label("layer_top")
    ring = Ring()
    ld = Asm()
    def tile_offs(base_imm, layer_stride, tile_bytes, ksplit):
        a(f"s_mul_i32 s40, s67, {tile_bytes}\ns_mul_i32 s41, s65, {tile_bytes}")
        if layer_stride:
            a(f"s_mul_i32 s45, s37, {layer_stride}\ns_add_u32 s45, s45, {base_imm}")
        else:
            a(f"s_mov_b32 s45, {base_imm}")
        if ksplit:
            a("s_and_b32 s44, s34, 1\ns_lshl_b32 s44, s44, 10\ns_add_u32 s45, s45, s44")
        a("s_add_u32 s40, s40, s45\ns_add_u32 s41, s41, s45")
    class BL:
        def __init__(self, stride, nslots): self.stride, self.n, self.tag, self.cur = stride, nslots, {}, 0
        def regs(self, i): r = VB + 8 * (i % self.n); return (r, r + 4)
        def load(self, i):
            o = i * self.stride
            if o - self.cur > 4095 - 1023 * 0 or o - self.cur >= 4096:
                d = (o - self.cur) // 4096 * 4096
                a(f"s_add_u32 s40, s40, {d}\ns_add_u32 s41, s41, {d}"); self.cur += d
            r0, r1 = self.regs(i)
            if "noB" in sys.argv and i >= 2:
                self.tag[i] = a.nvm; return
            a.vm(f"buffer_load_dwordx4 v[{r0}:{r0+3}], v5, s[8:11], s40 offen offset:{o - self.cur} sc1")
            self.tag[i] = a.vm(f"buffer_load_dwordx4 v[{r1}:{r1+3}], v5, s[8:11], s41 offen offset:{o - self.cur} sc1")
    def flag_line(dst, kind, tile_sgpr=None, pair=False, layer_delta=0):
        a(f"s_lshl_b32 s{dst}, s37, 13")
        if pair: a(f"s_and_b32 s45, s67, -2\ns_lshl_b32 s45, s45, 6")
        else: a(f"s_lshl_b32 s45, s{tile_sgpr}, 6")
        a(f"s_add_u32 s{dst}, s{dst}, s45\ns_add_u32 s{dst}, s{dst}, {XF + kind*16384 + layer_delta}")
    def reduce_pair(acc0, acc1, NT, stats):
        a(f"s_and_b32 s45, s34, 3\ns_lshl_b32 s44, s45, 13\ns_add_u32 s44, s44, {KVL}\nv_add_u32 v56, s44, v5")
        for t in range(NT): a(f"ds_write_b128 v56, v[{acc1+4*t}:{acc1+4*t+3}] offset:{t*1024}")
        if stats:
            a(f"ds_write_b128 v56, v[{VSO}:{VSO+3}] offset:{6*1024}\nds_write_b128 v56, v[{VSO+4}:{VSO+7}] offset:{7*1024}")
        a(f"s_xor_b32 s45, s45, 1\ns_lshl_b32 s44, s45, 13\ns_add_u32 s44, s44, {KVL}\nv_add_u32 v57, s44, v5")
        a("s_waitcnt lgkmcnt(0)\ns_barrier")
        for t in range(NT): a(f"ds_read_b128 v[{VA+4*t}:{VA+4*t+3}], v57 offset:{t*1024}")
        if stats:
            a(f"ds_read_b128 v[{VSO}:{VSO+3}], v57 offset:{6*1024}\nds_read_b128 v[{VSO+4}:{VSO+7}], v57 offset:{7*1024}")
        a("s_waitcnt lgkmcnt(0)")
        for t in range(NT * 4): a(f"v_add_f32 v{acc0+t}, v{acc0+t}, v{VA+t}")
        if stats:
            for t in range(8): a(f"v_add_f32 v{VST+t}, v{VST+t}, v{VSO+t}")
    ones = lambda: a("v_mov_b32 v52, 0x3f803f80\nv_mov_b32 v53, 0x3f803f80\nv_mov_b32 v54, 0x3f803f80\nv_mov_b32 v55, 0x3f803f80")
    A0, A1 = 192, 216
    a("s_cmp_ge_u32 s34, 4\ns_cbranch_scc1 ld_qkv")
    a.nvm = 0; a.nlg = 0
    a(f"s_mul_i32 s45, s36, 384\ns_add_u32 s45, s45, {CSQ}\nv_lshlrev_b32 v58, 4, v4")
    for i in range(6): a(f"buffer_load_dwordx4 v[{8+4*i}:{8+4*i+3}], v58, s[8:11], s45 offen offset:{i*64}")
    a(f"s_min_u32 s46, s36, 2\ns_lshl_b32 s46, s46, 6\ns_add_u32 s46, s46, {BKV}")
    a(f"buffer_load_dwordx4 v[32:35], v58, s[8:11], s46 offen")
    ones(); set_bases(a, 6)
    a("s_cmp_eq_u32 s37, 0\ns_cbranch_scc1 qkv_l0")
    flag_line(46, 3, pair=True, layer_delta=-8192)
    await_flags(a, 0x00FF00FF, 46)
    a.label("qkv_l0")
    ts(a, "qkv_ready")
    tile_offs(XF0, X2 - XF0, 20480, True)
    bl = BL(2048, 10)
    for i in range(10): bl.load(i)
    segs = [(0, 2), (2, 4), (4, 6), (6, 8), (8, 10)]
    kloop2(a, FQ, 12, 6, 6, segs, bl.regs, A0, A1, 2, 6, before=lambda i: a.wait_vm(bl.tag[i]))
    ld.label("ld_qkv")
    loader_kloop2(ld, ring, FQ, 12, 6, segs, 6)
    ts(a, "qkv_kloop")
    reduce_pair(A0, A1, 6, True)
    ld("s_barrier")
    stats_finalize(a, VST, VST + 4, 60, 61, 56, False)
    qs = DH ** -0.5 * LOG2E
    a(f"v_mul_f32 v62, {f2u(qs):#x}, v60\nv_mul_f32 v63, {f2u(qs):#x}, v61")
    a("s_cmp_lt_u32 s36, 3\ns_cbranch_scc0 qkv_nokv")
    i = 5
    for r in range(4):
        a(f"v_fma_f32 v{48+r}, -v61, v{8+4*i+r}, v{32+r}")
        a(f"v_fma_f32 v{48+r}, v60, v{A0+4*i+r}, v{48+r}")
    a("v_cvt_pk_bf16_f32 v52, v48, v49\nv_cvt_pk_bf16_f32 v53, v50, v51")
    a("s_and_b32 s38, s34, 1")
    a(f"s_and_b32 s41, s34, 3\ns_lshl_b32 s41, s41, 10\ns_add_u32 s41, s41, {KVL + 32*KB}")
    a(f"s_lshr_b32 s47, s67, 1\ns_lshl_b32 s47, s47, 12\ns_mul_i32 s48, s37, {KVB[1]-KVB[0]}\ns_add_u32 s47, s47, s48\ns_add_u32 s47, s47, {KVB[0]}")
    def vwrite(rowoff, hstride):
        a(f"v_bfe_u32 v54, v3, 2, 1\nv_mul_u32_u24 v54, {hstride}, v54")
        a("v_bfe_u32 v55, v3, 3, 1\nv_lshl_add_u32 v54, v55, 3, v54")
        a("v_and_b32 v55, 3, v3\nv_lshl_add_u32 v54, v55, 1, v54")
        a(f"v_add3_u32 v54, v54, v{rowoff}, s41")
        a("ds_write_b16 v54, v52\nds_write_b16_d16_hi v54, v52 offset:16\nds_write_b16 v54, v53 offset:32\nds_write_b16_d16_hi v54, v53 offset:48")
    a("s_cmp_eq_u32 s36, 0\ns_cbranch_scc1 qkv_kvA")
    a("s_cmp_eq_u32 s36, 1\ns_cbranch_scc1 qkv_kvB")
    a("v_lshlrev_b32 v47, 3, v3\nv_add_u32 v47, s41, v47\nv_add_u32 v54, 128, v47\nv_cmp_eq_u32 vcc, 3, v4\nv_cndmask_b32 v47, v47, v54, vcc")
    a("v_cmp_eq_u32 vcc, 0, v4\nv_cmp_eq_u32 s[48:49], 3, v4\ns_or_b64 vcc, vcc, s[48:49]")
    a("s_and_saveexec_b64 s[50:51], vcc")
    a("ds_write_b64 v47, v[52:53]")
    a("s_andn2_b64 exec, s[50:51], exec")
    a("v_lshlrev_b32 v47, 6, v4\nv_add_u32 v47, 192, v47")
    vwrite(47, 128)
    a("s_mov_b64 exec, s[50:51]")
    a("v_and_b32 v47, 7, v1\nv_lshlrev_b32 v47, 4, v47\nv_bfe_u32 v54, v1, 3, 2")
    a("s_lshl_b32 s49, s38, 7\ns_add_u32 s49, s49, 1024\ns_lshl_b32 s50, s38, 10\ns_add_u32 s50, s50, 2304")
    a("v_mov_b32 v55, s49\ns_add_u32 s51, s49, 256\nv_mov_b32 v50, s51\nv_cmp_eq_u32 vcc, 1, v54\nv_cndmask_b32 v55, v55, v50, vcc")
    a("v_mov_b32 v50, s50\nv_cmp_eq_u32 vcc, 2, v54\nv_cndmask_b32 v55, v55, v50, vcc")
    a("s_add_u32 s51, s50, 512\nv_mov_b32 v50, s51\nv_cmp_eq_u32 vcc, 3, v54\nv_cndmask_b32 v55, v55, v50, vcc")
    a("v_add_u32 v47, v47, v55")
    a("s_branch qkv_kvout")
    a.label("qkv_kvB")
    a("v_lshlrev_b32 v47, 6, v4")
    vwrite(47, 256)
    a("v_lshlrev_b32 v47, 4, v3\nv_and_b32 v54, 1, v4\nv_lshl_add_u32 v47, v54, 9, v47\ns_lshl_b32 s49, s38, 10\ns_add_u32 s49, s49, 2048\nv_add_u32 v47, s49, v47")
    a("s_branch qkv_kvout")
    a.label("qkv_kvA")
    a("v_lshrrev_b32 v47, 1, v4\nv_lshlrev_b32 v47, 8, v47\nv_lshl_add_u32 v47, v3, 4, v47\nv_and_b32 v54, 1, v4\nv_lshl_add_u32 v47, v54, 3, v47\nv_add_u32 v47, s41, v47")
    a("ds_write_b64 v47, v[52:53]")
    a("s_lshl_b32 s49, s38, 8\nv_lshlrev_b32 v47, 4, v3\nv_and_b32 v54, 1, v4\nv_lshl_add_u32 v47, v54, 9, v47\nv_add_u32 v47, s49, v47")
    a.label("qkv_kvout")
    a("v_add_u32 v54, s41, v5")
    a("s_waitcnt lgkmcnt(0)")
    a("s_mov_b64 s[50:51], exec\ns_mov_b64 exec, 0xffffffff")
    a("ds_read_b128 v[48:51], v54\ns_waitcnt lgkmcnt(0)")
    a("buffer_store_dwordx4 v[48:51], v47, s[8:11], s47 offen sc1")
    a("s_mov_b64 exec, s[50:51]")
    a.label("qkv_nokv")
    a("s_and_b32 s38, s34, 3\ns_lshl_b32 s38, s38, 4\nv_add_u32 v44, s38, v3\nv_mul_u32_u24 v44, 192, v44")
    a(f"v_add_u32 v44, {KVL + 36*KB}, v44")
    for i in range(5):
        for r in range(4):
            a(f"v_mul_f32 v{48+r}, v63, v{8+4*i+r}")
            a(f"v_fma_f32 v{48+r}, v62, v{A0+4*i+r}, -v{48+r}")
        a(f"v_cvt_pk_bf16_f32 v52, v48, v49\nv_cvt_pk_bf16_f32 v53, v50, v51")
        a(f"v_add_u32 v45, {4*i}, v4\nv_mul_u32_u24 v46, 52, v45\nv_lshrrev_b32 v46, 8, v46\nv_add_u32 v45, v45, v46\nv_lshl_add_u32 v45, v45, 3, v44")
        a("ds_write_b64 v45, v[52:53]")
    a("s_waitcnt vmcnt(0) lgkmcnt(0)")
    a("s_barrier")
    loader_bp(ld, ring, None, FO)
    ld("s_branch att_top")
    a("s_cmp_eq_u32 s34, 0\ns_cbranch_scc0 att_top")
    a("s_cmp_lt_u32 s36, 3\ns_cbranch_scc0 att_top")
    a(f"s_lshl_b32 s46, s37, 13\ns_lshr_b32 s45, s35, 3\ns_lshl_b32 s45, s45, 11\ns_add_u32 s46, s46, s45\ns_add_u32 s46, s46, {KVF}\nv_lshlrev_b32 v56, 8, v1\nv_mov_b32 v57, 1")
    a("s_mov_b64 s[42:43], exec\ns_mov_b64 exec, 0xff")
    a("buffer_atomic_add v57, v56, s[8:11], s46 offen")
    a("s_mov_b64 exec, s[42:43]")
    a.label("att_top")
    ts(a, "qkv_done")
    QB_, KV0, P, SA, SB, O = 8, 32, 64, 72, 88, 104
    def Q1(i): return QB_ + 6 * i
    def Q2(i): return QB_ + 6 * i + 4
    def K1(b): return KV0 + 16 * b
    def K2(b): return KV0 + 16 * b + 4
    def V1(b): return KV0 + 16 * b + 8
    a("v_and_b32 v6, 31, v1\nv_lshrrev_b32 v7, 5, v1\nv_lshlrev_b32 v170, 3, v1")
    a("s_and_b32 s38, s34, 3\ns_lshr_b32 s39, s34, 2")
    a("v_lshrrev_b32 v171, 2, v6\nv_mul_u32_u24 v171, 192, v171\nv_and_b32 v172, 3, v6\nv_mul_u32_u24 v172, 48, v172\nv_add_u32 v171, v171, v172")
    for i in range(4):
        a(f"s_add_u32 s40, s38, {i}\ns_and_b32 s40, s40, 3\ns_lshl_b32 s41, s39, 2\ns_add_u32 s40, s40, s41\ns_mul_i32 s40, s40, {8*192}\ns_add_u32 s40, s40, {KVL + 36*KB}")
        a(f"v_add_u32 v173, s40, v171\nv_lshl_add_u32 v174, v7, 4, v173")
        a(f"ds_read_b128 v[{Q1(i)}:{Q1(i)+3}], v174\nds_read_b64 v[{Q2(i)}:{Q2(i)+1}], v173 offset:32")
    FLAGW = KVL + 48 * KB - 64
    a("s_mov_b32 s57, 0")
    a("s_waitcnt lgkmcnt(0)")
    a("v_cmp_eq_u32 vcc, 1, v7")
    for i in range(4):
        a(f"v_cndmask_b32 v{Q2(i)}, v{Q2(i)}, 0, vcc\nv_cndmask_b32 v{Q2(i)+1}, v{Q2(i)+1}, 0, vcc")
    Lp, Ld = newlab("kvp"), newlab("kvpd")
    a(f"s_lshl_b32 s46, s37, 13\ns_lshl_b32 s45, s38, 11\ns_add_u32 s46, s46, s45\ns_and_b32 s45, s2, 7\ns_lshl_b32 s45, s45, 8\ns_add_u32 s46, s46, s45\ns_add_u32 s46, s46, {KVF}\nv_mov_b32 v175, 0\ns_mov_b32 s44, 0")
    a("s_mov_b64 s[42:43], exec\ns_mov_b64 exec, 1")
    a.label(Lp)
    a("buffer_load_dword v176, v175, s[8:11], s46 offen sc1")
    a("s_add_u32 s44, s44, 1\ns_waitcnt vmcnt(0)")
    a("v_readfirstlane_b32 s45, v176")
    a(f"s_cmp_ge_u32 s45, 24\ns_cbranch_scc1 {Ld}")
    a(f"s_cmp_gt_u32 s44, {SPIN_MAX}\ns_cbranch_scc1 {Ld}")
    a(f"s_sleep 2\ns_branch {Lp}")
    a.label(Ld)
    a("s_mov_b64 exec, s[42:43]")
    ts(a, "kv_ready")
    a.label("att_main")
    for r in range(64): a(f"v_mov_b32 v{O+r}, 0")
    a(f"s_mul_i32 s47, s37, {KVB[1]-KVB[0]}\ns_add_u32 s47, s47, {KVB[0]}\ns_lshl_b32 s48, s38, 16\ns_add_u32 s47, s47, s48")
    def ldK(b):
        a(f"buffer_load_dwordx4 v[{K1(b)}:{K1(b)+3}], v5, s[8:11], s47 offen sc1")
        a(f"buffer_load_dwordx2 v[{K2(b)}:{K2(b)+1}], v170, s[8:11], s47 offen offset:1024 sc1")
    def ldV(b, h):
        a(f"buffer_load_dwordx4 v[{V1(b)+4*h}:{V1(b)+4*h+3}], v5, s[8:11], s47 offen offset:{2048+1024*h} sc1")
    def qk1(Sd, b, i): a(f"v_mfma_f32_32x32x16_bf16 v[{Sd}:{Sd+15}], v[{K1(b)}:{K1(b)+3}], v[{Q1(i)}:{Q1(i)+3}], 0")
    def qk2(Sd, b, i): a(f"v_mfma_f32_32x32x8_bf16 v[{Sd}:{Sd+15}], v[{K2(b)}:{K2(b)+1}], v[{Q2(i)}:{Q2(i)+1}], v[{Sd}:{Sd+15}]")
    def pv(i, b, h): a(f"v_mfma_f32_32x32x16_bf16 v[{O+16*i}:{O+16*i+15}], v[{V1(b)+4*h}:{V1(b)+4*h+3}], v[{P+4*h}:{P+4*h+3}], v[{O+16*i}:{O+16*i+15}]")
    ldK(0); ldV(0, 0); ldV(0, 1)
    a("s_add_u32 s47, s47, 4096")
    ldK(1)
    for r in range(4, 8): a(f"v_mov_b32 v{P+r}, 0\nv_mov_b32 v{V1(1)+r}, 0\nv_mov_b32 v{SB+8+r}, 0")
    a("s_waitcnt vmcnt(4)")
    qk1(SA, 0, 0); qk2(SA, 0, 0)
    a("s_mov_b32 s49, 0")
    a("s_cmp_eq_u32 s37, 0\ns_cbranch_scc0 att_nochk")
    a(f"s_lshl_b32 s46, s35, 5\ns_add_u32 s46, s46, {XID}")
    await_flags(a, 0xFF, 46, vtmp=175)
    a("s_mov_b64 s[42:43], exec\ns_mov_b64 exec, 0xff\nv_cmp_ne_u32 vcc, s58, v176\ns_cmp_eq_u64 vcc, 0\ns_cselect_b32 s59, 1, 0\ns_mov_b64 exec, s[42:43]")
    if "noxcd" in sys.argv: a("s_mov_b32 s59, 0")
    a.label("att_nochk")
    a("s_nop 7")
    ts(a, "att_start")
    a.label("att_loop")
    ex = lambda Sc, r: a(f"v_exp_f32 v{Sc+r}, v{Sc+r}")
    cv = lambda Sc, q: a(f"v_cvt_pk_bf16_f32 v{P+q}, v{Sc+2*q}, v{Sc+2*q+1}")
    for kk in range(2):
        b = kk
        for q in range(4):
            u = kk * 4 + q
            Sc, Sn = (SA, SB) if u % 2 == 0 else (SB, SA)
            pq, pb = (q - 1) % 4, (b if q > 0 else 1 - b)
            nq, nb = (q + 1) % 4, (b if q < 3 else 1 - b)
            ex(Sc, 0); ex(Sc, 1); cv(Sn, 6); cv(Sn, 7); ex(Sc, 2); ex(Sc, 3)
            if q == 3: a("s_waitcnt vmcnt(2)")
            qk1(Sn, nb, nq)
            ex(Sc, 4); ex(Sc, 5); cv(Sc, 0); cv(Sc, 1); ex(Sc, 6); ex(Sc, 7)
            qk2(Sn, nb, nq)
            if q == 3:
                a("s_add_u32 s47, s47, 4096")
                ldK(b)
            ex(Sc, 8); ex(Sc, 9); cv(Sc, 2); cv(Sc, 3); ex(Sc, 10); ex(Sc, 11)
            pv(pq, pb, 1)
            if q == 0: ldV(1 - b, 0)
            if q == 1: ldV(1 - b, 1)
            ex(Sc, 12); ex(Sc, 13); cv(Sc, 4); cv(Sc, 5); ex(Sc, 14); ex(Sc, 15)
            if q == 0: a("s_waitcnt vmcnt(3)")
            pv(q, b, 0)
    a("s_add_u32 s49, s49, 1\ns_cmp_lt_u32 s49, 8\ns_cbranch_scc1 att_loop")
    cv(SB, 6); cv(SB, 7)
    pv(3, 1, 1)
    ts(a, "att_loop_end")
    a(f"s_mul_i32 s40, s34, {3*1536}\ns_add_u32 s40, s40, {KVL}\nv_add_u32 v171, s40, v5\nv_add_u32 v172, s40, v170\nv_add_u32 v172, 1024, v172")
    for r in (1, 2, 3):
        t = 72 + 8 * (r - 1)
        for q in range(5): a(f"v_cvt_pk_bf16_f32 v{t+q}, v{O+16*r+2*q}, v{O+16*r+2*q+1}")
        a(f"v_mov_b32 v{t+5}, v{O+16*r+10}")
        a(f"ds_write_b128 v171, v[{t}:{t+3}] offset:{(r-1)*1536}\nds_write_b64 v172, v[{t+4}:{t+5}] offset:{(r-1)*1536}")
    a(f"v_mov_b32 v175, {FLAGW}\nv_mov_b32 v176, 0\nds_write_b32 v175, v176")
    a("s_waitcnt lgkmcnt(0)\ns_barrier")
    for r in (1, 2, 3):
        t = 72 + 8 * (r - 1)
        a(f"s_sub_u32 s41, s38, {r}\ns_and_b32 s41, s41, 3\ns_lshl_b32 s45, s39, 2\ns_add_u32 s41, s41, s45\ns_mul_i32 s41, s41, {3*1536}\ns_add_u32 s41, s41, {KVL + (r-1)*1536}")
        a(f"v_add_u32 v171, s41, v5\nv_add_u32 v172, s41, v170")
        a(f"ds_read_b128 v[{t}:{t+3}], v171\nds_read_b64 v[{t+4}:{t+5}], v172 offset:1024")
    a("s_waitcnt vmcnt(0) lgkmcnt(0)")
    for r in (1, 2, 3):
        t = 72 + 8 * (r - 1)
        for q in range(5):
            unpack2(a, 173, 174, t + q)
            a(f"v_add_f32 v{O+2*q}, v{O+2*q}, v173\nv_add_f32 v{O+2*q+1}, v{O+2*q+1}, v174")
        a(f"v_add_f32 v{O+10}, v{O+10}, v{t+5}")
    a("s_cmp_eq_u32 s57, 1\ns_cbranch_scc1 att_fin")
    a("v_mov_b32 v173, 0")
    for r in range(10): a(f"v_fma_f32 v173, v{O+r}, 0, v173")
    a(f"v_cmp_lt_f32 vcc, {f2u(2.0**-60):#x}, v{O+10}")
    a(f"v_mov_b32 v174, {f2u(2.0**60):#x}\nv_cmp_gt_f32 s[40:41], v174, v{O+10}\ns_and_b64 vcc, vcc, s[40:41]")
    a("v_cmp_eq_f32 s[40:41], 0, v173\ns_and_b64 vcc, vcc, s[40:41]")
    if "forcefb" in sys.argv: a("s_mov_b64 vcc, 0")
    a("s_cmp_eq_u64 vcc, -1\ns_cbranch_scc1 att_okw")
    a(f"v_mov_b32 v175, {FLAGW}\nv_mov_b32 v176, 1\nds_write_b32 v175, v176\ns_waitcnt lgkmcnt(0)")
    a.label("att_okw")
    a("s_barrier")
    a(f"v_mov_b32 v175, {FLAGW}\nds_read_b32 v176, v175\ns_waitcnt lgkmcnt(0)\nv_readfirstlane_b32 s40, v176")
    a("s_cmp_eq_u32 s40, 0\ns_cbranch_scc0 att_fallback")
    a.label("att_fin")
    ts(a, "att_red")
    a(f"v_rcp_f32 v173, v{O+10}")
    for r in range(10): a(f"v_mul_f32 v{O+r}, v{O+r}, v173")
    for q in range(5): a(f"v_cvt_pk_bf16_f32 v{P+q}, v{O+2*q}, v{O+2*q+1}")
    a(f"s_mul_i32 s40, s34, 1280\ns_add_u32 s40, s40, {KVL + 36864}")
    a("v_lshrrev_b32 v171, 2, v6\nv_mul_u32_u24 v171, 160, v171\nv_and_b32 v172, 3, v6\nv_mul_u32_u24 v172, 40, v172\nv_mul_u32_u24 v173, 20, v7\nv_add3_u32 v171, v171, v172, v173")
    a("v_add_u32 v171, s40, v171")
    for q in range(5): a(f"ds_write_b32 v171, v{P+q} offset:{4*q}")
    a("v_and_b32 v172, 7, v1\nv_lshrrev_b32 v173, 3, v1")
    a("v_mul_u32_u24 v174, 160, v172\nv_lshl_add_u32 v174, v173, 4, v174\nv_add_u32 v174, s40, v174")
    a("s_waitcnt lgkmcnt(0)")
    a("ds_read_b128 v[72:75], v174\nds_read_b128 v[76:79], v174 offset:128")
    a("s_and_b32 s41, s34, 1\ns_lshl_b32 s41, s41, 7\nv_lshlrev_b32 v172, 4, v172\nv_lshl_add_u32 v172, v173, 8, v172\nv_add_u32 v172, s41, v172")
    a(f"s_lshl_b32 s41, s35, 2\ns_lshr_b32 s45, s34, 1\ns_add_u32 s48, s41, s45\ns_mul_i32 s41, s48, 20480\ns_mul_i32 s45, s36, 2560\ns_add_u32 s41, s41, s45\ns_mul_i32 s45, s37, {OB[1]-OB[0]}\ns_add_u32 s41, s41, s45\ns_add_u32 s41, s41, {OB[0]}")
    a("s_waitcnt lgkmcnt(0)")
    xstore(a, "buffer_store_dwordx4 v[72:75], v172, s[8:11], s41 offen @SC\ns_mov_b64 s[42:43], exec\ns_mov_b64 exec, 0xffff\nbuffer_store_dwordx4 v[76:79], v172, s[8:11], s41 offen offset:2048 @SC\ns_mov_b64 exec, s[42:43]")
    flag_line(46, 0, tile_sgpr=48)
    a("s_lshl_b32 s45, s36, 3\ns_add_u32 s46, s46, s45\ns_and_b32 s45, s34, 1\ns_lshl_b32 s45, s45, 2\ns_add_u32 s46, s46, s45")
    set_flag(a, 46, vtmp=175)
    ts(a, "att_done")
    a("s_cmp_ge_u32 s34, 4\ns_cbranch_scc1 ld_wo")
    a.nvm = 0; a.nlg = 0
    set_bases(a, 5)
    flag_line(46, 0, pair=True)
    await_flags(a, 0xFFFFFFFF, 46)
    ts(a, "wo_ready")
    tile_offs(OB[0], OB[1] - OB[0], 20480, True)
    bl = BL(2048, 10)
    for i in range(10): bl.load(i)
    segs = [(0, 5), (5, 10)]
    kloop2(a, FO, 10, 5, 5, segs, bl.regs, A0, A1, 0, 5, before=lambda i: a.wait_vm(bl.tag[i]))
    ld.label("ld_wo")
    ring.drained()
    loader_kloop2(ld, ring, FO, 10, 5, segs, 5)
    ts(a, "wo_kloop")
    reduce_pair(A0, A1, 5, False)
    loader_bp(ld, ring, None, F1)
    frag_addr(a, 60, 61, 68, 62)
    tile_offs(X1[0], X1[1] - X1[0], 20480, False)
    for i in range(5):
        unpack2(a, 48, 49, RES + 2 * i); unpack2(a, 50, 51, RES + 2 * i + 1)
        for r in range(4): a(f"v_add_f32 v{48+r}, v{48+r}, v{A0+4*i+r}")
        a(f"v_cvt_pk_bf16_f32 v{RES+2*i}, v48, v49\nv_cvt_pk_bf16_f32 v{RES+2*i+1}, v50, v51")
    store_tiles(a, [RES + 2 * i for i in range(5)], 5, 60, 61, 8, "s40", 512, "@SC", tmp=48)
    flag_line(46, 1, tile_sgpr=67)
    a("s_lshl_b32 s45, s36, 2\ns_add_u32 s46, s46, s45")
    set_flag(a, 46)
    ts(a, "wo_done")
    a.nvm = 0; a.nlg = 0
    a("s_lshr_b32 s52, s36, 1\ns_mul_i32 s52, s52, 27\ns_and_b32 s53, s36, 1\ns_mul_i32 s53, s53, 14\ns_add_u32 s52, s52, s53")
    a("s_and_b32 s53, s34, 1\ns_mul_i32 s53, s53, 7\ns_add_u32 s52, s52, s53")
    srd(a, 20, 24, 0, F * 2)
    a("s_lshl_b32 s47, s52, 5\nv_lshlrev_b32 v60, 3, v4\nv_add_u32 v60, s47, v60")
    B1R = 232
    for i in range(7): a(f"buffer_load_dwordx2 v[{B1R+2*i}:{B1R+2*i+1}], v60, s[20:23], 0 offen offset:{i*32}")
    a(f"s_mul_i32 s45, s36, 896\ns_lshl_b32 s44, s53, 6\ns_add_u32 s45, s45, s44\ns_add_u32 s45, s45, {CS1}\nv_lshlrev_b32 v58, 4, v4")
    for i in range(7): a(f"buffer_load_dwordx4 v[{8+4*i}:{8+4*i+3}], v58, s[8:11], s45 offen offset:{i*64}")
    ones(); set_bases(a, 7)
    flag_line(46, 1, pair=True)
    await_flags(a, 0x00FF00FF, 46)
    ts(a, "fc1_ready")
    tile_offs(X1[0], X1[1] - X1[0], 20480, False)
    bl = BL(1024, 10)
    for i in range(10): bl.load(i)
    segs = [(2 * s_, 2 * s_ + 2) for s_ in range(10)]
    C0, C1 = 176, 204
    kloop2(a, F1, 14, 7, 7, segs, bl.regs, C0, C1, 1, 4, before=lambda i: a.wait_vm(bl.tag[i]),
           after=lambda i: bl.load(i + 10) if i + 10 < 20 else None)
    ld.label("ld_fc1")
    loader_kloop2(ld, ring, F1, 14, 7, segs, 4)
    ts(a, "fc1_kloop")
    stats_finalize(a, VST, VST + 4, 60, 61, 56, True)
    a(f"s_and_b32 s45, s34, 3\ns_lshl_b32 s44, s45, 9\ns_add_u32 s44, s44, {KVL}\nv_lshlrev_b32 v56, 3, v1\nv_add_u32 v57, s44, v56")
    a("ds_write_b64 v57, v[60:61]")
    a(f"s_xor_b32 s45, s45, 1\ns_lshl_b32 s44, s45, 9\ns_add_u32 s44, s44, {KVL}\nv_add_u32 v57, s44, v56")
    a("s_waitcnt lgkmcnt(0)\ns_barrier")
    loader_bp(ld, ring, None, F2)
    a("ds_read_b64 v[62:63], v57")
    frag_addr(a, 58, 59, 52, 56)
    tile_offs(HB[0], HB[1] - HB[0], 55296, False)
    c0 = -2.0 * math.sqrt(2.0 / math.pi) * LOG2E
    c1 = c0 * 0.044715
    a(f"v_mov_b32 v40, {f2u(c0):#x}\nv_mov_b32 v41, v40\nv_mov_b32 v42, {f2u(c1):#x}\nv_mov_b32 v43, v42\nv_mov_b32 v46, 1.0\nv_mov_b32 v47, 1.0")
    a("s_waitcnt lgkmcnt(0)")
    def gelu_tile(i, acc, dst):
        unpack2(a, 52, 53, B1R + 2 * i); unpack2(a, 54, 55, B1R + 2 * i + 1)
        for h in range(2): a(f"v_pk_fma_f32 v[{52+2*h}:{53+2*h}], v[38:39], v[{8+4*i+2*h}:{8+4*i+2*h+1}], v[{52+2*h}:{53+2*h}]")
        for h in range(2): a(f"v_pk_fma_f32 v[{52+2*h}:{53+2*h}], v[36:37], v[{acc+4*i+2*h}:{acc+4*i+2*h+1}], v[{52+2*h}:{53+2*h}]")
        for h in range(2): a(f"v_pk_mul_f32 v[{144+2*h}:{145+2*h}], v[{52+2*h}:{53+2*h}], v[{52+2*h}:{53+2*h}]")
        for h in range(2): a(f"v_pk_fma_f32 v[{144+2*h}:{145+2*h}], v[{144+2*h}:{145+2*h}], v[42:43], v[40:41]")
        for h in range(2): a(f"v_pk_mul_f32 v[{144+2*h}:{145+2*h}], v[{144+2*h}:{145+2*h}], v[{52+2*h}:{53+2*h}]")
        for r in range(4): a(f"v_exp_f32 v{144+r}, v{144+r}")
        for h in range(2): a(f"v_pk_add_f32 v[{144+2*h}:{145+2*h}], v[{144+2*h}:{145+2*h}], v[46:47]")
        for r in range(4): a(f"v_rcp_f32 v{144+r}, v{144+r}")
        for h in range(2): a(f"v_pk_mul_f32 v[{52+2*h}:{53+2*h}], v[{52+2*h}:{53+2*h}], v[{144+2*h}:{145+2*h}]")
        a(f"v_cvt_pk_bf16_f32 v{dst}, v52, v53\nv_cvt_pk_bf16_f32 v{dst+1}, v54, v55")
    for tilesel in range(2):
        acc, rho, mu, so = (C0, 60, 61, "s40") if tilesel == 0 else (C1, 62, 63, "s41")
        a(f"v_mov_b32 v36, v{rho}\nv_mov_b32 v37, v{rho}\nv_sub_f32 v38, 0, v{mu}\nv_mov_b32 v39, v38")
        for p in range(3):
            t = 152 + 4 * (p % 2)
            gelu_tile(2 * p, acc, t); gelu_tile(2 * p + 1, acc, t + 2)
            a(f"v_permlane16_swap_b32 v{t}, v{t+2}\nv_permlane16_swap_b32 v{t+1}, v{t+3}")
            xstore(a, f"buffer_store_dwordx4 v[{t}:{t+3}], v58, s[8:11], {so} offen offset:{p*1024} @SC")
        sk = newlab("fc1sk")
        a(f"s_and_b32 s45, s36, s34\ns_bitcmp1_b32 s45, 0\ns_cbranch_scc1 {sk}")
        gelu_tile(6, acc, 160)
        xstore(a, f"buffer_store_dwordx2 v[160:161], v59, s[8:11], {so} offen offset:3072 @SC")
        a.label(sk)
    flag_line(46, 2, tile_sgpr=67)
    flag_line(47, 2, tile_sgpr=65)
    a("s_lshl_b32 s45, s36, 3\ns_and_b32 s44, s34, 1\ns_lshl_b32 s44, s44, 2\ns_add_u32 s45, s45, s44\ns_add_u32 s46, s46, s45\ns_add_u32 s47, s47, s45")
    set_flag(a, 46, second=47)
    ts(a, "fc1_done")
    a.nvm = 0; a.nlg = 0
    srd(a, 20, 26, 0, D * 2)
    a("v_lshlrev_b32 v58, 3, v4\ns_mul_i32 s40, s36, 160\nv_add_u32 v58, s40, v58")
    for i in range(5): a(f"buffer_load_dwordx2 v[{8+2*i}:{9+2*i}], v58, s[20:23], 0 offen offset:{i*32}")
    set_bases(a, 5)
    flag_line(46, 2, pair=True)
    await_flags(a, 0xFFFFFFFF, 46)
    ts(a, "fc2_ready")
    tile_offs(HB[0], HB[1] - HB[0], 55296, True)
    bl = BL(2048, 10)
    for i in range(10): bl.load(i)
    segs = [(2 * s_, min(27, 2 * s_ + 2)) for s_ in range(14)]
    SEGTS[0] = True
    kloop2(a, F2, 10, 5, 5, segs, bl.regs, A0, A1, 0, 5, before=lambda i: a.wait_vm(bl.tag[i]),
           after=lambda i: bl.load(i + 10) if i + 10 < 27 else None)
    ld.label("ld_fc2")
    LDTS[0] = True
    loader_kloop2(ld, ring, F2, 10, 5, segs, 5)
    ts(a, "fc2_kloop")
    reduce_pair(A0, A1, 5, False)
    loader_bp(ld, ring, None, SL)
    assert ring.I == SLP + RING
    for i in range(5):
        unpack2(a, 48, 49, RES + 2 * i); unpack2(a, 50, 51, RES + 2 * i + 1)
        unpack2(a, 52, 53, 8 + 2 * i); unpack2(a, 54, 55, 8 + 2 * i + 1)
        for r in range(4): a(f"v_add_f32 v{52+r}, v{52+r}, v{A0+4*i+r}")
        for r in range(4): a(f"v_add_f32 v{48+r}, v{48+r}, v{52+r}")
        a(f"v_cvt_pk_bf16_f32 v{RES+2*i}, v48, v49\nv_cvt_pk_bf16_f32 v{RES+2*i+1}, v50, v51")
    a("s_cmp_eq_u32 s37, 0\ns_cbranch_scc0 fc2_last")
    frag_addr(a, 60, 61, 68, 62)
    tile_offs(X2, 0, 20480, False)
    store_tiles(a, [RES + 2 * i for i in range(5)], 5, 60, 61, 8, "s40", 512, "@SC", tmp=48)
    flag_line(46, 3, tile_sgpr=67)
    a("s_lshl_b32 s45, s36, 2\ns_add_u32 s46, s46, s45")
    set_flag(a, 46)
    a("s_branch fc2_fin")
    a.label("fc2_last")
    srd(a, 16, 28, 0, XBYTES)
    a("v_add_u32 v62, s66, v3\nv_mul_u32_u24 v60, 1280, v62\ns_mul_i32 s40, s36, 160\nv_add_u32 v60, s40, v60")
    a("v_lshl_add_u32 v61, v4, 3, v60")
    a("v_and_b32 v62, 1, v4\nv_lshl_add_u32 v60, v62, 5, v60\nv_lshrrev_b32 v62, 1, v4\nv_lshl_add_u32 v60, v62, 4, v60")
    store_tiles(a, [RES + 2 * i for i in range(5)], 5, 60, 61, 16, "0", 32, "", tmp=48)
    a.label("fc2_fin")
    ts(a, "fc2_done")
    a("s_branch layer_end")
    ld("s_branch layer_end")
    a.out += ld.out
    fbk = Asm()
    fbk.label("att_fallback")
    fbk("s_barrier")
    for i in range(4): fbk(f"v_mov_b32 v{181+i}, 0xff800000")
    fbk(f"s_mul_i32 s47, s37, {KVB[1]-KVB[0]}\ns_add_u32 s47, s47, {KVB[0]}\ns_lshl_b32 s48, s38, 16\ns_add_u32 s47, s47, s48\ns_mov_b32 s49, 0")
    fbk.label("fb_loop")
    fbk(f"buffer_load_dwordx4 v[{K1(0)}:{K1(0)+3}], v5, s[8:11], s47 offen sc1")
    fbk(f"buffer_load_dwordx2 v[{K2(0)}:{K2(0)+1}], v170, s[8:11], s47 offen offset:1024 sc1")
    fbk("s_waitcnt vmcnt(0)")
    for i in range(4):
        fbk(f"v_mfma_f32_32x32x16_bf16 v[{SA}:{SA+15}], v[{K1(0)}:{K1(0)+3}], v[{Q1(i)}:{Q1(i)+3}], 0")
        fbk(f"v_mfma_f32_32x32x8_bf16 v[{SA}:{SA+15}], v[{K2(0)}:{K2(0)+1}], v[{Q2(i)}:{Q2(i)+1}], v[{SA}:{SA+15}]")
        for r in range(0, 16, 2): fbk(f"v_max3_f32 v{181+i}, v{181+i}, v{SA+r}, v{SA+r+1}")
    fbk("s_add_u32 s47, s47, 4096\ns_add_u32 s49, s49, 1\ns_cmp_lt_u32 s49, 16\ns_cbranch_scc1 fb_loop")
    fbk("v_xor_b32 v171, 32, v1\nv_lshlrev_b32 v171, 2, v171")
    for i in range(4):
        fbk(f"ds_bpermute_b32 v172, v171, v{181+i}\ns_waitcnt lgkmcnt(0)\nv_max_f32 v{181+i}, v{181+i}, v172")
    fbk("v_lshlrev_b32 v171, 2, v6")
    for i in range(4):
        fbk(f"s_add_u32 s40, s38, {i}\ns_and_b32 s40, s40, 3\ns_lshl_b32 s41, s39, 2\ns_add_u32 s40, s40, s41\ns_lshl_b32 s40, s40, 9\ns_lshl_b32 s41, s38, 7\ns_add_u32 s41, s41, s40\ns_add_u32 s41, s41, {KVL}")
        fbk(f"v_add_u32 v172, s41, v171\nds_write_b32 v172, v{181+i}")
    fbk("s_waitcnt lgkmcnt(0)\ns_barrier")
    for i in range(4):
        fbk(f"s_add_u32 s40, s38, {i}\ns_and_b32 s40, s40, 3\ns_lshl_b32 s41, s39, 2\ns_add_u32 s40, s40, s41\ns_lshl_b32 s40, s40, 9\ns_add_u32 s40, s40, {KVL}")
        fbk(f"v_add_u32 v172, s40, v171\nds_read_b32 v173, v172\nds_read_b32 v174, v172 offset:128\nds_read_b32 v175, v172 offset:256\nds_read_b32 v176, v172 offset:384")
        fbk("s_waitcnt lgkmcnt(0)\nv_max_f32 v173, v173, v174\nv_max3_f32 v173, v173, v175, v176")
        fbk("v_sub_f32 v173, 0, v173\nv_cvt_pk_bf16_f32 v174, v173, v173\nv_lshlrev_b32 v175, 16, v174\nv_sub_f32 v175, v173, v175\nv_cvt_pk_bf16_f32 v176, v173, v175")
        fbk(f"v_cmp_eq_u32 vcc, 1, v7\nv_cndmask_b32 v{Q2(i)}, v{Q2(i)}, v176, vcc")
    fbk("s_mov_b32 s57, 1\ns_barrier\ns_branch att_main")
    a.out += fbk.out
    a.label("layer_end")
    if PROFILE:
        a(f"s_cmp_eq_u32 s34, {4 if PROFLD else 0}\ns_cbranch_scc0 prof_skip")
        a(f"s_lshl_b32 s40, s2, 8\ns_lshl_b32 s41, s37, 7\ns_add_u32 s40, s40, s41\ns_add_u32 s40, s40, {TSB}\nv_mov_b32 v8, 0\ns_mov_b64 s[42:43], exec\ns_mov_b64 exec, 1")
        for i in range(Prof.n):
            a(f"v_mov_b32 v9, s{70+i}\nbuffer_store_dword v9, v8, s[8:11], s40 offen offset:{4*i}\ns_nop 0")
        a("s_mov_b64 exec, s[42:43]")
        a.label("prof_skip")
    a(f"s_add_u32 s37, s37, 1\ns_cmp_lt_u32 s37, 2\ns_cbranch_scc1 layer_top")
    a("s_waitcnt vmcnt(0)")
    a("s_endpgm")
    kernel_end(a, name)
    return a.out, descriptor(name, 256), (name, 256, 512, LDS_BYTES)

def build(path, kernels):
    hdr = []
    for k in kernels:
        name, grid, block, lds = k[2]
        hdr.append(f"; @launch kernel={name} grid=({grid},1,1) block=({block},1,1) lds={lds}")
    body = ['.amdgcn_target "amdgcn-amd-amdhsa--gfx950"', ".text"]
    descs = []
    nfix = 0
    for k in kernels:
        lines, n = fix_hazards(k[0])
        nfix += n
        body += lines
        descs.append(k[1])
    txt = "\n".join(hdr) + "\n" + "\n".join(body) + '\n.section .rodata,"a"\n' + "".join(".p2align 6\n" + d for d in descs)
    open(path, "w").write(txt)
    print("written", path, len(txt), "bytes; hazard nops at", nfix, "sites")

if __name__ == "__main__":
    out = [x for x in sys.argv[1:] if x.endswith(".s")]
    build(out[0] if out else "v10.s", [gen_prep(), gen_main()])
    json.dump(dict(WST=WST, CSQ=CSQ, BKV=BKV, CS1=CS1, KVB=KVB, KMAX=KMAX, OB=OB, X1=X1, X2=X2, HB=HB, TSB=TSB, XF=XF, KVF=KVF, TSN=TSN, ver=3, XF0=XF0), open("layout.json", "w"))
```

```python
import sys, math, json, struct
sys.path.insert(0, "gen")
from asmdsl import *

S, D, F, H, DH = 2048, 640, 1728, 32, 20
KB = 1024
PROFSEG = "profseg" in sys.argv
PROFILE = "prof" in sys.argv or "profld" in sys.argv or PROFSEG
PROFLD = "profld" in sys.argv
off = 0
def alloc(n, align=4096):
    global off
    off = (off + align - 1) // align * align
    o = off; off += n; return o
SL = 770
RING = 112
SLP = 784
FQ, FO, F1, F2 = 0, 120, 220, 500
WST = alloc(8 * SL * KB + 16 * KB)
CSQ = alloc(8 * 96 * 4)
BKV = alloc(3 * 16 * 4)
CS1 = alloc(8 * 224 * 4)
FLAGS = alloc(16384 + 4 * 16384 + 4096, 4096)
KVF = FLAGS
XF = FLAGS + 16384
XID = FLAGS + 16384 + 4 * 16384
FLAG_BYTES = 16384 + 4 * 16384 + 4096
KVB = [alloc(64 * 4096), alloc(64 * 4096)]
KMAX = [alloc(1024), alloc(1024)]
OB = [alloc(S * D * 2), alloc(S * D * 2)]
X1 = [alloc(S * D * 2), alloc(S * D * 2)]
HB = [alloc(S * F * 2), alloc(S * F * 2)]
X2 = alloc(S * D * 2)
XF0 = alloc(S * D * 2)
TSB = alloc(256 * 64 * 4)
WS_BYTES = 268435456
XBYTES = S * D * 2
LOG2E = 1.4426950408889634
def f2u(x): return struct.unpack("<I", struct.pack("<f", x))[0]
KVL = RING * KB
LDS_BYTES = 160 * KB
SPIN_MAX = 200000

def srd(a, s, ptr_pair, off, nbytes):
    if off:
        a(f"s_add_u32 s{s}, s{ptr_pair}, {off}")
        a(f"s_addc_u32 s{s+1}, s{ptr_pair+1}, 0")
    else:
        a(f"s_mov_b32 s{s}, s{ptr_pair}")
        a(f"s_mov_b32 s{s+1}, s{ptr_pair+1}")
    a(f"s_mov_b32 s{s+2}, {nbytes}")
    a(f"s_mov_b32 s{s+3}, 0x20000")
def srd_dyn(a, s, ptr_pair, off_sgpr, nbytes):
    a(f"s_add_u32 s{s}, s{ptr_pair}, s{off_sgpr}")
    a(f"s_addc_u32 s{s+1}, s{ptr_pair+1}, 0")
    a(f"s_mov_b32 s{s+2}, {nbytes}")
    a(f"s_mov_b32 s{s+3}, 0x20000")

def kernel_begin(a, name, nwg):
    a(f".globl {name}")
    a(".p2align 8")
    a(f".type {name},@function")
    a.out.append(f"{name}:")
    a(f"s_cmp_ge_u32 s2, {nwg}")
    a(f"s_cbranch_scc1 {name}_exit")
def kernel_end(a, name):
    a.label(f"{name}_exit")
    a("s_endpgm")
def descriptor(name, vgpr, sgpr=102):
    vg = (vgpr + 7) // 8 * 8
    return f""".amdhsa_kernel {name}
  .amdhsa_next_free_vgpr {vg}
  .amdhsa_next_free_sgpr {sgpr}
  .amdhsa_accum_offset {min(vg,256)}
  .amdhsa_group_segment_fixed_size 0
  .amdhsa_kernarg_size 104
  .amdhsa_user_sgpr_count 2
  .amdhsa_user_sgpr_kernarg_segment_ptr 1
  .amdhsa_system_sgpr_workgroup_id_x 1
  .amdhsa_float_denorm_mode_32 3
  .amdhsa_float_denorm_mode_16_64 3
.end_amdhsa_kernel
"""

PSC = " sc1" if "psc1" in sys.argv else (" nt" if "pnt" in sys.argv else (" sc0 sc1" if "psc01" in sys.argv else ""))
def gen_prep():
    a = Asm(); name = "prep_kernel"
    kernel_begin(a, name, 256)
    a("s_load_dwordx2 s[52:53], s[0:1], 0")
    a("s_load_dwordx2 s[4:5], s[0:1], 96")
    a("s_load_dwordx2 s[6:7], s[0:1], 8")
    a("s_load_dwordx4 s[24:27], s[0:1], 16")
    a("s_load_dwordx2 s[28:29], s[0:1], 32")
    a("s_load_dwordx2 s[30:31], s[0:1], 48")
    a("s_load_dwordx2 s[32:33], s[0:1], 64")
    a("v_and_b32 v1, 63, v0")
    a("v_lshrrev_b32 v2, 6, v0")
    a("v_readfirstlane_b32 s34, v2")
    a("v_and_b32 v3, 15, v1")
    a("v_lshrrev_b32 v4, 4, v1")
    a("v_lshlrev_b32 v5, 4, v1")
    a("s_waitcnt lgkmcnt(0)")
    srd(a, 8, 4, 0, WS_BYTES)
    if "cpf2" in sys.argv:
        a("s_cmp_eq_u32 s34, 3\ns_cbranch_scc0 prep_cpf")
        a("s_getpc_b64 s[40:41]")
        a.label("prep_pc")
        a("s_add_u32 s40, s40, main_kernel-prep_pc\ns_addc_u32 s41, s41, 0")
        a("v_lshlrev_b32 v8, 6, v1")
        for i in range(8):
            a(f"global_load_dword v{110}, v8, s[40:41]")
            a("v_add_u32 v8, 4096, v8")
        a.label("prep_cpf")
    srd(a, 12, 52, 0, XBYTES)
    a("s_lshl_b32 s35, s2, 2\ns_add_u32 s35, s35, s34")
    a("v_mul_u32_u24 v7, 1280, v3\nv_lshl_add_u32 v7, v4, 4, v7")
    for q in range(3):
        a(f"s_add_u32 s36, s35, {q*1024}")
        a("s_mul_i32 s37, s36, 3277\ns_lshr_b32 s37, s37, 16")
        a("s_mul_i32 s38, s37, 20\ns_sub_u32 s38, s36, s38")
        a("s_mul_i32 s39, s37, 20480\ns_lshl_b32 s38, s38, 6\ns_add_u32 s39, s39, s38")
        a(f"buffer_load_dwordx4 v[{16+4*q}:{19+4*q}], v7, s[12:15], s39 offen")
        a(f"s_lshl_b32 s{54+q}, s36, 10\ns_add_u32 s{54+q}, s{54+q}, {XF0}")
    a("s_mov_b32 s57, s35")
    xs_n = [0]
    def xstores():
        L = f"prep_xd{xs_n[0]}"; xs_n[0] += 1
        for q in range(3):
            if q == 2: a(f"s_cmp_lt_u32 s57, 512\ns_cbranch_scc0 {L}")
            a(f"buffer_store_dwordx4 v[{16+4*q}:{19+4*q}], v5, s[8:11], s{54+q} offen" + PSC)
        a.label(L)
    a("s_cmp_ge_u32 s2, 252\ns_cbranch_scc0 prep_go")
    a("s_waitcnt vmcnt(0)")
    xstores()
    a("s_branch prep_done")
    a.label("prep_go")
    def gather(voff, srdn, rowbytes, soff_base_sgpr, nfr, ks_stride_bytes):
        for f in range(nfr):
            for jj in range(8):
                a(f"s_add_u32 s40, s{soff_base_sgpr}, {f*ks_stride_bytes + jj*rowbytes}")
                a(f"buffer_load_ushort v{64+8*f+jj}, v{voff}, s[{srdn}:{srdn+3}], s40 offen")
    def pack(nfr):
        a("s_waitcnt vmcnt(0)")
        xstores()
        for f in range(nfr):
            for q in range(4):
                a(f"v_lshl_or_b32 v{32+4*f+q}, v{64+8*f+2*q+1}, 16, v{64+8*f+2*q}")
    def colsum_and_store(dst_soff_sgpr, dst_ks_stride, cs_off_sgpr):
        a("v_mov_b32 v132, 0x3f803f80\nv_mov_b32 v133, 0x3f803f80\nv_mov_b32 v134, 0x3f803f80\nv_mov_b32 v135, 0x3f803f80")
        pack(5)
        for f in range(5):
            a(f"s_add_u32 s40, s{dst_soff_sgpr}, {f*dst_ks_stride}")
            a(f"buffer_store_dwordx4 v[{32+4*f}:{35+4*f}], v5, s[8:11], s40 offen" + PSC)
            a(f"v_mfma_f32_16x16x32_bf16 v[28:31], v[{32+4*f}:{35+4*f}], v[132:135], " + ("0" if f == 0 else "v[28:31]"))
        a("v_lshlrev_b32 v6, 4, v4")
        a("s_lshl_b32 s41, s34, 6")
        a("v_add_u32 v6, s41, v6")
        a("v_cmp_eq_u32 vcc, 0, v3")
        a("s_and_saveexec_b64 s[42:43], vcc")
        a("ds_write_b128 v6, v[28:31]")
        a("s_mov_b64 exec, s[42:43]")
        a("s_waitcnt lgkmcnt(0)")
        a("s_barrier")
        a("v_lshlrev_b32 v6, 2, v0")
        a("v_cmp_gt_u32 vcc, 16, v0")
        a("s_and_saveexec_b64 s[42:43], vcc")
        a(f"s_cbranch_execz {name}_exit")
        a("ds_read_b32 v7, v6\nds_read_b32 v8, v6 offset:64\nds_read_b32 v9, v6 offset:128\nds_read_b32 v10, v6 offset:192")
        a("s_waitcnt lgkmcnt(0)")
        a("v_add_f32 v7, v7, v8\nv_add_f32 v9, v9, v10\nv_add_f32 v7, v7, v9")
        a(f"buffer_store_dword v7, v6, s[8:11], s{cs_off_sgpr} offen")
        a("s_waitcnt vmcnt(0)")
        a("s_endpgm")
    a("s_cmp_lt_u32 s2, 40\ns_cbranch_scc1 prep_wq")
    a("s_cmp_lt_u32 s2, 43\ns_cbranch_scc1 prep_kv")
    a("s_cmp_lt_u32 s2, 151\ns_cbranch_scc1 prep_w1")
    a("s_branch prep_plain")
    a.label("prep_wq")
    srd(a, 12, 6, 0, D * D * 2)
    a("s_mul_i32 s35, s2, 52429\ns_lshr_b32 s35, s35, 18")
    a("s_mul_i32 s36, s35, 5\ns_sub_u32 s36, s2, s36")
    a("v_mul_u32_u24 v7, 10240, v4")
    a("s_lshl_b32 s37, s2, 5")
    a("v_lshl_add_u32 v7, v3, 1, v7\nv_add_u32 v7, s37, v7")
    a(f"s_mul_i32 s38, s34, {5*32*1280}")
    gather(7, 12, 1280, 38, 5, 32 * 1280)
    a(f"s_mul_i32 s44, s35, {SL*KB}\ns_mul_i32 s45, s34, {30*KB}\ns_add_u32 s44, s44, s45\ns_lshl_b32 s45, s36, 10\ns_add_u32 s44, s44, s45\ns_add_u32 s44, s44, {WST + FQ*KB}")
    a(f"s_mul_i32 s46, s35, 384\ns_lshl_b32 s45, s36, 6\ns_add_u32 s46, s46, s45\ns_add_u32 s46, s46, {CSQ}")
    colsum_and_store(44, 6 * KB, 46)
    a.label("prep_kv")
    srd(a, 12, 24, 0, D * DH * 2)
    srd(a, 16, 26, 0, D * DH * 2)
    a("s_sub_u32 s35, s2, 40")
    for r in range(64, 104): a(f"v_mov_b32 v{r}, 0")
    BIG = 0x40000000
    a("v_and_b32 v8, 3, v3\nv_lshrrev_b32 v9, 2, v3")
    a("s_cmp_eq_u32 s35, 0\ns_cbranch_scc1 prep_kv0")
    a("s_cmp_eq_u32 s35, 1\ns_cbranch_scc1 prep_kv1")
    a(f"v_mov_b32 v10, {BIG}\nv_mov_b32 v11, {BIG}")
    a("v_lshlrev_b32 v12, 1, v3\nv_add_u32 v12, 32, v12")
    a("v_cmp_gt_u32 vcc, 4, v3\nv_cndmask_b32 v10, v10, v12, vcc")
    a("v_lshlrev_b32 v12, 1, v8")
    a("v_add_u32 v13, 16, v12\nv_add_u32 v14, 36, v12")
    a("v_cmp_eq_u32 vcc, 1, v9\nv_cndmask_b32 v11, v11, v13, vcc")
    a("v_cmp_eq_u32 vcc, 2, v9\nv_cndmask_b32 v11, v11, v14, vcc")
    a(f"v_mov_b32 v12, {BIG}\nv_cmp_lt_u32 vcc, 1, v8\nv_cndmask_b32 v11, v11, v12, vcc")
    a("s_branch prep_kvgo")
    a.label("prep_kv0")
    a(f"v_lshlrev_b32 v10, 1, v3\nv_mov_b32 v11, {BIG}")
    a("s_branch prep_kvgo")
    a.label("prep_kv1")
    a(f"v_mov_b32 v10, {BIG}")
    a("v_mov_b32 v11, 0\nv_cmp_eq_u32 vcc, 1, v9\nv_cndmask_b32 v11, v11, 10, vcc")
    a("v_cmp_eq_u32 vcc, 2, v9\nv_cndmask_b32 v11, v11, 4, vcc")
    a("v_cmp_eq_u32 vcc, 3, v9\nv_cndmask_b32 v11, v11, 14, vcc")
    a("v_add_u32 v11, v11, v8\nv_lshlrev_b32 v11, 1, v11")
    a.label("prep_kvgo")
    a("v_mul_u32_u24 v12, 320, v4")
    a("v_add_u32 v10, v10, v12\nv_add_u32 v11, v11, v12")
    a(f"s_mul_i32 s38, s34, {5*32*40}")
    a(f"v_cmp_gt_u32 vcc, {BIG}, v10\ns_and_saveexec_b64 s[48:49], vcc")
    a("s_cbranch_execz prep_kv_skipk")
    gather(10, 12, 40, 38, 5, 32 * 40)
    a.label("prep_kv_skipk")
    a("s_mov_b64 exec, s[48:49]")
    a(f"v_cmp_gt_u32 vcc, {BIG}, v11\ns_and_saveexec_b64 s[48:49], vcc")
    a("s_cbranch_execz prep_kv_skipv")
    gather(11, 16, 40, 38, 5, 32 * 40)
    a.label("prep_kv_skipv")
    a("s_mov_b64 exec, s[48:49]")
    a(f"s_mul_i32 s44, s35, {SL*KB}\ns_mul_i32 s45, s34, {30*KB}\ns_add_u32 s44, s44, s45\ns_add_u32 s44, s44, {WST + (FQ+5)*KB}")
    a(f"s_mul_i32 s46, s35, 384\ns_add_u32 s46, s46, {CSQ + 5*64}")
    colsum_and_store(44, 6 * KB, 46)
    a.label("prep_w1")
    srd(a, 12, 30, 0, D * F * 2)
    a("s_sub_u32 s35, s2, 43")
    a("s_mul_i32 s36, s35, 2428\ns_lshr_b32 s36, s36, 16")
    a("s_mul_i32 s37, s36, 27\ns_sub_u32 s37, s35, s37")
    a("s_lshl_b32 s36, s36, 1")
    a("s_cmp_ge_u32 s37, 14\ns_cbranch_scc0 prep_w1a")
    a("s_add_u32 s36, s36, 1\ns_sub_u32 s37, s37, 14")
    a.label("prep_w1a")
    a("v_mul_u32_u24 v7, 27648, v4")
    a("s_lshl_b32 s39, s35, 5")
    a("v_lshl_add_u32 v7, v3, 1, v7\nv_add_u32 v7, s39, v7")
    a(f"s_mul_i32 s38, s34, {5*32*3456}")
    gather(7, 12, 3456, 38, 5, 32 * 3456)
    a(f"s_mul_i32 s44, s36, {SL*KB}\ns_mul_i32 s45, s34, {5*14*KB}\ns_add_u32 s44, s44, s45\ns_lshl_b32 s45, s37, 10\ns_add_u32 s44, s44, s45\ns_add_u32 s44, s44, {WST + F1*KB}")
    a(f"s_mul_i32 s46, s36, 896\ns_lshl_b32 s45, s37, 6\ns_add_u32 s46, s46, s45\ns_add_u32 s46, s46, {CS1}")
    colsum_and_store(44, 14 * KB, 46)
    a.label("prep_plain")
    a("s_sub_u32 s35, s2, 151\ns_lshl_b32 s35, s35, 2\ns_add_u32 s35, s35, s34")
    a("s_cmp_lt_u32 s35, 120\ns_cbranch_scc1 prep_wo")
    a("s_sub_u32 s35, s35, 120")
    a("s_cmp_ge_u32 s35, 280\ns_cbranch_scc1 prep_bias")
    srd(a, 12, 32, 0, F * D * 2)
    a(f"s_mov_b32 s50, {WST + F2*KB}\ns_mov_b32 s51, 6\ns_mov_b32 s52, 2")
    a("s_branch prep_pl2")
    a.label("prep_wo")
    srd(a, 12, 28, 0, D * D * 2)
    a(f"s_mov_b32 s50, {WST + FO*KB}\ns_mov_b32 s51, 2\ns_mov_b32 s52, 0")
    a.label("prep_pl2")
    a("s_mul_i32 s36, s35, 1639\ns_lshr_b32 s36, s36, 16")
    a("s_mul_i32 s37, s36, 40\ns_sub_u32 s37, s35, s37")
    a("s_mul_i32 s38, s37, 52429\ns_lshr_b32 s38, s38, 18")
    a("s_mul_i32 s39, s38, 5\ns_sub_u32 s39, s37, s39")
    a("v_mul_u32_u24 v7, 10240, v4")
    a("s_lshl_b32 s45, s37, 5")
    a("v_lshl_add_u32 v7, v3, 1, v7\nv_add_u32 v7, s45, v7")
    a(f"s_mul_i32 s44, s38, {SL*KB}\ns_add_u32 s44, s44, s50\ns_mul_i32 s45, s36, {40*KB}\ns_add_u32 s44, s44, s45\ns_lshl_b32 s45, s39, 10\ns_add_u32 s44, s44, s45")
    a(f"s_mul_i32 s38, s36, {8*32*1280}")
    gather(7, 12, 1280, 38, 8, 32 * 1280)
    pack(8)
    for f in range(8):
        if f >= 4:
            a(f"s_cmp_eq_u32 s36, s51\ns_cbranch_scc0 prep_st{f}")
            a(f"s_cmp_gt_u32 s52, {f-4}\ns_cbranch_scc0 prep_done")
            a.label(f"prep_st{f}")
        a(f"s_add_u32 s40, s44, {f*5*KB}")
        a(f"buffer_store_dwordx4 v[{32+4*f}:{35+4*f}], v5, s[8:11], s40 offen" + PSC)
    a.label("prep_done")
    a("s_waitcnt vmcnt(0)")
    a("s_endpgm")
    a.label("prep_bias")
    a("s_waitcnt vmcnt(0)")
    xstores()
    a("v_mov_b32 v8, 0\nv_mov_b32 v9, 0\nv_mov_b32 v10, 0\nv_mov_b32 v11, 0")
    a("v_lshlrev_b32 v6, 4, v0")
    nz = FLAG_BYTES // 4096
    for r in range(nz):
        a(f"s_mov_b32 s40, {FLAGS + r*4096}\nbuffer_store_dwordx4 v[8:11], v6, s[8:11], s40 offen")
    a("s_cmp_eq_u32 s35, 280\ns_cbranch_scc0 prep_done2")
    a("v_mov_b32 v7, 0")
    for idx in (32 + 6, 32 + 10, 32 + 12, 32 + 13):
        a(f"v_cmp_eq_u32 vcc, {idx}, v1\nv_cndmask_b32 v7, v7, 1.0, vcc")
    a("v_lshlrev_b32 v6, 2, v1\nv_cmp_gt_u32 vcc, 48, v1\ns_and_saveexec_b64 s[42:43], vcc")
    a(f"s_mov_b32 s40, {BKV}\nbuffer_store_dword v7, v6, s[8:11], s40 offen")
    a.label("prep_done2")
    a("s_waitcnt vmcnt(0)")
    a("s_endpgm")
    kernel_end(a, name)
    return a.out, descriptor(name, 144), (name, 256, 256, 1024)

VB, VA, VST, VSO, VONE, RES = 64, 144, 36, 44, 52, 246

class Prof:
    n = 0
LDTS = [False]
SEGTS = [False]
def ts(a, label, loader=False, seg=False):
    if not PROFILE: return
    if PROFLD != loader: return
    if PROFSEG != seg: return
    if Prof.n >= 26: return
    i = Prof.n; Prof.n += 1
    assert i < 26, i
    a(f"s_memtime s[98:99]\ns_waitcnt lgkmcnt(0)\ns_mov_b32 s{70+i}, s98")
    TSN.append(label)
TSN = []

def unpack2(a, dlo, dhi, src):
    a(f"v_lshlrev_b32 v{dlo}, 16, v{src}")
    a(f"v_and_b32 v{dhi}, 0xffff0000, v{src}")

uid = [0]
def newlab(p):
    uid[0] += 1
    return f"{p}_{uid[0]}"

def await_flags(a, mask, off_sgpr, vtmp=56):
    L, Dn = newlab("poll"), newlab("polld")
    a(f"v_lshlrev_b32 v{vtmp}, 2, v1")
    a(f"s_mov_b64 s[42:43], exec\ns_mov_b64 exec, {mask:#x}\ns_mov_b32 s44, 0")
    a.label(L)
    a(f"buffer_load_dword v{vtmp+1}, v{vtmp}, s[8:11], s{off_sgpr} offen sc1")
    a("s_add_u32 s44, s44, 1")
    a("s_waitcnt vmcnt(0)")
    a(f"v_cmp_eq_u32 vcc, 0, v{vtmp+1}")
    a(f"s_cmp_eq_u64 vcc, 0\ns_cbranch_scc1 {Dn}")
    a(f"s_cmp_gt_u32 s44, {SPIN_MAX}\ns_cbranch_scc1 {Dn}")
    a(f"s_sleep 1\ns_branch {L}")
    a.label(Dn)
    a("s_mov_b64 exec, s[42:43]")

def set_flag(a, off_sgpr, vtmp=56, second=None):
    L1, L2 = newlab("sf"), newlab("sf")
    a("s_waitcnt vmcnt(0)")
    a(f"v_mov_b32 v{vtmp}, 0\nv_mov_b32 v{vtmp+1}, 1")
    a("s_mov_b64 s[42:43], exec\ns_mov_b64 exec, 1")
    a(f"s_cmp_eq_u32 s59, 1\ns_cbranch_scc1 {L1}")
    a(f"buffer_store_dword v{vtmp+1}, v{vtmp}, s[8:11], s{off_sgpr} offen sc1")
    if second is not None: a(f"buffer_store_dword v{vtmp+1}, v{vtmp}, s[8:11], s{second} offen sc1")
    a(f"s_branch {L2}")
    a.label(L1)
    a(f"buffer_store_dword v{vtmp+1}, v{vtmp}, s[8:11], s{off_sgpr} offen")
    if second is not None: a(f"buffer_store_dword v{vtmp+1}, v{vtmp}, s[8:11], s{second} offen")
    a.label(L2)
    a("s_mov_b64 exec, s[42:43]")

def xstore(a, text):
    L1, L2 = newlab("xs"), newlab("xs")
    a(f"s_cmp_eq_u32 s59, 1\ns_cbranch_scc1 {L1}")
    a(text.replace("@SC", "sc1"))
    a(f"s_branch {L2}")
    a.label(L1)
    a(text.replace("@SC", ""))
    a.label(L2)

def xf_off(a, dst, kind, extra_sgpr=None, extra_imm=0):
    a(f"s_lshl_b32 s{dst}, s37, 13\ns_lshl_b32 s45, s35, 8\ns_add_u32 s{dst}, s{dst}, s45")
    a(f"s_and_b32 s45, s34, 3\ns_lshl_b32 s45, s45, 6\ns_add_u32 s{dst}, s{dst}, s45")
    a(f"s_add_u32 s{dst}, s{dst}, {XF + kind*16384 + extra_imm}")
    if extra_sgpr is not None: a(f"s_add_u32 s{dst}, s{dst}, s{extra_sgpr}")

class Ring:
    def __init__(self):
        self.I = RING
        self.q = [f for f in range(0, RING, 16) for _ in range(4)]
    def drained(self): self.q = []
def loader_issue(a, frm, upto, ring=None):
    assert frm % 16 == 0 and upto % 16 == 0
    skip = None
    for f in range(frm, upto, 16):
        if f == SLP or (f > SLP and f == frm):
            skip = newlab("ldsk")
            a(f"s_cmp_eq_u32 s37, 1\ns_cbranch_scc1 {skip}")
        a(f"s_add_u32 m0, s69, {(f % RING) * KB}")
        a(f"s_add_u32 s44, s60, {(f % SLP) * KB}")
        for q in range(4):
            if "noW" not in sys.argv: a(f"buffer_load_dwordx4 v5, s[8:11], s44 offen offset:{q*1024} lds")
            if ring is not None and f < SLP: ring.q.append(f)
    if skip: a.label(skip)

def touch(a, ring, frag0, n, per_wave_sgpr=69):
    a("v_lshlrev_b32 v58, 7, v1")
    a(f"s_mul_i32 s45, s69, {2*n}\ns_sub_u32 s45, s45, s69\ns_add_u32 s45, s45, s60")
    for i in range(n):
        a(f"s_add_u32 s44, s45, {(frag0 + 8*i) * KB}")
        a(f"buffer_load_dword v59, v58, s[8:11], s44 offen")
        if ring is not None: ring.q.append(None)

def loader_bp(a, ring, need, consumed, cap=None):
    if LDTS[0] and Prof.n < 22: ts(a, "w0", True)
    if need is not None:
        assert need <= ring.I, (need, ring.I)
        last = -1
        for i, f in enumerate(ring.q):
            if f is not None and f < need: last = i
        if last >= 0:
            n = len(ring.q) - 1 - last
            a(f"s_waitcnt vmcnt({min(n,63)})")
            ring.q = ring.q[last + 1:]
    if LDTS[0] and Prof.n < 22: ts(a, "vm", True)
    a("s_barrier")
    if LDTS[0] and Prof.n < 22: ts(a, "bar", True)
    if consumed >= SL: consumed = SLP
    upto = (consumed + RING) // 16 * 16
    if cap is not None: upto = min(upto, (cap + 15) // 16 * 16)
    if upto > ring.I:
        loader_issue(a, ring.I, upto, ring)
        ring.I = upto

def stats_finalize(a, accS, accQ, vRho, vMu, tmp, double_ln):
    t0, t1, t2, t3 = tmp, tmp + 1, tmp + 2, tmp + 3
    a(f"v_and_b32 v{t0}, 3, v1")
    a(f"v_mov_b32 v{t1}, v{accQ}")
    for r in (1, 2, 3):
        a(f"v_cmp_eq_u32 vcc, {r}, v{t0}")
        a(f"v_cndmask_b32 v{t1}, v{t1}, v{accQ+r}, vcc")
    a(f"v_lshrrev_b32 v{t2}, 2, v3\nv_lshlrev_b32 v{t2}, 4, v{t2}\nv_add_u32 v{t2}, v{t2}, v3\nv_lshlrev_b32 v{t2}, 2, v{t2}")
    a(f"ds_bpermute_b32 v{t1}, v{t2}, v{t1}")
    a(f"v_mul_f32 v{t0}, {f2u(1.0/D):#x}, v{accS}")
    a("s_waitcnt lgkmcnt(0)")
    a(f"v_mul_f32 v{t1}, {f2u(1.0/D):#x}, v{t1}")
    a(f"v_fma_f32 v{t1}, -v{t0}, v{t0}, v{t1}")
    a(f"v_max_f32 v{t1}, 0, v{t1}")
    a(f"v_add_f32 v{t2}, {f2u(1e-5):#x}, v{t1}")
    a(f"v_rsq_f32 v{t2}, v{t2}")
    if double_ln:
        a(f"v_mul_f32 v{t3}, v{t2}, v{t2}")
        a(f"v_mul_f32 v{t3}, v{t3}, v{t1}")
        a(f"v_add_f32 v{t3}, {f2u(1e-5):#x}, v{t3}")
        a(f"v_rsq_f32 v{t3}, v{t3}")
        a(f"v_mul_f32 v{t2}, v{t2}, v{t3}")
    a(f"v_mov_b32 v{vRho}, v{t2}")
    a(f"v_mul_f32 v{vMu}, v{t0}, v{t2}")

def set_bases(a, delta):
    a(f"s_and_b32 s45, s34, 1\ns_mul_i32 s44, s45, {delta*KB}\nv_add_u32 v6, s44, v5\nv_add_u32 v7, 0x10000, v6")
    a(f"s_xor_b32 s45, s45, 1\ns_mul_i32 s44, s45, {(RING-delta)*KB}\nv_add_u32 v2, s44, v5")
def rdA(a, f0, delta, reg):
    o = f0 % RING
    if o + delta < RING:
        ob = o * KB
        base = 6 if ob < 65536 else 7
        return a.lg(f"ds_read_b128 v[{reg}:{reg+3}], v{base} offset:{ob % 65536}")
    return a.lg(f"ds_read_b128 v[{reg}:{reg+3}], v2 offset:{(o - (RING - delta)) * KB}")

def make_units(nA, segs, G):
    return [(i, t0, min(nA, t0 + G), si) for si, (i0, i1) in enumerate(segs) for i in range(i0, i1) for t0 in range(0, nA, G)]

def kloop2(a, fbase, span, delta, nA, segs, breg, acc0, acc1, stats, G, before=None, after=None):
    units = make_units(nA, segs, G)
    def read1(u, buf, k):
        i, t0, t1, si = u
        if "noR" in sys.argv and i > 0: return a.nlg
        return rdA(a, fbase + i * span + t0 + k, delta, VA + (buf * G + k) * 4)
    a("s_barrier")
    pend = [read1(units[0], 0, k) for k in range(units[0][2] - units[0][1])]
    for n, u in enumerate(units):
        i, t0, t1, si = u
        nu = units[n + 1] if n + 1 < len(units) else None
        if nu is not None and nu[3] != si:
            if SEGTS[0]: ts(a, "preb", seg=True)
            a("s_barrier")
            if SEGTS[0]: ts(a, "bar", seg=True)
        if t0 == 0 and before: before(i)
        if SEGTS[0] and nu is not None and nu[3] != si: ts(a, "vm", seg=True)
        b0, b1 = breg(i)
        def m(d, A, B):
            c = "0" if i == 0 else f"v[{d}:{d+3}]"
            if "noM" in sys.argv and i > 0: return
            a(f"v_mfma_f32_16x16x32_bf16 v[{d}:{d+3}], v[{A}:{A+3}], v[{B}:{B+3}], {c}")
        nn = (nu[2] - nu[1]) if nu is not None else 0
        nxt = []
        for t in range(t0, t1):
            ra = VA + ((n % 2) * G + t - t0) * 4
            a.wait_lg(pend[t - t0])
            m(acc0 + 4 * t, ra, b0)
            if len(nxt) < nn: nxt.append(read1(nu, (n + 1) % 2, len(nxt)))
            m(acc1 + 4 * t, ra, b1)
            if len(nxt) < nn and (t - t0) % 2 == 0 and nn > (t1 - t0): nxt.append(read1(nu, (n + 1) % 2, len(nxt)))
        while len(nxt) < nn: nxt.append(read1(nu, (n + 1) % 2, len(nxt)))
        if stats and t1 == nA:
            m(VST, VONE, b0); m(VST + 4, b0, b0)
            if stats == 2: m(VSO, VONE, b1); m(VSO + 4, b1, b1)
        pend = nxt
        if t1 == nA and after: after(i)

def loader_kloop2(a, ring, fbase, span, nA, segs, G):
    units = make_units(nA, segs, G)
    cap = None if "nocap" in sys.argv else fbase + segs[-1][1] * span
    loader_bp(a, ring, fbase + segs[0][1] * span, fbase, cap)
    for n, u in enumerate(units):
        nu = units[n + 1] if n + 1 < len(units) else None
        if nu is not None and nu[3] != u[3]:
            loader_bp(a, ring, fbase + segs[nu[3]][1] * span, fbase + u[0] * span, cap)

def store_tiles(a, srcs, ntiles, vaddr16, vaddr8, srd_, soff, imm_stride, sc, tmp=56):
    st = []
    i = 0
    while i < ntiles:
        if i + 1 < ntiles:
            t = tmp + 4 * ((i // 2) % 2)
            a(f"v_mov_b32 v{t}, v{srcs[i]}\nv_mov_b32 v{t+1}, v{srcs[i]+1}\nv_mov_b32 v{t+2}, v{srcs[i+1]}\nv_mov_b32 v{t+3}, v{srcs[i+1]+1}")
            a(f"v_permlane16_swap_b32 v{t}, v{t+2}\nv_permlane16_swap_b32 v{t+1}, v{t+3}")
            st.append(f"buffer_store_dwordx4 v[{t}:{t+3}], v{vaddr16}, s[{srd_}:{srd_+3}], {soff} offen offset:{i*imm_stride} {sc}")
            i += 2
        else:
            st.append(f"buffer_store_dwordx2 v[{srcs[i]}:{srcs[i]+1}], v{vaddr8}, s[{srd_}:{srd_+3}], {soff} offen offset:{i*imm_stride} {sc}")
            i += 1
    if sc == "@SC": xstore(a, "\n".join(st))
    else: a("\n".join(st))

def frag_addr(a, v16, v8, Tsgpr, tmp):
    a(f"v_lshrrev_b32 v{v8}, 1, v4\nv_lshlrev_b32 v{v8}, 8, v{v8}\nv_lshl_add_u32 v{v8}, v3, 4, v{v8}")
    a(f"s_lshl_b32 s45, s{Tsgpr}, 9\nv_add_u32 v{v8}, s45, v{v8}")
    a(f"v_and_b32 v{tmp}, 1, v4\nv_lshl_add_u32 v{v16}, v{tmp}, 9, v{v8}\nv_lshl_add_u32 v{v8}, v{tmp}, 3, v{v8}")

def code_prefetch(a, first, last, wave, nkb=32):
    L = newlab("cpf")
    a(f"s_cmp_eq_u32 s34, {wave}\ns_cbranch_scc0 {L}")
    a(f"s_getpc_b64 s[40:41]")
    here = newlab("pc"); a.label(here)
    a(f"s_sub_u32 s40, s40, {here}-{first}\ns_subb_u32 s41, s41, 0")
    a("v_lshlrev_b32 v8, 6, v1")
    for i in range(nkb // 4):
        a(f"global_load_dword v{10+i}, v8, s[40:41]")
        a("v_add_u32 v8, 4096, v8")
    a.label(L)

def gen_main():
    a = Asm(); name = "main_kernel"
    kernel_begin(a, name, 256)
    a("s_load_dwordx2 s[4:5], s[0:1], 96")
    a("s_load_dwordx2 s[6:7], s[0:1], 0")
    a("s_load_dwordx2 s[24:25], s[0:1], 56")
    a("s_load_dwordx4 s[28:31], s[0:1], 72")
    a("v_and_b32 v1, 63, v0")
    a("v_lshrrev_b32 v2, 6, v0")
    a("v_readfirstlane_b32 s34, v2")
    a("v_and_b32 v3, 15, v1\nv_lshrrev_b32 v4, 4, v1\nv_lshlrev_b32 v5, 4, v1")
    a("s_and_b32 s35, s2, 31\ns_lshr_b32 s36, s2, 5\ns_mov_b32 s37, 0")
    a("s_waitcnt lgkmcnt(0)")
    a("s_mov_b32 s26, s28\ns_mov_b32 s27, s29\ns_mov_b32 s28, s30\ns_mov_b32 s29, s31")
    srd(a, 8, 4, 0, WS_BYTES)
    a("s_lshl_b32 s67, s35, 2\ns_and_b32 s38, s34, 3\ns_add_u32 s67, s67, s38\ns_lshl_b32 s66, s67, 4\ns_xor_b32 s65, s67, 1\ns_mul_i32 s68, s36, 5")
    a(f"s_lshl_b32 s69, s38, 12\ns_mul_i32 s60, s36, {SL*KB}\ns_add_u32 s60, s60, s69\ns_add_u32 s60, s60, {WST}")
    a("s_mov_b32 s59, 0\ns_getreg_b32 s58, hwreg(HW_REG_XCC_ID, 0, 4)\ns_add_u32 s58, s58, 1")
    a("s_cmp_eq_u32 s34, 0\ns_cbranch_scc0 pro_x")
    a(f"s_lshl_b32 s40, s35, 5\ns_lshl_b32 s41, s36, 2\ns_add_u32 s40, s40, s41\ns_add_u32 s40, s40, {XID}\nv_mov_b32 v8, 0\nv_mov_b32 v9, s58")
    a("s_mov_b64 s[42:43], exec\ns_mov_b64 exec, 1\nbuffer_store_dword v9, v8, s[8:11], s40 offen sc1\ns_mov_b64 exec, s[42:43]")
    a.label("pro_x")
    ts(a, "start")
    if "cpf" in sys.argv:
        code_prefetch(a, "main_kernel", "main_kernel_exit", 7)
    a("s_cmp_ge_u32 s34, 4\ns_cbranch_scc0 pro_c")
    loader_issue(a, 0, RING)
    a("s_branch pro_d")
    a.label("pro_c")
    a("v_add_u32 v6, s66, v3")
    a("v_mul_u32_u24 v56, 1280, v6\nv_lshl_add_u32 v56, v4, 3, v56\ns_mul_i32 s40, s36, 160\nv_add_u32 v56, s40, v56")
    srd(a, 12, 6, 0, XBYTES)
    for i in range(5):
        a(f"buffer_load_dwordx2 v[{RES+2*i}:{RES+2*i+1}], v56, s[12:15], 0 offen offset:{i*32}")
    a.label("pro_d")
    a.label("layer_top")
    ring = Ring()
    ld = Asm()
    def tile_offs(base_imm, layer_stride, tile_bytes, ksplit):
        a(f"s_mul_i32 s40, s67, {tile_bytes}\ns_mul_i32 s41, s65, {tile_bytes}")
        if layer_stride:
            a(f"s_mul_i32 s45, s37, {layer_stride}\ns_add_u32 s45, s45, {base_imm}")
        else:
            a(f"s_mov_b32 s45, {base_imm}")
        if ksplit:
            a("s_and_b32 s44, s34, 1\ns_lshl_b32 s44, s44, 10\ns_add_u32 s45, s45, s44")
        a("s_add_u32 s40, s40, s45\ns_add_u32 s41, s41, s45")
    class BL:
        def __init__(self, stride, nslots): self.stride, self.n, self.tag, self.cur = stride, nslots, {}, 0
        def regs(self, i): r = VB + 8 * (i % self.n); return (r, r + 4)
        def load(self, i):
            o = i * self.stride
            if o - self.cur > 4095 - 1023 * 0 or o - self.cur >= 4096:
                d = (o - self.cur) // 4096 * 4096
                a(f"s_add_u32 s40, s40, {d}\ns_add_u32 s41, s41, {d}"); self.cur += d
            r0, r1 = self.regs(i)
            if "noB" in sys.argv and i >= 2:
                self.tag[i] = a.nvm; return
            a.vm(f"buffer_load_dwordx4 v[{r0}:{r0+3}], v5, s[8:11], s40 offen offset:{o - self.cur} sc1")
            self.tag[i] = a.vm(f"buffer_load_dwordx4 v[{r1}:{r1+3}], v5, s[8:11], s41 offen offset:{o - self.cur} sc1")
    def flag_line(dst, kind, tile_sgpr=None, pair=False, layer_delta=0):
        a(f"s_lshl_b32 s{dst}, s37, 13")
        if pair: a(f"s_and_b32 s45, s67, -2\ns_lshl_b32 s45, s45, 6")
        else: a(f"s_lshl_b32 s45, s{tile_sgpr}, 6")
        a(f"s_add_u32 s{dst}, s{dst}, s45\ns_add_u32 s{dst}, s{dst}, {XF + kind*16384 + layer_delta}")
    def reduce_pair(acc0, acc1, NT, stats):
        a(f"s_and_b32 s45, s34, 3\ns_lshl_b32 s44, s45, 13\ns_add_u32 s44, s44, {KVL}\nv_add_u32 v56, s44, v5")
        for t in range(NT): a(f"ds_write_b128 v56, v[{acc1+4*t}:{acc1+4*t+3}] offset:{t*1024}")
        if stats:
            a(f"ds_write_b128 v56, v[{VSO}:{VSO+3}] offset:{6*1024}\nds_write_b128 v56, v[{VSO+4}:{VSO+7}] offset:{7*1024}")
        a(f"s_xor_b32 s45, s45, 1\ns_lshl_b32 s44, s45, 13\ns_add_u32 s44, s44, {KVL}\nv_add_u32 v57, s44, v5")
        a("s_waitcnt lgkmcnt(0)\ns_barrier")
        for t in range(NT): a(f"ds_read_b128 v[{VA+4*t}:{VA+4*t+3}], v57 offset:{t*1024}")
        if stats:
            a(f"ds_read_b128 v[{VSO}:{VSO+3}], v57 offset:{6*1024}\nds_read_b128 v[{VSO+4}:{VSO+7}], v57 offset:{7*1024}")
        a("s_waitcnt lgkmcnt(0)")
        for t in range(NT * 4): a(f"v_add_f32 v{acc0+t}, v{acc0+t}, v{VA+t}")
        if stats:
            for t in range(8): a(f"v_add_f32 v{VST+t}, v{VST+t}, v{VSO+t}")
    ones = lambda: a("v_mov_b32 v52, 0x3f803f80\nv_mov_b32 v53, 0x3f803f80\nv_mov_b32 v54, 0x3f803f80\nv_mov_b32 v55, 0x3f803f80")
    A0, A1 = 192, 216
    a("s_cmp_ge_u32 s34, 4\ns_cbranch_scc1 ld_qkv")
    a.nvm = 0; a.nlg = 0
    a(f"s_mul_i32 s45, s36, 384\ns_add_u32 s45, s45, {CSQ}\nv_lshlrev_b32 v58, 4, v4")
    for i in range(6): a(f"buffer_load_dwordx4 v[{8+4*i}:{8+4*i+3}], v58, s[8:11], s45 offen offset:{i*64}")
    a(f"s_min_u32 s46, s36, 2\ns_lshl_b32 s46, s46, 6\ns_add_u32 s46, s46, {BKV}")
    a(f"buffer_load_dwordx4 v[32:35], v58, s[8:11], s46 offen")
    ones(); set_bases(a, 6)
    a("s_cmp_eq_u32 s37, 0\ns_cbranch_scc1 qkv_l0")
    flag_line(46, 3, pair=True, layer_delta=-8192)
    await_flags(a, 0x00FF00FF, 46)
    a.label("qkv_l0")
    ts(a, "qkv_ready")
    tile_offs(XF0, X2 - XF0, 20480, True)
    bl = BL(2048, 10)
    for i in range(10): bl.load(i)
    segs = [(0, 2), (2, 4), (4, 6), (6, 8), (8, 10)]
    kloop2(a, FQ, 12, 6, 6, segs, bl.regs, A0, A1, 2, 6, before=lambda i: a.wait_vm(bl.tag[i]))
    ld.label("ld_qkv")
    loader_kloop2(ld, ring, FQ, 12, 6, segs, 6)
    ts(a, "qkv_kloop")
    reduce_pair(A0, A1, 6, True)
    ld("s_barrier")
    stats_finalize(a, VST, VST + 4, 60, 61, 56, False)
    qs = DH ** -0.5 * LOG2E
    a(f"v_mul_f32 v62, {f2u(qs):#x}, v60\nv_mul_f32 v63, {f2u(qs):#x}, v61")
    a("s_cmp_lt_u32 s36, 3\ns_cbranch_scc0 qkv_nokv")
    i = 5
    for r in range(4):
        a(f"v_fma_f32 v{48+r}, -v61, v{8+4*i+r}, v{32+r}")
        a(f"v_fma_f32 v{48+r}, v60, v{A0+4*i+r}, v{48+r}")
    a("v_cvt_pk_bf16_f32 v52, v48, v49\nv_cvt_pk_bf16_f32 v53, v50, v51")
    a("s_and_b32 s38, s34, 1")
    a(f"s_and_b32 s41, s34, 3\ns_lshl_b32 s41, s41, 10\ns_add_u32 s41, s41, {KVL + 32*KB}")
    a(f"s_lshr_b32 s47, s67, 1\ns_lshl_b32 s47, s47, 12\ns_mul_i32 s48, s37, {KVB[1]-KVB[0]}\ns_add_u32 s47, s47, s48\ns_add_u32 s47, s47, {KVB[0]}")
    def vwrite(rowoff, hstride):
        a(f"v_bfe_u32 v54, v3, 2, 1\nv_mul_u32_u24 v54, {hstride}, v54")
        a("v_bfe_u32 v55, v3, 3, 1\nv_lshl_add_u32 v54, v55, 3, v54")
        a("v_and_b32 v55, 3, v3\nv_lshl_add_u32 v54, v55, 1, v54")
        a(f"v_add3_u32 v54, v54, v{rowoff}, s41")
        a("ds_write_b16 v54, v52\nds_write_b16_d16_hi v54, v52 offset:16\nds_write_b16 v54, v53 offset:32\nds_write_b16_d16_hi v54, v53 offset:48")
    a("s_cmp_eq_u32 s36, 0\ns_cbranch_scc1 qkv_kvA")
    a("s_cmp_eq_u32 s36, 1\ns_cbranch_scc1 qkv_kvB")
    a("v_lshlrev_b32 v47, 3, v3\nv_add_u32 v47, s41, v47\nv_add_u32 v54, 128, v47\nv_cmp_eq_u32 vcc, 3, v4\nv_cndmask_b32 v47, v47, v54, vcc")
    a("v_cmp_eq_u32 vcc, 0, v4\nv_cmp_eq_u32 s[48:49], 3, v4\ns_or_b64 vcc, vcc, s[48:49]")
    a("s_and_saveexec_b64 s[50:51], vcc")
    a("ds_write_b64 v47, v[52:53]")
    a("s_andn2_b64 exec, s[50:51], exec")
    a("v_lshlrev_b32 v47, 6, v4\nv_add_u32 v47, 192, v47")
    vwrite(47, 128)
    a("s_mov_b64 exec, s[50:51]")
    a("v_and_b32 v47, 7, v1\nv_lshlrev_b32 v47, 4, v47\nv_bfe_u32 v54, v1, 3, 2")
    a("s_lshl_b32 s49, s38, 7\ns_add_u32 s49, s49, 1024\ns_lshl_b32 s50, s38, 10\ns_add_u32 s50, s50, 2304")
    a("v_mov_b32 v55, s49\ns_add_u32 s51, s49, 256\nv_mov_b32 v50, s51\nv_cmp_eq_u32 vcc, 1, v54\nv_cndmask_b32 v55, v55, v50, vcc")
    a("v_mov_b32 v50, s50\nv_cmp_eq_u32 vcc, 2, v54\nv_cndmask_b32 v55, v55, v50, vcc")
    a("s_add_u32 s51, s50, 512\nv_mov_b32 v50, s51\nv_cmp_eq_u32 vcc, 3, v54\nv_cndmask_b32 v55, v55, v50, vcc")
    a("v_add_u32 v47, v47, v55")
    a("s_branch qkv_kvout")
    a.label("qkv_kvB")
    a("v_lshlrev_b32 v47, 6, v4")
    vwrite(47, 256)
    a("v_lshlrev_b32 v47, 4, v3\nv_and_b32 v54, 1, v4\nv_lshl_add_u32 v47, v54, 9, v47\ns_lshl_b32 s49, s38, 10\ns_add_u32 s49, s49, 2048\nv_add_u32 v47, s49, v47")
    a("s_branch qkv_kvout")
    a.label("qkv_kvA")
    a("v_lshrrev_b32 v47, 1, v4\nv_lshlrev_b32 v47, 8, v47\nv_lshl_add_u32 v47, v3, 4, v47\nv_and_b32 v54, 1, v4\nv_lshl_add_u32 v47, v54, 3, v47\nv_add_u32 v47, s41, v47")
    a("ds_write_b64 v47, v[52:53]")
    a("s_lshl_b32 s49, s38, 8\nv_lshlrev_b32 v47, 4, v3\nv_and_b32 v54, 1, v4\nv_lshl_add_u32 v47, v54, 9, v47\nv_add_u32 v47, s49, v47")
    a.label("qkv_kvout")
    a("v_add_u32 v54, s41, v5")
    a("s_waitcnt lgkmcnt(0)")
    a("s_mov_b64 s[50:51], exec\ns_mov_b64 exec, 0xffffffff")
    a("ds_read_b128 v[48:51], v54\ns_waitcnt lgkmcnt(0)")
    a("buffer_store_dwordx4 v[48:51], v47, s[8:11], s47 offen sc1")
    a("s_mov_b64 exec, s[50:51]")
    a.label("qkv_nokv")
    a("s_and_b32 s38, s34, 3\ns_lshl_b32 s38, s38, 4\nv_add_u32 v44, s38, v3\nv_mul_u32_u24 v44, 192, v44")
    a(f"v_add_u32 v44, {KVL + 36*KB}, v44")
    for i in range(5):
        for r in range(4):
            a(f"v_mul_f32 v{48+r}, v63, v{8+4*i+r}")
            a(f"v_fma_f32 v{48+r}, v62, v{A0+4*i+r}, -v{48+r}")
        a(f"v_cvt_pk_bf16_f32 v52, v48, v49\nv_cvt_pk_bf16_f32 v53, v50, v51")
        a(f"v_add_u32 v45, {4*i}, v4\nv_mul_u32_u24 v46, 52, v45\nv_lshrrev_b32 v46, 8, v46\nv_add_u32 v45, v45, v46\nv_lshl_add_u32 v45, v45, 3, v44")
        a("ds_write_b64 v45, v[52:53]")
    a("s_waitcnt vmcnt(0) lgkmcnt(0)")
    a("s_barrier")
    loader_bp(ld, ring, None, FO)
    ld("s_branch att_top")
    a("s_cmp_eq_u32 s34, 0\ns_cbranch_scc0 att_top")
    a("s_cmp_lt_u32 s36, 3\ns_cbranch_scc0 att_top")
    a(f"s_lshl_b32 s46, s37, 13\ns_lshr_b32 s45, s35, 3\ns_lshl_b32 s45, s45, 11\ns_add_u32 s46, s46, s45\ns_add_u32 s46, s46, {KVF}\nv_lshlrev_b32 v56, 8, v1\nv_mov_b32 v57, 1")
    a("s_mov_b64 s[42:43], exec\ns_mov_b64 exec, 0xff")
    a("buffer_atomic_add v57, v56, s[8:11], s46 offen")
    a("s_mov_b64 exec, s[42:43]")
    a.label("att_top")
    ts(a, "qkv_done")
    QB_, KV0, P, SA, SB, O = 8, 32, 64, 72, 88, 104
    def Q1(i): return QB_ + 6 * i
    def Q2(i): return QB_ + 6 * i + 4
    def K1(b): return KV0 + 16 * b
    def K2(b): return KV0 + 16 * b + 4
    def V1(b): return KV0 + 16 * b + 8
    a("v_and_b32 v6, 31, v1\nv_lshrrev_b32 v7, 5, v1\nv_lshlrev_b32 v170, 3, v1")
    a("s_and_b32 s38, s34, 3\ns_lshr_b32 s39, s34, 2")
    a("v_lshrrev_b32 v171, 2, v6\nv_mul_u32_u24 v171, 192, v171\nv_and_b32 v172, 3, v6\nv_mul_u32_u24 v172, 48, v172\nv_add_u32 v171, v171, v172")
    for i in range(4):
        a(f"s_add_u32 s40, s38, {i}\ns_and_b32 s40, s40, 3\ns_lshl_b32 s41, s39, 2\ns_add_u32 s40, s40, s41\ns_mul_i32 s40, s40, {8*192}\ns_add_u32 s40, s40, {KVL + 36*KB}")
        a(f"v_add_u32 v173, s40, v171\nv_lshl_add_u32 v174, v7, 4, v173")
        a(f"ds_read_b128 v[{Q1(i)}:{Q1(i)+3}], v174\nds_read_b64 v[{Q2(i)}:{Q2(i)+1}], v173 offset:32")
    FLAGW = KVL + 48 * KB - 64
    a("s_mov_b32 s57, 0")
    a("s_waitcnt lgkmcnt(0)")
    a("v_cmp_eq_u32 vcc, 1, v7")
    for i in range(4):
        a(f"v_cndmask_b32 v{Q2(i)}, v{Q2(i)}, 0, vcc\nv_cndmask_b32 v{Q2(i)+1}, v{Q2(i)+1}, 0, vcc")
    Lp, Ld = newlab("kvp"), newlab("kvpd")
    a(f"s_lshl_b32 s46, s37, 13\ns_lshl_b32 s45, s38, 11\ns_add_u32 s46, s46, s45\ns_and_b32 s45, s2, 7\ns_lshl_b32 s45, s45, 8\ns_add_u32 s46, s46, s45\ns_add_u32 s46, s46, {KVF}\nv_mov_b32 v175, 0\ns_mov_b32 s44, 0")
    a("s_mov_b64 s[42:43], exec\ns_mov_b64 exec, 1")
    a.label(Lp)
    a("buffer_load_dword v176, v175, s[8:11], s46 offen sc1")
    a("s_add_u32 s44, s44, 1\ns_waitcnt vmcnt(0)")
    a("v_readfirstlane_b32 s45, v176")
    a(f"s_cmp_ge_u32 s45, 24\ns_cbranch_scc1 {Ld}")
    a(f"s_cmp_gt_u32 s44, {SPIN_MAX}\ns_cbranch_scc1 {Ld}")
    a(f"s_sleep 2\ns_branch {Lp}")
    a.label(Ld)
    a("s_mov_b64 exec, s[42:43]")
    ts(a, "kv_ready")
    a.label("att_main")
    for r in range(64): a(f"v_mov_b32 v{O+r}, 0")
    a(f"s_mul_i32 s47, s37, {KVB[1]-KVB[0]}\ns_add_u32 s47, s47, {KVB[0]}\ns_lshl_b32 s48, s38, 16\ns_add_u32 s47, s47, s48")
    def ldK(b):
        a(f"buffer_load_dwordx4 v[{K1(b)}:{K1(b)+3}], v5, s[8:11], s47 offen sc1")
        a(f"buffer_load_dwordx2 v[{K2(b)}:{K2(b)+1}], v170, s[8:11], s47 offen offset:1024 sc1")
    def ldV(b, h):
        a(f"buffer_load_dwordx4 v[{V1(b)+4*h}:{V1(b)+4*h+3}], v5, s[8:11], s47 offen offset:{2048+1024*h} sc1")
    def qk1(Sd, b, i): a(f"v_mfma_f32_32x32x16_bf16 v[{Sd}:{Sd+15}], v[{K1(b)}:{K1(b)+3}], v[{Q1(i)}:{Q1(i)+3}], 0")
    def qk2(Sd, b, i): a(f"v_mfma_f32_32x32x8_bf16 v[{Sd}:{Sd+15}], v[{K2(b)}:{K2(b)+1}], v[{Q2(i)}:{Q2(i)+1}], v[{Sd}:{Sd+15}]")
    def pv(i, b, h): a(f"v_mfma_f32_32x32x16_bf16 v[{O+16*i}:{O+16*i+15}], v[{V1(b)+4*h}:{V1(b)+4*h+3}], v[{P+4*h}:{P+4*h+3}], v[{O+16*i}:{O+16*i+15}]")
    ldK(0); ldV(0, 0); ldV(0, 1)
    a("s_add_u32 s47, s47, 4096")
    ldK(1)
    for r in range(4, 8): a(f"v_mov_b32 v{P+r}, 0\nv_mov_b32 v{V1(1)+r}, 0\nv_mov_b32 v{SB+8+r}, 0")
    a("s_waitcnt vmcnt(4)")
    qk1(SA, 0, 0); qk2(SA, 0, 0)
    a("s_mov_b32 s49, 0")
    a("s_cmp_eq_u32 s37, 0\ns_cbranch_scc0 att_nochk")
    a(f"s_lshl_b32 s46, s35, 5\ns_add_u32 s46, s46, {XID}")
    await_flags(a, 0xFF, 46, vtmp=175)
    a("s_mov_b64 s[42:43], exec\ns_mov_b64 exec, 0xff\nv_cmp_ne_u32 vcc, s58, v176\ns_cmp_eq_u64 vcc, 0\ns_cselect_b32 s59, 1, 0\ns_mov_b64 exec, s[42:43]")
    if "noxcd" in sys.argv: a("s_mov_b32 s59, 0")
    a.label("att_nochk")
    PFQ = int([x for x in sys.argv if x.startswith("pfq=")][0][4:]) if any(x.startswith("pfq=") for x in sys.argv) else 96
    PF = "nopf" not in sys.argv
    if PF:
        a(f"s_mul_i32 s88, s36, {SL*KB}\ns_lshr_b32 s45, s35, 3\ns_mul_i32 s45, s45, {PFQ*KB}\ns_add_u32 s88, s88, s45\ns_add_u32 s88, s88, {WST + 224*KB}")
        a(f"s_lshl_b32 s45, s34, 12\ns_add_u32 s88, s88, s45\ns_add_u32 s89, s88, 32768\ns_add_u32 s90, s88, 65536")
        a("s_and_b32 s40, s34, 3\ns_lshl_b32 s41, s35, 2\ns_add_u32 s40, s40, s41")
        a("s_cmp_ge_u32 s34, 4\ns_cbranch_scc1 dst_h")
        a(f"s_mul_i32 s41, s40, 20480\ns_mul_i32 s45, s36, 2560\ns_add_u32 s41, s41, s45")
        a(f"s_mul_i32 s91, s37, {OB[1]-OB[0]}\ns_add_u32 s91, s91, {OB[0]}\ns_add_u32 s91, s91, s41")
        a(f"s_mul_i32 s92, s37, {X1[1]-X1[0]}\ns_add_u32 s92, s92, {X1[0]}\ns_add_u32 s92, s92, s41")
        a(f"s_add_u32 s93, s41, {X2}\ns_mov_b32 s61, 3\ns_mov_b32 s62, 39")
        a("s_branch dst_d")
        a.label("dst_h")
        a("s_lshr_b32 s44, s36, 1\ns_mul_i32 s44, s44, 27\ns_and_b32 s45, s36, 1\ns_mul_i32 s45, s45, 14\ns_add_u32 s44, s44, s45\ns_lshl_b32 s44, s44, 9")
        a(f"s_mul_i32 s41, s40, 55296\ns_add_u32 s44, s44, s41\ns_mul_i32 s45, s37, {HB[1]-HB[0]}\ns_add_u32 s44, s44, s45\ns_add_u32 s91, s44, {HB[0]}")
        a("s_add_u32 s92, s91, 4096\ns_mov_b32 s93, s92\ns_mov_b32 s61, 4\ns_bitcmp1_b32 s36, 0\ns_cselect_b32 s62, 39, 47")
        a.label("dst_d")
        a("s_mov_b32 s94, s93\ns_mov_b32 s95, s93")
    a("s_nop 7")
    ts(a, "att_start")
    a.label("att_loop")
    ex = lambda Sc, r: a(f"v_exp_f32 v{Sc+r}, v{Sc+r}")
    cv = lambda Sc, q: a(f"v_cvt_pk_bf16_f32 v{P+q}, v{Sc+2*q}, v{Sc+2*q+1}")
    for kk in range(2):
        b = kk
        for q in range(4):
            u = kk * 4 + q
            Sc, Sn = (SA, SB) if u % 2 == 0 else (SB, SA)
            pq, pb = (q - 1) % 4, (b if q > 0 else 1 - b)
            nq, nb = (q + 1) % 4, (b if q < 3 else 1 - b)
            ex(Sc, 0); ex(Sc, 1); cv(Sn, 6); cv(Sn, 7); ex(Sc, 2); ex(Sc, 3)
            if q == 3: a(f"s_waitcnt vmcnt({3 if (PF and kk == 1) else 2})")
            qk1(Sn, nb, nq)
            ex(Sc, 4); ex(Sc, 5); cv(Sc, 0); cv(Sc, 1); ex(Sc, 6); ex(Sc, 7)
            qk2(Sn, nb, nq)
            if q == 3:
                a("s_add_u32 s47, s47, 4096")
                ldK(b)
                if PF and kk == 0:
                    a("s_mov_b32 m0, s49\ns_cmp_lt_u32 s49, s61\ns_cselect_b32 s63, 63, s62\ns_movrels_b32 s50, s88")
                    a("v_min_u32 v177, s63, v1\nv_lshlrev_b32 v177, 6, v177")
                    a("buffer_load_dword v178, v177, s[8:11], s50 offen")
            ex(Sc, 8); ex(Sc, 9); cv(Sc, 2); cv(Sc, 3); ex(Sc, 10); ex(Sc, 11)
            pv(pq, pb, 1)
            if q == 0: ldV(1 - b, 0)
            if q == 1: ldV(1 - b, 1)
            ex(Sc, 12); ex(Sc, 13); cv(Sc, 4); cv(Sc, 5); ex(Sc, 14); ex(Sc, 15)
            if q == 0: a(f"s_waitcnt vmcnt({4 if (PF and kk == 1) else 3})")
            pv(q, b, 0)
    a("s_add_u32 s49, s49, 1\ns_cmp_lt_u32 s49, 8\ns_cbranch_scc1 att_loop")
    cv(SB, 6); cv(SB, 7)
    pv(3, 1, 1)
    ts(a, "att_loop_end")
    a(f"s_mul_i32 s40, s34, {3*1536}\ns_add_u32 s40, s40, {KVL}\nv_add_u32 v171, s40, v5\nv_add_u32 v172, s40, v170\nv_add_u32 v172, 1024, v172")
    for r in (1, 2, 3):
        t = 72 + 8 * (r - 1)
        for q in range(5): a(f"v_cvt_pk_bf16_f32 v{t+q}, v{O+16*r+2*q}, v{O+16*r+2*q+1}")
        a(f"v_mov_b32 v{t+5}, v{O+16*r+10}")
        a(f"ds_write_b128 v171, v[{t}:{t+3}] offset:{(r-1)*1536}\nds_write_b64 v172, v[{t+4}:{t+5}] offset:{(r-1)*1536}")
    a(f"v_mov_b32 v175, {FLAGW}\nv_mov_b32 v176, 0\nds_write_b32 v175, v176")
    a("s_waitcnt lgkmcnt(0)\ns_barrier")
    for r in (1, 2, 3):
        t = 72 + 8 * (r - 1)
        a(f"s_sub_u32 s41, s38, {r}\ns_and_b32 s41, s41, 3\ns_lshl_b32 s45, s39, 2\ns_add_u32 s41, s41, s45\ns_mul_i32 s41, s41, {3*1536}\ns_add_u32 s41, s41, {KVL + (r-1)*1536}")
        a(f"v_add_u32 v171, s41, v5\nv_add_u32 v172, s41, v170")
        a(f"ds_read_b128 v[{t}:{t+3}], v171\nds_read_b64 v[{t+4}:{t+5}], v172 offset:1024")
    a("s_waitcnt vmcnt(0) lgkmcnt(0)")
    for r in (1, 2, 3):
        t = 72 + 8 * (r - 1)
        for q in range(5):
            unpack2(a, 173, 174, t + q)
            a(f"v_add_f32 v{O+2*q}, v{O+2*q}, v173\nv_add_f32 v{O+2*q+1}, v{O+2*q+1}, v174")
        a(f"v_add_f32 v{O+10}, v{O+10}, v{t+5}")
    a("s_cmp_eq_u32 s57, 1\ns_cbranch_scc1 att_fin")
    a("v_mov_b32 v173, 0")
    for r in range(10): a(f"v_fma_f32 v173, v{O+r}, 0, v173")
    a(f"v_cmp_lt_f32 vcc, {f2u(2.0**-60):#x}, v{O+10}")
    a(f"v_mov_b32 v174, {f2u(2.0**60):#x}\nv_cmp_gt_f32 s[40:41], v174, v{O+10}\ns_and_b64 vcc, vcc, s[40:41]")
    a("v_cmp_eq_f32 s[40:41], 0, v173\ns_and_b64 vcc, vcc, s[40:41]")
    if "forcefb" in sys.argv: a("s_mov_b64 vcc, 0")
    a("s_cmp_eq_u64 vcc, -1\ns_cbranch_scc1 att_okw")
    a(f"v_mov_b32 v175, {FLAGW}\nv_mov_b32 v176, 1\nds_write_b32 v175, v176\ns_waitcnt lgkmcnt(0)")
    a.label("att_okw")
    a("s_barrier")
    a(f"v_mov_b32 v175, {FLAGW}\nds_read_b32 v176, v175\ns_waitcnt lgkmcnt(0)\nv_readfirstlane_b32 s40, v176")
    a("s_cmp_eq_u32 s40, 0\ns_cbranch_scc0 att_fallback")
    a.label("att_fin")
    ts(a, "att_red")
    a(f"v_rcp_f32 v173, v{O+10}")
    for r in range(10): a(f"v_mul_f32 v{O+r}, v{O+r}, v173")
    for q in range(5): a(f"v_cvt_pk_bf16_f32 v{P+q}, v{O+2*q}, v{O+2*q+1}")
    a(f"s_mul_i32 s40, s34, 1280\ns_add_u32 s40, s40, {KVL + 36864}")
    a("v_lshrrev_b32 v171, 2, v6\nv_mul_u32_u24 v171, 160, v171\nv_and_b32 v172, 3, v6\nv_mul_u32_u24 v172, 40, v172\nv_mul_u32_u24 v173, 20, v7\nv_add3_u32 v171, v171, v172, v173")
    a("v_add_u32 v171, s40, v171")
    for q in range(5): a(f"ds_write_b32 v171, v{P+q} offset:{4*q}")
    a("v_and_b32 v172, 7, v1\nv_lshrrev_b32 v173, 3, v1")
    a("v_mul_u32_u24 v174, 160, v172\nv_lshl_add_u32 v174, v173, 4, v174\nv_add_u32 v174, s40, v174")
    a("s_waitcnt lgkmcnt(0)")
    a("ds_read_b128 v[72:75], v174\nds_read_b128 v[76:79], v174 offset:128")
    a("s_and_b32 s41, s34, 1\ns_lshl_b32 s41, s41, 7\nv_lshlrev_b32 v172, 4, v172\nv_lshl_add_u32 v172, v173, 8, v172\nv_add_u32 v172, s41, v172")
    a(f"s_lshl_b32 s41, s35, 2\ns_lshr_b32 s45, s34, 1\ns_add_u32 s48, s41, s45\ns_mul_i32 s41, s48, 20480\ns_mul_i32 s45, s36, 2560\ns_add_u32 s41, s41, s45\ns_mul_i32 s45, s37, {OB[1]-OB[0]}\ns_add_u32 s41, s41, s45\ns_add_u32 s41, s41, {OB[0]}")
    a("s_waitcnt lgkmcnt(0)")
    xstore(a, "buffer_store_dwordx4 v[72:75], v172, s[8:11], s41 offen @SC\ns_mov_b64 s[42:43], exec\ns_mov_b64 exec, 0xffff\nbuffer_store_dwordx4 v[76:79], v172, s[8:11], s41 offen offset:2048 @SC\ns_mov_b64 exec, s[42:43]")
    flag_line(46, 0, tile_sgpr=48)
    a("s_lshl_b32 s45, s36, 3\ns_add_u32 s46, s46, s45\ns_and_b32 s45, s34, 1\ns_lshl_b32 s45, s45, 2\ns_add_u32 s46, s46, s45")
    set_flag(a, 46, vtmp=175)
    ts(a, "att_done")
    a("s_cmp_ge_u32 s34, 4\ns_cbranch_scc1 ld_wo")
    a.nvm = 0; a.nlg = 0
    set_bases(a, 5)
    flag_line(46, 0, pair=True)
    await_flags(a, 0xFFFFFFFF, 46)
    ts(a, "wo_ready")
    tile_offs(OB[0], OB[1] - OB[0], 20480, True)
    bl = BL(2048, 10)
    for i in range(10): bl.load(i)
    segs = [(0, 5), (5, 10)]
    kloop2(a, FO, 10, 5, 5, segs, bl.regs, A0, A1, 0, 5, before=lambda i: a.wait_vm(bl.tag[i]))
    ld.label("ld_wo")
    ring.drained()
    loader_kloop2(ld, ring, FO, 10, 5, segs, 5)
    ts(a, "wo_kloop")
    reduce_pair(A0, A1, 5, False)
    loader_bp(ld, ring, None, F1)
    frag_addr(a, 60, 61, 68, 62)
    tile_offs(X1[0], X1[1] - X1[0], 20480, False)
    for i in range(5):
        unpack2(a, 48, 49, RES + 2 * i); unpack2(a, 50, 51, RES + 2 * i + 1)
        for r in range(4): a(f"v_add_f32 v{48+r}, v{48+r}, v{A0+4*i+r}")
        a(f"v_cvt_pk_bf16_f32 v{RES+2*i}, v48, v49\nv_cvt_pk_bf16_f32 v{RES+2*i+1}, v50, v51")
    store_tiles(a, [RES + 2 * i for i in range(5)], 5, 60, 61, 8, "s40", 512, "@SC", tmp=48)
    flag_line(46, 1, tile_sgpr=67)
    a("s_lshl_b32 s45, s36, 2\ns_add_u32 s46, s46, s45")
    set_flag(a, 46)
    ts(a, "wo_done")
    a.nvm = 0; a.nlg = 0
    a("s_lshr_b32 s52, s36, 1\ns_mul_i32 s52, s52, 27\ns_and_b32 s53, s36, 1\ns_mul_i32 s53, s53, 14\ns_add_u32 s52, s52, s53")
    a("s_and_b32 s53, s34, 1\ns_mul_i32 s53, s53, 7\ns_add_u32 s52, s52, s53")
    srd(a, 20, 24, 0, F * 2)
    a("s_lshl_b32 s47, s52, 5\nv_lshlrev_b32 v60, 3, v4\nv_add_u32 v60, s47, v60")
    B1R = 232
    for i in range(7): a(f"buffer_load_dwordx2 v[{B1R+2*i}:{B1R+2*i+1}], v60, s[20:23], 0 offen offset:{i*32}")
    a(f"s_mul_i32 s45, s36, 896\ns_lshl_b32 s44, s53, 6\ns_add_u32 s45, s45, s44\ns_add_u32 s45, s45, {CS1}\nv_lshlrev_b32 v58, 4, v4")
    for i in range(7): a(f"buffer_load_dwordx4 v[{8+4*i}:{8+4*i+3}], v58, s[8:11], s45 offen offset:{i*64}")
    ones(); set_bases(a, 7)
    flag_line(46, 1, pair=True)
    await_flags(a, 0x00FF00FF, 46)
    ts(a, "fc1_ready")
    tile_offs(X1[0], X1[1] - X1[0], 20480, False)
    bl = BL(1024, 10)
    for i in range(10): bl.load(i)
    segs = [(2 * s_, 2 * s_ + 2) for s_ in range(10)]
    C0, C1 = 176, 204
    kloop2(a, F1, 14, 7, 7, segs, bl.regs, C0, C1, 1, 4, before=lambda i: a.wait_vm(bl.tag[i]),
           after=lambda i: bl.load(i + 10) if i + 10 < 20 else None)
    ld.label("ld_fc1")
    loader_kloop2(ld, ring, F1, 14, 7, segs, 4)
    ts(a, "fc1_kloop")
    stats_finalize(a, VST, VST + 4, 60, 61, 56, True)
    a(f"s_and_b32 s45, s34, 3\ns_lshl_b32 s44, s45, 9\ns_add_u32 s44, s44, {KVL}\nv_lshlrev_b32 v56, 3, v1\nv_add_u32 v57, s44, v56")
    a("ds_write_b64 v57, v[60:61]")
    a(f"s_xor_b32 s45, s45, 1\ns_lshl_b32 s44, s45, 9\ns_add_u32 s44, s44, {KVL}\nv_add_u32 v57, s44, v56")
    a("s_waitcnt lgkmcnt(0)\ns_barrier")
    loader_bp(ld, ring, None, F2)
    a("ds_read_b64 v[62:63], v57")
    frag_addr(a, 58, 59, 52, 56)
    tile_offs(HB[0], HB[1] - HB[0], 55296, False)
    c0 = -2.0 * math.sqrt(2.0 / math.pi) * LOG2E
    c1 = c0 * 0.044715
    a(f"v_mov_b32 v40, {f2u(c0):#x}\nv_mov_b32 v41, v40\nv_mov_b32 v42, {f2u(c1):#x}\nv_mov_b32 v43, v42\nv_mov_b32 v46, 1.0\nv_mov_b32 v47, 1.0")
    a("s_waitcnt lgkmcnt(0)")
    def gelu_tile(i, acc, dst):
        unpack2(a, 52, 53, B1R + 2 * i); unpack2(a, 54, 55, B1R + 2 * i + 1)
        for h in range(2): a(f"v_pk_fma_f32 v[{52+2*h}:{53+2*h}], v[38:39], v[{8+4*i+2*h}:{8+4*i+2*h+1}], v[{52+2*h}:{53+2*h}]")
        for h in range(2): a(f"v_pk_fma_f32 v[{52+2*h}:{53+2*h}], v[36:37], v[{acc+4*i+2*h}:{acc+4*i+2*h+1}], v[{52+2*h}:{53+2*h}]")
        for h in range(2): a(f"v_pk_mul_f32 v[{144+2*h}:{145+2*h}], v[{52+2*h}:{53+2*h}], v[{52+2*h}:{53+2*h}]")
        for h in range(2): a(f"v_pk_fma_f32 v[{144+2*h}:{145+2*h}], v[{144+2*h}:{145+2*h}], v[42:43], v[40:41]")
        for h in range(2): a(f"v_pk_mul_f32 v[{144+2*h}:{145+2*h}], v[{144+2*h}:{145+2*h}], v[{52+2*h}:{53+2*h}]")
        for r in range(4): a(f"v_exp_f32 v{144+r}, v{144+r}")
        for h in range(2): a(f"v_pk_add_f32 v[{144+2*h}:{145+2*h}], v[{144+2*h}:{145+2*h}], v[46:47]")
        for r in range(4): a(f"v_rcp_f32 v{144+r}, v{144+r}")
        for h in range(2): a(f"v_pk_mul_f32 v[{52+2*h}:{53+2*h}], v[{52+2*h}:{53+2*h}], v[{144+2*h}:{145+2*h}]")
        a(f"v_cvt_pk_bf16_f32 v{dst}, v52, v53\nv_cvt_pk_bf16_f32 v{dst+1}, v54, v55")
    for tilesel in range(2):
        acc, rho, mu, so = (C0, 60, 61, "s40") if tilesel == 0 else (C1, 62, 63, "s41")
        a(f"v_mov_b32 v36, v{rho}\nv_mov_b32 v37, v{rho}\nv_sub_f32 v38, 0, v{mu}\nv_mov_b32 v39, v38")
        for p in range(3):
            t = 152 + 4 * (p % 2)
            gelu_tile(2 * p, acc, t); gelu_tile(2 * p + 1, acc, t + 2)
            a(f"v_permlane16_swap_b32 v{t}, v{t+2}\nv_permlane16_swap_b32 v{t+1}, v{t+3}")
            xstore(a, f"buffer_store_dwordx4 v[{t}:{t+3}], v58, s[8:11], {so} offen offset:{p*1024} @SC")
        sk = newlab("fc1sk")
        a(f"s_and_b32 s45, s36, s34\ns_bitcmp1_b32 s45, 0\ns_cbranch_scc1 {sk}")
        gelu_tile(6, acc, 160)
        xstore(a, f"buffer_store_dwordx2 v[160:161], v59, s[8:11], {so} offen offset:3072 @SC")
        a.label(sk)
    flag_line(46, 2, tile_sgpr=67)
    flag_line(47, 2, tile_sgpr=65)
    a("s_lshl_b32 s45, s36, 3\ns_and_b32 s44, s34, 1\ns_lshl_b32 s44, s44, 2\ns_add_u32 s45, s45, s44\ns_add_u32 s46, s46, s45\ns_add_u32 s47, s47, s45")
    set_flag(a, 46, second=47)
    ts(a, "fc1_done")
    a.nvm = 0; a.nlg = 0
    srd(a, 20, 26, 0, D * 2)
    a("v_lshlrev_b32 v58, 3, v4\ns_mul_i32 s40, s36, 160\nv_add_u32 v58, s40, v58")
    for i in range(5): a(f"buffer_load_dwordx2 v[{8+2*i}:{9+2*i}], v58, s[20:23], 0 offen offset:{i*32}")
    set_bases(a, 5)
    flag_line(46, 2, pair=True)
    await_flags(a, 0xFFFFFFFF, 46)
    ts(a, "fc2_ready")
    tile_offs(HB[0], HB[1] - HB[0], 55296, True)
    bl = BL(2048, 10)
    for i in range(10): bl.load(i)
    segs = [(2 * s_, min(27, 2 * s_ + 2)) for s_ in range(14)]
    SEGTS[0] = True
    kloop2(a, F2, 10, 5, 5, segs, bl.regs, A0, A1, 0, 5, before=lambda i: a.wait_vm(bl.tag[i]),
           after=lambda i: bl.load(i + 10) if i + 10 < 27 else None)
    ld.label("ld_fc2")
    LDTS[0] = True
    loader_kloop2(ld, ring, F2, 10, 5, segs, 5)
    ts(a, "fc2_kloop")
    reduce_pair(A0, A1, 5, False)
    loader_bp(ld, ring, None, SL)
    assert ring.I == SLP + RING
    for i in range(5):
        unpack2(a, 48, 49, RES + 2 * i); unpack2(a, 50, 51, RES + 2 * i + 1)
        unpack2(a, 52, 53, 8 + 2 * i); unpack2(a, 54, 55, 8 + 2 * i + 1)
        for r in range(4): a(f"v_add_f32 v{52+r}, v{52+r}, v{A0+4*i+r}")
        for r in range(4): a(f"v_add_f32 v{48+r}, v{48+r}, v{52+r}")
        a(f"v_cvt_pk_bf16_f32 v{RES+2*i}, v48, v49\nv_cvt_pk_bf16_f32 v{RES+2*i+1}, v50, v51")
    a("s_cmp_eq_u32 s37, 0\ns_cbranch_scc0 fc2_last")
    frag_addr(a, 60, 61, 68, 62)
    tile_offs(X2, 0, 20480, False)
    store_tiles(a, [RES + 2 * i for i in range(5)], 5, 60, 61, 8, "s40", 512, "@SC", tmp=48)
    flag_line(46, 3, tile_sgpr=67)
    a("s_lshl_b32 s45, s36, 2\ns_add_u32 s46, s46, s45")
    set_flag(a, 46)
    a("s_branch fc2_fin")
    a.label("fc2_last")
    srd(a, 16, 28, 0, XBYTES)
    a("v_add_u32 v62, s66, v3\nv_mul_u32_u24 v60, 1280, v62\ns_mul_i32 s40, s36, 160\nv_add_u32 v60, s40, v60")
    a("v_lshl_add_u32 v61, v4, 3, v60")
    a("v_and_b32 v62, 1, v4\nv_lshl_add_u32 v60, v62, 5, v60\nv_lshrrev_b32 v62, 1, v4\nv_lshl_add_u32 v60, v62, 4, v60")
    store_tiles(a, [RES + 2 * i for i in range(5)], 5, 60, 61, 16, "0", 32, "", tmp=48)
    a.label("fc2_fin")
    ts(a, "fc2_done")
    a("s_branch layer_end")
    ld("s_branch layer_end")
    a.out += ld.out
    fbk = Asm()
    fbk.label("att_fallback")
    fbk("s_barrier")
    for i in range(4): fbk(f"v_mov_b32 v{181+i}, 0xff800000")
    fbk(f"s_mul_i32 s47, s37, {KVB[1]-KVB[0]}\ns_add_u32 s47, s47, {KVB[0]}\ns_lshl_b32 s48, s38, 16\ns_add_u32 s47, s47, s48\ns_mov_b32 s49, 0")
    fbk.label("fb_loop")
    fbk(f"buffer_load_dwordx4 v[{K1(0)}:{K1(0)+3}], v5, s[8:11], s47 offen sc1")
    fbk(f"buffer_load_dwordx2 v[{K2(0)}:{K2(0)+1}], v170, s[8:11], s47 offen offset:1024 sc1")
    fbk("s_waitcnt vmcnt(0)")
    for i in range(4):
        fbk(f"v_mfma_f32_32x32x16_bf16 v[{SA}:{SA+15}], v[{K1(0)}:{K1(0)+3}], v[{Q1(i)}:{Q1(i)+3}], 0")
        fbk(f"v_mfma_f32_32x32x8_bf16 v[{SA}:{SA+15}], v[{K2(0)}:{K2(0)+1}], v[{Q2(i)}:{Q2(i)+1}], v[{SA}:{SA+15}]")
        for r in range(0, 16, 2): fbk(f"v_max3_f32 v{181+i}, v{181+i}, v{SA+r}, v{SA+r+1}")
    fbk("s_add_u32 s47, s47, 4096\ns_add_u32 s49, s49, 1\ns_cmp_lt_u32 s49, 16\ns_cbranch_scc1 fb_loop")
    fbk("v_xor_b32 v171, 32, v1\nv_lshlrev_b32 v171, 2, v171")
    for i in range(4):
        fbk(f"ds_bpermute_b32 v172, v171, v{181+i}\ns_waitcnt lgkmcnt(0)\nv_max_f32 v{181+i}, v{181+i}, v172")
    fbk("v_lshlrev_b32 v171, 2, v6")
    for i in range(4):
        fbk(f"s_add_u32 s40, s38, {i}\ns_and_b32 s40, s40, 3\ns_lshl_b32 s41, s39, 2\ns_add_u32 s40, s40, s41\ns_lshl_b32 s40, s40, 9\ns_lshl_b32 s41, s38, 7\ns_add_u32 s41, s41, s40\ns_add_u32 s41, s41, {KVL}")
        fbk(f"v_add_u32 v172, s41, v171\nds_write_b32 v172, v{181+i}")
    fbk("s_waitcnt lgkmcnt(0)\ns_barrier")
    for i in range(4):
        fbk(f"s_add_u32 s40, s38, {i}\ns_and_b32 s40, s40, 3\ns_lshl_b32 s41, s39, 2\ns_add_u32 s40, s40, s41\ns_lshl_b32 s40, s40, 9\ns_add_u32 s40, s40, {KVL}")
        fbk(f"v_add_u32 v172, s40, v171\nds_read_b32 v173, v172\nds_read_b32 v174, v172 offset:128\nds_read_b32 v175, v172 offset:256\nds_read_b32 v176, v172 offset:384")
        fbk("s_waitcnt lgkmcnt(0)\nv_max_f32 v173, v173, v174\nv_max3_f32 v173, v173, v175, v176")
        fbk("v_sub_f32 v173, 0, v173\nv_cvt_pk_bf16_f32 v174, v173, v173\nv_lshlrev_b32 v175, 16, v174\nv_sub_f32 v175, v173, v175\nv_cvt_pk_bf16_f32 v176, v173, v175")
        fbk(f"v_cmp_eq_u32 vcc, 1, v7\nv_cndmask_b32 v{Q2(i)}, v{Q2(i)}, v176, vcc")
    fbk("s_mov_b32 s57, 1\ns_barrier\ns_branch att_main")
    a.out += fbk.out
    a.label("layer_end")
    if PROFILE:
        a(f"s_cmp_eq_u32 s34, {4 if PROFLD else 0}\ns_cbranch_scc0 prof_skip")
        a(f"s_lshl_b32 s40, s2, 8\ns_lshl_b32 s41, s37, 7\ns_add_u32 s40, s40, s41\ns_add_u32 s40, s40, {TSB}\nv_mov_b32 v8, 0\ns_mov_b64 s[42:43], exec\ns_mov_b64 exec, 1")
        for i in range(Prof.n):
            a(f"v_mov_b32 v9, s{70+i}\nbuffer_store_dword v9, v8, s[8:11], s40 offen offset:{4*i}\ns_nop 0")
        a("s_mov_b64 exec, s[42:43]")
        a.label("prof_skip")
    a(f"s_add_u32 s37, s37, 1\ns_cmp_lt_u32 s37, 2\ns_cbranch_scc1 layer_top")
    a("s_waitcnt vmcnt(0)")
    a("s_endpgm")
    kernel_end(a, name)
    return a.out, descriptor(name, 256), (name, 256, 512, LDS_BYTES)

def build(path, kernels):
    hdr = []
    for k in kernels:
        name, grid, block, lds = k[2]
        hdr.append(f"; @launch kernel={name} grid=({grid},1,1) block=({block},1,1) lds={lds}")
    body = ['.amdgcn_target "amdgcn-amd-amdhsa--gfx950"', ".text"]
    descs = []
    nfix = 0
    for k in kernels:
        lines, n = fix_hazards(k[0])
        nfix += n
        body += lines
        descs.append(k[1])
    txt = "\n".join(hdr) + "\n" + "\n".join(body) + '\n.section .rodata,"a"\n' + "".join(".p2align 6\n" + d for d in descs)
    open(path, "w").write(txt)
    print("written", path, len(txt), "bytes; hazard nops at", nfix, "sites")

if __name__ == "__main__":
    out = [x for x in sys.argv[1:] if x.endswith(".s")]
    build(out[0] if out else "v10.s", [gen_prep(), gen_main()])
    json.dump(dict(WST=WST, CSQ=CSQ, BKV=BKV, CS1=CS1, KVB=KVB, KMAX=KMAX, OB=OB, X1=X1, X2=X2, HB=HB, TSB=TSB, XF=XF, KVF=KVF, TSN=TSN, ver=3, XF0=XF0), open("layout.json", "w"))
```

```python
import sys, math, json, struct
sys.path.insert(0, "gen")
from asmdsl import *

S, D, F, H, DH = 2048, 640, 1728, 32, 20
KB = 1024
PROFSEG = "profseg" in sys.argv
PROFILE = "prof" in sys.argv or "profld" in sys.argv or PROFSEG
PROFLD = "profld" in sys.argv
off = 0
def alloc(n, align=4096):
    global off
    off = (off + align - 1) // align * align
    o = off; off += n; return o
SL = 770
RING = 112
SLP = 784
FQ, FO, F1, F2 = 0, 120, 220, 500
WST = alloc(8 * SL * KB + 16 * KB)
CSQ = alloc(8 * 96 * 4)
BKV = alloc(3 * 16 * 4)
CS1 = alloc(8 * 224 * 4)
FLAGS = alloc(16384 + 4 * 16384 + 4096, 4096)
KVF = FLAGS
XF = FLAGS + 16384
XID = FLAGS + 16384 + 4 * 16384
FLAG_BYTES = 16384 + 4 * 16384 + 4096
KVB = [alloc(64 * 4096), alloc(64 * 4096)]
KMAX = [alloc(1024), alloc(1024)]
OB = [alloc(S * D * 2), alloc(S * D * 2)]
X1 = [alloc(S * D * 2), alloc(S * D * 2)]
HB = [alloc(S * F * 2), alloc(S * F * 2)]
X2 = alloc(S * D * 2)
XF0 = alloc(S * D * 2)
TSB = alloc(256 * 64 * 4)
WS_BYTES = 268435456
XBYTES = S * D * 2
LOG2E = 1.4426950408889634
def f2u(x): return struct.unpack("<I", struct.pack("<f", x))[0]
KVL = RING * KB
LDS_BYTES = 160 * KB
SPIN_MAX = 200000

def srd(a, s, ptr_pair, off, nbytes):
    if off:
        a(f"s_add_u32 s{s}, s{ptr_pair}, {off}")
        a(f"s_addc_u32 s{s+1}, s{ptr_pair+1}, 0")
    else:
        a(f"s_mov_b32 s{s}, s{ptr_pair}")
        a(f"s_mov_b32 s{s+1}, s{ptr_pair+1}")
    a(f"s_mov_b32 s{s+2}, {nbytes}")
    a(f"s_mov_b32 s{s+3}, 0x20000")
def srd_dyn(a, s, ptr_pair, off_sgpr, nbytes):
    a(f"s_add_u32 s{s}, s{ptr_pair}, s{off_sgpr}")
    a(f"s_addc_u32 s{s+1}, s{ptr_pair+1}, 0")
    a(f"s_mov_b32 s{s+2}, {nbytes}")
    a(f"s_mov_b32 s{s+3}, 0x20000")

def kernel_begin(a, name, nwg):
    a(f".globl {name}")
    a(".p2align 8")
    a(f".type {name},@function")
    a.out.append(f"{name}:")
    a(f"s_cmp_ge_u32 s2, {nwg}")
    a(f"s_cbranch_scc1 {name}_exit")
def kernel_end(a, name):
    a.label(f"{name}_exit")
    a("s_endpgm")
def descriptor(name, vgpr, sgpr=102):
    vg = (vgpr + 7) // 8 * 8
    return f""".amdhsa_kernel {name}
  .amdhsa_next_free_vgpr {vg}
  .amdhsa_next_free_sgpr {sgpr}
  .amdhsa_accum_offset {min(vg,256)}
  .amdhsa_group_segment_fixed_size 0
  .amdhsa_kernarg_size 104
  .amdhsa_user_sgpr_count 2
  .amdhsa_user_sgpr_kernarg_segment_ptr 1
  .amdhsa_system_sgpr_workgroup_id_x 1
  .amdhsa_float_denorm_mode_32 3
  .amdhsa_float_denorm_mode_16_64 3
.end_amdhsa_kernel
"""

PSC = " sc1" if "psc1" in sys.argv else (" nt" if "pnt" in sys.argv else (" sc0 sc1" if "psc01" in sys.argv else ""))
def gen_prep():
    a = Asm(); name = "prep_kernel"
    kernel_begin(a, name, 256)
    a("s_load_dwordx2 s[52:53], s[0:1], 0")
    a("s_load_dwordx2 s[4:5], s[0:1], 96")
    a("s_load_dwordx2 s[6:7], s[0:1], 8")
    a("s_load_dwordx4 s[24:27], s[0:1], 16")
    a("s_load_dwordx2 s[28:29], s[0:1], 32")
    a("s_load_dwordx2 s[30:31], s[0:1], 48")
    a("s_load_dwordx2 s[32:33], s[0:1], 64")
    a("v_and_b32 v1, 63, v0")
    a("v_lshrrev_b32 v2, 6, v0")
    a("v_readfirstlane_b32 s34, v2")
    a("v_and_b32 v3, 15, v1")
    a("v_lshrrev_b32 v4, 4, v1")
    a("v_lshlrev_b32 v5, 4, v1")
    a("s_waitcnt lgkmcnt(0)")
    srd(a, 8, 4, 0, WS_BYTES)
    if "cpf2" in sys.argv:
        a("s_cmp_eq_u32 s34, 3\ns_cbranch_scc0 prep_cpf")
        a("s_getpc_b64 s[40:41]")
        a.label("prep_pc")
        a("s_add_u32 s40, s40, main_kernel-prep_pc\ns_addc_u32 s41, s41, 0")
        a("v_lshlrev_b32 v8, 6, v1")
        for i in range(8):
            a(f"global_load_dword v{110}, v8, s[40:41]")
            a("v_add_u32 v8, 4096, v8")
        a.label("prep_cpf")
    srd(a, 12, 52, 0, XBYTES)
    a("s_lshl_b32 s35, s2, 2\ns_add_u32 s35, s35, s34")
    a("v_mul_u32_u24 v7, 1280, v3\nv_lshl_add_u32 v7, v4, 4, v7")
    for q in range(3):
        a(f"s_add_u32 s36, s35, {q*1024}")
        a("s_mul_i32 s37, s36, 3277\ns_lshr_b32 s37, s37, 16")
        a("s_mul_i32 s38, s37, 20\ns_sub_u32 s38, s36, s38")
        a("s_mul_i32 s39, s37, 20480\ns_lshl_b32 s38, s38, 6\ns_add_u32 s39, s39, s38")
        a(f"buffer_load_dwordx4 v[{16+4*q}:{19+4*q}], v7, s[12:15], s39 offen")
        a(f"s_lshl_b32 s{54+q}, s36, 10\ns_add_u32 s{54+q}, s{54+q}, {XF0}")
    a("s_mov_b32 s57, s35")
    xs_n = [0]
    def xstores():
        L = f"prep_xd{xs_n[0]}"; xs_n[0] += 1
        for q in range(3):
            if q == 2: a(f"s_cmp_lt_u32 s57, 512\ns_cbranch_scc0 {L}")
            a(f"buffer_store_dwordx4 v[{16+4*q}:{19+4*q}], v5, s[8:11], s{54+q} offen" + PSC)
        a.label(L)
    a("s_cmp_ge_u32 s2, 252\ns_cbranch_scc0 prep_go")
    a("s_waitcnt vmcnt(0)")
    xstores()
    a("s_branch prep_done")
    a.label("prep_go")
    def gather(voff, srdn, rowbytes, soff_base_sgpr, nfr, ks_stride_bytes):
        for f in range(nfr):
            for jj in range(8):
                a(f"s_add_u32 s40, s{soff_base_sgpr}, {f*ks_stride_bytes + jj*rowbytes}")
                a(f"buffer_load_ushort v{64+8*f+jj}, v{voff}, s[{srdn}:{srdn+3}], s40 offen")
    def pack(nfr):
        a("s_waitcnt vmcnt(0)")
        xstores()
        for f in range(nfr):
            for q in range(4):
                a(f"v_lshl_or_b32 v{32+4*f+q}, v{64+8*f+2*q+1}, 16, v{64+8*f+2*q}")
    def colsum_and_store(dst_soff_sgpr, dst_ks_stride, cs_off_sgpr):
        a("v_mov_b32 v132, 0x3f803f80\nv_mov_b32 v133, 0x3f803f80\nv_mov_b32 v134, 0x3f803f80\nv_mov_b32 v135, 0x3f803f80")
        pack(5)
        for f in range(5):
            a(f"s_add_u32 s40, s{dst_soff_sgpr}, {f*dst_ks_stride}")
            a(f"buffer_store_dwordx4 v[{32+4*f}:{35+4*f}], v5, s[8:11], s40 offen" + PSC)
            a(f"v_mfma_f32_16x16x32_bf16 v[28:31], v[{32+4*f}:{35+4*f}], v[132:135], " + ("0" if f == 0 else "v[28:31]"))
        a("v_lshlrev_b32 v6, 4, v4")
        a("s_lshl_b32 s41, s34, 6")
        a("v_add_u32 v6, s41, v6")
        a("v_cmp_eq_u32 vcc, 0, v3")
        a("s_and_saveexec_b64 s[42:43], vcc")
        a("ds_write_b128 v6, v[28:31]")
        a("s_mov_b64 exec, s[42:43]")
        a("s_waitcnt lgkmcnt(0)")
        a("s_barrier")
        a("v_lshlrev_b32 v6, 2, v0")
        a("v_cmp_gt_u32 vcc, 16, v0")
        a("s_and_saveexec_b64 s[42:43], vcc")
        a(f"s_cbranch_execz {name}_exit")
        a("ds_read_b32 v7, v6\nds_read_b32 v8, v6 offset:64\nds_read_b32 v9, v6 offset:128\nds_read_b32 v10, v6 offset:192")
        a("s_waitcnt lgkmcnt(0)")
        a("v_add_f32 v7, v7, v8\nv_add_f32 v9, v9, v10\nv_add_f32 v7, v7, v9")
        a(f"buffer_store_dword v7, v6, s[8:11], s{cs_off_sgpr} offen")
        a("s_waitcnt vmcnt(0)")
        a("s_endpgm")
    a("s_cmp_lt_u32 s2, 40\ns_cbranch_scc1 prep_wq")
    a("s_cmp_lt_u32 s2, 43\ns_cbranch_scc1 prep_kv")
    a("s_cmp_lt_u32 s2, 151\ns_cbranch_scc1 prep_w1")
    a("s_branch prep_plain")
    a.label("prep_wq")
    srd(a, 12, 6, 0, D * D * 2)
    a("s_mul_i32 s35, s2, 52429\ns_lshr_b32 s35, s35, 18")
    a("s_mul_i32 s36, s35, 5\ns_sub_u32 s36, s2, s36")
    a("v_mul_u32_u24 v7, 10240, v4")
    a("s_lshl_b32 s37, s2, 5")
    a("v_lshl_add_u32 v7, v3, 1, v7\nv_add_u32 v7, s37, v7")
    a(f"s_mul_i32 s38, s34, {5*32*1280}")
    gather(7, 12, 1280, 38, 5, 32 * 1280)
    a(f"s_mul_i32 s44, s35, {SL*KB}\ns_mul_i32 s45, s34, {30*KB}\ns_add_u32 s44, s44, s45\ns_lshl_b32 s45, s36, 10\ns_add_u32 s44, s44, s45\ns_add_u32 s44, s44, {WST + FQ*KB}")
    a(f"s_mul_i32 s46, s35, 384\ns_lshl_b32 s45, s36, 6\ns_add_u32 s46, s46, s45\ns_add_u32 s46, s46, {CSQ}")
    colsum_and_store(44, 6 * KB, 46)
    a.label("prep_kv")
    srd(a, 12, 24, 0, D * DH * 2)
    srd(a, 16, 26, 0, D * DH * 2)
    a("s_sub_u32 s35, s2, 40")
    for r in range(64, 104): a(f"v_mov_b32 v{r}, 0")
    BIG = 0x40000000
    a("v_and_b32 v8, 3, v3\nv_lshrrev_b32 v9, 2, v3")
    a("s_cmp_eq_u32 s35, 0\ns_cbranch_scc1 prep_kv0")
    a("s_cmp_eq_u32 s35, 1\ns_cbranch_scc1 prep_kv1")
    a(f"v_mov_b32 v10, {BIG}\nv_mov_b32 v11, {BIG}")
    a("v_lshlrev_b32 v12, 1, v3\nv_add_u32 v12, 32, v12")
    a("v_cmp_gt_u32 vcc, 4, v3\nv_cndmask_b32 v10, v10, v12, vcc")
    a("v_lshlrev_b32 v12, 1, v8")
    a("v_add_u32 v13, 16, v12\nv_add_u32 v14, 36, v12")
    a("v_cmp_eq_u32 vcc, 1, v9\nv_cndmask_b32 v11, v11, v13, vcc")
    a("v_cmp_eq_u32 vcc, 2, v9\nv_cndmask_b32 v11, v11, v14, vcc")
    a(f"v_mov_b32 v12, {BIG}\nv_cmp_lt_u32 vcc, 1, v8\nv_cndmask_b32 v11, v11, v12, vcc")
    a("s_branch prep_kvgo")
    a.label("prep_kv0")
    a(f"v_lshlrev_b32 v10, 1, v3\nv_mov_b32 v11, {BIG}")
    a("s_branch prep_kvgo")
    a.label("prep_kv1")
    a(f"v_mov_b32 v10, {BIG}")
    a("v_mov_b32 v11, 0\nv_cmp_eq_u32 vcc, 1, v9\nv_cndmask_b32 v11, v11, 10, vcc")
    a("v_cmp_eq_u32 vcc, 2, v9\nv_cndmask_b32 v11, v11, 4, vcc")
    a("v_cmp_eq_u32 vcc, 3, v9\nv_cndmask_b32 v11, v11, 14, vcc")
    a("v_add_u32 v11, v11, v8\nv_lshlrev_b32 v11, 1, v11")
    a.label("prep_kvgo")
    a("v_mul_u32_u24 v12, 320, v4")
    a("v_add_u32 v10, v10, v12\nv_add_u32 v11, v11, v12")
    a(f"s_mul_i32 s38, s34, {5*32*40}")
    a(f"v_cmp_gt_u32 vcc, {BIG}, v10\ns_and_saveexec_b64 s[48:49], vcc")
    a("s_cbranch_execz prep_kv_skipk")
    gather(10, 12, 40, 38, 5, 32 * 40)
    a.label("prep_kv_skipk")
    a("s_mov_b64 exec, s[48:49]")
    a(f"v_cmp_gt_u32 vcc, {BIG}, v11\ns_and_saveexec_b64 s[48:49], vcc")
    a("s_cbranch_execz prep_kv_skipv")
    gather(11, 16, 40, 38, 5, 32 * 40)
    a.label("prep_kv_skipv")
    a("s_mov_b64 exec, s[48:49]")
    a(f"s_mul_i32 s44, s35, {SL*KB}\ns_mul_i32 s45, s34, {30*KB}\ns_add_u32 s44, s44, s45\ns_add_u32 s44, s44, {WST + (FQ+5)*KB}")
    a(f"s_mul_i32 s46, s35, 384\ns_add_u32 s46, s46, {CSQ + 5*64}")
    colsum_and_store(44, 6 * KB, 46)
    a.label("prep_w1")
    srd(a, 12, 30, 0, D * F * 2)
    a("s_sub_u32 s35, s2, 43")
    a("s_mul_i32 s36, s35, 2428\ns_lshr_b32 s36, s36, 16")
    a("s_mul_i32 s37, s36, 27\ns_sub_u32 s37, s35, s37")
    a("s_lshl_b32 s36, s36, 1")
    a("s_cmp_ge_u32 s37, 14\ns_cbranch_scc0 prep_w1a")
    a("s_add_u32 s36, s36, 1\ns_sub_u32 s37, s37, 14")
    a.label("prep_w1a")
    a("v_mul_u32_u24 v7, 27648, v4")
    a("s_lshl_b32 s39, s35, 5")
    a("v_lshl_add_u32 v7, v3, 1, v7\nv_add_u32 v7, s39, v7")
    a(f"s_mul_i32 s38, s34, {5*32*3456}")
    gather(7, 12, 3456, 38, 5, 32 * 3456)
    a(f"s_mul_i32 s44, s36, {SL*KB}\ns_mul_i32 s45, s34, {5*14*KB}\ns_add_u32 s44, s44, s45\ns_lshl_b32 s45, s37, 10\ns_add_u32 s44, s44, s45\ns_add_u32 s44, s44, {WST + F1*KB}")
    a(f"s_mul_i32 s46, s36, 896\ns_lshl_b32 s45, s37, 6\ns_add_u32 s46, s46, s45\ns_add_u32 s46, s46, {CS1}")
    colsum_and_store(44, 14 * KB, 46)
    a.label("prep_plain")
    a("s_sub_u32 s35, s2, 151\ns_lshl_b32 s35, s35, 2\ns_add_u32 s35, s35, s34")
    a("s_cmp_lt_u32 s35, 120\ns_cbranch_scc1 prep_wo")
    a("s_sub_u32 s35, s35, 120")
    a("s_cmp_ge_u32 s35, 280\ns_cbranch_scc1 prep_bias")
    srd(a, 12, 32, 0, F * D * 2)
    a(f"s_mov_b32 s50, {WST + F2*KB}\ns_mov_b32 s51, 6\ns_mov_b32 s52, 2")
    a("s_branch prep_pl2")
    a.label("prep_wo")
    srd(a, 12, 28, 0, D * D * 2)
    a(f"s_mov_b32 s50, {WST + FO*KB}\ns_mov_b32 s51, 2\ns_mov_b32 s52, 0")
    a.label("prep_pl2")
    a("s_mul_i32 s36, s35, 1639\ns_lshr_b32 s36, s36, 16")
    a("s_mul_i32 s37, s36, 40\ns_sub_u32 s37, s35, s37")
    a("s_mul_i32 s38, s37, 52429\ns_lshr_b32 s38, s38, 18")
    a("s_mul_i32 s39, s38, 5\ns_sub_u32 s39, s37, s39")
    a("v_mul_u32_u24 v7, 10240, v4")
    a("s_lshl_b32 s45, s37, 5")
    a("v_lshl_add_u32 v7, v3, 1, v7\nv_add_u32 v7, s45, v7")
    a(f"s_mul_i32 s44, s38, {SL*KB}\ns_add_u32 s44, s44, s50\ns_mul_i32 s45, s36, {40*KB}\ns_add_u32 s44, s44, s45\ns_lshl_b32 s45, s39, 10\ns_add_u32 s44, s44, s45")
    a(f"s_mul_i32 s38, s36, {8*32*1280}")
    gather(7, 12, 1280, 38, 8, 32 * 1280)
    pack(8)
    for f in range(8):
        if f >= 4:
            a(f"s_cmp_eq_u32 s36, s51\ns_cbranch_scc0 prep_st{f}")
            a(f"s_cmp_gt_u32 s52, {f-4}\ns_cbranch_scc0 prep_done")
            a.label(f"prep_st{f}")
        a(f"s_add_u32 s40, s44, {f*5*KB}")
        a(f"buffer_store_dwordx4 v[{32+4*f}:{35+4*f}], v5, s[8:11], s40 offen" + PSC)
    a.label("prep_done")
    a("s_waitcnt vmcnt(0)")
    a("s_endpgm")
    a.label("prep_bias")
    a("s_waitcnt vmcnt(0)")
    xstores()
    a("v_mov_b32 v8, 0\nv_mov_b32 v9, 0\nv_mov_b32 v10, 0\nv_mov_b32 v11, 0")
    a("v_lshlrev_b32 v6, 4, v0")
    nz = FLAG_BYTES // 4096
    for r in range(nz):
        a(f"s_mov_b32 s40, {FLAGS + r*4096}\nbuffer_store_dwordx4 v[8:11], v6, s[8:11], s40 offen")
    a("s_cmp_eq_u32 s35, 280\ns_cbranch_scc0 prep_done2")
    a("v_mov_b32 v7, 0")
    for idx in (32 + 6, 32 + 10, 32 + 12, 32 + 13):
        a(f"v_cmp_eq_u32 vcc, {idx}, v1\nv_cndmask_b32 v7, v7, 1.0, vcc")
    a("v_lshlrev_b32 v6, 2, v1\nv_cmp_gt_u32 vcc, 48, v1\ns_and_saveexec_b64 s[42:43], vcc")
    a(f"s_mov_b32 s40, {BKV}\nbuffer_store_dword v7, v6, s[8:11], s40 offen")
    a.label("prep_done2")
    a("s_waitcnt vmcnt(0)")
    a("s_endpgm")
    kernel_end(a, name)
    return a.out, descriptor(name, 144), (name, 256, 256, 1024)

VB, VA, VST, VSO, VONE, RES = 64, 144, 36, 44, 52, 246

class Prof:
    n = 0
LDTS = [False]
SEGTS = [False]
def ts(a, label, loader=False, seg=False):
    if not PROFILE: return
    if PROFLD != loader: return
    if PROFSEG != seg: return
    if Prof.n >= 26: return
    i = Prof.n; Prof.n += 1
    assert i < 26, i
    a(f"s_memtime s[98:99]\ns_waitcnt lgkmcnt(0)\ns_mov_b32 s{70+i}, s98")
    TSN.append(label)
TSN = []

def unpack2(a, dlo, dhi, src):
    a(f"v_lshlrev_b32 v{dlo}, 16, v{src}")
    a(f"v_and_b32 v{dhi}, 0xffff0000, v{src}")

uid = [0]
def newlab(p):
    uid[0] += 1
    return f"{p}_{uid[0]}"

def await_flags(a, mask, off_sgpr, vtmp=56):
    L, Dn = newlab("poll"), newlab("polld")
    a(f"v_lshlrev_b32 v{vtmp}, 2, v1")
    a(f"s_mov_b64 s[42:43], exec\ns_mov_b64 exec, {mask:#x}\ns_mov_b32 s44, 0")
    a.label(L)
    a(f"buffer_load_dword v{vtmp+1}, v{vtmp}, s[8:11], s{off_sgpr} offen sc1")
    a("s_add_u32 s44, s44, 1")
    a("s_waitcnt vmcnt(0)")
    a(f"v_cmp_eq_u32 vcc, 0, v{vtmp+1}")
    a(f"s_cmp_eq_u64 vcc, 0\ns_cbranch_scc1 {Dn}")
    a(f"s_cmp_gt_u32 s44, {SPIN_MAX}\ns_cbranch_scc1 {Dn}")
    a(f"s_sleep 1\ns_branch {L}")
    a.label(Dn)
    a("s_mov_b64 exec, s[42:43]")

def set_flag(a, off_sgpr, vtmp=56, second=None):
    L1, L2 = newlab("sf"), newlab("sf")
    a("s_waitcnt vmcnt(0)")
    a(f"v_mov_b32 v{vtmp}, 0\nv_mov_b32 v{vtmp+1}, 1")
    a("s_mov_b64 s[42:43], exec\ns_mov_b64 exec, 1")
    a(f"s_cmp_eq_u32 s59, 1\ns_cbranch_scc1 {L1}")
    a(f"buffer_store_dword v{vtmp+1}, v{vtmp}, s[8:11], s{off_sgpr} offen sc1")
    if second is not None: a(f"buffer_store_dword v{vtmp+1}, v{vtmp}, s[8:11], s{second} offen sc1")
    a(f"s_branch {L2}")
    a.label(L1)
    a(f"buffer_store_dword v{vtmp+1}, v{vtmp}, s[8:11], s{off_sgpr} offen")
    if second is not None: a(f"buffer_store_dword v{vtmp+1}, v{vtmp}, s[8:11], s{second} offen")
    a.label(L2)
    a("s_mov_b64 exec, s[42:43]")

def xstore(a, text):
    L1, L2 = newlab("xs"), newlab("xs")
    a(f"s_cmp_eq_u32 s59, 1\ns_cbranch_scc1 {L1}")
    a(text.replace("@SC", "sc1"))
    a(f"s_branch {L2}")
    a.label(L1)
    a(text.replace("@SC", ""))
    a.label(L2)

def xf_off(a, dst, kind, extra_sgpr=None, extra_imm=0):
    a(f"s_lshl_b32 s{dst}, s37, 13\ns_lshl_b32 s45, s35, 8\ns_add_u32 s{dst}, s{dst}, s45")
    a(f"s_and_b32 s45, s34, 3\ns_lshl_b32 s45, s45, 6\ns_add_u32 s{dst}, s{dst}, s45")
    a(f"s_add_u32 s{dst}, s{dst}, {XF + kind*16384 + extra_imm}")
    if extra_sgpr is not None: a(f"s_add_u32 s{dst}, s{dst}, s{extra_sgpr}")

class Ring:
    def __init__(self):
        self.I = RING
        self.q = [f for f in range(0, RING, 16) for _ in range(4)]
    def drained(self): self.q = []
def loader_issue(a, frm, upto, ring=None):
    assert frm % 16 == 0 and upto % 16 == 0
    skip = None
    for f in range(frm, upto, 16):
        if f == SLP or (f > SLP and f == frm):
            skip = newlab("ldsk")
            a(f"s_cmp_eq_u32 s37, 1\ns_cbranch_scc1 {skip}")
        a(f"s_add_u32 m0, s69, {(f % RING) * KB}")
        a(f"s_add_u32 s44, s60, {(f % SLP) * KB}")
        for q in range(4):
            if "noW" not in sys.argv: a(f"buffer_load_dwordx4 v5, s[8:11], s44 offen offset:{q*1024} lds")
            if ring is not None and f < SLP: ring.q.append(f)
    if skip: a.label(skip)

def touch(a, ring, frag0, n, per_wave_sgpr=69):
    a("v_lshlrev_b32 v58, 7, v1")
    a(f"s_mul_i32 s45, s69, {2*n}\ns_sub_u32 s45, s45, s69\ns_add_u32 s45, s45, s60")
    for i in range(n):
        a(f"s_add_u32 s44, s45, {(frag0 + 8*i) * KB}")
        a(f"buffer_load_dword v59, v58, s[8:11], s44 offen")
        if ring is not None: ring.q.append(None)

def loader_bp(a, ring, need, consumed, cap=None):
    if LDTS[0] and Prof.n < 22: ts(a, "w0", True)
    if need is not None:
        assert need <= ring.I, (need, ring.I)
        last = -1
        for i, f in enumerate(ring.q):
            if f is not None and f < need: last = i
        if last >= 0:
            n = len(ring.q) - 1 - last
            a(f"s_waitcnt vmcnt({min(n,63)})")
            ring.q = ring.q[last + 1:]
    if LDTS[0] and Prof.n < 22: ts(a, "vm", True)
    a("s_barrier")
    if LDTS[0] and Prof.n < 22: ts(a, "bar", True)
    if consumed >= SL: consumed = SLP
    upto = (consumed + RING) // 16 * 16
    if cap is not None: upto = min(upto, (cap + 15) // 16 * 16)
    if upto > ring.I:
        loader_issue(a, ring.I, upto, ring)
        ring.I = upto

def stats_finalize(a, accS, accQ, vRho, vMu, tmp, double_ln):
    t0, t1, t2, t3 = tmp, tmp + 1, tmp + 2, tmp + 3
    a(f"v_and_b32 v{t0}, 3, v1")
    a(f"v_mov_b32 v{t1}, v{accQ}")
    for r in (1, 2, 3):
        a(f"v_cmp_eq_u32 vcc, {r}, v{t0}")
        a(f"v_cndmask_b32 v{t1}, v{t1}, v{accQ+r}, vcc")
    a(f"v_lshrrev_b32 v{t2}, 2, v3\nv_lshlrev_b32 v{t2}, 4, v{t2}\nv_add_u32 v{t2}, v{t2}, v3\nv_lshlrev_b32 v{t2}, 2, v{t2}")
    a(f"ds_bpermute_b32 v{t1}, v{t2}, v{t1}")
    a(f"v_mul_f32 v{t0}, {f2u(1.0/D):#x}, v{accS}")
    a("s_waitcnt lgkmcnt(0)")
    a(f"v_mul_f32 v{t1}, {f2u(1.0/D):#x}, v{t1}")
    a(f"v_fma_f32 v{t1}, -v{t0}, v{t0}, v{t1}")
    a(f"v_max_f32 v{t1}, 0, v{t1}")
    a(f"v_add_f32 v{t2}, {f2u(1e-5):#x}, v{t1}")
    a(f"v_rsq_f32 v{t2}, v{t2}")
    if double_ln:
        a(f"v_mul_f32 v{t3}, v{t2}, v{t2}")
        a(f"v_mul_f32 v{t3}, v{t3}, v{t1}")
        a(f"v_add_f32 v{t3}, {f2u(1e-5):#x}, v{t3}")
        a(f"v_rsq_f32 v{t3}, v{t3}")
        a(f"v_mul_f32 v{t2}, v{t2}, v{t3}")
    a(f"v_mov_b32 v{vRho}, v{t2}")
    a(f"v_mul_f32 v{vMu}, v{t0}, v{t2}")

def set_bases(a, delta):
    a(f"s_and_b32 s45, s34, 1\ns_mul_i32 s44, s45, {delta*KB}\nv_add_u32 v6, s44, v5\nv_add_u32 v7, 0x10000, v6")
    a(f"s_xor_b32 s45, s45, 1\ns_mul_i32 s44, s45, {(RING-delta)*KB}\nv_add_u32 v2, s44, v5")
def rdA(a, f0, delta, reg):
    o = f0 % RING
    if o + delta < RING:
        ob = o * KB
        base = 6 if ob < 65536 else 7
        return a.lg(f"ds_read_b128 v[{reg}:{reg+3}], v{base} offset:{ob % 65536}")
    return a.lg(f"ds_read_b128 v[{reg}:{reg+3}], v2 offset:{(o - (RING - delta)) * KB}")

def make_units(nA, segs, G):
    return [(i, t0, min(nA, t0 + G), si) for si, (i0, i1) in enumerate(segs) for i in range(i0, i1) for t0 in range(0, nA, G)]

def kloop2(a, fbase, span, delta, nA, segs, breg, acc0, acc1, stats, G, before=None, after=None):
    units = make_units(nA, segs, G)
    def read1(u, buf, k):
        i, t0, t1, si = u
        if "noR" in sys.argv and i > 0: return a.nlg
        return rdA(a, fbase + i * span + t0 + k, delta, VA + (buf * G + k) * 4)
    a("s_barrier")
    pend = [read1(units[0], 0, k) for k in range(units[0][2] - units[0][1])]
    for n, u in enumerate(units):
        i, t0, t1, si = u
        nu = units[n + 1] if n + 1 < len(units) else None
        if nu is not None and nu[3] != si:
            if SEGTS[0]: ts(a, "preb", seg=True)
            a("s_barrier")
            if SEGTS[0]: ts(a, "bar", seg=True)
        if t0 == 0 and before: before(i)
        if SEGTS[0] and nu is not None and nu[3] != si: ts(a, "vm", seg=True)
        b0, b1 = breg(i)
        def m(d, A, B):
            c = "0" if i == 0 else f"v[{d}:{d+3}]"
            if "noM" in sys.argv and i > 0: return
            a(f"v_mfma_f32_16x16x32_bf16 v[{d}:{d+3}], v[{A}:{A+3}], v[{B}:{B+3}], {c}")
        nn = (nu[2] - nu[1]) if nu is not None else 0
        nxt = []
        for t in range(t0, t1):
            ra = VA + ((n % 2) * G + t - t0) * 4
            a.wait_lg(pend[t - t0])
            m(acc0 + 4 * t, ra, b0)
            if len(nxt) < nn: nxt.append(read1(nu, (n + 1) % 2, len(nxt)))
            m(acc1 + 4 * t, ra, b1)
            if len(nxt) < nn and (t - t0) % 2 == 0 and nn > (t1 - t0): nxt.append(read1(nu, (n + 1) % 2, len(nxt)))
        while len(nxt) < nn: nxt.append(read1(nu, (n + 1) % 2, len(nxt)))
        if stats and t1 == nA:
            m(VST, VONE, b0); m(VST + 4, b0, b0)
            if stats == 2: m(VSO, VONE, b1); m(VSO + 4, b1, b1)
        pend = nxt
        if t1 == nA and after: after(i)

def loader_kloop2(a, ring, fbase, span, nA, segs, G):
    units = make_units(nA, segs, G)
    cap = None if "nocap" in sys.argv else fbase + segs[-1][1] * span
    loader_bp(a, ring, fbase + segs[0][1] * span, fbase, cap)
    for n, u in enumerate(units):
        nu = units[n + 1] if n + 1 < len(units) else None
        if nu is not None and nu[3] != u[3]:
            loader_bp(a, ring, fbase + segs[nu[3]][1] * span, fbase + u[0] * span, cap)

def store_tiles(a, srcs, ntiles, vaddr16, vaddr8, srd_, soff, imm_stride, sc, tmp=56):
    st = []
    i = 0
    while i < ntiles:
        if i + 1 < ntiles:
            t = tmp + 4 * ((i // 2) % 2)
            a(f"v_mov_b32 v{t}, v{srcs[i]}\nv_mov_b32 v{t+1}, v{srcs[i]+1}\nv_mov_b32 v{t+2}, v{srcs[i+1]}\nv_mov_b32 v{t+3}, v{srcs[i+1]+1}")
            a(f"v_permlane16_swap_b32 v{t}, v{t+2}\nv_permlane16_swap_b32 v{t+1}, v{t+3}")
            st.append(f"buffer_store_dwordx4 v[{t}:{t+3}], v{vaddr16}, s[{srd_}:{srd_+3}], {soff} offen offset:{i*imm_stride} {sc}")
            i += 2
        else:
            st.append(f"buffer_store_dwordx2 v[{srcs[i]}:{srcs[i]+1}], v{vaddr8}, s[{srd_}:{srd_+3}], {soff} offen offset:{i*imm_stride} {sc}")
            i += 1
    if sc == "@SC": xstore(a, "\n".join(st))
    else: a("\n".join(st))

def frag_addr(a, v16, v8, Tsgpr, tmp):
    a(f"v_lshrrev_b32 v{v8}, 1, v4\nv_lshlrev_b32 v{v8}, 8, v{v8}\nv_lshl_add_u32 v{v8}, v3, 4, v{v8}")
    a(f"s_lshl_b32 s45, s{Tsgpr}, 9\nv_add_u32 v{v8}, s45, v{v8}")
    a(f"v_and_b32 v{tmp}, 1, v4\nv_lshl_add_u32 v{v16}, v{tmp}, 9, v{v8}\nv_lshl_add_u32 v{v8}, v{tmp}, 3, v{v8}")

def code_prefetch(a, first, last, wave, nkb=32):
    L = newlab("cpf")
    a(f"s_cmp_eq_u32 s34, {wave}\ns_cbranch_scc0 {L}")
    a(f"s_getpc_b64 s[40:41]")
    here = newlab("pc"); a.label(here)
    a(f"s_sub_u32 s40, s40, {here}-{first}\ns_subb_u32 s41, s41, 0")
    a("v_lshlrev_b32 v8, 6, v1")
    for i in range(nkb // 4):
        a(f"global_load_dword v{10+i}, v8, s[40:41]")
        a("v_add_u32 v8, 4096, v8")
    a.label(L)

def gen_main():
    a = Asm(); name = "main_kernel"
    kernel_begin(a, name, 256)
    a("s_load_dwordx2 s[4:5], s[0:1], 96")
    a("s_load_dwordx2 s[6:7], s[0:1], 0")
    a("s_load_dwordx2 s[24:25], s[0:1], 56")
    a("s_load_dwordx4 s[28:31], s[0:1], 72")
    a("v_and_b32 v1, 63, v0")
    a("v_lshrrev_b32 v2, 6, v0")
    a("v_readfirstlane_b32 s34, v2")
    a("v_and_b32 v3, 15, v1\nv_lshrrev_b32 v4, 4, v1\nv_lshlrev_b32 v5, 4, v1")
    a("s_and_b32 s35, s2, 31\ns_lshr_b32 s36, s2, 5\ns_mov_b32 s37, 0")
    a("s_waitcnt lgkmcnt(0)")
    a("s_mov_b32 s26, s28\ns_mov_b32 s27, s29\ns_mov_b32 s28, s30\ns_mov_b32 s29, s31")
    srd(a, 8, 4, 0, WS_BYTES)
    a("s_lshl_b32 s67, s35, 2\ns_and_b32 s38, s34, 3\ns_add_u32 s67, s67, s38\ns_lshl_b32 s66, s67, 4\ns_xor_b32 s65, s67, 1\ns_mul_i32 s68, s36, 5")
    a(f"s_lshl_b32 s69, s38, 12\ns_mul_i32 s60, s36, {SL*KB}\ns_add_u32 s60, s60, s69\ns_add_u32 s60, s60, {WST}")
    a("s_mov_b32 s59, 0\ns_getreg_b32 s58, hwreg(HW_REG_XCC_ID, 0, 4)\ns_add_u32 s58, s58, 1")
    a("s_cmp_eq_u32 s34, 0\ns_cbranch_scc0 pro_x")
    a(f"s_lshl_b32 s40, s35, 5\ns_lshl_b32 s41, s36, 2\ns_add_u32 s40, s40, s41\ns_add_u32 s40, s40, {XID}\nv_mov_b32 v8, 0\nv_mov_b32 v9, s58")
    a("s_mov_b64 s[42:43], exec\ns_mov_b64 exec, 1\nbuffer_store_dword v9, v8, s[8:11], s40 offen sc1\ns_mov_b64 exec, s[42:43]")
    a.label("pro_x")
    ts(a, "start")
    if "cpf" in sys.argv:
        code_prefetch(a, "main_kernel", "main_kernel_exit", 7)
    a("s_cmp_ge_u32 s34, 4\ns_cbranch_scc0 pro_c")
    loader_issue(a, 0, RING)
    a("s_branch pro_d")
    a.label("pro_c")
    a("v_add_u32 v6, s66, v3")
    a("v_mul_u32_u24 v56, 1280, v6\nv_lshl_add_u32 v56, v4, 3, v56\ns_mul_i32 s40, s36, 160\nv_add_u32 v56, s40, v56")
    srd(a, 12, 6, 0, XBYTES)
    for i in range(5):
        a(f"buffer_load_dwordx2 v[{RES+2*i}:{RES+2*i+1}], v56, s[12:15], 0 offen offset:{i*32}")
    a.label("pro_d")
    a.label("layer_top")
    ring = Ring()
    ld = Asm()
    def tile_offs(base_imm, layer_stride, tile_bytes, ksplit):
        a(f"s_mul_i32 s40, s67, {tile_bytes}\ns_mul_i32 s41, s65, {tile_bytes}")
        if layer_stride:
            a(f"s_mul_i32 s45, s37, {layer_stride}\ns_add_u32 s45, s45, {base_imm}")
        else:
            a(f"s_mov_b32 s45, {base_imm}")
        if ksplit:
            a("s_and_b32 s44, s34, 1\ns_lshl_b32 s44, s44, 10\ns_add_u32 s45, s45, s44")
        a("s_add_u32 s40, s40, s45\ns_add_u32 s41, s41, s45")
    class BL:
        def __init__(self, stride, nslots): self.stride, self.n, self.tag, self.cur = stride, nslots, {}, 0
        def regs(self, i): r = VB + 8 * (i % self.n); return (r, r + 4)
        def load(self, i):
            o = i * self.stride
            if o - self.cur > 4095 - 1023 * 0 or o - self.cur >= 4096:
                d = (o - self.cur) // 4096 * 4096
                a(f"s_add_u32 s40, s40, {d}\ns_add_u32 s41, s41, {d}"); self.cur += d
            r0, r1 = self.regs(i)
            if "noB" in sys.argv and i >= 2:
                self.tag[i] = a.nvm; return
            a.vm(f"buffer_load_dwordx4 v[{r0}:{r0+3}], v5, s[8:11], s40 offen offset:{o - self.cur} sc1")
            self.tag[i] = a.vm(f"buffer_load_dwordx4 v[{r1}:{r1+3}], v5, s[8:11], s41 offen offset:{o - self.cur} sc1")
    def flag_line(dst, kind, tile_sgpr=None, pair=False, layer_delta=0):
        a(f"s_lshl_b32 s{dst}, s37, 13")
        if pair: a(f"s_and_b32 s45, s67, -2\ns_lshl_b32 s45, s45, 6")
        else: a(f"s_lshl_b32 s45, s{tile_sgpr}, 6")
        a(f"s_add_u32 s{dst}, s{dst}, s45\ns_add_u32 s{dst}, s{dst}, {XF + kind*16384 + layer_delta}")
    def reduce_pair(acc0, acc1, NT, stats):
        a(f"s_and_b32 s45, s34, 3\ns_lshl_b32 s44, s45, 13\ns_add_u32 s44, s44, {KVL}\nv_add_u32 v56, s44, v5")
        for t in range(NT): a(f"ds_write_b128 v56, v[{acc1+4*t}:{acc1+4*t+3}] offset:{t*1024}")
        if stats:
            a(f"ds_write_b128 v56, v[{VSO}:{VSO+3}] offset:{6*1024}\nds_write_b128 v56, v[{VSO+4}:{VSO+7}] offset:{7*1024}")
        a(f"s_xor_b32 s45, s45, 1\ns_lshl_b32 s44, s45, 13\ns_add_u32 s44, s44, {KVL}\nv_add_u32 v57, s44, v5")
        a("s_waitcnt lgkmcnt(0)\ns_barrier")
        for t in range(NT): a(f"ds_read_b128 v[{VA+4*t}:{VA+4*t+3}], v57 offset:{t*1024}")
        if stats:
            a(f"ds_read_b128 v[{VSO}:{VSO+3}], v57 offset:{6*1024}\nds_read_b128 v[{VSO+4}:{VSO+7}], v57 offset:{7*1024}")
        a("s_waitcnt lgkmcnt(0)")
        for t in range(NT * 4): a(f"v_add_f32 v{acc0+t}, v{acc0+t}, v{VA+t}")
        if stats:
            for t in range(8): a(f"v_add_f32 v{VST+t}, v{VST+t}, v{VSO+t}")
    ones = lambda: a("v_mov_b32 v52, 0x3f803f80\nv_mov_b32 v53, 0x3f803f80\nv_mov_b32 v54, 0x3f803f80\nv_mov_b32 v55, 0x3f803f80")
    A0, A1 = 192, 216
    a("s_cmp_ge_u32 s34, 4\ns_cbranch_scc1 ld_qkv")
    a.nvm = 0; a.nlg = 0
    a(f"s_mul_i32 s45, s36, 384\ns_add_u32 s45, s45, {CSQ}\nv_lshlrev_b32 v58, 4, v4")
    for i in range(6): a(f"buffer_load_dwordx4 v[{8+4*i}:{8+4*i+3}], v58, s[8:11], s45 offen offset:{i*64}")
    a(f"s_min_u32 s46, s36, 2\ns_lshl_b32 s46, s46, 6\ns_add_u32 s46, s46, {BKV}")
    a(f"buffer_load_dwordx4 v[32:35], v58, s[8:11], s46 offen")
    ones(); set_bases(a, 6)
    a("s_cmp_eq_u32 s37, 0\ns_cbranch_scc1 qkv_l0")
    flag_line(46, 3, pair=True, layer_delta=-8192)
    await_flags(a, 0x00FF00FF, 46)
    a.label("qkv_l0")
    ts(a, "qkv_ready")
    tile_offs(XF0, X2 - XF0, 20480, True)
    bl = BL(2048, 10)
    for i in range(10): bl.load(i)
    segs = [(0, 2), (2, 4), (4, 6), (6, 8), (8, 10)]
    kloop2(a, FQ, 12, 6, 6, segs, bl.regs, A0, A1, 2, 6, before=lambda i: a.wait_vm(bl.tag[i]))
    ld.label("ld_qkv")
    loader_kloop2(ld, ring, FQ, 12, 6, segs, 6)
    ts(a, "qkv_kloop")
    reduce_pair(A0, A1, 6, True)
    ld("s_barrier")
    stats_finalize(a, VST, VST + 4, 60, 61, 56, False)
    qs = DH ** -0.5 * LOG2E
    a(f"v_mul_f32 v62, {f2u(qs):#x}, v60\nv_mul_f32 v63, {f2u(qs):#x}, v61")
    a("s_cmp_lt_u32 s36, 3\ns_cbranch_scc0 qkv_nokv")
    i = 5
    for r in range(4):
        a(f"v_fma_f32 v{48+r}, -v61, v{8+4*i+r}, v{32+r}")
        a(f"v_fma_f32 v{48+r}, v60, v{A0+4*i+r}, v{48+r}")
    a("v_cvt_pk_bf16_f32 v52, v48, v49\nv_cvt_pk_bf16_f32 v53, v50, v51")
    a("s_and_b32 s38, s34, 1")
    a(f"s_and_b32 s41, s34, 3\ns_lshl_b32 s41, s41, 10\ns_add_u32 s41, s41, {KVL + 32*KB}")
    a(f"s_lshr_b32 s47, s67, 1\ns_lshl_b32 s47, s47, 12\ns_mul_i32 s48, s37, {KVB[1]-KVB[0]}\ns_add_u32 s47, s47, s48\ns_add_u32 s47, s47, {KVB[0]}")
    def vwrite(rowoff, hstride):
        a(f"v_bfe_u32 v54, v3, 2, 1\nv_mul_u32_u24 v54, {hstride}, v54")
        a("v_bfe_u32 v55, v3, 3, 1\nv_lshl_add_u32 v54, v55, 3, v54")
        a("v_and_b32 v55, 3, v3\nv_lshl_add_u32 v54, v55, 1, v54")
        a(f"v_add3_u32 v54, v54, v{rowoff}, s41")
        a("ds_write_b16 v54, v52\nds_write_b16_d16_hi v54, v52 offset:16\nds_write_b16 v54, v53 offset:32\nds_write_b16_d16_hi v54, v53 offset:48")
    a("s_cmp_eq_u32 s36, 0\ns_cbranch_scc1 qkv_kvA")
    a("s_cmp_eq_u32 s36, 1\ns_cbranch_scc1 qkv_kvB")
    a("v_lshlrev_b32 v47, 3, v3\nv_add_u32 v47, s41, v47\nv_add_u32 v54, 128, v47\nv_cmp_eq_u32 vcc, 3, v4\nv_cndmask_b32 v47, v47, v54, vcc")
    a("v_cmp_eq_u32 vcc, 0, v4\nv_cmp_eq_u32 s[48:49], 3, v4\ns_or_b64 vcc, vcc, s[48:49]")
    a("s_and_saveexec_b64 s[50:51], vcc")
    a("ds_write_b64 v47, v[52:53]")
    a("s_andn2_b64 exec, s[50:51], exec")
    a("v_lshlrev_b32 v47, 6, v4\nv_add_u32 v47, 192, v47")
    vwrite(47, 128)
    a("s_mov_b64 exec, s[50:51]")
    a("v_and_b32 v47, 7, v1\nv_lshlrev_b32 v47, 4, v47\nv_bfe_u32 v54, v1, 3, 2")
    a("s_lshl_b32 s49, s38, 7\ns_add_u32 s49, s49, 1024\ns_lshl_b32 s50, s38, 10\ns_add_u32 s50, s50, 2304")
    a("v_mov_b32 v55, s49\ns_add_u32 s51, s49, 256\nv_mov_b32 v50, s51\nv_cmp_eq_u32 vcc, 1, v54\nv_cndmask_b32 v55, v55, v50, vcc")
    a("v_mov_b32 v50, s50\nv_cmp_eq_u32 vcc, 2, v54\nv_cndmask_b32 v55, v55, v50, vcc")
    a("s_add_u32 s51, s50, 512\nv_mov_b32 v50, s51\nv_cmp_eq_u32 vcc, 3, v54\nv_cndmask_b32 v55, v55, v50, vcc")
    a("v_add_u32 v47, v47, v55")
    a("s_branch qkv_kvout")
    a.label("qkv_kvB")
    a("v_lshlrev_b32 v47, 6, v4")
    vwrite(47, 256)
    a("v_lshlrev_b32 v47, 4, v3\nv_and_b32 v54, 1, v4\nv_lshl_add_u32 v47, v54, 9, v47\ns_lshl_b32 s49, s38, 10\ns_add_u32 s49, s49, 2048\nv_add_u32 v47, s49, v47")
    a("s_branch qkv_kvout")
    a.label("qkv_kvA")
    a("v_lshrrev_b32 v47, 1, v4\nv_lshlrev_b32 v47, 8, v47\nv_lshl_add_u32 v47, v3, 4, v47\nv_and_b32 v54, 1, v4\nv_lshl_add_u32 v47, v54, 3, v47\nv_add_u32 v47, s41, v47")
    a("ds_write_b64 v47, v[52:53]")
    a("s_lshl_b32 s49, s38, 8\nv_lshlrev_b32 v47, 4, v3\nv_and_b32 v54, 1, v4\nv_lshl_add_u32 v47, v54, 9, v47\nv_add_u32 v47, s49, v47")
    a.label("qkv_kvout")
    a("v_add_u32 v54, s41, v5")
    a("s_waitcnt lgkmcnt(0)")
    a("s_mov_b64 s[50:51], exec\ns_mov_b64 exec, 0xffffffff")
    a("ds_read_b128 v[48:51], v54\ns_waitcnt lgkmcnt(0)")
    a("buffer_store_dwordx4 v[48:51], v47, s[8:11], s47 offen sc1")
    a("s_mov_b64 exec, s[50:51]")
    a.label("qkv_nokv")
    a("s_and_b32 s38, s34, 3\ns_lshl_b32 s38, s38, 4\nv_add_u32 v44, s38, v3\nv_mul_u32_u24 v44, 192, v44")
    a(f"v_add_u32 v44, {KVL + 36*KB}, v44")
    for i in range(5):
        for r in range(4):
            a(f"v_mul_f32 v{48+r}, v63, v{8+4*i+r}")
            a(f"v_fma_f32 v{48+r}, v62, v{A0+4*i+r}, -v{48+r}")
        a(f"v_cvt_pk_bf16_f32 v52, v48, v49\nv_cvt_pk_bf16_f32 v53, v50, v51")
        a(f"v_add_u32 v45, {4*i}, v4\nv_mul_u32_u24 v46, 52, v45\nv_lshrrev_b32 v46, 8, v46\nv_add_u32 v45, v45, v46\nv_lshl_add_u32 v45, v45, 3, v44")
        a("ds_write_b64 v45, v[52:53]")
    a("s_waitcnt vmcnt(0) lgkmcnt(0)")
    a("s_barrier")
    loader_bp(ld, ring, None, FO)
    ld("s_branch att_top")
    a("s_cmp_eq_u32 s34, 0\ns_cbranch_scc0 att_top")
    a("s_cmp_lt_u32 s36, 3\ns_cbranch_scc0 att_top")
    a(f"s_lshl_b32 s46, s37, 13\ns_lshr_b32 s45, s35, 3\ns_lshl_b32 s45, s45, 11\ns_add_u32 s46, s46, s45\ns_add_u32 s46, s46, {KVF}\nv_lshlrev_b32 v56, 8, v1\nv_mov_b32 v57, 1")
    a("s_mov_b64 s[42:43], exec\ns_mov_b64 exec, 0xff")
    a("buffer_atomic_add v57, v56, s[8:11], s46 offen")
    a("s_mov_b64 exec, s[42:43]")
    a.label("att_top")
    ts(a, "qkv_done")
    QB_, KV0, P, SA, SB, O = 8, 32, 64, 72, 88, 104
    def Q1(i): return QB_ + 6 * i
    def Q2(i): return QB_ + 6 * i + 4
    def K1(b): return KV0 + 16 * b
    def K2(b): return KV0 + 16 * b + 4
    def V1(b): return KV0 + 16 * b + 8
    a("v_and_b32 v6, 31, v1\nv_lshrrev_b32 v7, 5, v1\nv_lshlrev_b32 v170, 3, v1")
    a("s_and_b32 s38, s34, 3\ns_lshr_b32 s39, s34, 2")
    a("v_lshrrev_b32 v171, 2, v6\nv_mul_u32_u24 v171, 192, v171\nv_and_b32 v172, 3, v6\nv_mul_u32_u24 v172, 48, v172\nv_add_u32 v171, v171, v172")
    for i in range(4):
        a(f"s_add_u32 s40, s38, {i}\ns_and_b32 s40, s40, 3\ns_lshl_b32 s41, s39, 2\ns_add_u32 s40, s40, s41\ns_mul_i32 s40, s40, {8*192}\ns_add_u32 s40, s40, {KVL + 36*KB}")
        a(f"v_add_u32 v173, s40, v171\nv_lshl_add_u32 v174, v7, 4, v173")
        a(f"ds_read_b128 v[{Q1(i)}:{Q1(i)+3}], v174\nds_read_b64 v[{Q2(i)}:{Q2(i)+1}], v173 offset:32")
    FLAGW = KVL + 48 * KB - 64
    a("s_mov_b32 s57, 0")
    a("s_waitcnt lgkmcnt(0)")
    a("v_cmp_eq_u32 vcc, 1, v7")
    for i in range(4):
        a(f"v_cndmask_b32 v{Q2(i)}, v{Q2(i)}, 0, vcc\nv_cndmask_b32 v{Q2(i)+1}, v{Q2(i)+1}, 0, vcc")
    Lp, Ld = newlab("kvp"), newlab("kvpd")
    a(f"s_lshl_b32 s46, s37, 13\ns_lshl_b32 s45, s38, 11\ns_add_u32 s46, s46, s45\ns_and_b32 s45, s2, 7\ns_lshl_b32 s45, s45, 8\ns_add_u32 s46, s46, s45\ns_add_u32 s46, s46, {KVF}\nv_mov_b32 v175, 0\ns_mov_b32 s44, 0")
    a("s_mov_b64 s[42:43], exec\ns_mov_b64 exec, 1")
    a.label(Lp)
    a("buffer_load_dword v176, v175, s[8:11], s46 offen sc1")
    a("s_add_u32 s44, s44, 1\ns_waitcnt vmcnt(0)")
    a("v_readfirstlane_b32 s45, v176")
    a(f"s_cmp_ge_u32 s45, 24\ns_cbranch_scc1 {Ld}")
    a(f"s_cmp_gt_u32 s44, {SPIN_MAX}\ns_cbranch_scc1 {Ld}")
    a(f"s_sleep 2\ns_branch {Lp}")
    a.label(Ld)
    a("s_mov_b64 exec, s[42:43]")
    ts(a, "kv_ready")
    a.label("att_main")
    for r in range(64): a(f"v_mov_b32 v{O+r}, 0")
    a(f"s_mul_i32 s47, s37, {KVB[1]-KVB[0]}\ns_add_u32 s47, s47, {KVB[0]}\ns_lshl_b32 s48, s38, 16\ns_add_u32 s47, s47, s48")
    def ldK(b):
        a(f"buffer_load_dwordx4 v[{K1(b)}:{K1(b)+3}], v5, s[8:11], s47 offen sc1")
        a(f"buffer_load_dwordx2 v[{K2(b)}:{K2(b)+1}], v170, s[8:11], s47 offen offset:1024 sc1")
    def ldV(b, h):
        a(f"buffer_load_dwordx4 v[{V1(b)+4*h}:{V1(b)+4*h+3}], v5, s[8:11], s47 offen offset:{2048+1024*h} sc1")
    def qk1(Sd, b, i): a(f"v_mfma_f32_32x32x16_bf16 v[{Sd}:{Sd+15}], v[{K1(b)}:{K1(b)+3}], v[{Q1(i)}:{Q1(i)+3}], 0")
    def qk2(Sd, b, i): a(f"v_mfma_f32_32x32x8_bf16 v[{Sd}:{Sd+15}], v[{K2(b)}:{K2(b)+1}], v[{Q2(i)}:{Q2(i)+1}], v[{Sd}:{Sd+15}]")
    def pv(i, b, h): a(f"v_mfma_f32_32x32x16_bf16 v[{O+16*i}:{O+16*i+15}], v[{V1(b)+4*h}:{V1(b)+4*h+3}], v[{P+4*h}:{P+4*h+3}], v[{O+16*i}:{O+16*i+15}]")
    ldK(0); ldV(0, 0); ldV(0, 1)
    a("s_add_u32 s47, s47, 4096")
    ldK(1)
    for r in range(4, 8): a(f"v_mov_b32 v{P+r}, 0\nv_mov_b32 v{V1(1)+r}, 0\nv_mov_b32 v{SB+8+r}, 0")
    a("s_waitcnt vmcnt(4)")
    qk1(SA, 0, 0); qk2(SA, 0, 0)
    a("s_mov_b32 s49, 0")
    a("s_cmp_eq_u32 s37, 0\ns_cbranch_scc0 att_nochk")
    a(f"s_lshl_b32 s46, s35, 5\ns_add_u32 s46, s46, {XID}")
    await_flags(a, 0xFF, 46, vtmp=175)
    a("s_mov_b64 s[42:43], exec\ns_mov_b64 exec, 0xff\nv_cmp_ne_u32 vcc, s58, v176\ns_cmp_eq_u64 vcc, 0\ns_cselect_b32 s59, 1, 0\ns_mov_b64 exec, s[42:43]")
    if "noxcd" in sys.argv: a("s_mov_b32 s59, 0")
    a.label("att_nochk")
    PFQ = int([x for x in sys.argv if x.startswith("pfq=")][0][4:]) if any(x.startswith("pfq=") for x in sys.argv) else 96
    PF = "nopf" not in sys.argv
    if PF:
        a(f"s_mul_i32 s88, s36, {SL*KB}\ns_lshr_b32 s45, s35, 3\ns_mul_i32 s45, s45, {PFQ*KB}\ns_add_u32 s88, s88, s45\ns_add_u32 s88, s88, {WST + 224*KB}")
        a(f"s_lshl_b32 s45, s34, 12\ns_add_u32 s88, s88, s45\ns_add_u32 s89, s88, 32768\ns_add_u32 s90, s88, 65536")
        a("s_and_b32 s40, s34, 3\ns_lshl_b32 s41, s35, 2\ns_add_u32 s40, s40, s41")
        a("s_cmp_ge_u32 s34, 4\ns_cbranch_scc1 dst_h")
        a(f"s_mul_i32 s41, s40, 20480\ns_mul_i32 s45, s36, 2560\ns_add_u32 s41, s41, s45")
        a(f"s_mul_i32 s91, s37, {OB[1]-OB[0]}\ns_add_u32 s91, s91, {OB[0]}\ns_add_u32 s91, s91, s41")
        a(f"s_mul_i32 s92, s37, {X1[1]-X1[0]}\ns_add_u32 s92, s92, {X1[0]}\ns_add_u32 s92, s92, s41")
        a(f"s_add_u32 s93, s41, {X2}\ns_mov_b32 s61, 3\ns_mov_b32 s62, 39")
        a("s_branch dst_d")
        a.label("dst_h")
        a("s_lshr_b32 s44, s36, 1\ns_mul_i32 s44, s44, 27\ns_and_b32 s45, s36, 1\ns_mul_i32 s45, s45, 14\ns_add_u32 s44, s44, s45\ns_lshl_b32 s44, s44, 9")
        a(f"s_mul_i32 s41, s40, 55296\ns_add_u32 s44, s44, s41\ns_mul_i32 s45, s37, {HB[1]-HB[0]}\ns_add_u32 s44, s44, s45\ns_add_u32 s91, s44, {HB[0]}")
        a("s_add_u32 s92, s91, 4096\ns_mov_b32 s93, s92\ns_mov_b32 s61, 4\ns_bitcmp1_b32 s36, 0\ns_cselect_b32 s62, 39, 47")
        a.label("dst_d")
        a("s_mov_b32 s94, s93\ns_mov_b32 s95, s93")
    if "noout" not in sys.argv:
        a("s_cmp_eq_u32 s37, 1\ns_cbranch_scc0 outpf_d\ns_cmp_ge_u32 s34, 4\ns_cbranch_scc0 outpf_d")
        srd(a, 16, 28, 0, XBYTES)
        a("v_add_u32 v179, s66, v3\nv_mul_u32_u24 v179, 1280, v179\nv_lshl_add_u32 v179, v4, 6, v179\ns_mul_i32 s40, s36, 160\ns_and_b32 s40, s40, -64\nv_add_u32 v179, s40, v179")
        a("buffer_load_dword v178, v179, s[16:19], 0 offen")
        a.label("outpf_d")
    a("s_nop 7")
    ts(a, "att_start")
    a.label("att_loop")
    ex = lambda Sc, r: a(f"v_exp_f32 v{Sc+r}, v{Sc+r}")
    cv = lambda Sc, q: a(f"v_cvt_pk_bf16_f32 v{P+q}, v{Sc+2*q}, v{Sc+2*q+1}")
    for kk in range(2):
        b = kk
        for q in range(4):
            u = kk * 4 + q
            Sc, Sn = (SA, SB) if u % 2 == 0 else (SB, SA)
            pq, pb = (q - 1) % 4, (b if q > 0 else 1 - b)
            nq, nb = (q + 1) % 4, (b if q < 3 else 1 - b)
            ex(Sc, 0); ex(Sc, 1); cv(Sn, 6); cv(Sn, 7); ex(Sc, 2); ex(Sc, 3)
            if q == 3: a(f"s_waitcnt vmcnt({3 if (PF and kk == 1) else 2})")
            qk1(Sn, nb, nq)
            ex(Sc, 4); ex(Sc, 5); cv(Sc, 0); cv(Sc, 1); ex(Sc, 6); ex(Sc, 7)
            qk2(Sn, nb, nq)
            if q == 3:
                a("s_add_u32 s47, s47, 4096")
                ldK(b)
                if PF and kk == 0:
                    a("s_mov_b32 m0, s49\ns_cmp_lt_u32 s49, s61\ns_cselect_b32 s63, 63, s62\ns_movrels_b32 s50, s88")
                    a("v_min_u32 v177, s63, v1\nv_lshlrev_b32 v177, 6, v177")
                    a("buffer_load_dword v178, v177, s[8:11], s50 offen")
            ex(Sc, 8); ex(Sc, 9); cv(Sc, 2); cv(Sc, 3); ex(Sc, 10); ex(Sc, 11)
            pv(pq, pb, 1)
            if q == 0: ldV(1 - b, 0)
            if q == 1: ldV(1 - b, 1)
            ex(Sc, 12); ex(Sc, 13); cv(Sc, 4); cv(Sc, 5); ex(Sc, 14); ex(Sc, 15)
            if q == 0: a(f"s_waitcnt vmcnt({4 if (PF and kk == 1) else 3})")
            pv(q, b, 0)
    a("s_add_u32 s49, s49, 1\ns_cmp_lt_u32 s49, 8\ns_cbranch_scc1 att_loop")
    cv(SB, 6); cv(SB, 7)
    pv(3, 1, 1)
    ts(a, "att_loop_end")
    a(f"s_mul_i32 s40, s34, {3*1536}\ns_add_u32 s40, s40, {KVL}\nv_add_u32 v171, s40, v5\nv_add_u32 v172, s40, v170\nv_add_u32 v172, 1024, v172")
    for r in (1, 2, 3):
        t = 72 + 8 * (r - 1)
        for q in range(5): a(f"v_cvt_pk_bf16_f32 v{t+q}, v{O+16*r+2*q}, v{O+16*r+2*q+1}")
        a(f"v_mov_b32 v{t+5}, v{O+16*r+10}")
        a(f"ds_write_b128 v171, v[{t}:{t+3}] offset:{(r-1)*1536}\nds_write_b64 v172, v[{t+4}:{t+5}] offset:{(r-1)*1536}")
    a(f"v_mov_b32 v175, {FLAGW}\nv_mov_b32 v176, 0\nds_write_b32 v175, v176")
    a("s_waitcnt lgkmcnt(0)\ns_barrier")
    for r in (1, 2, 3):
        t = 72 + 8 * (r - 1)
        a(f"s_sub_u32 s41, s38, {r}\ns_and_b32 s41, s41, 3\ns_lshl_b32 s45, s39, 2\ns_add_u32 s41, s41, s45\ns_mul_i32 s41, s41, {3*1536}\ns_add_u32 s41, s41, {KVL + (r-1)*1536}")
        a(f"v_add_u32 v171, s41, v5\nv_add_u32 v172, s41, v170")
        a(f"ds_read_b128 v[{t}:{t+3}], v171\nds_read_b64 v[{t+4}:{t+5}], v172 offset:1024")
    a("s_waitcnt vmcnt(0) lgkmcnt(0)")
    for r in (1, 2, 3):
        t = 72 + 8 * (r - 1)
        for q in range(5):
            unpack2(a, 173, 174, t + q)
            a(f"v_add_f32 v{O+2*q}, v{O+2*q}, v173\nv_add_f32 v{O+2*q+1}, v{O+2*q+1}, v174")
        a(f"v_add_f32 v{O+10}, v{O+10}, v{t+5}")
    a("s_cmp_eq_u32 s57, 1\ns_cbranch_scc1 att_fin")
    a("v_mov_b32 v173, 0")
    for r in range(10): a(f"v_fma_f32 v173, v{O+r}, 0, v173")
    a(f"v_cmp_lt_f32 vcc, {f2u(2.0**-60):#x}, v{O+10}")
    a(f"v_mov_b32 v174, {f2u(2.0**60):#x}\nv_cmp_gt_f32 s[40:41], v174, v{O+10}\ns_and_b64 vcc, vcc, s[40:41]")
    a("v_cmp_eq_f32 s[40:41], 0, v173\ns_and_b64 vcc, vcc, s[40:41]")
    if "forcefb" in sys.argv: a("s_mov_b64 vcc, 0")
    a("s_cmp_eq_u64 vcc, -1\ns_cbranch_scc1 att_okw")
    a(f"v_mov_b32 v175, {FLAGW}\nv_mov_b32 v176, 1\nds_write_b32 v175, v176\ns_waitcnt lgkmcnt(0)")
    a.label("att_okw")
    a("s_barrier")
    a(f"v_mov_b32 v175, {FLAGW}\nds_read_b32 v176, v175\ns_waitcnt lgkmcnt(0)\nv_readfirstlane_b32 s40, v176")
    a("s_cmp_eq_u32 s40, 0\ns_cbranch_scc0 att_fallback")
    a.label("att_fin")
    ts(a, "att_red")
    a(f"v_rcp_f32 v173, v{O+10}")
    for r in range(10): a(f"v_mul_f32 v{O+r}, v{O+r}, v173")
    for q in range(5): a(f"v_cvt_pk_bf16_f32 v{P+q}, v{O+2*q}, v{O+2*q+1}")
    a(f"s_mul_i32 s40, s34, 1280\ns_add_u32 s40, s40, {KVL + 36864}")
    a("v_lshrrev_b32 v171, 2, v6\nv_mul_u32_u24 v171, 160, v171\nv_and_b32 v172, 3, v6\nv_mul_u32_u24 v172, 40, v172\nv_mul_u32_u24 v173, 20, v7\nv_add3_u32 v171, v171, v172, v173")
    a("v_add_u32 v171, s40, v171")
    for q in range(5): a(f"ds_write_b32 v171, v{P+q} offset:{4*q}")
    a("v_and_b32 v172, 7, v1\nv_lshrrev_b32 v173, 3, v1")
    a("v_mul_u32_u24 v174, 160, v172\nv_lshl_add_u32 v174, v173, 4, v174\nv_add_u32 v174, s40, v174")
    a("s_waitcnt lgkmcnt(0)")
    a("ds_read_b128 v[72:75], v174\nds_read_b128 v[76:79], v174 offset:128")
    a("s_and_b32 s41, s34, 1\ns_lshl_b32 s41, s41, 7\nv_lshlrev_b32 v172, 4, v172\nv_lshl_add_u32 v172, v173, 8, v172\nv_add_u32 v172, s41, v172")
    a(f"s_lshl_b32 s41, s35, 2\ns_lshr_b32 s45, s34, 1\ns_add_u32 s48, s41, s45\ns_mul_i32 s41, s48, 20480\ns_mul_i32 s45, s36, 2560\ns_add_u32 s41, s41, s45\ns_mul_i32 s45, s37, {OB[1]-OB[0]}\ns_add_u32 s41, s41, s45\ns_add_u32 s41, s41, {OB[0]}")
    a("s_waitcnt lgkmcnt(0)")
    xstore(a, "buffer_store_dwordx4 v[72:75], v172, s[8:11], s41 offen @SC\ns_mov_b64 s[42:43], exec\ns_mov_b64 exec, 0xffff\nbuffer_store_dwordx4 v[76:79], v172, s[8:11], s41 offen offset:2048 @SC\ns_mov_b64 exec, s[42:43]")
    flag_line(46, 0, tile_sgpr=48)
    a("s_lshl_b32 s45, s36, 3\ns_add_u32 s46, s46, s45\ns_and_b32 s45, s34, 1\ns_lshl_b32 s45, s45, 2\ns_add_u32 s46, s46, s45")
    set_flag(a, 46, vtmp=175)
    ts(a, "att_done")
    a("s_cmp_ge_u32 s34, 4\ns_cbranch_scc1 ld_wo")
    a.nvm = 0; a.nlg = 0
    set_bases(a, 5)
    flag_line(46, 0, pair=True)
    await_flags(a, 0xFFFFFFFF, 46)
    ts(a, "wo_ready")
    tile_offs(OB[0], OB[1] - OB[0], 20480, True)
    bl = BL(2048, 10)
    for i in range(10): bl.load(i)
    segs = [(0, 5), (5, 10)]
    kloop2(a, FO, 10, 5, 5, segs, bl.regs, A0, A1, 0, 5, before=lambda i: a.wait_vm(bl.tag[i]))
    ld.label("ld_wo")
    ring.drained()
    loader_kloop2(ld, ring, FO, 10, 5, segs, 5)
    ts(a, "wo_kloop")
    reduce_pair(A0, A1, 5, False)
    loader_bp(ld, ring, None, F1)
    frag_addr(a, 60, 61, 68, 62)
    tile_offs(X1[0], X1[1] - X1[0], 20480, False)
    for i in range(5):
        unpack2(a, 48, 49, RES + 2 * i); unpack2(a, 50, 51, RES + 2 * i + 1)
        for r in range(4): a(f"v_add_f32 v{48+r}, v{48+r}, v{A0+4*i+r}")
        a(f"v_cvt_pk_bf16_f32 v{RES+2*i}, v48, v49\nv_cvt_pk_bf16_f32 v{RES+2*i+1}, v50, v51")
    store_tiles(a, [RES + 2 * i for i in range(5)], 5, 60, 61, 8, "s40", 512, "@SC", tmp=48)
    flag_line(46, 1, tile_sgpr=67)
    a("s_lshl_b32 s45, s36, 2\ns_add_u32 s46, s46, s45")
    set_flag(a, 46)
    ts(a, "wo_done")
    a.nvm = 0; a.nlg = 0
    a("s_lshr_b32 s52, s36, 1\ns_mul_i32 s52, s52, 27\ns_and_b32 s53, s36, 1\ns_mul_i32 s53, s53, 14\ns_add_u32 s52, s52, s53")
    a("s_and_b32 s53, s34, 1\ns_mul_i32 s53, s53, 7\ns_add_u32 s52, s52, s53")
    srd(a, 20, 24, 0, F * 2)
    a("s_lshl_b32 s47, s52, 5\nv_lshlrev_b32 v60, 3, v4\nv_add_u32 v60, s47, v60")
    B1R = 232
    for i in range(7): a(f"buffer_load_dwordx2 v[{B1R+2*i}:{B1R+2*i+1}], v60, s[20:23], 0 offen offset:{i*32}")
    a(f"s_mul_i32 s45, s36, 896\ns_lshl_b32 s44, s53, 6\ns_add_u32 s45, s45, s44\ns_add_u32 s45, s45, {CS1}\nv_lshlrev_b32 v58, 4, v4")
    for i in range(7): a(f"buffer_load_dwordx4 v[{8+4*i}:{8+4*i+3}], v58, s[8:11], s45 offen offset:{i*64}")
    ones(); set_bases(a, 7)
    flag_line(46, 1, pair=True)
    await_flags(a, 0x00FF00FF, 46)
    ts(a, "fc1_ready")
    tile_offs(X1[0], X1[1] - X1[0], 20480, False)
    bl = BL(1024, 10)
    for i in range(10): bl.load(i)
    segs = [(2 * s_, 2 * s_ + 2) for s_ in range(10)]
    C0, C1 = 176, 204
    kloop2(a, F1, 14, 7, 7, segs, bl.regs, C0, C1, 1, 4, before=lambda i: a.wait_vm(bl.tag[i]),
           after=lambda i: bl.load(i + 10) if i + 10 < 20 else None)
    ld.label("ld_fc1")
    loader_kloop2(ld, ring, F1, 14, 7, segs, 4)
    ts(a, "fc1_kloop")
    stats_finalize(a, VST, VST + 4, 60, 61, 56, True)
    a(f"s_and_b32 s45, s34, 3\ns_lshl_b32 s44, s45, 9\ns_add_u32 s44, s44, {KVL}\nv_lshlrev_b32 v56, 3, v1\nv_add_u32 v57, s44, v56")
    a("ds_write_b64 v57, v[60:61]")
    a(f"s_xor_b32 s45, s45, 1\ns_lshl_b32 s44, s45, 9\ns_add_u32 s44, s44, {KVL}\nv_add_u32 v57, s44, v56")
    a("s_waitcnt lgkmcnt(0)\ns_barrier")
    loader_bp(ld, ring, None, F2)
    a("ds_read_b64 v[62:63], v57")
    frag_addr(a, 58, 59, 52, 56)
    tile_offs(HB[0], HB[1] - HB[0], 55296, False)
    c0 = -2.0 * math.sqrt(2.0 / math.pi) * LOG2E
    c1 = c0 * 0.044715
    a(f"v_mov_b32 v40, {f2u(c0):#x}\nv_mov_b32 v41, v40\nv_mov_b32 v42, {f2u(c1):#x}\nv_mov_b32 v43, v42\nv_mov_b32 v46, 1.0\nv_mov_b32 v47, 1.0")
    a("s_waitcnt lgkmcnt(0)")
    def gelu_tile(i, acc, dst):
        unpack2(a, 52, 53, B1R + 2 * i); unpack2(a, 54, 55, B1R + 2 * i + 1)
        for h in range(2): a(f"v_pk_fma_f32 v[{52+2*h}:{53+2*h}], v[38:39], v[{8+4*i+2*h}:{8+4*i+2*h+1}], v[{52+2*h}:{53+2*h}]")
        for h in range(2): a(f"v_pk_fma_f32 v[{52+2*h}:{53+2*h}], v[36:37], v[{acc+4*i+2*h}:{acc+4*i+2*h+1}], v[{52+2*h}:{53+2*h}]")
        for h in range(2): a(f"v_pk_mul_f32 v[{144+2*h}:{145+2*h}], v[{52+2*h}:{53+2*h}], v[{52+2*h}:{53+2*h}]")
        for h in range(2): a(f"v_pk_fma_f32 v[{144+2*h}:{145+2*h}], v[{144+2*h}:{145+2*h}], v[42:43], v[40:41]")
        for h in range(2): a(f"v_pk_mul_f32 v[{144+2*h}:{145+2*h}], v[{144+2*h}:{145+2*h}], v[{52+2*h}:{53+2*h}]")
        for r in range(4): a(f"v_exp_f32 v{144+r}, v{144+r}")
        for h in range(2): a(f"v_pk_add_f32 v[{144+2*h}:{145+2*h}], v[{144+2*h}:{145+2*h}], v[46:47]")
        for r in range(4): a(f"v_rcp_f32 v{144+r}, v{144+r}")
        for h in range(2): a(f"v_pk_mul_f32 v[{52+2*h}:{53+2*h}], v[{52+2*h}:{53+2*h}], v[{144+2*h}:{145+2*h}]")
        a(f"v_cvt_pk_bf16_f32 v{dst}, v52, v53\nv_cvt_pk_bf16_f32 v{dst+1}, v54, v55")
    for tilesel in range(2):
        acc, rho, mu, so = (C0, 60, 61, "s40") if tilesel == 0 else (C1, 62, 63, "s41")
        a(f"v_mov_b32 v36, v{rho}\nv_mov_b32 v37, v{rho}\nv_sub_f32 v38, 0, v{mu}\nv_mov_b32 v39, v38")
        for p in range(3):
            t = 152 + 4 * (p % 2)
            gelu_tile(2 * p, acc, t); gelu_tile(2 * p + 1, acc, t + 2)
            a(f"v_permlane16_swap_b32 v{t}, v{t+2}\nv_permlane16_swap_b32 v{t+1}, v{t+3}")
            xstore(a, f"buffer_store_dwordx4 v[{t}:{t+3}], v58, s[8:11], {so} offen offset:{p*1024} @SC")
        sk = newlab("fc1sk")
        a(f"s_and_b32 s45, s36, s34\ns_bitcmp1_b32 s45, 0\ns_cbranch_scc1 {sk}")
        gelu_tile(6, acc, 160)
        xstore(a, f"buffer_store_dwordx2 v[160:161], v59, s[8:11], {so} offen offset:3072 @SC")
        a.label(sk)
    flag_line(46, 2, tile_sgpr=67)
    flag_line(47, 2, tile_sgpr=65)
    a("s_lshl_b32 s45, s36, 3\ns_and_b32 s44, s34, 1\ns_lshl_b32 s44, s44, 2\ns_add_u32 s45, s45, s44\ns_add_u32 s46, s46, s45\ns_add_u32 s47, s47, s45")
    set_flag(a, 46, second=47)
    ts(a, "fc1_done")
    a.nvm = 0; a.nlg = 0
    srd(a, 20, 26, 0, D * 2)
    a("v_lshlrev_b32 v58, 3, v4\ns_mul_i32 s40, s36, 160\nv_add_u32 v58, s40, v58")
    for i in range(5): a(f"buffer_load_dwordx2 v[{8+2*i}:{9+2*i}], v58, s[20:23], 0 offen offset:{i*32}")
    set_bases(a, 5)
    flag_line(46, 2, pair=True)
    await_flags(a, 0xFFFFFFFF, 46)
    ts(a, "fc2_ready")
    tile_offs(HB[0], HB[1] - HB[0], 55296, True)
    bl = BL(2048, 10)
    for i in range(10): bl.load(i)
    segs = [(2 * s_, min(27, 2 * s_ + 2)) for s_ in range(14)]
    SEGTS[0] = True
    kloop2(a, F2, 10, 5, 5, segs, bl.regs, A0, A1, 0, 5, before=lambda i: a.wait_vm(bl.tag[i]),
           after=lambda i: bl.load(i + 10) if i + 10 < 27 else None)
    ld.label("ld_fc2")
    LDTS[0] = True
    loader_kloop2(ld, ring, F2, 10, 5, segs, 5)
    ts(a, "fc2_kloop")
    reduce_pair(A0, A1, 5, False)
    loader_bp(ld, ring, None, SL)
    assert ring.I == SLP + RING
    for i in range(5):
        unpack2(a, 48, 49, RES + 2 * i); unpack2(a, 50, 51, RES + 2 * i + 1)
        unpack2(a, 52, 53, 8 + 2 * i); unpack2(a, 54, 55, 8 + 2 * i + 1)
        for r in range(4): a(f"v_add_f32 v{52+r}, v{52+r}, v{A0+4*i+r}")
        for r in range(4): a(f"v_add_f32 v{48+r}, v{48+r}, v{52+r}")
        a(f"v_cvt_pk_bf16_f32 v{RES+2*i}, v48, v49\nv_cvt_pk_bf16_f32 v{RES+2*i+1}, v50, v51")
    a("s_cmp_eq_u32 s37, 0\ns_cbranch_scc0 fc2_last")
    frag_addr(a, 60, 61, 68, 62)
    tile_offs(X2, 0, 20480, False)
    store_tiles(a, [RES + 2 * i for i in range(5)], 5, 60, 61, 8, "s40", 512, "@SC", tmp=48)
    flag_line(46, 3, tile_sgpr=67)
    a("s_lshl_b32 s45, s36, 2\ns_add_u32 s46, s46, s45")
    set_flag(a, 46)
    a("s_branch fc2_fin")
    a.label("fc2_last")
    srd(a, 16, 28, 0, XBYTES)
    a("v_add_u32 v62, s66, v3\nv_mul_u32_u24 v60, 1280, v62\ns_mul_i32 s40, s36, 160\nv_add_u32 v60, s40, v60")
    a("v_lshl_add_u32 v61, v4, 3, v60")
    a("v_and_b32 v62, 1, v4\nv_lshl_add_u32 v60, v62, 5, v60\nv_lshrrev_b32 v62, 1, v4\nv_lshl_add_u32 v60, v62, 4, v60")
    store_tiles(a, [RES + 2 * i for i in range(5)], 5, 60, 61, 16, "0", 32, "", tmp=48)
    a.label("fc2_fin")
    ts(a, "fc2_done")
    a("s_branch layer_end")
    ld("s_branch layer_end")
    a.out += ld.out
    fbk = Asm()
    fbk.label("att_fallback")
    fbk("s_barrier")
    for i in range(4): fbk(f"v_mov_b32 v{181+i}, 0xff800000")
    fbk(f"s_mul_i32 s47, s37, {KVB[1]-KVB[0]}\ns_add_u32 s47, s47, {KVB[0]}\ns_lshl_b32 s48, s38, 16\ns_add_u32 s47, s47, s48\ns_mov_b32 s49, 0")
    fbk.label("fb_loop")
    fbk(f"buffer_load_dwordx4 v[{K1(0)}:{K1(0)+3}], v5, s[8:11], s47 offen sc1")
    fbk(f"buffer_load_dwordx2 v[{K2(0)}:{K2(0)+1}], v170, s[8:11], s47 offen offset:1024 sc1")
    fbk("s_waitcnt vmcnt(0)")
    for i in range(4):
        fbk(f"v_mfma_f32_32x32x16_bf16 v[{SA}:{SA+15}], v[{K1(0)}:{K1(0)+3}], v[{Q1(i)}:{Q1(i)+3}], 0")
        fbk(f"v_mfma_f32_32x32x8_bf16 v[{SA}:{SA+15}], v[{K2(0)}:{K2(0)+1}], v[{Q2(i)}:{Q2(i)+1}], v[{SA}:{SA+15}]")
        for r in range(0, 16, 2): fbk(f"v_max3_f32 v{181+i}, v{181+i}, v{SA+r}, v{SA+r+1}")
    fbk("s_add_u32 s47, s47, 4096\ns_add_u32 s49, s49, 1\ns_cmp_lt_u32 s49, 16\ns_cbranch_scc1 fb_loop")
    fbk("v_xor_b32 v171, 32, v1\nv_lshlrev_b32 v171, 2, v171")
    for i in range(4):
        fbk(f"ds_bpermute_b32 v172, v171, v{181+i}\ns_waitcnt lgkmcnt(0)\nv_max_f32 v{181+i}, v{181+i}, v172")
    fbk("v_lshlrev_b32 v171, 2, v6")
    for i in range(4):
        fbk(f"s_add_u32 s40, s38, {i}\ns_and_b32 s40, s40, 3\ns_lshl_b32 s41, s39, 2\ns_add_u32 s40, s40, s41\ns_lshl_b32 s40, s40, 9\ns_lshl_b32 s41, s38, 7\ns_add_u32 s41, s41, s40\ns_add_u32 s41, s41, {KVL}")
        fbk(f"v_add_u32 v172, s41, v171\nds_write_b32 v172, v{181+i}")
    fbk("s_waitcnt lgkmcnt(0)\ns_barrier")
    for i in range(4):
        fbk(f"s_add_u32 s40, s38, {i}\ns_and_b32 s40, s40, 3\ns_lshl_b32 s41, s39, 2\ns_add_u32 s40, s40, s41\ns_lshl_b32 s40, s40, 9\ns_add_u32 s40, s40, {KVL}")
        fbk(f"v_add_u32 v172, s40, v171\nds_read_b32 v173, v172\nds_read_b32 v174, v172 offset:128\nds_read_b32 v175, v172 offset:256\nds_read_b32 v176, v172 offset:384")
        fbk("s_waitcnt lgkmcnt(0)\nv_max_f32 v173, v173, v174\nv_max3_f32 v173, v173, v175, v176")
        fbk("v_sub_f32 v173, 0, v173\nv_cvt_pk_bf16_f32 v174, v173, v173\nv_lshlrev_b32 v175, 16, v174\nv_sub_f32 v175, v173, v175\nv_cvt_pk_bf16_f32 v176, v173, v175")
        fbk(f"v_cmp_eq_u32 vcc, 1, v7\nv_cndmask_b32 v{Q2(i)}, v{Q2(i)}, v176, vcc")
    fbk("s_mov_b32 s57, 1\ns_barrier\ns_branch att_main")
    a.out += fbk.out
    a.label("layer_end")
    if PROFILE:
        a(f"s_cmp_eq_u32 s34, {4 if PROFLD else 0}\ns_cbranch_scc0 prof_skip")
        a(f"s_lshl_b32 s40, s2, 8\ns_lshl_b32 s41, s37, 7\ns_add_u32 s40, s40, s41\ns_add_u32 s40, s40, {TSB}\nv_mov_b32 v8, 0\ns_mov_b64 s[42:43], exec\ns_mov_b64 exec, 1")
        for i in range(Prof.n):
            a(f"v_mov_b32 v9, s{70+i}\nbuffer_store_dword v9, v8, s[8:11], s40 offen offset:{4*i}\ns_nop 0")
        a("s_mov_b64 exec, s[42:43]")
        a.label("prof_skip")
    a(f"s_add_u32 s37, s37, 1\ns_cmp_lt_u32 s37, 2\ns_cbranch_scc1 layer_top")
    a("s_waitcnt vmcnt(0)")
    a("s_endpgm")
    kernel_end(a, name)
    return a.out, descriptor(name, 256), (name, 256, 512, LDS_BYTES)

def build(path, kernels):
    hdr = []
    for k in kernels:
        name, grid, block, lds = k[2]
        hdr.append(f"; @launch kernel={name} grid=({grid},1,1) block=({block},1,1) lds={lds}")
    body = ['.amdgcn_target "amdgcn-amd-amdhsa--gfx950"', ".text"]
    descs = []
    nfix = 0
    for k in kernels:
        lines, n = fix_hazards(k[0])
        nfix += n
        body += lines
        descs.append(k[1])
    txt = "\n".join(hdr) + "\n" + "\n".join(body) + '\n.section .rodata,"a"\n' + "".join(".p2align 6\n" + d for d in descs)
    open(path, "w").write(txt)
    print("written", path, len(txt), "bytes; hazard nops at", nfix, "sites")

if __name__ == "__main__":
    out = [x for x in sys.argv[1:] if x.endswith(".s")]
    build(out[0] if out else "v10.s", [gen_prep(), gen_main()])
    json.dump(dict(WST=WST, CSQ=CSQ, BKV=BKV, CS1=CS1, KVB=KVB, KMAX=KMAX, OB=OB, X1=X1, X2=X2, HB=HB, TSB=TSB, XF=XF, KVF=KVF, TSN=TSN, ver=3, XF0=XF0), open("layout.json", "w"))
```

```python
import sys, math, json, struct
sys.path.insert(0, "gen")
from asmdsl import *

S, D, F, H, DH = 2048, 640, 1728, 32, 20
KB = 1024
PROFSEG = "profseg" in sys.argv
PROFILE = "prof" in sys.argv or "profld" in sys.argv or PROFSEG
PROFLD = "profld" in sys.argv
off = 0
def alloc(n, align=4096):
    global off
    off = (off + align - 1) // align * align
    o = off; off += n; return o
SL = 770
RING = 112
SLP = 784
FQ, FO, F1, F2 = 0, 120, 220, 500
WST = alloc(8 * SL * KB + 16 * KB)
CSQ = alloc(8 * 96 * 4)
BKV = alloc(3 * 16 * 4)
CS1 = alloc(8 * 224 * 4)
FLAGS = alloc(16384 + 4 * 16384 + 4096, 4096)
KVF = FLAGS
XF = FLAGS + 16384
XID = FLAGS + 16384 + 4 * 16384
FLAG_BYTES = 16384 + 4 * 16384 + 4096
KVB = [alloc(64 * 4096), alloc(64 * 4096)]
KMAX = [alloc(1024), alloc(1024)]
OB = [alloc(S * D * 2), alloc(S * D * 2)]
X1 = [alloc(S * D * 2), alloc(S * D * 2)]
HB = [alloc(S * F * 2), alloc(S * F * 2)]
X2 = alloc(S * D * 2)
XF0 = alloc(S * D * 2)
TSB = alloc(256 * 64 * 4)
WS_BYTES = 268435456
XBYTES = S * D * 2
LOG2E = 1.4426950408889634
def f2u(x): return struct.unpack("<I", struct.pack("<f", x))[0]
KVL = RING * KB
LDS_BYTES = 160 * KB
SPIN_MAX = 200000

def srd(a, s, ptr_pair, off, nbytes):
    if off:
        a(f"s_add_u32 s{s}, s{ptr_pair}, {off}")
        a(f"s_addc_u32 s{s+1}, s{ptr_pair+1}, 0")
    else:
        a(f"s_mov_b32 s{s}, s{ptr_pair}")
        a(f"s_mov_b32 s{s+1}, s{ptr_pair+1}")
    a(f"s_mov_b32 s{s+2}, {nbytes}")
    a(f"s_mov_b32 s{s+3}, 0x20000")
def srd_dyn(a, s, ptr_pair, off_sgpr, nbytes):
    a(f"s_add_u32 s{s}, s{ptr_pair}, s{off_sgpr}")
    a(f"s_addc_u32 s{s+1}, s{ptr_pair+1}, 0")
    a(f"s_mov_b32 s{s+2}, {nbytes}")
    a(f"s_mov_b32 s{s+3}, 0x20000")

def kernel_begin(a, name, nwg):
    a(f".globl {name}")
    a(".p2align 8")
    a(f".type {name},@function")
    a.out.append(f"{name}:")
    a(f"s_cmp_ge_u32 s2, {nwg}")
    a(f"s_cbranch_scc1 {name}_exit")
def kernel_end(a, name):
    a.label(f"{name}_exit")
    a("s_endpgm")
def descriptor(name, vgpr, sgpr=102):
    vg = (vgpr + 7) // 8 * 8
    return f""".amdhsa_kernel {name}
  .amdhsa_next_free_vgpr {vg}
  .amdhsa_next_free_sgpr {sgpr}
  .amdhsa_accum_offset {min(vg,256)}
  .amdhsa_group_segment_fixed_size 0
  .amdhsa_kernarg_size 104
  .amdhsa_user_sgpr_count 2
  .amdhsa_user_sgpr_kernarg_segment_ptr 1
  .amdhsa_system_sgpr_workgroup_id_x 1
  .amdhsa_float_denorm_mode_32 3
  .amdhsa_float_denorm_mode_16_64 3
.end_amdhsa_kernel
"""

PSC = " sc1" if "psc1" in sys.argv else (" nt" if "pnt" in sys.argv else (" sc0 sc1" if "psc01" in sys.argv else ""))
def gen_prep():
    a = Asm(); name = "prep_kernel"
    kernel_begin(a, name, 256)
    a("s_load_dwordx2 s[52:53], s[0:1], 0")
    a("s_load_dwordx2 s[4:5], s[0:1], 96")
    a("s_load_dwordx2 s[6:7], s[0:1], 8")
    a("s_load_dwordx4 s[24:27], s[0:1], 16")
    a("s_load_dwordx2 s[28:29], s[0:1], 32")
    a("s_load_dwordx2 s[30:31], s[0:1], 48")
    a("s_load_dwordx2 s[32:33], s[0:1], 64")
    a("v_and_b32 v1, 63, v0")
    a("v_lshrrev_b32 v2, 6, v0")
    a("v_readfirstlane_b32 s34, v2")
    a("v_and_b32 v3, 15, v1")
    a("v_lshrrev_b32 v4, 4, v1")
    a("v_lshlrev_b32 v5, 4, v1")
    a("s_waitcnt lgkmcnt(0)")
    srd(a, 8, 4, 0, WS_BYTES)
    if "cpf2" in sys.argv:
        a("s_cmp_eq_u32 s34, 3\ns_cbranch_scc0 prep_cpf")
        a("s_getpc_b64 s[40:41]")
        a.label("prep_pc")
        a("s_add_u32 s40, s40, main_kernel-prep_pc\ns_addc_u32 s41, s41, 0")
        a("v_lshlrev_b32 v8, 6, v1")
        for i in range(8):
            a(f"global_load_dword v{110}, v8, s[40:41]")
            a("v_add_u32 v8, 4096, v8")
        a.label("prep_cpf")
    srd(a, 12, 52, 0, XBYTES)
    a("s_lshl_b32 s35, s2, 2\ns_add_u32 s35, s35, s34")
    a("v_mul_u32_u24 v7, 1280, v3\nv_lshl_add_u32 v7, v4, 4, v7")
    for q in range(3):
        a(f"s_add_u32 s36, s35, {q*1024}")
        a("s_mul_i32 s37, s36, 3277\ns_lshr_b32 s37, s37, 16")
        a("s_mul_i32 s38, s37, 20\ns_sub_u32 s38, s36, s38")
        a("s_mul_i32 s39, s37, 20480\ns_lshl_b32 s38, s38, 6\ns_add_u32 s39, s39, s38")
        a(f"buffer_load_dwordx4 v[{16+4*q}:{19+4*q}], v7, s[12:15], s39 offen")
        a(f"s_lshl_b32 s{54+q}, s36, 10\ns_add_u32 s{54+q}, s{54+q}, {XF0}")
    a("s_mov_b32 s57, s35")
    xs_n = [0]
    def xstores():
        L = f"prep_xd{xs_n[0]}"; xs_n[0] += 1
        for q in range(3):
            if q == 2: a(f"s_cmp_lt_u32 s57, 512\ns_cbranch_scc0 {L}")
            a(f"buffer_store_dwordx4 v[{16+4*q}:{19+4*q}], v5, s[8:11], s{54+q} offen" + PSC)
        a.label(L)
    a("s_cmp_ge_u32 s2, 252\ns_cbranch_scc0 prep_go")
    a("s_waitcnt vmcnt(0)")
    xstores()
    a("s_branch prep_done")
    a.label("prep_go")
    def gather(voff, srdn, rowbytes, soff_base_sgpr, nfr, ks_stride_bytes):
        for f in range(nfr):
            for jj in range(8):
                a(f"s_add_u32 s40, s{soff_base_sgpr}, {f*ks_stride_bytes + jj*rowbytes}")
                a(f"buffer_load_ushort v{64+8*f+jj}, v{voff}, s[{srdn}:{srdn+3}], s40 offen")
    def pack(nfr):
        a("s_waitcnt vmcnt(0)")
        xstores()
        for f in range(nfr):
            for q in range(4):
                a(f"v_lshl_or_b32 v{32+4*f+q}, v{64+8*f+2*q+1}, 16, v{64+8*f+2*q}")
    def colsum_and_store(dst_soff_sgpr, dst_ks_stride, cs_off_sgpr):
        a("v_mov_b32 v132, 0x3f803f80\nv_mov_b32 v133, 0x3f803f80\nv_mov_b32 v134, 0x3f803f80\nv_mov_b32 v135, 0x3f803f80")
        pack(5)
        for f in range(5):
            a(f"s_add_u32 s40, s{dst_soff_sgpr}, {f*dst_ks_stride}")
            a(f"buffer_store_dwordx4 v[{32+4*f}:{35+4*f}], v5, s[8:11], s40 offen" + PSC)
            a(f"v_mfma_f32_16x16x32_bf16 v[28:31], v[{32+4*f}:{35+4*f}], v[132:135], " + ("0" if f == 0 else "v[28:31]"))
        a("v_lshlrev_b32 v6, 4, v4")
        a("s_lshl_b32 s41, s34, 6")
        a("v_add_u32 v6, s41, v6")
        a("v_cmp_eq_u32 vcc, 0, v3")
        a("s_and_saveexec_b64 s[42:43], vcc")
        a("ds_write_b128 v6, v[28:31]")
        a("s_mov_b64 exec, s[42:43]")
        a("s_waitcnt lgkmcnt(0)")
        a("s_barrier")
        a("v_lshlrev_b32 v6, 2, v0")
        a("v_cmp_gt_u32 vcc, 16, v0")
        a("s_and_saveexec_b64 s[42:43], vcc")
        a(f"s_cbranch_execz {name}_exit")
        a("ds_read_b32 v7, v6\nds_read_b32 v8, v6 offset:64\nds_read_b32 v9, v6 offset:128\nds_read_b32 v10, v6 offset:192")
        a("s_waitcnt lgkmcnt(0)")
        a("v_add_f32 v7, v7, v8\nv_add_f32 v9, v9, v10\nv_add_f32 v7, v7, v9")
        a(f"buffer_store_dword v7, v6, s[8:11], s{cs_off_sgpr} offen")
        a("s_waitcnt vmcnt(0)")
        a("s_endpgm")
    a("s_cmp_lt_u32 s2, 40\ns_cbranch_scc1 prep_wq")
    a("s_cmp_lt_u32 s2, 43\ns_cbranch_scc1 prep_kv")
    a("s_cmp_lt_u32 s2, 151\ns_cbranch_scc1 prep_w1")
    a("s_branch prep_plain")
    a.label("prep_wq")
    srd(a, 12, 6, 0, D * D * 2)
    a("s_mul_i32 s35, s2, 52429\ns_lshr_b32 s35, s35, 18")
    a("s_mul_i32 s36, s35, 5\ns_sub_u32 s36, s2, s36")
    a("v_mul_u32_u24 v7, 10240, v4")
    a("s_lshl_b32 s37, s2, 5")
    a("v_lshl_add_u32 v7, v3, 1, v7\nv_add_u32 v7, s37, v7")
    a(f"s_mul_i32 s38, s34, {5*32*1280}")
    gather(7, 12, 1280, 38, 5, 32 * 1280)
    a(f"s_mul_i32 s44, s35, {SL*KB}\ns_mul_i32 s45, s34, {25*KB}\ns_add_u32 s44, s44, s45\ns_lshl_b32 s45, s36, 10\ns_add_u32 s44, s44, s45\ns_add_u32 s44, s44, {WST + (FQ+20)*KB}")
    a(f"s_mul_i32 s46, s35, 384\ns_lshl_b32 s45, s36, 6\ns_add_u32 s46, s46, s45\ns_add_u32 s46, s46, {CSQ}")
    colsum_and_store(44, 5 * KB, 46)
    a.label("prep_kv")
    srd(a, 12, 24, 0, D * DH * 2)
    srd(a, 16, 26, 0, D * DH * 2)
    a("s_sub_u32 s35, s2, 40")
    for r in range(64, 104): a(f"v_mov_b32 v{r}, 0")
    BIG = 0x40000000
    a("v_and_b32 v8, 3, v3\nv_lshrrev_b32 v9, 2, v3")
    a("s_cmp_eq_u32 s35, 0\ns_cbranch_scc1 prep_kv0")
    a("s_cmp_eq_u32 s35, 1\ns_cbranch_scc1 prep_kv1")
    a(f"v_mov_b32 v10, {BIG}\nv_mov_b32 v11, {BIG}")
    a("v_lshlrev_b32 v12, 1, v3\nv_add_u32 v12, 32, v12")
    a("v_cmp_gt_u32 vcc, 4, v3\nv_cndmask_b32 v10, v10, v12, vcc")
    a("v_lshlrev_b32 v12, 1, v8")
    a("v_add_u32 v13, 16, v12\nv_add_u32 v14, 36, v12")
    a("v_cmp_eq_u32 vcc, 1, v9\nv_cndmask_b32 v11, v11, v13, vcc")
    a("v_cmp_eq_u32 vcc, 2, v9\nv_cndmask_b32 v11, v11, v14, vcc")
    a(f"v_mov_b32 v12, {BIG}\nv_cmp_lt_u32 vcc, 1, v8\nv_cndmask_b32 v11, v11, v12, vcc")
    a("s_branch prep_kvgo")
    a.label("prep_kv0")
    a(f"v_lshlrev_b32 v10, 1, v3\nv_mov_b32 v11, {BIG}")
    a("s_branch prep_kvgo")
    a.label("prep_kv1")
    a(f"v_mov_b32 v10, {BIG}")
    a("v_mov_b32 v11, 0\nv_cmp_eq_u32 vcc, 1, v9\nv_cndmask_b32 v11, v11, 10, vcc")
    a("v_cmp_eq_u32 vcc, 2, v9\nv_cndmask_b32 v11, v11, 4, vcc")
    a("v_cmp_eq_u32 vcc, 3, v9\nv_cndmask_b32 v11, v11, 14, vcc")
    a("v_add_u32 v11, v11, v8\nv_lshlrev_b32 v11, 1, v11")
    a.label("prep_kvgo")
    a("v_mul_u32_u24 v12, 320, v4")
    a("v_add_u32 v10, v10, v12\nv_add_u32 v11, v11, v12")
    a(f"s_mul_i32 s38, s34, {5*32*40}")
    a(f"v_cmp_gt_u32 vcc, {BIG}, v10\ns_and_saveexec_b64 s[48:49], vcc")
    a("s_cbranch_execz prep_kv_skipk")
    gather(10, 12, 40, 38, 5, 32 * 40)
    a.label("prep_kv_skipk")
    a("s_mov_b64 exec, s[48:49]")
    a(f"v_cmp_gt_u32 vcc, {BIG}, v11\ns_and_saveexec_b64 s[48:49], vcc")
    a("s_cbranch_execz prep_kv_skipv")
    gather(11, 16, 40, 38, 5, 32 * 40)
    a.label("prep_kv_skipv")
    a("s_mov_b64 exec, s[48:49]")
    a(f"s_mul_i32 s44, s35, {SL*KB}\ns_mul_i32 s45, s34, {5*KB}\ns_add_u32 s44, s44, s45\ns_add_u32 s44, s44, {WST + FQ*KB}")
    a(f"s_mul_i32 s46, s35, 384\ns_add_u32 s46, s46, {CSQ + 5*64}")
    colsum_and_store(44, 1 * KB, 46)
    a.label("prep_w1")
    srd(a, 12, 30, 0, D * F * 2)
    a("s_sub_u32 s35, s2, 43")
    a("s_mul_i32 s36, s35, 2428\ns_lshr_b32 s36, s36, 16")
    a("s_mul_i32 s37, s36, 27\ns_sub_u32 s37, s35, s37")
    a("s_lshl_b32 s36, s36, 1")
    a("s_cmp_ge_u32 s37, 14\ns_cbranch_scc0 prep_w1a")
    a("s_add_u32 s36, s36, 1\ns_sub_u32 s37, s37, 14")
    a.label("prep_w1a")
    a("v_mul_u32_u24 v7, 27648, v4")
    a("s_lshl_b32 s39, s35, 5")
    a("v_lshl_add_u32 v7, v3, 1, v7\nv_add_u32 v7, s39, v7")
    a(f"s_mul_i32 s38, s34, {5*32*3456}")
    gather(7, 12, 3456, 38, 5, 32 * 3456)
    a(f"s_mul_i32 s44, s36, {SL*KB}\ns_mul_i32 s45, s34, {5*14*KB}\ns_add_u32 s44, s44, s45\ns_lshl_b32 s45, s37, 10\ns_add_u32 s44, s44, s45\ns_add_u32 s44, s44, {WST + F1*KB}")
    a(f"s_mul_i32 s46, s36, 896\ns_lshl_b32 s45, s37, 6\ns_add_u32 s46, s46, s45\ns_add_u32 s46, s46, {CS1}")
    colsum_and_store(44, 14 * KB, 46)
    a.label("prep_plain")
    a("s_sub_u32 s35, s2, 151\ns_lshl_b32 s35, s35, 2\ns_add_u32 s35, s35, s34")
    a("s_cmp_lt_u32 s35, 120\ns_cbranch_scc1 prep_wo")
    a("s_sub_u32 s35, s35, 120")
    a("s_cmp_ge_u32 s35, 280\ns_cbranch_scc1 prep_bias")
    srd(a, 12, 32, 0, F * D * 2)
    a(f"s_mov_b32 s50, {WST + F2*KB}\ns_mov_b32 s51, 6\ns_mov_b32 s52, 2")
    a("s_branch prep_pl2")
    a.label("prep_wo")
    srd(a, 12, 28, 0, D * D * 2)
    a(f"s_mov_b32 s50, {WST + FO*KB}\ns_mov_b32 s51, 2\ns_mov_b32 s52, 0")
    a.label("prep_pl2")
    a("s_mul_i32 s36, s35, 1639\ns_lshr_b32 s36, s36, 16")
    a("s_mul_i32 s37, s36, 40\ns_sub_u32 s37, s35, s37")
    a("s_mul_i32 s38, s37, 52429\ns_lshr_b32 s38, s38, 18")
    a("s_mul_i32 s39, s38, 5\ns_sub_u32 s39, s37, s39")
    a("v_mul_u32_u24 v7, 10240, v4")
    a("s_lshl_b32 s45, s37, 5")
    a("v_lshl_add_u32 v7, v3, 1, v7\nv_add_u32 v7, s45, v7")
    a(f"s_mul_i32 s44, s38, {SL*KB}\ns_add_u32 s44, s44, s50\ns_mul_i32 s45, s36, {40*KB}\ns_add_u32 s44, s44, s45\ns_lshl_b32 s45, s39, 10\ns_add_u32 s44, s44, s45")
    a(f"s_mul_i32 s38, s36, {8*32*1280}")
    gather(7, 12, 1280, 38, 8, 32 * 1280)
    pack(8)
    for f in range(8):
        if f >= 4:
            a(f"s_cmp_eq_u32 s36, s51\ns_cbranch_scc0 prep_st{f}")
            a(f"s_cmp_gt_u32 s52, {f-4}\ns_cbranch_scc0 prep_done")
            a.label(f"prep_st{f}")
        a(f"s_add_u32 s40, s44, {f*5*KB}")
        a(f"buffer_store_dwordx4 v[{32+4*f}:{35+4*f}], v5, s[8:11], s40 offen" + PSC)
    a.label("prep_done")
    a("s_waitcnt vmcnt(0)")
    a("s_endpgm")
    a.label("prep_bias")
    a("s_waitcnt vmcnt(0)")
    xstores()
    a("v_mov_b32 v8, 0\nv_mov_b32 v9, 0\nv_mov_b32 v10, 0\nv_mov_b32 v11, 0")
    a("v_lshlrev_b32 v6, 4, v0")
    nz = FLAG_BYTES // 4096
    for r in range(nz):
        a(f"s_mov_b32 s40, {FLAGS + r*4096}\nbuffer_store_dwordx4 v[8:11], v6, s[8:11], s40 offen")
    a("s_cmp_eq_u32 s35, 280\ns_cbranch_scc0 prep_done2")
    a("v_mov_b32 v7, 0")
    for idx in (32 + 6, 32 + 10, 32 + 12, 32 + 13):
        a(f"v_cmp_eq_u32 vcc, {idx}, v1\nv_cndmask_b32 v7, v7, 1.0, vcc")
    a("v_lshlrev_b32 v6, 2, v1\nv_cmp_gt_u32 vcc, 48, v1\ns_and_saveexec_b64 s[42:43], vcc")
    a(f"s_mov_b32 s40, {BKV}\nbuffer_store_dword v7, v6, s[8:11], s40 offen")
    a.label("prep_done2")
    a("s_waitcnt vmcnt(0)")
    a("s_endpgm")
    kernel_end(a, name)
    return a.out, descriptor(name, 144), (name, 256, 256, 1024)

VB, VA, VST, VSO, VONE, RES = 64, 144, 36, 44, 52, 246

class Prof:
    n = 0
LDTS = [False]
SEGTS = [False]
def ts(a, label, loader=False, seg=False):
    if not PROFILE: return
    if PROFLD != loader: return
    if PROFSEG != seg: return
    if Prof.n >= 26: return
    i = Prof.n; Prof.n += 1
    assert i < 26, i
    a(f"s_memtime s[98:99]\ns_waitcnt lgkmcnt(0)\ns_mov_b32 s{70+i}, s98")
    TSN.append(label)
TSN = []

def unpack2(a, dlo, dhi, src):
    a(f"v_lshlrev_b32 v{dlo}, 16, v{src}")
    a(f"v_and_b32 v{dhi}, 0xffff0000, v{src}")

uid = [0]
def newlab(p):
    uid[0] += 1
    return f"{p}_{uid[0]}"

def await_flags(a, mask, off_sgpr, vtmp=56):
    L, Dn = newlab("poll"), newlab("polld")
    a(f"v_lshlrev_b32 v{vtmp}, 2, v1")
    a(f"s_mov_b64 s[42:43], exec\ns_mov_b64 exec, {mask:#x}\ns_mov_b32 s44, 0")
    a.label(L)
    a(f"buffer_load_dword v{vtmp+1}, v{vtmp}, s[8:11], s{off_sgpr} offen sc1")
    a("s_add_u32 s44, s44, 1")
    a("s_waitcnt vmcnt(0)")
    a(f"v_cmp_eq_u32 vcc, 0, v{vtmp+1}")
    a(f"s_cmp_eq_u64 vcc, 0\ns_cbranch_scc1 {Dn}")
    a(f"s_cmp_gt_u32 s44, {SPIN_MAX}\ns_cbranch_scc1 {Dn}")
    a(f"s_sleep 1\ns_branch {L}")
    a.label(Dn)
    a("s_mov_b64 exec, s[42:43]")

def set_flag(a, off_sgpr, vtmp=56, second=None):
    L1, L2 = newlab("sf"), newlab("sf")
    a("s_waitcnt vmcnt(0)")
    a(f"v_mov_b32 v{vtmp}, 0\nv_mov_b32 v{vtmp+1}, 1")
    a("s_mov_b64 s[42:43], exec\ns_mov_b64 exec, 1")
    a(f"s_cmp_eq_u32 s59, 1\ns_cbranch_scc1 {L1}")
    a(f"buffer_store_dword v{vtmp+1}, v{vtmp}, s[8:11], s{off_sgpr} offen sc1")
    if second is not None: a(f"buffer_store_dword v{vtmp+1}, v{vtmp}, s[8:11], s{second} offen sc1")
    a(f"s_branch {L2}")
    a.label(L1)
    a(f"buffer_store_dword v{vtmp+1}, v{vtmp}, s[8:11], s{off_sgpr} offen")
    if second is not None: a(f"buffer_store_dword v{vtmp+1}, v{vtmp}, s[8:11], s{second} offen")
    a.label(L2)
    a("s_mov_b64 exec, s[42:43]")

def xstore(a, text):
    L1, L2 = newlab("xs"), newlab("xs")
    a(f"s_cmp_eq_u32 s59, 1\ns_cbranch_scc1 {L1}")
    a(text.replace("@SC", "sc1"))
    a(f"s_branch {L2}")
    a.label(L1)
    a(text.replace("@SC", ""))
    a.label(L2)

def xf_off(a, dst, kind, extra_sgpr=None, extra_imm=0):
    a(f"s_lshl_b32 s{dst}, s37, 13\ns_lshl_b32 s45, s35, 8\ns_add_u32 s{dst}, s{dst}, s45")
    a(f"s_and_b32 s45, s34, 3\ns_lshl_b32 s45, s45, 6\ns_add_u32 s{dst}, s{dst}, s45")
    a(f"s_add_u32 s{dst}, s{dst}, {XF + kind*16384 + extra_imm}")
    if extra_sgpr is not None: a(f"s_add_u32 s{dst}, s{dst}, s{extra_sgpr}")

class Ring:
    def __init__(self):
        self.I = RING
        self.q = [f for f in range(0, RING, 16) for _ in range(4)]
    def drained(self): self.q = []
def loader_issue(a, frm, upto, ring=None):
    assert frm % 16 == 0 and upto % 16 == 0
    skip = None
    for f in range(frm, upto, 16):
        if f == SLP or (f > SLP and f == frm):
            skip = newlab("ldsk")
            a(f"s_cmp_eq_u32 s37, 1\ns_cbranch_scc1 {skip}")
        a(f"s_add_u32 m0, s69, {(f % RING) * KB}")
        a(f"s_add_u32 s44, s60, {(f % SLP) * KB}")
        for q in range(4):
            if "noW" not in sys.argv: a(f"buffer_load_dwordx4 v5, s[8:11], s44 offen offset:{q*1024} lds")
            if ring is not None and f < SLP: ring.q.append(f)
    if skip: a.label(skip)

def touch(a, ring, frag0, n, per_wave_sgpr=69):
    a("v_lshlrev_b32 v58, 7, v1")
    a(f"s_mul_i32 s45, s69, {2*n}\ns_sub_u32 s45, s45, s69\ns_add_u32 s45, s45, s60")
    for i in range(n):
        a(f"s_add_u32 s44, s45, {(frag0 + 8*i) * KB}")
        a(f"buffer_load_dword v59, v58, s[8:11], s44 offen")
        if ring is not None: ring.q.append(None)

def loader_bp(a, ring, need, consumed, cap=None):
    if LDTS[0] and Prof.n < 22: ts(a, "w0", True)
    if need is not None:
        assert need <= ring.I, (need, ring.I)
        last = -1
        for i, f in enumerate(ring.q):
            if f is not None and f < need: last = i
        if last >= 0:
            n = len(ring.q) - 1 - last
            a(f"s_waitcnt vmcnt({min(n,63)})")
            ring.q = ring.q[last + 1:]
    if LDTS[0] and Prof.n < 22: ts(a, "vm", True)
    a("s_barrier")
    if LDTS[0] and Prof.n < 22: ts(a, "bar", True)
    if consumed >= SL: consumed = SLP
    upto = (consumed + RING) // 16 * 16
    if cap is not None: upto = min(upto, (cap + 15) // 16 * 16)
    if upto > ring.I:
        loader_issue(a, ring.I, upto, ring)
        ring.I = upto

def stats_finalize(a, accS, accQ, vRho, vMu, tmp, double_ln):
    t0, t1, t2, t3 = tmp, tmp + 1, tmp + 2, tmp + 3
    a(f"v_and_b32 v{t0}, 3, v1")
    a(f"v_mov_b32 v{t1}, v{accQ}")
    for r in (1, 2, 3):
        a(f"v_cmp_eq_u32 vcc, {r}, v{t0}")
        a(f"v_cndmask_b32 v{t1}, v{t1}, v{accQ+r}, vcc")
    a(f"v_lshrrev_b32 v{t2}, 2, v3\nv_lshlrev_b32 v{t2}, 4, v{t2}\nv_add_u32 v{t2}, v{t2}, v3\nv_lshlrev_b32 v{t2}, 2, v{t2}")
    a(f"ds_bpermute_b32 v{t1}, v{t2}, v{t1}")
    a(f"v_mul_f32 v{t0}, {f2u(1.0/D):#x}, v{accS}")
    a("s_waitcnt lgkmcnt(0)")
    a(f"v_mul_f32 v{t1}, {f2u(1.0/D):#x}, v{t1}")
    a(f"v_fma_f32 v{t1}, -v{t0}, v{t0}, v{t1}")
    a(f"v_max_f32 v{t1}, 0, v{t1}")
    a(f"v_add_f32 v{t2}, {f2u(1e-5):#x}, v{t1}")
    a(f"v_rsq_f32 v{t2}, v{t2}")
    if double_ln:
        a(f"v_mul_f32 v{t3}, v{t2}, v{t2}")
        a(f"v_mul_f32 v{t3}, v{t3}, v{t1}")
        a(f"v_add_f32 v{t3}, {f2u(1e-5):#x}, v{t3}")
        a(f"v_rsq_f32 v{t3}, v{t3}")
        a(f"v_mul_f32 v{t2}, v{t2}, v{t3}")
    a(f"v_mov_b32 v{vRho}, v{t2}")
    a(f"v_mul_f32 v{vMu}, v{t0}, v{t2}")

def set_bases(a, delta):
    a(f"s_and_b32 s45, s34, 1\ns_mul_i32 s44, s45, {delta*KB}\nv_add_u32 v6, s44, v5\nv_add_u32 v7, 0x10000, v6")
    a(f"s_xor_b32 s45, s45, 1\ns_mul_i32 s44, s45, {(RING-delta)*KB}\nv_add_u32 v2, s44, v5")
def rdA(a, f0, delta, reg):
    o = f0 % RING
    if o + delta < RING:
        ob = o * KB
        base = 6 if ob < 65536 else 7
        return a.lg(f"ds_read_b128 v[{reg}:{reg+3}], v{base} offset:{ob % 65536}")
    return a.lg(f"ds_read_b128 v[{reg}:{reg+3}], v2 offset:{(o - (RING - delta)) * KB}")

def make_units(nA, segs, G):
    return [(i, t0, min(nA, t0 + G), si) for si, (i0, i1) in enumerate(segs) for i in range(i0, i1) for t0 in range(0, nA, G)]

def kloop2(a, fbase, span, delta, nA, segs, breg, acc0, acc1, stats, G, before=None, after=None, hook=None):
    units = make_units(nA, segs, G)
    def read1(u, buf, k):
        i, t0, t1, si = u
        if "noR" in sys.argv and i > 0: return a.nlg
        return rdA(a, fbase + i * span + t0 + k, delta, VA + (buf * G + k) * 4)
    a("s_barrier")
    pend = [read1(units[0], 0, k) for k in range(units[0][2] - units[0][1])]
    for n, u in enumerate(units):
        i, t0, t1, si = u
        nu = units[n + 1] if n + 1 < len(units) else None
        if nu is not None and nu[3] != si:
            if SEGTS[0]: ts(a, "preb", seg=True)
            if hook: hook(si, False)
            a("s_barrier")
            if hook: hook(si, True)
            if SEGTS[0]: ts(a, "bar", seg=True)
        if t0 == 0 and before: before(i)
        if SEGTS[0] and nu is not None and nu[3] != si: ts(a, "vm", seg=True)
        b0, b1 = breg(i)
        def m(d, A, B):
            c = "0" if i == 0 else f"v[{d}:{d+3}]"
            if "noM" in sys.argv and i > 0: return
            a(f"v_mfma_f32_16x16x32_bf16 v[{d}:{d+3}], v[{A}:{A+3}], v[{B}:{B+3}], {c}")
        nn = (nu[2] - nu[1]) if nu is not None else 0
        nxt = []
        for t in range(t0, t1):
            ra = VA + ((n % 2) * G + t - t0) * 4
            a.wait_lg(pend[t - t0])
            m(acc0 + 4 * t, ra, b0)
            if len(nxt) < nn: nxt.append(read1(nu, (n + 1) % 2, len(nxt)))
            m(acc1 + 4 * t, ra, b1)
            if len(nxt) < nn and (t - t0) % 2 == 0 and nn > (t1 - t0): nxt.append(read1(nu, (n + 1) % 2, len(nxt)))
        while len(nxt) < nn: nxt.append(read1(nu, (n + 1) % 2, len(nxt)))
        if stats and t1 == nA:
            m(VST, VONE, b0); m(VST + 4, b0, b0)
            if stats == 2: m(VSO, VONE, b1); m(VSO + 4, b1, b1)
        pend = nxt
        if t1 == nA and after: after(i)

def loader_kloop2(a, ring, fbase, span, nA, segs, G):
    units = make_units(nA, segs, G)
    cap = None if "nocap" in sys.argv else fbase + segs[-1][1] * span
    loader_bp(a, ring, fbase + segs[0][1] * span, fbase, cap)
    for n, u in enumerate(units):
        nu = units[n + 1] if n + 1 < len(units) else None
        if nu is not None and nu[3] != u[3]:
            loader_bp(a, ring, fbase + segs[nu[3]][1] * span, fbase + u[0] * span, cap)

def store_tiles(a, srcs, ntiles, vaddr16, vaddr8, srd_, soff, imm_stride, sc, tmp=56):
    st = []
    i = 0
    while i < ntiles:
        if i + 1 < ntiles:
            t = tmp + 4 * ((i // 2) % 2)
            a(f"v_mov_b32 v{t}, v{srcs[i]}\nv_mov_b32 v{t+1}, v{srcs[i]+1}\nv_mov_b32 v{t+2}, v{srcs[i+1]}\nv_mov_b32 v{t+3}, v{srcs[i+1]+1}")
            a(f"v_permlane16_swap_b32 v{t}, v{t+2}\nv_permlane16_swap_b32 v{t+1}, v{t+3}")
            st.append(f"buffer_store_dwordx4 v[{t}:{t+3}], v{vaddr16}, s[{srd_}:{srd_+3}], {soff} offen offset:{i*imm_stride} {sc}")
            i += 2
        else:
            st.append(f"buffer_store_dwordx2 v[{srcs[i]}:{srcs[i]+1}], v{vaddr8}, s[{srd_}:{srd_+3}], {soff} offen offset:{i*imm_stride} {sc}")
            i += 1
    if sc == "@SC": xstore(a, "\n".join(st))
    else: a("\n".join(st))

def frag_addr(a, v16, v8, Tsgpr, tmp):
    a(f"v_lshrrev_b32 v{v8}, 1, v4\nv_lshlrev_b32 v{v8}, 8, v{v8}\nv_lshl_add_u32 v{v8}, v3, 4, v{v8}")
    a(f"s_lshl_b32 s45, s{Tsgpr}, 9\nv_add_u32 v{v8}, s45, v{v8}")
    a(f"v_and_b32 v{tmp}, 1, v4\nv_lshl_add_u32 v{v16}, v{tmp}, 9, v{v8}\nv_lshl_add_u32 v{v8}, v{tmp}, 3, v{v8}")

def code_prefetch(a, first, last, wave, nkb=32):
    L = newlab("cpf")
    a(f"s_cmp_eq_u32 s34, {wave}\ns_cbranch_scc0 {L}")
    a(f"s_getpc_b64 s[40:41]")
    here = newlab("pc"); a.label(here)
    a(f"s_sub_u32 s40, s40, {here}-{first}\ns_subb_u32 s41, s41, 0")
    a("v_lshlrev_b32 v8, 6, v1")
    for i in range(nkb // 4):
        a(f"global_load_dword v{10+i}, v8, s[40:41]")
        a("v_add_u32 v8, 4096, v8")
    a.label(L)

def gen_main():
    a = Asm(); name = "main_kernel"
    kernel_begin(a, name, 256)
    a("s_load_dwordx2 s[4:5], s[0:1], 96")
    a("s_load_dwordx2 s[6:7], s[0:1], 0")
    a("s_load_dwordx2 s[24:25], s[0:1], 56")
    a("s_load_dwordx4 s[28:31], s[0:1], 72")
    a("v_and_b32 v1, 63, v0")
    a("v_lshrrev_b32 v2, 6, v0")
    a("v_readfirstlane_b32 s34, v2")
    a("v_and_b32 v3, 15, v1\nv_lshrrev_b32 v4, 4, v1\nv_lshlrev_b32 v5, 4, v1")
    a("s_and_b32 s35, s2, 31\ns_lshr_b32 s36, s2, 5\ns_mov_b32 s37, 0")
    a("s_waitcnt lgkmcnt(0)")
    a("s_mov_b32 s26, s28\ns_mov_b32 s27, s29\ns_mov_b32 s28, s30\ns_mov_b32 s29, s31")
    srd(a, 8, 4, 0, WS_BYTES)
    a("s_lshl_b32 s67, s35, 2\ns_and_b32 s38, s34, 3\ns_add_u32 s67, s67, s38\ns_lshl_b32 s66, s67, 4\ns_xor_b32 s65, s67, 1\ns_mul_i32 s68, s36, 5")
    a(f"s_lshl_b32 s69, s38, 12\ns_mul_i32 s60, s36, {SL*KB}\ns_add_u32 s60, s60, s69\ns_add_u32 s60, s60, {WST}")
    a("s_mov_b32 s59, 0\ns_getreg_b32 s58, hwreg(HW_REG_XCC_ID, 0, 4)\ns_add_u32 s58, s58, 1")
    a("s_cmp_eq_u32 s34, 0\ns_cbranch_scc0 pro_x")
    a(f"s_lshl_b32 s40, s35, 5\ns_lshl_b32 s41, s36, 2\ns_add_u32 s40, s40, s41\ns_add_u32 s40, s40, {XID}\nv_mov_b32 v8, 0\nv_mov_b32 v9, s58")
    a("s_mov_b64 s[42:43], exec\ns_mov_b64 exec, 1\nbuffer_store_dword v9, v8, s[8:11], s40 offen sc1\ns_mov_b64 exec, s[42:43]")
    a.label("pro_x")
    ts(a, "start")
    if "cpf" in sys.argv:
        code_prefetch(a, "main_kernel", "main_kernel_exit", 7)
    a("s_cmp_ge_u32 s34, 4\ns_cbranch_scc0 pro_c")
    loader_issue(a, 0, RING)
    a("s_branch pro_d")
    a.label("pro_c")
    a("v_add_u32 v6, s66, v3")
    a("v_mul_u32_u24 v56, 1280, v6\nv_lshl_add_u32 v56, v4, 3, v56\ns_mul_i32 s40, s36, 160\nv_add_u32 v56, s40, v56")
    srd(a, 12, 6, 0, XBYTES)
    for i in range(5):
        a(f"buffer_load_dwordx2 v[{RES+2*i}:{RES+2*i+1}], v56, s[12:15], 0 offen offset:{i*32}")
    a.label("pro_d")
    a.label("layer_top")
    ring = Ring()
    ld = Asm()
    def tile_offs(base_imm, layer_stride, tile_bytes, ksplit):
        a(f"s_mul_i32 s40, s67, {tile_bytes}\ns_mul_i32 s41, s65, {tile_bytes}")
        if layer_stride:
            a(f"s_mul_i32 s45, s37, {layer_stride}\ns_add_u32 s45, s45, {base_imm}")
        else:
            a(f"s_mov_b32 s45, {base_imm}")
        if ksplit:
            a("s_and_b32 s44, s34, 1\ns_lshl_b32 s44, s44, 10\ns_add_u32 s45, s45, s44")
        a("s_add_u32 s40, s40, s45\ns_add_u32 s41, s41, s45")
    class BL:
        def __init__(self, stride, nslots, sc="sc1"): self.stride, self.n, self.tag, self.cur, self.sc = stride, nslots, {}, 0, sc
        def regs(self, i): r = VB + 8 * (i % self.n); return (r, r + 4)
        def load(self, i):
            o = i * self.stride
            if o - self.cur > 4095 - 1023 * 0 or o - self.cur >= 4096:
                d = (o - self.cur) // 4096 * 4096
                a(f"s_add_u32 s40, s40, {d}\ns_add_u32 s41, s41, {d}"); self.cur += d
            r0, r1 = self.regs(i)
            if "noB" in sys.argv and i >= 2:
                self.tag[i] = a.nvm; return
            a.vm(f"buffer_load_dwordx4 v[{r0}:{r0+3}], v5, s[8:11], s40 offen offset:{o - self.cur} {self.sc}")
            self.tag[i] = a.vm(f"buffer_load_dwordx4 v[{r1}:{r1+3}], v5, s[8:11], s41 offen offset:{o - self.cur} {self.sc}")
    def flag_line(dst, kind, tile_sgpr=None, pair=False, layer_delta=0):
        a(f"s_lshl_b32 s{dst}, s37, 13")
        if pair: a(f"s_and_b32 s45, s67, -2\ns_lshl_b32 s45, s45, 6")
        else: a(f"s_lshl_b32 s45, s{tile_sgpr}, 6")
        a(f"s_add_u32 s{dst}, s{dst}, s45\ns_add_u32 s{dst}, s{dst}, {XF + kind*16384 + layer_delta}")
    def reduce_pair(acc0, acc1, NT, stats):
        a(f"s_and_b32 s45, s34, 3\ns_lshl_b32 s44, s45, 13\ns_add_u32 s44, s44, {KVL}\nv_add_u32 v56, s44, v5")
        for t in range(NT): a(f"ds_write_b128 v56, v[{acc1+4*t}:{acc1+4*t+3}] offset:{t*1024}")
        if stats:
            a(f"ds_write_b128 v56, v[{VSO}:{VSO+3}] offset:{6*1024}\nds_write_b128 v56, v[{VSO+4}:{VSO+7}] offset:{7*1024}")
        a(f"s_xor_b32 s45, s45, 1\ns_lshl_b32 s44, s45, 13\ns_add_u32 s44, s44, {KVL}\nv_add_u32 v57, s44, v5")
        a("s_waitcnt lgkmcnt(0)\ns_barrier")
        for t in range(NT): a(f"ds_read_b128 v[{VA+4*t}:{VA+4*t+3}], v57 offset:{t*1024}")
        if stats:
            a(f"ds_read_b128 v[{VSO}:{VSO+3}], v57 offset:{6*1024}\nds_read_b128 v[{VSO+4}:{VSO+7}], v57 offset:{7*1024}")
        a("s_waitcnt lgkmcnt(0)")
        for t in range(NT * 4): a(f"v_add_f32 v{acc0+t}, v{acc0+t}, v{VA+t}")
        if stats:
            for t in range(8): a(f"v_add_f32 v{VST+t}, v{VST+t}, v{VSO+t}")
    ones = lambda: a("v_mov_b32 v52, 0x3f803f80\nv_mov_b32 v53, 0x3f803f80\nv_mov_b32 v54, 0x3f803f80\nv_mov_b32 v55, 0x3f803f80")
    A0, A1 = 192, 216
    a("s_cmp_ge_u32 s34, 4\ns_cbranch_scc1 ld_qkv")
    a.nvm = 0; a.nlg = 0
    a(f"s_mul_i32 s45, s36, 384\ns_add_u32 s45, s45, {CSQ}\nv_lshlrev_b32 v58, 4, v4")
    for i in range(6): a(f"buffer_load_dwordx4 v[{8+4*i}:{8+4*i+3}], v58, s[8:11], s45 offen offset:{i*64}")
    a(f"s_min_u32 s46, s36, 2\ns_lshl_b32 s46, s46, 6\ns_add_u32 s46, s46, {BKV}")
    a(f"buffer_load_dwordx4 v[32:35], v58, s[8:11], s46 offen")
    ones(); set_bases(a, 1)
    a("s_cmp_eq_u32 s37, 0\ns_cbranch_scc1 qkv_l0")
    flag_line(46, 3, pair=True, layer_delta=-8192)
    await_flags(a, 0x00FF00FF, 46)
    a.label("qkv_l0")
    ts(a, "qkv_ready")
    tile_offs(XF0, X2 - XF0, 20480, True)
    bl = BL(2048, 10)
    for i in range(10): bl.load(i)
    kloop2(a, FQ, 2, 1, 1, [(0, 10)], bl.regs, A0 + 20, A1 + 20, 2, 1, before=lambda i: a.wait_vm(bl.tag[i]))
    ld.label("ld_qkv")
    loader_kloop2(ld, ring, FQ, 2, 1, [(0, 10)], 1)
    ts(a, "qkv_p1")
    reduce_pair(A0 + 20, A1 + 20, 1, True)
    ld("s_barrier")
    stats_finalize(a, VST, VST + 4, 60, 61, 56, False)
    qs = DH ** -0.5 * LOG2E
    a(f"v_mul_f32 v62, {f2u(qs):#x}, v60\nv_mul_f32 v63, {f2u(qs):#x}, v61")
    a("s_cmp_lt_u32 s36, 3\ns_cbranch_scc0 qkv_nokv")
    i = 5
    for r in range(4):
        a(f"v_fma_f32 v{48+r}, -v61, v{8+4*i+r}, v{32+r}")
        a(f"v_fma_f32 v{48+r}, v60, v{A0+4*i+r}, v{48+r}")
    a("v_cvt_pk_bf16_f32 v52, v48, v49\nv_cvt_pk_bf16_f32 v53, v50, v51")
    a("s_and_b32 s38, s34, 1")
    a(f"s_and_b32 s41, s34, 3\ns_lshl_b32 s41, s41, 10\ns_add_u32 s41, s41, {KVL + 32*KB}")
    a(f"s_lshr_b32 s47, s67, 1\ns_lshl_b32 s47, s47, 12\ns_mul_i32 s48, s37, {KVB[1]-KVB[0]}\ns_add_u32 s47, s47, s48\ns_add_u32 s47, s47, {KVB[0]}")
    def vwrite(rowoff, hstride):
        a(f"v_bfe_u32 v54, v3, 2, 1\nv_mul_u32_u24 v54, {hstride}, v54")
        a("v_bfe_u32 v55, v3, 3, 1\nv_lshl_add_u32 v54, v55, 3, v54")
        a("v_and_b32 v55, 3, v3\nv_lshl_add_u32 v54, v55, 1, v54")
        a(f"v_add3_u32 v54, v54, v{rowoff}, s41")
        a("ds_write_b16 v54, v52\nds_write_b16_d16_hi v54, v52 offset:16\nds_write_b16 v54, v53 offset:32\nds_write_b16_d16_hi v54, v53 offset:48")
    a("s_cmp_eq_u32 s36, 0\ns_cbranch_scc1 qkv_kvA")
    a("s_cmp_eq_u32 s36, 1\ns_cbranch_scc1 qkv_kvB")
    a("v_lshlrev_b32 v47, 3, v3\nv_add_u32 v47, s41, v47\nv_add_u32 v54, 128, v47\nv_cmp_eq_u32 vcc, 3, v4\nv_cndmask_b32 v47, v47, v54, vcc")
    a("v_cmp_eq_u32 vcc, 0, v4\nv_cmp_eq_u32 s[48:49], 3, v4\ns_or_b64 vcc, vcc, s[48:49]")
    a("s_and_saveexec_b64 s[50:51], vcc")
    a("ds_write_b64 v47, v[52:53]")
    a("s_andn2_b64 exec, s[50:51], exec")
    a("v_lshlrev_b32 v47, 6, v4\nv_add_u32 v47, 192, v47")
    vwrite(47, 128)
    a("s_mov_b64 exec, s[50:51]")
    a("v_and_b32 v47, 7, v1\nv_lshlrev_b32 v47, 4, v47\nv_bfe_u32 v54, v1, 3, 2")
    a("s_lshl_b32 s49, s38, 7\ns_add_u32 s49, s49, 1024\ns_lshl_b32 s50, s38, 10\ns_add_u32 s50, s50, 2304")
    a("v_mov_b32 v55, s49\ns_add_u32 s51, s49, 256\nv_mov_b32 v50, s51\nv_cmp_eq_u32 vcc, 1, v54\nv_cndmask_b32 v55, v55, v50, vcc")
    a("v_mov_b32 v50, s50\nv_cmp_eq_u32 vcc, 2, v54\nv_cndmask_b32 v55, v55, v50, vcc")
    a("s_add_u32 s51, s50, 512\nv_mov_b32 v50, s51\nv_cmp_eq_u32 vcc, 3, v54\nv_cndmask_b32 v55, v55, v50, vcc")
    a("v_add_u32 v47, v47, v55")
    a("s_branch qkv_kvout")
    a.label("qkv_kvB")
    a("v_lshlrev_b32 v47, 6, v4")
    vwrite(47, 256)
    a("v_lshlrev_b32 v47, 4, v3\nv_and_b32 v54, 1, v4\nv_lshl_add_u32 v47, v54, 9, v47\ns_lshl_b32 s49, s38, 10\ns_add_u32 s49, s49, 2048\nv_add_u32 v47, s49, v47")
    a("s_branch qkv_kvout")
    a.label("qkv_kvA")
    a("v_lshrrev_b32 v47, 1, v4\nv_lshlrev_b32 v47, 8, v47\nv_lshl_add_u32 v47, v3, 4, v47\nv_and_b32 v54, 1, v4\nv_lshl_add_u32 v47, v54, 3, v47\nv_add_u32 v47, s41, v47")
    a("ds_write_b64 v47, v[52:53]")
    a("s_lshl_b32 s49, s38, 8\nv_lshlrev_b32 v47, 4, v3\nv_and_b32 v54, 1, v4\nv_lshl_add_u32 v47, v54, 9, v47\nv_add_u32 v47, s49, v47")
    a.label("qkv_kvout")
    a("v_add_u32 v54, s41, v5")
    a("s_waitcnt lgkmcnt(0)")
    a("s_mov_b64 s[50:51], exec\ns_mov_b64 exec, 0xffffffff")
    a("ds_read_b128 v[48:51], v54\ns_waitcnt lgkmcnt(0)")
    a("buffer_store_dwordx4 v[48:51], v47, s[8:11], s47 offen sc1")
    a("s_mov_b64 exec, s[50:51]")
    a.label("qkv_nokv")
    ts(a, "qkv_kv")
    set_bases(a, 5)
    segs = [(0, 2), (2, 4), (4, 6), (6, 8), (8, 10)]
    def kvhook(si, after):
        if si != 0: return
        if not after:
            a("s_waitcnt vmcnt(0)")
        else:
            Lx = newlab("kvpub")
            a(f"s_cmp_eq_u32 s34, 0\ns_cbranch_scc0 {Lx}\ns_cmp_lt_u32 s36, 3\ns_cbranch_scc0 {Lx}")
            a(f"s_lshl_b32 s46, s37, 13\ns_lshr_b32 s45, s35, 3\ns_lshl_b32 s45, s45, 11\ns_add_u32 s46, s46, s45\ns_add_u32 s46, s46, {KVF}\nv_lshlrev_b32 v56, 8, v1\nv_mov_b32 v57, 1")
            a("s_mov_b64 s[42:43], exec\ns_mov_b64 exec, 0xff")
            a("buffer_atomic_add v57, v56, s[8:11], s46 offen")
            a("s_mov_b64 exec, s[42:43]")
            a.label(Lx)
    kloop2(a, FQ + 20, 10, 5, 5, segs, bl.regs, A0, A1, 0, 5, hook=kvhook)
    loader_kloop2(ld, ring, FQ + 20, 10, 5, segs, 5)
    ts(a, "qkv_kloop")
    reduce_pair(A0, A1, 5, False)
    ld("s_barrier")
    a("s_and_b32 s38, s34, 3\ns_lshl_b32 s38, s38, 4\nv_add_u32 v44, s38, v3\nv_mul_u32_u24 v44, 192, v44")
    a(f"v_add_u32 v44, {KVL + 36*KB}, v44")
    for i in range(5):
        for r in range(4):
            a(f"v_mul_f32 v{48+r}, v63, v{8+4*i+r}")
            a(f"v_fma_f32 v{48+r}, v62, v{A0+4*i+r}, -v{48+r}")
        a(f"v_cvt_pk_bf16_f32 v52, v48, v49\nv_cvt_pk_bf16_f32 v53, v50, v51")
        a(f"v_add_u32 v45, {4*i}, v4\nv_mul_u32_u24 v46, 52, v45\nv_lshrrev_b32 v46, 8, v46\nv_add_u32 v45, v45, v46\nv_lshl_add_u32 v45, v45, 3, v44")
        a("ds_write_b64 v45, v[52:53]")
    a("s_waitcnt vmcnt(0) lgkmcnt(0)")
    a("s_barrier")
    loader_bp(ld, ring, None, FO)
    ld("s_branch att_top")
    a.label("att_top")
    ts(a, "qkv_done")
    QB_, KV0, P, SA, SB, O = 8, 32, 64, 72, 88, 104
    def Q1(i): return QB_ + 6 * i
    def Q2(i): return QB_ + 6 * i + 4
    def K1(b): return KV0 + 16 * b
    def K2(b): return KV0 + 16 * b + 4
    def V1(b): return KV0 + 16 * b + 8
    a("v_and_b32 v6, 31, v1\nv_lshrrev_b32 v7, 5, v1\nv_lshlrev_b32 v170, 3, v1")
    a("s_and_b32 s38, s34, 3\ns_lshr_b32 s39, s34, 2")
    a("v_lshrrev_b32 v171, 2, v6\nv_mul_u32_u24 v171, 192, v171\nv_and_b32 v172, 3, v6\nv_mul_u32_u24 v172, 48, v172\nv_add_u32 v171, v171, v172")
    for i in range(4):
        a(f"s_add_u32 s40, s38, {i}\ns_and_b32 s40, s40, 3\ns_lshl_b32 s41, s39, 2\ns_add_u32 s40, s40, s41\ns_mul_i32 s40, s40, {8*192}\ns_add_u32 s40, s40, {KVL + 36*KB}")
        a(f"v_add_u32 v173, s40, v171\nv_lshl_add_u32 v174, v7, 4, v173")
        a(f"ds_read_b128 v[{Q1(i)}:{Q1(i)+3}], v174\nds_read_b64 v[{Q2(i)}:{Q2(i)+1}], v173 offset:32")
    FLAGW = KVL + 48 * KB - 64
    a("s_mov_b32 s57, 0")
    a("s_waitcnt lgkmcnt(0)")
    a("v_cmp_eq_u32 vcc, 1, v7")
    for i in range(4):
        a(f"v_cndmask_b32 v{Q2(i)}, v{Q2(i)}, 0, vcc\nv_cndmask_b32 v{Q2(i)+1}, v{Q2(i)+1}, 0, vcc")
    Lp, Ld = newlab("kvp"), newlab("kvpd")
    a(f"s_lshl_b32 s46, s37, 13\ns_lshl_b32 s45, s38, 11\ns_add_u32 s46, s46, s45\ns_and_b32 s45, s2, 7\ns_lshl_b32 s45, s45, 8\ns_add_u32 s46, s46, s45\ns_add_u32 s46, s46, {KVF}\nv_mov_b32 v175, 0\ns_mov_b32 s44, 0")
    a("s_mov_b64 s[42:43], exec\ns_mov_b64 exec, 1")
    a.label(Lp)
    a("buffer_load_dword v176, v175, s[8:11], s46 offen sc1")
    a("s_add_u32 s44, s44, 1\ns_waitcnt vmcnt(0)")
    a("v_readfirstlane_b32 s45, v176")
    a(f"s_cmp_ge_u32 s45, 24\ns_cbranch_scc1 {Ld}")
    a(f"s_cmp_gt_u32 s44, {SPIN_MAX}\ns_cbranch_scc1 {Ld}")
    a(f"s_sleep 2\ns_branch {Lp}")
    a.label(Ld)
    a("s_mov_b64 exec, s[42:43]")
    ts(a, "kv_ready")
    a.label("att_main")
    for r in range(64): a(f"v_mov_b32 v{O+r}, 0")
    a(f"s_mul_i32 s47, s37, {KVB[1]-KVB[0]}\ns_add_u32 s47, s47, {KVB[0]}\ns_lshl_b32 s48, s38, 16\ns_add_u32 s47, s47, s48")
    def ldK(b):
        a(f"buffer_load_dwordx4 v[{K1(b)}:{K1(b)+3}], v5, s[8:11], s47 offen sc1")
        a(f"buffer_load_dwordx2 v[{K2(b)}:{K2(b)+1}], v170, s[8:11], s47 offen offset:1024 sc1")
    def ldV(b, h):
        a(f"buffer_load_dwordx4 v[{V1(b)+4*h}:{V1(b)+4*h+3}], v5, s[8:11], s47 offen offset:{2048+1024*h} sc1")
    def qk1(Sd, b, i): a(f"v_mfma_f32_32x32x16_bf16 v[{Sd}:{Sd+15}], v[{K1(b)}:{K1(b)+3}], v[{Q1(i)}:{Q1(i)+3}], 0")
    def qk2(Sd, b, i): a(f"v_mfma_f32_32x32x8_bf16 v[{Sd}:{Sd+15}], v[{K2(b)}:{K2(b)+1}], v[{Q2(i)}:{Q2(i)+1}], v[{Sd}:{Sd+15}]")
    def pv(i, b, h): a(f"v_mfma_f32_32x32x16_bf16 v[{O+16*i}:{O+16*i+15}], v[{V1(b)+4*h}:{V1(b)+4*h+3}], v[{P+4*h}:{P+4*h+3}], v[{O+16*i}:{O+16*i+15}]")
    ldK(0); ldV(0, 0); ldV(0, 1)
    a("s_add_u32 s47, s47, 4096")
    ldK(1)
    for r in range(4, 8): a(f"v_mov_b32 v{P+r}, 0\nv_mov_b32 v{V1(1)+r}, 0\nv_mov_b32 v{SB+8+r}, 0")
    a("s_waitcnt vmcnt(4)")
    qk1(SA, 0, 0); qk2(SA, 0, 0)
    a("s_mov_b32 s49, 0")
    a("s_cmp_eq_u32 s37, 0\ns_cbranch_scc0 att_nochk")
    a(f"s_lshl_b32 s46, s35, 5\ns_add_u32 s46, s46, {XID}")
    await_flags(a, 0xFF, 46, vtmp=175)
    a("s_mov_b64 s[42:43], exec\ns_mov_b64 exec, 0xff\nv_cmp_ne_u32 vcc, s58, v176\ns_cmp_eq_u64 vcc, 0\ns_cselect_b32 s59, 1, 0\ns_mov_b64 exec, s[42:43]")
    if "noxcd" in sys.argv: a("s_mov_b32 s59, 0")
    a.label("att_nochk")
    PFQ = int([x for x in sys.argv if x.startswith("pfq=")][0][4:]) if any(x.startswith("pfq=") for x in sys.argv) else 96
    PF = "nopf" not in sys.argv
    if PF:
        a(f"s_mul_i32 s88, s36, {SL*KB}\ns_lshr_b32 s45, s35, 3\ns_mul_i32 s45, s45, {PFQ*KB}\ns_add_u32 s88, s88, s45\ns_add_u32 s88, s88, {WST + 224*KB}")
        a(f"s_lshl_b32 s45, s34, 12\ns_add_u32 s88, s88, s45\ns_add_u32 s89, s88, 32768\ns_add_u32 s90, s88, 65536")
        a("s_and_b32 s40, s34, 3\ns_lshl_b32 s41, s35, 2\ns_add_u32 s40, s40, s41")
        a("s_cmp_ge_u32 s34, 4\ns_cbranch_scc1 dst_h")
        a(f"s_mul_i32 s41, s40, 20480\ns_mul_i32 s45, s36, 2560\ns_add_u32 s41, s41, s45")
        a(f"s_mul_i32 s91, s37, {OB[1]-OB[0]}\ns_add_u32 s91, s91, {OB[0]}\ns_add_u32 s91, s91, s41")
        a(f"s_mul_i32 s92, s37, {X1[1]-X1[0]}\ns_add_u32 s92, s92, {X1[0]}\ns_add_u32 s92, s92, s41")
        a(f"s_add_u32 s93, s41, {X2}\ns_mov_b32 s61, 3\ns_mov_b32 s62, 39")
        a("s_branch dst_d")
        a.label("dst_h")
        a("s_lshr_b32 s44, s36, 1\ns_mul_i32 s44, s44, 27\ns_and_b32 s45, s36, 1\ns_mul_i32 s45, s45, 14\ns_add_u32 s44, s44, s45\ns_lshl_b32 s44, s44, 9")
        a(f"s_mul_i32 s41, s40, 55296\ns_add_u32 s44, s44, s41\ns_mul_i32 s45, s37, {HB[1]-HB[0]}\ns_add_u32 s44, s44, s45\ns_add_u32 s91, s44, {HB[0]}")
        a("s_add_u32 s92, s91, 4096\ns_mov_b32 s93, s92\ns_mov_b32 s61, 4\ns_bitcmp1_b32 s36, 0\ns_cselect_b32 s62, 39, 47")
        a.label("dst_d")
        a("s_mov_b32 s94, s93\ns_mov_b32 s95, s93")
    if "noout" not in sys.argv:
        a("s_cmp_eq_u32 s37, 1\ns_cbranch_scc0 outpf_d\ns_cmp_ge_u32 s34, 4\ns_cbranch_scc0 outpf_d")
        srd(a, 16, 28, 0, XBYTES)
        a("v_add_u32 v179, s66, v3\nv_mul_u32_u24 v179, 1280, v179\nv_lshl_add_u32 v179, v4, 6, v179\ns_mul_i32 s40, s36, 160\ns_and_b32 s40, s40, -64\nv_add_u32 v179, s40, v179")
        a("buffer_load_dword v178, v179, s[16:19], 0 offen")
        a.label("outpf_d")
    a("s_nop 7")
    ts(a, "att_start")
    a.label("att_loop")
    if "altprio" in sys.argv:
        a("s_lshr_b32 s45, s34, 2\ns_add_u32 s45, s45, s49\ns_bitcmp1_b32 s45, 0\ns_cbranch_scc1 att_p1\ns_setprio 0\ns_branch att_p2")
        a.label("att_p1"); a("s_setprio 1"); a.label("att_p2")
    if "hiprio" in sys.argv:
        a("s_cmp_ge_u32 s34, 4\ns_cbranch_scc0 att_p2\ns_setprio 1"); a.label("att_p2")
    ex = lambda Sc, r: a(f"v_exp_f32 v{Sc+r}, v{Sc+r}")
    cv = lambda Sc, q: a(f"v_cvt_pk_bf16_f32 v{P+q}, v{Sc+2*q}, v{Sc+2*q+1}")
    for kk in range(2):
        b = kk
        for q in range(4):
            u = kk * 4 + q
            Sc, Sn = (SA, SB) if u % 2 == 0 else (SB, SA)
            pq, pb = (q - 1) % 4, (b if q > 0 else 1 - b)
            nq, nb = (q + 1) % 4, (b if q < 3 else 1 - b)
            if "altprio2" in sys.argv and q == 0:
                L1, L2 = newlab("ap"), newlab("ap")
                a(f"s_lshr_b32 s45, s34, 2\ns_bitcmp1_b32 s45, 0\ns_cbranch_scc1 {L1}\ns_setprio {kk}\ns_branch {L2}")
                a.label(L1); a(f"s_setprio {1-kk}"); a.label(L2)
            ex(Sc, 0); ex(Sc, 1); cv(Sn, 6); cv(Sn, 7); ex(Sc, 2); ex(Sc, 3)
            if q == 3: a(f"s_waitcnt vmcnt({3 if (PF and kk == 1) else 2})")
            qk1(Sn, nb, nq)
            ex(Sc, 4); ex(Sc, 5); cv(Sc, 0); cv(Sc, 1); ex(Sc, 6); ex(Sc, 7)
            qk2(Sn, nb, nq)
            if q == 3:
                a("s_add_u32 s47, s47, 4096")
                ldK(b)
                if PF and kk == 0:
                    a("s_mov_b32 m0, s49\ns_cmp_lt_u32 s49, s61\ns_cselect_b32 s63, 63, s62\ns_movrels_b32 s50, s88")
                    a("v_min_u32 v177, s63, v1\nv_lshlrev_b32 v177, 6, v177")
                    a("buffer_load_dword v178, v177, s[8:11], s50 offen")
            ex(Sc, 8); ex(Sc, 9); cv(Sc, 2); cv(Sc, 3); ex(Sc, 10); ex(Sc, 11)
            pv(pq, pb, 1)
            if q == 0: ldV(1 - b, 0)
            if q == 1: ldV(1 - b, 1)
            ex(Sc, 12); ex(Sc, 13); cv(Sc, 4); cv(Sc, 5); ex(Sc, 14); ex(Sc, 15)
            if q == 0: a(f"s_waitcnt vmcnt({4 if (PF and kk == 1) else 3})")
            pv(q, b, 0)
    a("s_add_u32 s49, s49, 1\ns_cmp_lt_u32 s49, 8\ns_cbranch_scc1 att_loop")
    a("s_setprio 0")
    cv(SB, 6); cv(SB, 7)
    pv(3, 1, 1)
    ts(a, "att_loop_end")
    a(f"s_mul_i32 s40, s34, {3*1536}\ns_add_u32 s40, s40, {KVL}\nv_add_u32 v171, s40, v5\nv_add_u32 v172, s40, v170\nv_add_u32 v172, 1024, v172")
    for r in (1, 2, 3):
        t = 72 + 8 * (r - 1)
        for q in range(5): a(f"v_cvt_pk_bf16_f32 v{t+q}, v{O+16*r+2*q}, v{O+16*r+2*q+1}")
        a(f"v_mov_b32 v{t+5}, v{O+16*r+10}")
        a(f"ds_write_b128 v171, v[{t}:{t+3}] offset:{(r-1)*1536}\nds_write_b64 v172, v[{t+4}:{t+5}] offset:{(r-1)*1536}")
    a(f"v_mov_b32 v175, {FLAGW}\nv_mov_b32 v176, 0\nds_write_b32 v175, v176")
    a("s_waitcnt lgkmcnt(0)\ns_barrier")
    for r in (1, 2, 3):
        t = 72 + 8 * (r - 1)
        a(f"s_sub_u32 s41, s38, {r}\ns_and_b32 s41, s41, 3\ns_lshl_b32 s45, s39, 2\ns_add_u32 s41, s41, s45\ns_mul_i32 s41, s41, {3*1536}\ns_add_u32 s41, s41, {KVL + (r-1)*1536}")
        a(f"v_add_u32 v171, s41, v5\nv_add_u32 v172, s41, v170")
        a(f"ds_read_b128 v[{t}:{t+3}], v171\nds_read_b64 v[{t+4}:{t+5}], v172 offset:1024")
    a("s_waitcnt vmcnt(0) lgkmcnt(0)")
    for r in (1, 2, 3):
        t = 72 + 8 * (r - 1)
        for q in range(5):
            unpack2(a, 173, 174, t + q)
            a(f"v_add_f32 v{O+2*q}, v{O+2*q}, v173\nv_add_f32 v{O+2*q+1}, v{O+2*q+1}, v174")
        a(f"v_add_f32 v{O+10}, v{O+10}, v{t+5}")
    a("s_cmp_eq_u32 s57, 1\ns_cbranch_scc1 att_fin")
    a("v_mov_b32 v173, 0")
    for r in range(10): a(f"v_fma_f32 v173, v{O+r}, 0, v173")
    a(f"v_cmp_lt_f32 vcc, {f2u(2.0**-60):#x}, v{O+10}")
    a(f"v_mov_b32 v174, {f2u(2.0**60):#x}\nv_cmp_gt_f32 s[40:41], v174, v{O+10}\ns_and_b64 vcc, vcc, s[40:41]")
    a("v_cmp_eq_f32 s[40:41], 0, v173\ns_and_b64 vcc, vcc, s[40:41]")
    if "forcefb" in sys.argv: a("s_mov_b64 vcc, 0")
    a("s_cmp_eq_u64 vcc, -1\ns_cbranch_scc1 att_okw")
    a(f"v_mov_b32 v175, {FLAGW}\nv_mov_b32 v176, 1\nds_write_b32 v175, v176\ns_waitcnt lgkmcnt(0)")
    a.label("att_okw")
    a("s_barrier")
    a(f"v_mov_b32 v175, {FLAGW}\nds_read_b32 v176, v175\ns_waitcnt lgkmcnt(0)\nv_readfirstlane_b32 s40, v176")
    a("s_cmp_eq_u32 s40, 0\ns_cbranch_scc0 att_fallback")
    a.label("att_fin")
    ts(a, "att_red")
    a(f"v_rcp_f32 v173, v{O+10}")
    for r in range(10): a(f"v_mul_f32 v{O+r}, v{O+r}, v173")
    for q in range(5): a(f"v_cvt_pk_bf16_f32 v{P+q}, v{O+2*q}, v{O+2*q+1}")
    a(f"s_mul_i32 s40, s34, 1280\ns_add_u32 s40, s40, {KVL + 36864}")
    a("v_lshrrev_b32 v171, 2, v6\nv_mul_u32_u24 v171, 160, v171\nv_and_b32 v172, 3, v6\nv_mul_u32_u24 v172, 40, v172\nv_mul_u32_u24 v173, 20, v7\nv_add3_u32 v171, v171, v172, v173")
    a("v_add_u32 v171, s40, v171")
    for q in range(5): a(f"ds_write_b32 v171, v{P+q} offset:{4*q}")
    a("v_and_b32 v172, 7, v1\nv_lshrrev_b32 v173, 3, v1")
    a("v_mul_u32_u24 v174, 160, v172\nv_lshl_add_u32 v174, v173, 4, v174\nv_add_u32 v174, s40, v174")
    a("s_waitcnt lgkmcnt(0)")
    a("ds_read_b128 v[72:75], v174\nds_read_b128 v[76:79], v174 offset:128")
    a("s_and_b32 s41, s34, 1\ns_lshl_b32 s41, s41, 7\nv_lshlrev_b32 v172, 4, v172\nv_lshl_add_u32 v172, v173, 8, v172\nv_add_u32 v172, s41, v172")
    a(f"s_lshl_b32 s41, s35, 2\ns_lshr_b32 s45, s34, 1\ns_add_u32 s48, s41, s45\ns_mul_i32 s41, s48, 20480\ns_mul_i32 s45, s36, 2560\ns_add_u32 s41, s41, s45\ns_mul_i32 s45, s37, {OB[1]-OB[0]}\ns_add_u32 s41, s41, s45\ns_add_u32 s41, s41, {OB[0]}")
    a("s_waitcnt lgkmcnt(0)")
    xstore(a, "buffer_store_dwordx4 v[72:75], v172, s[8:11], s41 offen @SC\ns_mov_b64 s[42:43], exec\ns_mov_b64 exec, 0xffff\nbuffer_store_dwordx4 v[76:79], v172, s[8:11], s41 offen offset:2048 @SC\ns_mov_b64 exec, s[42:43]")
    flag_line(46, 0, tile_sgpr=48)
    a("s_lshl_b32 s45, s36, 3\ns_add_u32 s46, s46, s45\ns_and_b32 s45, s34, 1\ns_lshl_b32 s45, s45, 2\ns_add_u32 s46, s46, s45")
    set_flag(a, 46, vtmp=175)
    ts(a, "att_done")
    a("s_cmp_ge_u32 s34, 4\ns_cbranch_scc1 ld_wo")
    a.nvm = 0; a.nlg = 0
    set_bases(a, 5)
    flag_line(46, 0, pair=True)
    await_flags(a, 0xFFFFFFFF, 46)
    ts(a, "wo_ready")
    tile_offs(OB[0], OB[1] - OB[0], 20480, True)
    bl = BL(2048, 10)
    for i in range(10): bl.load(i)
    segs = [(0, 5), (5, 10)]
    kloop2(a, FO, 10, 5, 5, segs, bl.regs, A0, A1, 0, 5, before=lambda i: a.wait_vm(bl.tag[i]))
    ld.label("ld_wo")
    ring.drained()
    loader_kloop2(ld, ring, FO, 10, 5, segs, 5)
    ts(a, "wo_kloop")
    reduce_pair(A0, A1, 5, False)
    loader_bp(ld, ring, None, F1)
    frag_addr(a, 60, 61, 68, 62)
    tile_offs(X1[0], X1[1] - X1[0], 20480, False)
    for i in range(5):
        unpack2(a, 48, 49, RES + 2 * i); unpack2(a, 50, 51, RES + 2 * i + 1)
        for r in range(4): a(f"v_add_f32 v{48+r}, v{48+r}, v{A0+4*i+r}")
        a(f"v_cvt_pk_bf16_f32 v{RES+2*i}, v48, v49\nv_cvt_pk_bf16_f32 v{RES+2*i+1}, v50, v51")
    store_tiles(a, [RES + 2 * i for i in range(5)], 5, 60, 61, 8, "s40", 512, "@SC", tmp=48)
    flag_line(46, 1, tile_sgpr=67)
    a("s_lshl_b32 s45, s36, 2\ns_add_u32 s46, s46, s45")
    set_flag(a, 46)
    ts(a, "wo_done")
    a.nvm = 0; a.nlg = 0
    a("s_lshr_b32 s52, s36, 1\ns_mul_i32 s52, s52, 27\ns_and_b32 s53, s36, 1\ns_mul_i32 s53, s53, 14\ns_add_u32 s52, s52, s53")
    a("s_and_b32 s53, s34, 1\ns_mul_i32 s53, s53, 7\ns_add_u32 s52, s52, s53")
    srd(a, 20, 24, 0, F * 2)
    a("s_lshl_b32 s47, s52, 5\nv_lshlrev_b32 v60, 3, v4\nv_add_u32 v60, s47, v60")
    B1R = 232
    for i in range(7): a(f"buffer_load_dwordx2 v[{B1R+2*i}:{B1R+2*i+1}], v60, s[20:23], 0 offen offset:{i*32}")
    a(f"s_mul_i32 s45, s36, 896\ns_lshl_b32 s44, s53, 6\ns_add_u32 s45, s45, s44\ns_add_u32 s45, s45, {CS1}\nv_lshlrev_b32 v58, 4, v4")
    for i in range(7): a(f"buffer_load_dwordx4 v[{8+4*i}:{8+4*i+3}], v58, s[8:11], s45 offen offset:{i*64}")
    ones(); set_bases(a, 7)
    flag_line(46, 1, pair=True)
    await_flags(a, 0x00FF00FF, 46)
    ts(a, "fc1_ready")
    tile_offs(X1[0], X1[1] - X1[0], 20480, False)
    bl = BL(1024, 10, sc=('' if 'fc1plain' in sys.argv else 'sc1'))
    for i in range(10): bl.load(i)
    segs = [(2 * s_, 2 * s_ + 2) for s_ in range(10)]
    C0, C1 = 176, 204
    kloop2(a, F1, 14, 7, 7, segs, bl.regs, C0, C1, 1, 4, before=lambda i: a.wait_vm(bl.tag[i]),
           after=lambda i: bl.load(i + 10) if i + 10 < 20 else None)
    ld.label("ld_fc1")
    loader_kloop2(ld, ring, F1, 14, 7, segs, 4)
    ts(a, "fc1_kloop")
    stats_finalize(a, VST, VST + 4, 60, 61, 56, True)
    a(f"s_and_b32 s45, s34, 3\ns_lshl_b32 s44, s45, 9\ns_add_u32 s44, s44, {KVL}\nv_lshlrev_b32 v56, 3, v1\nv_add_u32 v57, s44, v56")
    a("ds_write_b64 v57, v[60:61]")
    a(f"s_xor_b32 s45, s45, 1\ns_lshl_b32 s44, s45, 9\ns_add_u32 s44, s44, {KVL}\nv_add_u32 v57, s44, v56")
    a("s_waitcnt lgkmcnt(0)\ns_barrier")
    loader_bp(ld, ring, None, F2)
    a("ds_read_b64 v[62:63], v57")
    frag_addr(a, 58, 59, 52, 56)
    tile_offs(HB[0], HB[1] - HB[0], 55296, False)
    c0 = -2.0 * math.sqrt(2.0 / math.pi) * LOG2E
    c1 = c0 * 0.044715
    a(f"v_mov_b32 v40, {f2u(c0):#x}\nv_mov_b32 v41, v40\nv_mov_b32 v42, {f2u(c1):#x}\nv_mov_b32 v43, v42\nv_mov_b32 v46, 1.0\nv_mov_b32 v47, 1.0")
    a("s_waitcnt lgkmcnt(0)")
    def gelu_tile(i, acc, dst):
        unpack2(a, 52, 53, B1R + 2 * i); unpack2(a, 54, 55, B1R + 2 * i + 1)
        for h in range(2): a(f"v_pk_fma_f32 v[{52+2*h}:{53+2*h}], v[38:39], v[{8+4*i+2*h}:{8+4*i+2*h+1}], v[{52+2*h}:{53+2*h}]")
        for h in range(2): a(f"v_pk_fma_f32 v[{52+2*h}:{53+2*h}], v[36:37], v[{acc+4*i+2*h}:{acc+4*i+2*h+1}], v[{52+2*h}:{53+2*h}]")
        for h in range(2): a(f"v_pk_mul_f32 v[{144+2*h}:{145+2*h}], v[{52+2*h}:{53+2*h}], v[{52+2*h}:{53+2*h}]")
        for h in range(2): a(f"v_pk_fma_f32 v[{144+2*h}:{145+2*h}], v[{144+2*h}:{145+2*h}], v[42:43], v[40:41]")
        for h in range(2): a(f"v_pk_mul_f32 v[{144+2*h}:{145+2*h}], v[{144+2*h}:{145+2*h}], v[{52+2*h}:{53+2*h}]")
        for r in range(4): a(f"v_exp_f32 v{144+r}, v{144+r}")
        for h in range(2): a(f"v_pk_add_f32 v[{144+2*h}:{145+2*h}], v[{144+2*h}:{145+2*h}], v[46:47]")
        for r in range(4): a(f"v_rcp_f32 v{144+r}, v{144+r}")
        for h in range(2): a(f"v_pk_mul_f32 v[{52+2*h}:{53+2*h}], v[{52+2*h}:{53+2*h}], v[{144+2*h}:{145+2*h}]")
        a(f"v_cvt_pk_bf16_f32 v{dst}, v52, v53\nv_cvt_pk_bf16_f32 v{dst+1}, v54, v55")
    for tilesel in range(2):
        acc, rho, mu, so = (C0, 60, 61, "s40") if tilesel == 0 else (C1, 62, 63, "s41")
        a(f"v_mov_b32 v36, v{rho}\nv_mov_b32 v37, v{rho}\nv_sub_f32 v38, 0, v{mu}\nv_mov_b32 v39, v38")
        for p in range(3):
            t = 152 + 4 * (p % 2)
            gelu_tile(2 * p, acc, t); gelu_tile(2 * p + 1, acc, t + 2)
            a(f"v_permlane16_swap_b32 v{t}, v{t+2}\nv_permlane16_swap_b32 v{t+1}, v{t+3}")
            xstore(a, f"buffer_store_dwordx4 v[{t}:{t+3}], v58, s[8:11], {so} offen offset:{p*1024} @SC")
        sk = newlab("fc1sk")
        a(f"s_and_b32 s45, s36, s34\ns_bitcmp1_b32 s45, 0\ns_cbranch_scc1 {sk}")
        gelu_tile(6, acc, 160)
        xstore(a, f"buffer_store_dwordx2 v[160:161], v59, s[8:11], {so} offen offset:3072 @SC")
        a.label(sk)
    flag_line(46, 2, tile_sgpr=67)
    flag_line(47, 2, tile_sgpr=65)
    a("s_lshl_b32 s45, s36, 3\ns_and_b32 s44, s34, 1\ns_lshl_b32 s44, s44, 2\ns_add_u32 s45, s45, s44\ns_add_u32 s46, s46, s45\ns_add_u32 s47, s47, s45")
    set_flag(a, 46, second=47)
    ts(a, "fc1_done")
    a.nvm = 0; a.nlg = 0
    srd(a, 20, 26, 0, D * 2)
    a("v_lshlrev_b32 v58, 3, v4\ns_mul_i32 s40, s36, 160\nv_add_u32 v58, s40, v58")
    for i in range(5): a(f"buffer_load_dwordx2 v[{8+2*i}:{9+2*i}], v58, s[20:23], 0 offen offset:{i*32}")
    set_bases(a, 5)
    flag_line(46, 2, pair=True)
    await_flags(a, 0xFFFFFFFF, 46)
    ts(a, "fc2_ready")
    tile_offs(HB[0], HB[1] - HB[0], 55296, True)
    bl = BL(2048, 10)
    for i in range(10): bl.load(i)
    segs = [(2 * s_, min(27, 2 * s_ + 2)) for s_ in range(14)]
    SEGTS[0] = True
    kloop2(a, F2, 10, 5, 5, segs, bl.regs, A0, A1, 0, 5, before=lambda i: a.wait_vm(bl.tag[i]),
           after=lambda i: bl.load(i + 10) if i + 10 < 27 else None)
    ld.label("ld_fc2")
    LDTS[0] = True
    loader_kloop2(ld, ring, F2, 10, 5, segs, 5)
    ts(a, "fc2_kloop")
    reduce_pair(A0, A1, 5, False)
    loader_bp(ld, ring, None, SL)
    assert ring.I == SLP + RING
    for i in range(5):
        unpack2(a, 48, 49, RES + 2 * i); unpack2(a, 50, 51, RES + 2 * i + 1)
        unpack2(a, 52, 53, 8 + 2 * i); unpack2(a, 54, 55, 8 + 2 * i + 1)
        for r in range(4): a(f"v_add_f32 v{52+r}, v{52+r}, v{A0+4*i+r}")
        for r in range(4): a(f"v_add_f32 v{48+r}, v{48+r}, v{52+r}")
        a(f"v_cvt_pk_bf16_f32 v{RES+2*i}, v48, v49\nv_cvt_pk_bf16_f32 v{RES+2*i+1}, v50, v51")
    a("s_cmp_eq_u32 s37, 0\ns_cbranch_scc0 fc2_last")
    frag_addr(a, 60, 61, 68, 62)
    tile_offs(X2, 0, 20480, False)
    store_tiles(a, [RES + 2 * i for i in range(5)], 5, 60, 61, 8, "s40", 512, "@SC", tmp=48)
    flag_line(46, 3, tile_sgpr=67)
    a("s_lshl_b32 s45, s36, 2\ns_add_u32 s46, s46, s45")
    set_flag(a, 46)
    a("s_branch fc2_fin")
    a.label("fc2_last")
    srd(a, 16, 28, 0, XBYTES)
    a("v_add_u32 v62, s66, v3\nv_mul_u32_u24 v60, 1280, v62\ns_mul_i32 s40, s36, 160\nv_add_u32 v60, s40, v60")
    a("v_lshl_add_u32 v61, v4, 3, v60")
    a("v_and_b32 v62, 1, v4\nv_lshl_add_u32 v60, v62, 5, v60\nv_lshrrev_b32 v62, 1, v4\nv_lshl_add_u32 v60, v62, 4, v60")
    store_tiles(a, [RES + 2 * i for i in range(5)], 5, 60, 61, 16, "0", 32, "", tmp=48)
    a.label("fc2_fin")
    ts(a, "fc2_done")
    a("s_branch layer_end")
    ld("s_branch layer_end")
    a.out += ld.out
    fbk = Asm()
    fbk.label("att_fallback")
    fbk("s_barrier")
    for i in range(4): fbk(f"v_mov_b32 v{181+i}, 0xff800000")
    fbk(f"s_mul_i32 s47, s37, {KVB[1]-KVB[0]}\ns_add_u32 s47, s47, {KVB[0]}\ns_lshl_b32 s48, s38, 16\ns_add_u32 s47, s47, s48\ns_mov_b32 s49, 0")
    fbk.label("fb_loop")
    fbk(f"buffer_load_dwordx4 v[{K1(0)}:{K1(0)+3}], v5, s[8:11], s47 offen sc1")
    fbk(f"buffer_load_dwordx2 v[{K2(0)}:{K2(0)+1}], v170, s[8:11], s47 offen offset:1024 sc1")
    fbk("s_waitcnt vmcnt(0)")
    for i in range(4):
        fbk(f"v_mfma_f32_32x32x16_bf16 v[{SA}:{SA+15}], v[{K1(0)}:{K1(0)+3}], v[{Q1(i)}:{Q1(i)+3}], 0")
        fbk(f"v_mfma_f32_32x32x8_bf16 v[{SA}:{SA+15}], v[{K2(0)}:{K2(0)+1}], v[{Q2(i)}:{Q2(i)+1}], v[{SA}:{SA+15}]")
        for r in range(0, 16, 2): fbk(f"v_max3_f32 v{181+i}, v{181+i}, v{SA+r}, v{SA+r+1}")
    fbk("s_add_u32 s47, s47, 4096\ns_add_u32 s49, s49, 1\ns_cmp_lt_u32 s49, 16\ns_cbranch_scc1 fb_loop")
    fbk("v_xor_b32 v171, 32, v1\nv_lshlrev_b32 v171, 2, v171")
    for i in range(4):
        fbk(f"ds_bpermute_b32 v172, v171, v{181+i}\ns_waitcnt lgkmcnt(0)\nv_max_f32 v{181+i}, v{181+i}, v172")
    fbk("v_lshlrev_b32 v171, 2, v6")
    for i in range(4):
        fbk(f"s_add_u32 s40, s38, {i}\ns_and_b32 s40, s40, 3\ns_lshl_b32 s41, s39, 2\ns_add_u32 s40, s40, s41\ns_lshl_b32 s40, s40, 9\ns_lshl_b32 s41, s38, 7\ns_add_u32 s41, s41, s40\ns_add_u32 s41, s41, {KVL}")
        fbk(f"v_add_u32 v172, s41, v171\nds_write_b32 v172, v{181+i}")
    fbk("s_waitcnt lgkmcnt(0)\ns_barrier")
    for i in range(4):
        fbk(f"s_add_u32 s40, s38, {i}\ns_and_b32 s40, s40, 3\ns_lshl_b32 s41, s39, 2\ns_add_u32 s40, s40, s41\ns_lshl_b32 s40, s40, 9\ns_add_u32 s40, s40, {KVL}")
        fbk(f"v_add_u32 v172, s40, v171\nds_read_b32 v173, v172\nds_read_b32 v174, v172 offset:128\nds_read_b32 v175, v172 offset:256\nds_read_b32 v176, v172 offset:384")
        fbk("s_waitcnt lgkmcnt(0)\nv_max_f32 v173, v173, v174\nv_max3_f32 v173, v173, v175, v176")
        fbk("v_sub_f32 v173, 0, v173\nv_cvt_pk_bf16_f32 v174, v173, v173\nv_lshlrev_b32 v175, 16, v174\nv_sub_f32 v175, v173, v175\nv_cvt_pk_bf16_f32 v176, v173, v175")
        fbk(f"v_cmp_eq_u32 vcc, 1, v7\nv_cndmask_b32 v{Q2(i)}, v{Q2(i)}, v176, vcc")
    fbk("s_mov_b32 s57, 1\ns_barrier\ns_branch att_main")
    a.out += fbk.out
    a.label("layer_end")
    if PROFILE:
        a(f"s_cmp_eq_u32 s34, {4 if PROFLD else 0}\ns_cbranch_scc0 prof_skip")
        a(f"s_lshl_b32 s40, s2, 8\ns_lshl_b32 s41, s37, 7\ns_add_u32 s40, s40, s41\ns_add_u32 s40, s40, {TSB}\nv_mov_b32 v8, 0\ns_mov_b64 s[42:43], exec\ns_mov_b64 exec, 1")
        for i in range(Prof.n):
            a(f"v_mov_b32 v9, s{70+i}\nbuffer_store_dword v9, v8, s[8:11], s40 offen offset:{4*i}\ns_nop 0")
        a("s_mov_b64 exec, s[42:43]")
        a.label("prof_skip")
    a(f"s_add_u32 s37, s37, 1\ns_cmp_lt_u32 s37, 2\ns_cbranch_scc1 layer_top")
    a("s_waitcnt vmcnt(0)")
    a("s_endpgm")
    kernel_end(a, name)
    return a.out, descriptor(name, 256), (name, 256, 512, LDS_BYTES)

def build(path, kernels):
    hdr = []
    for k in kernels:
        name, grid, block, lds = k[2]
        hdr.append(f"; @launch kernel={name} grid=({grid},1,1) block=({block},1,1) lds={lds}")
    body = ['.amdgcn_target "amdgcn-amd-amdhsa--gfx950"', ".text"]
    descs = []
    nfix = 0
    for k in kernels:
        lines, n = fix_hazards(k[0])
        nfix += n
        body += lines
        descs.append(k[1])
    txt = "\n".join(hdr) + "\n" + "\n".join(body) + '\n.section .rodata,"a"\n' + "".join(".p2align 6\n" + d for d in descs)
    open(path, "w").write(txt)
    print("written", path, len(txt), "bytes; hazard nops at", nfix, "sites")

if __name__ == "__main__":
    out = [x for x in sys.argv[1:] if x.endswith(".s")]
    build(out[0] if out else "v10.s", [gen_prep(), gen_main()])
    json.dump(dict(WST=WST, CSQ=CSQ, BKV=BKV, CS1=CS1, KVB=KVB, KMAX=KMAX, OB=OB, X1=X1, X2=X2, HB=HB, TSB=TSB, XF=XF, KVF=KVF, TSN=TSN, ver=3, XF0=XF0), open("layout.json", "w"))
```

```python
import sys, math, json, struct
sys.path.insert(0, "gen")
from asmdsl import *

S, D, F, H, DH = 2048, 640, 1728, 32, 20
KB = 1024
PROFSEG = "profseg" in sys.argv
PROFILE = "prof" in sys.argv or "profld" in sys.argv or PROFSEG
PROFLD = "profld" in sys.argv
off = 0
def alloc(n, align=4096):
    global off
    off = (off + align - 1) // align * align
    o = off; off += n; return o
SL = 770
RING = 112
SLP = 784
FQ, FO, F1, F2 = 0, 120, 220, 500
WST = alloc(8 * SL * KB + 16 * KB)
CSQ = alloc(8 * 96 * 4)
BKV = alloc(3 * 16 * 4)
CS1 = alloc(8 * 224 * 4)
FLAGS = alloc(16384 + 4 * 16384 + 4096, 4096)
KVF = FLAGS
XF = FLAGS + 16384
XID = FLAGS + 16384 + 4 * 16384
FLAG_BYTES = 16384 + 4 * 16384 + 4096
KVB = [alloc(64 * 4096), alloc(64 * 4096)]
KMAX = [alloc(1024), alloc(1024)]
OB = [alloc(S * D * 2), alloc(S * D * 2)]
X1 = [alloc(S * D * 2), alloc(S * D * 2)]
HB = [alloc(S * F * 2), alloc(S * F * 2)]
X2 = alloc(S * D * 2)
XF0 = alloc(S * D * 2)
TSB = alloc(256 * 64 * 4)
WS_BYTES = 268435456
XBYTES = S * D * 2
LOG2E = 1.4426950408889634
def f2u(x): return struct.unpack("<I", struct.pack("<f", x))[0]
KVL = RING * KB
LDS_BYTES = 160 * KB
SPIN_MAX = 200000

def srd(a, s, ptr_pair, off, nbytes):
    if off:
        a(f"s_add_u32 s{s}, s{ptr_pair}, {off}")
        a(f"s_addc_u32 s{s+1}, s{ptr_pair+1}, 0")
    else:
        a(f"s_mov_b32 s{s}, s{ptr_pair}")
        a(f"s_mov_b32 s{s+1}, s{ptr_pair+1}")
    a(f"s_mov_b32 s{s+2}, {nbytes}")
    a(f"s_mov_b32 s{s+3}, 0x20000")
def srd_dyn(a, s, ptr_pair, off_sgpr, nbytes):
    a(f"s_add_u32 s{s}, s{ptr_pair}, s{off_sgpr}")
    a(f"s_addc_u32 s{s+1}, s{ptr_pair+1}, 0")
    a(f"s_mov_b32 s{s+2}, {nbytes}")
    a(f"s_mov_b32 s{s+3}, 0x20000")

def kernel_begin(a, name, nwg):
    a(f".globl {name}")
    a(".p2align 8")
    a(f".type {name},@function")
    a.out.append(f"{name}:")
    a(f"s_cmp_ge_u32 s2, {nwg}")
    a(f"s_cbranch_scc1 {name}_exit")
def kernel_end(a, name):
    a.label(f"{name}_exit")
    a("s_endpgm")
def descriptor(name, vgpr, sgpr=102):
    vg = (vgpr + 7) // 8 * 8
    return f""".amdhsa_kernel {name}
  .amdhsa_next_free_vgpr {vg}
  .amdhsa_next_free_sgpr {sgpr}
  .amdhsa_accum_offset {min(vg,256)}
  .amdhsa_group_segment_fixed_size 0
  .amdhsa_kernarg_size 104
  .amdhsa_user_sgpr_count 2
  .amdhsa_user_sgpr_kernarg_segment_ptr 1
  .amdhsa_system_sgpr_workgroup_id_x 1
  .amdhsa_float_denorm_mode_32 3
  .amdhsa_float_denorm_mode_16_64 3
.end_amdhsa_kernel
"""

PSC = " sc1" if "psc1" in sys.argv else (" nt" if "pnt" in sys.argv else (" sc0 sc1" if "psc01" in sys.argv else ""))
def gen_prep():
    a = Asm(); name = "prep_kernel"
    kernel_begin(a, name, 256)
    a("s_load_dwordx2 s[52:53], s[0:1], 0")
    a("s_load_dwordx2 s[4:5], s[0:1], 96")
    a("s_load_dwordx2 s[6:7], s[0:1], 8")
    a("s_load_dwordx4 s[24:27], s[0:1], 16")
    a("s_load_dwordx2 s[28:29], s[0:1], 32")
    a("s_load_dwordx2 s[30:31], s[0:1], 48")
    a("s_load_dwordx2 s[32:33], s[0:1], 64")
    a("v_and_b32 v1, 63, v0")
    a("v_lshrrev_b32 v2, 6, v0")
    a("v_readfirstlane_b32 s34, v2")
    a("v_and_b32 v3, 15, v1")
    a("v_lshrrev_b32 v4, 4, v1")
    a("v_lshlrev_b32 v5, 4, v1")
    a("s_waitcnt lgkmcnt(0)")
    srd(a, 8, 4, 0, WS_BYTES)
    if "cpf2" in sys.argv:
        a("s_cmp_eq_u32 s34, 3\ns_cbranch_scc0 prep_cpf")
        a("s_getpc_b64 s[40:41]")
        a.label("prep_pc")
        a("s_add_u32 s40, s40, main_kernel-prep_pc\ns_addc_u32 s41, s41, 0")
        a("v_lshlrev_b32 v8, 6, v1")
        for i in range(8):
            a(f"global_load_dword v{110}, v8, s[40:41]")
            a("v_add_u32 v8, 4096, v8")
        a.label("prep_cpf")
    srd(a, 12, 52, 0, XBYTES)
    a("s_lshl_b32 s35, s2, 2\ns_add_u32 s35, s35, s34")
    a("v_mul_u32_u24 v7, 1280, v3\nv_lshl_add_u32 v7, v4, 4, v7")
    for q in range(3):
        a(f"s_add_u32 s36, s35, {q*1024}")
        a("s_mul_i32 s37, s36, 3277\ns_lshr_b32 s37, s37, 16")
        a("s_mul_i32 s38, s37, 20\ns_sub_u32 s38, s36, s38")
        a("s_mul_i32 s39, s37, 20480\ns_lshl_b32 s38, s38, 6\ns_add_u32 s39, s39, s38")
        a(f"buffer_load_dwordx4 v[{16+4*q}:{19+4*q}], v7, s[12:15], s39 offen")
        a(f"s_lshl_b32 s{54+q}, s36, 10\ns_add_u32 s{54+q}, s{54+q}, {XF0}")
    a("s_mov_b32 s57, s35")
    xs_n = [0]
    def xstores():
        L = f"prep_xd{xs_n[0]}"; xs_n[0] += 1
        for q in range(3):
            if q == 2: a(f"s_cmp_lt_u32 s57, 512\ns_cbranch_scc0 {L}")
            a(f"buffer_store_dwordx4 v[{16+4*q}:{19+4*q}], v5, s[8:11], s{54+q} offen" + PSC)
        a.label(L)
    a("s_cmp_ge_u32 s2, 252\ns_cbranch_scc0 prep_go")
    a("s_waitcnt vmcnt(0)")
    xstores()
    a("s_branch prep_done")
    a.label("prep_go")
    def gather(voff, srdn, rowbytes, soff_base_sgpr, nfr, ks_stride_bytes):
        for f in range(nfr):
            for jj in range(8):
                a(f"s_add_u32 s40, s{soff_base_sgpr}, {f*ks_stride_bytes + jj*rowbytes}")
                a(f"buffer_load_ushort v{64+8*f+jj}, v{voff}, s[{srdn}:{srdn+3}], s40 offen")
    def pack(nfr):
        a("s_waitcnt vmcnt(0)")
        xstores()
        for f in range(nfr):
            for q in range(4):
                a(f"v_lshl_or_b32 v{32+4*f+q}, v{64+8*f+2*q+1}, 16, v{64+8*f+2*q}")
    def colsum_and_store(dst_soff_sgpr, dst_ks_stride, cs_off_sgpr):
        a("v_mov_b32 v132, 0x3f803f80\nv_mov_b32 v133, 0x3f803f80\nv_mov_b32 v134, 0x3f803f80\nv_mov_b32 v135, 0x3f803f80")
        pack(5)
        for f in range(5):
            a(f"s_add_u32 s40, s{dst_soff_sgpr}, {f*dst_ks_stride}")
            a(f"buffer_store_dwordx4 v[{32+4*f}:{35+4*f}], v5, s[8:11], s40 offen" + PSC)
            a(f"v_mfma_f32_16x16x32_bf16 v[28:31], v[{32+4*f}:{35+4*f}], v[132:135], " + ("0" if f == 0 else "v[28:31]"))
        a("v_lshlrev_b32 v6, 4, v4")
        a("s_lshl_b32 s41, s34, 6")
        a("v_add_u32 v6, s41, v6")
        a("v_cmp_eq_u32 vcc, 0, v3")
        a("s_and_saveexec_b64 s[42:43], vcc")
        a("ds_write_b128 v6, v[28:31]")
        a("s_mov_b64 exec, s[42:43]")
        a("s_waitcnt lgkmcnt(0)")
        a("s_barrier")
        a("v_lshlrev_b32 v6, 2, v0")
        a("v_cmp_gt_u32 vcc, 16, v0")
        a("s_and_saveexec_b64 s[42:43], vcc")
        a(f"s_cbranch_execz {name}_exit")
        a("ds_read_b32 v7, v6\nds_read_b32 v8, v6 offset:64\nds_read_b32 v9, v6 offset:128\nds_read_b32 v10, v6 offset:192")
        a("s_waitcnt lgkmcnt(0)")
        a("v_add_f32 v7, v7, v8\nv_add_f32 v9, v9, v10\nv_add_f32 v7, v7, v9")
        a(f"buffer_store_dword v7, v6, s[8:11], s{cs_off_sgpr} offen")
        a("s_waitcnt vmcnt(0)")
        a("s_endpgm")
    a("s_cmp_lt_u32 s2, 40\ns_cbranch_scc1 prep_wq")
    a("s_cmp_lt_u32 s2, 43\ns_cbranch_scc1 prep_kv")
    a("s_cmp_lt_u32 s2, 151\ns_cbranch_scc1 prep_w1")
    a("s_branch prep_plain")
    a.label("prep_wq")
    srd(a, 12, 6, 0, D * D * 2)
    a("s_mul_i32 s35, s2, 52429\ns_lshr_b32 s35, s35, 18")
    a("s_mul_i32 s36, s35, 5\ns_sub_u32 s36, s2, s36")
    a("v_mul_u32_u24 v7, 10240, v4")
    a("s_lshl_b32 s37, s2, 5")
    a("v_lshl_add_u32 v7, v3, 1, v7\nv_add_u32 v7, s37, v7")
    a(f"s_mul_i32 s38, s34, {5*32*1280}")
    gather(7, 12, 1280, 38, 5, 32 * 1280)
    a(f"s_mul_i32 s44, s35, {SL*KB}\ns_mul_i32 s45, s34, {25*KB}\ns_add_u32 s44, s44, s45\ns_lshl_b32 s45, s36, 10\ns_add_u32 s44, s44, s45\ns_add_u32 s44, s44, {WST + (FQ+20)*KB}")
    a(f"s_mul_i32 s46, s35, 384\ns_lshl_b32 s45, s36, 6\ns_add_u32 s46, s46, s45\ns_add_u32 s46, s46, {CSQ}")
    colsum_and_store(44, 5 * KB, 46)
    a.label("prep_kv")
    srd(a, 12, 24, 0, D * DH * 2)
    srd(a, 16, 26, 0, D * DH * 2)
    a("s_sub_u32 s35, s2, 40")
    for r in range(64, 104): a(f"v_mov_b32 v{r}, 0")
    BIG = 0x40000000
    a("v_and_b32 v8, 3, v3\nv_lshrrev_b32 v9, 2, v3")
    a("s_cmp_eq_u32 s35, 0\ns_cbranch_scc1 prep_kv0")
    a("s_cmp_eq_u32 s35, 1\ns_cbranch_scc1 prep_kv1")
    a(f"v_mov_b32 v10, {BIG}\nv_mov_b32 v11, {BIG}")
    a("v_lshlrev_b32 v12, 1, v3\nv_add_u32 v12, 32, v12")
    a("v_cmp_gt_u32 vcc, 4, v3\nv_cndmask_b32 v10, v10, v12, vcc")
    a("v_lshlrev_b32 v12, 1, v8")
    a("v_add_u32 v13, 16, v12\nv_add_u32 v14, 36, v12")
    a("v_cmp_eq_u32 vcc, 1, v9\nv_cndmask_b32 v11, v11, v13, vcc")
    a("v_cmp_eq_u32 vcc, 2, v9\nv_cndmask_b32 v11, v11, v14, vcc")
    a(f"v_mov_b32 v12, {BIG}\nv_cmp_lt_u32 vcc, 1, v8\nv_cndmask_b32 v11, v11, v12, vcc")
    a("s_branch prep_kvgo")
    a.label("prep_kv0")
    a(f"v_lshlrev_b32 v10, 1, v3\nv_mov_b32 v11, {BIG}")
    a("s_branch prep_kvgo")
    a.label("prep_kv1")
    a(f"v_mov_b32 v10, {BIG}")
    a("v_mov_b32 v11, 0\nv_cmp_eq_u32 vcc, 1, v9\nv_cndmask_b32 v11, v11, 10, vcc")
    a("v_cmp_eq_u32 vcc, 2, v9\nv_cndmask_b32 v11, v11, 4, vcc")
    a("v_cmp_eq_u32 vcc, 3, v9\nv_cndmask_b32 v11, v11, 14, vcc")
    a("v_add_u32 v11, v11, v8\nv_lshlrev_b32 v11, 1, v11")
    a.label("prep_kvgo")
    a("v_mul_u32_u24 v12, 320, v4")
    a("v_add_u32 v10, v10, v12\nv_add_u32 v11, v11, v12")
    a(f"s_mul_i32 s38, s34, {5*32*40}")
    a(f"v_cmp_gt_u32 vcc, {BIG}, v10\ns_and_saveexec_b64 s[48:49], vcc")
    a("s_cbranch_execz prep_kv_skipk")
    gather(10, 12, 40, 38, 5, 32 * 40)
    a.label("prep_kv_skipk")
    a("s_mov_b64 exec, s[48:49]")
    a(f"v_cmp_gt_u32 vcc, {BIG}, v11\ns_and_saveexec_b64 s[48:49], vcc")
    a("s_cbranch_execz prep_kv_skipv")
    gather(11, 16, 40, 38, 5, 32 * 40)
    a.label("prep_kv_skipv")
    a("s_mov_b64 exec, s[48:49]")
    a(f"s_mul_i32 s44, s35, {SL*KB}\ns_mul_i32 s45, s34, {5*KB}\ns_add_u32 s44, s44, s45\ns_add_u32 s44, s44, {WST + FQ*KB}")
    a(f"s_mul_i32 s46, s35, 384\ns_add_u32 s46, s46, {CSQ + 5*64}")
    colsum_and_store(44, 1 * KB, 46)
    a.label("prep_w1")
    srd(a, 12, 30, 0, D * F * 2)
    a("s_sub_u32 s35, s2, 43")
    a("s_mul_i32 s36, s35, 2428\ns_lshr_b32 s36, s36, 16")
    a("s_mul_i32 s37, s36, 27\ns_sub_u32 s37, s35, s37")
    a("s_lshl_b32 s36, s36, 1")
    a("s_cmp_ge_u32 s37, 14\ns_cbranch_scc0 prep_w1a")
    a("s_add_u32 s36, s36, 1\ns_sub_u32 s37, s37, 14")
    a.label("prep_w1a")
    a("v_mul_u32_u24 v7, 27648, v4")
    a("s_lshl_b32 s39, s35, 5")
    a("v_lshl_add_u32 v7, v3, 1, v7\nv_add_u32 v7, s39, v7")
    a(f"s_mul_i32 s38, s34, {5*32*3456}")
    gather(7, 12, 3456, 38, 5, 32 * 3456)
    a(f"s_mul_i32 s44, s36, {SL*KB}\ns_mul_i32 s45, s34, {5*14*KB}\ns_add_u32 s44, s44, s45\ns_lshl_b32 s45, s37, 10\ns_add_u32 s44, s44, s45\ns_add_u32 s44, s44, {WST + F1*KB}")
    a(f"s_mul_i32 s46, s36, 896\ns_lshl_b32 s45, s37, 6\ns_add_u32 s46, s46, s45\ns_add_u32 s46, s46, {CS1}")
    colsum_and_store(44, 14 * KB, 46)
    a.label("prep_plain")
    a("s_sub_u32 s35, s2, 151\ns_lshl_b32 s35, s35, 2\ns_add_u32 s35, s35, s34")
    a("s_cmp_lt_u32 s35, 120\ns_cbranch_scc1 prep_wo")
    a("s_sub_u32 s35, s35, 120")
    a("s_cmp_ge_u32 s35, 280\ns_cbranch_scc1 prep_bias")
    srd(a, 12, 32, 0, F * D * 2)
    a(f"s_mov_b32 s50, {WST + F2*KB}\ns_mov_b32 s51, 6\ns_mov_b32 s52, 2")
    a("s_branch prep_pl2")
    a.label("prep_wo")
    srd(a, 12, 28, 0, D * D * 2)
    a(f"s_mov_b32 s50, {WST + FO*KB}\ns_mov_b32 s51, 2\ns_mov_b32 s52, 0")
    a.label("prep_pl2")
    a("s_mul_i32 s36, s35, 1639\ns_lshr_b32 s36, s36, 16")
    a("s_mul_i32 s37, s36, 40\ns_sub_u32 s37, s35, s37")
    a("s_mul_i32 s38, s37, 52429\ns_lshr_b32 s38, s38, 18")
    a("s_mul_i32 s39, s38, 5\ns_sub_u32 s39, s37, s39")
    a("v_mul_u32_u24 v7, 10240, v4")
    a("s_lshl_b32 s45, s37, 5")
    a("v_lshl_add_u32 v7, v3, 1, v7\nv_add_u32 v7, s45, v7")
    a(f"s_mul_i32 s44, s38, {SL*KB}\ns_add_u32 s44, s44, s50\ns_mul_i32 s45, s36, {40*KB}\ns_add_u32 s44, s44, s45\ns_lshl_b32 s45, s39, 10\ns_add_u32 s44, s44, s45")
    a(f"s_mul_i32 s38, s36, {8*32*1280}")
    gather(7, 12, 1280, 38, 8, 32 * 1280)
    pack(8)
    for f in range(8):
        if f >= 4:
            a(f"s_cmp_eq_u32 s36, s51\ns_cbranch_scc0 prep_st{f}")
            a(f"s_cmp_gt_u32 s52, {f-4}\ns_cbranch_scc0 prep_done")
            a.label(f"prep_st{f}")
        a(f"s_add_u32 s40, s44, {f*5*KB}")
        a(f"buffer_store_dwordx4 v[{32+4*f}:{35+4*f}], v5, s[8:11], s40 offen" + PSC)
    a.label("prep_done")
    a("s_waitcnt vmcnt(0)")
    a("s_endpgm")
    a.label("prep_bias")
    a("s_waitcnt vmcnt(0)")
    xstores()
    a("v_mov_b32 v8, 0\nv_mov_b32 v9, 0\nv_mov_b32 v10, 0\nv_mov_b32 v11, 0")
    a("v_lshlrev_b32 v6, 4, v0")
    nz = FLAG_BYTES // 4096
    for r in range(nz):
        a(f"s_mov_b32 s40, {FLAGS + r*4096}\nbuffer_store_dwordx4 v[8:11], v6, s[8:11], s40 offen")
    a("s_cmp_eq_u32 s35, 280\ns_cbranch_scc0 prep_done2")
    a("v_mov_b32 v7, 0")
    for idx in (32 + 6, 32 + 10, 32 + 12, 32 + 13):
        a(f"v_cmp_eq_u32 vcc, {idx}, v1\nv_cndmask_b32 v7, v7, 1.0, vcc")
    a("v_lshlrev_b32 v6, 2, v1\nv_cmp_gt_u32 vcc, 48, v1\ns_and_saveexec_b64 s[42:43], vcc")
    a(f"s_mov_b32 s40, {BKV}\nbuffer_store_dword v7, v6, s[8:11], s40 offen")
    a.label("prep_done2")
    a("s_waitcnt vmcnt(0)")
    a("s_endpgm")
    kernel_end(a, name)
    return a.out, descriptor(name, 144), (name, 256, 256, 1024)

VB, VA, VST, VSO, VONE, RES = 64, 144, 36, 44, 52, 246

class Prof:
    n = 0
LDTS = [False]
SEGTS = [False]
def ts(a, label, loader=False, seg=False):
    if not PROFILE: return
    if PROFLD != loader: return
    if PROFSEG != seg: return
    if Prof.n >= 26: return
    i = Prof.n; Prof.n += 1
    assert i < 26, i
    a(f"s_memtime s[98:99]\ns_waitcnt lgkmcnt(0)\ns_mov_b32 s{70+i}, s98")
    TSN.append(label)
TSN = []

def unpack2(a, dlo, dhi, src):
    a(f"v_lshlrev_b32 v{dlo}, 16, v{src}")
    a(f"v_and_b32 v{dhi}, 0xffff0000, v{src}")

uid = [0]
def newlab(p):
    uid[0] += 1
    return f"{p}_{uid[0]}"

def await_flags(a, mask, off_sgpr, vtmp=56):
    L, Dn = newlab("poll"), newlab("polld")
    a(f"v_lshlrev_b32 v{vtmp}, 2, v1")
    a(f"s_mov_b64 s[42:43], exec\ns_mov_b64 exec, {mask:#x}\ns_mov_b32 s44, 0")
    a.label(L)
    a(f"buffer_load_dword v{vtmp+1}, v{vtmp}, s[8:11], s{off_sgpr} offen sc1")
    a("s_add_u32 s44, s44, 1")
    a("s_waitcnt vmcnt(0)")
    a(f"v_cmp_eq_u32 vcc, 0, v{vtmp+1}")
    a(f"s_cmp_eq_u64 vcc, 0\ns_cbranch_scc1 {Dn}")
    a(f"s_cmp_gt_u32 s44, {SPIN_MAX}\ns_cbranch_scc1 {Dn}")
    a(f"s_sleep 1\ns_branch {L}")
    a.label(Dn)
    a("s_mov_b64 exec, s[42:43]")

def set_flag(a, off_sgpr, vtmp=56, second=None):
    L1, L2 = newlab("sf"), newlab("sf")
    a("s_waitcnt vmcnt(0)")
    a(f"v_mov_b32 v{vtmp}, 0\nv_mov_b32 v{vtmp+1}, 1")
    a("s_mov_b64 s[42:43], exec\ns_mov_b64 exec, 1")
    a(f"s_cmp_eq_u32 s59, 1\ns_cbranch_scc1 {L1}")
    a(f"buffer_store_dword v{vtmp+1}, v{vtmp}, s[8:11], s{off_sgpr} offen sc1")
    if second is not None: a(f"buffer_store_dword v{vtmp+1}, v{vtmp}, s[8:11], s{second} offen sc1")
    a(f"s_branch {L2}")
    a.label(L1)
    a(f"buffer_store_dword v{vtmp+1}, v{vtmp}, s[8:11], s{off_sgpr} offen")
    if second is not None: a(f"buffer_store_dword v{vtmp+1}, v{vtmp}, s[8:11], s{second} offen")
    a.label(L2)
    a("s_mov_b64 exec, s[42:43]")

def xstore(a, text):
    L1, L2 = newlab("xs"), newlab("xs")
    a(f"s_cmp_eq_u32 s59, 1\ns_cbranch_scc1 {L1}")
    a(text.replace("@SC", "sc1"))
    a(f"s_branch {L2}")
    a.label(L1)
    a(text.replace("@SC", ""))
    a.label(L2)

def xf_off(a, dst, kind, extra_sgpr=None, extra_imm=0):
    a(f"s_lshl_b32 s{dst}, s37, 13\ns_lshl_b32 s45, s35, 8\ns_add_u32 s{dst}, s{dst}, s45")
    a(f"s_and_b32 s45, s34, 3\ns_lshl_b32 s45, s45, 6\ns_add_u32 s{dst}, s{dst}, s45")
    a(f"s_add_u32 s{dst}, s{dst}, {XF + kind*16384 + extra_imm}")
    if extra_sgpr is not None: a(f"s_add_u32 s{dst}, s{dst}, s{extra_sgpr}")

class Ring:
    def __init__(self):
        self.I = RING
        self.q = [f for f in range(0, RING, 16) for _ in range(4)]
    def drained(self): self.q = []
def loader_issue(a, frm, upto, ring=None):
    assert frm % 16 == 0 and upto % 16 == 0
    skip = None
    for f in range(frm, upto, 16):
        if f == SLP or (f > SLP and f == frm):
            skip = newlab("ldsk")
            a(f"s_cmp_eq_u32 s37, 1\ns_cbranch_scc1 {skip}")
        a(f"s_add_u32 m0, s69, {(f % RING) * KB}")
        a(f"s_add_u32 s44, s60, {(f % SLP) * KB}")
        for q in range(4):
            if "noW" not in sys.argv: a(f"buffer_load_dwordx4 v5, s[8:11], s44 offen offset:{q*1024} lds")
            if ring is not None and f < SLP: ring.q.append(f)
    if skip: a.label(skip)

def touch(a, ring, frag0, n, per_wave_sgpr=69):
    a("v_lshlrev_b32 v58, 7, v1")
    a(f"s_mul_i32 s45, s69, {2*n}\ns_sub_u32 s45, s45, s69\ns_add_u32 s45, s45, s60")
    for i in range(n):
        a(f"s_add_u32 s44, s45, {(frag0 + 8*i) * KB}")
        a(f"buffer_load_dword v59, v58, s[8:11], s44 offen")
        if ring is not None: ring.q.append(None)

def loader_bp(a, ring, need, consumed, cap=None):
    if LDTS[0] and Prof.n < 22: ts(a, "w0", True)
    if need is not None:
        assert need <= ring.I, (need, ring.I)
        last = -1
        for i, f in enumerate(ring.q):
            if f is not None and f < need: last = i
        if last >= 0:
            n = len(ring.q) - 1 - last
            a(f"s_waitcnt vmcnt({min(n,63)})")
            ring.q = ring.q[last + 1:]
    if LDTS[0] and Prof.n < 22: ts(a, "vm", True)
    a("s_barrier")
    if LDTS[0] and Prof.n < 22: ts(a, "bar", True)
    if consumed >= SL: consumed = SLP
    upto = (consumed + RING) // 16 * 16
    if cap is not None: upto = min(upto, (cap + 15) // 16 * 16)
    if upto > ring.I:
        loader_issue(a, ring.I, upto, ring)
        ring.I = upto

def stats_finalize(a, accS, accQ, vRho, vMu, tmp, double_ln):
    t0, t1, t2, t3 = tmp, tmp + 1, tmp + 2, tmp + 3
    a(f"v_and_b32 v{t0}, 3, v1")
    a(f"v_mov_b32 v{t1}, v{accQ}")
    for r in (1, 2, 3):
        a(f"v_cmp_eq_u32 vcc, {r}, v{t0}")
        a(f"v_cndmask_b32 v{t1}, v{t1}, v{accQ+r}, vcc")
    a(f"v_lshrrev_b32 v{t2}, 2, v3\nv_lshlrev_b32 v{t2}, 4, v{t2}\nv_add_u32 v{t2}, v{t2}, v3\nv_lshlrev_b32 v{t2}, 2, v{t2}")
    a(f"ds_bpermute_b32 v{t1}, v{t2}, v{t1}")
    a(f"v_mul_f32 v{t0}, {f2u(1.0/D):#x}, v{accS}")
    a("s_waitcnt lgkmcnt(0)")
    a(f"v_mul_f32 v{t1}, {f2u(1.0/D):#x}, v{t1}")
    a(f"v_fma_f32 v{t1}, -v{t0}, v{t0}, v{t1}")
    a(f"v_max_f32 v{t1}, 0, v{t1}")
    a(f"v_add_f32 v{t2}, {f2u(1e-5):#x}, v{t1}")
    a(f"v_rsq_f32 v{t2}, v{t2}")
    if double_ln:
        a(f"v_mul_f32 v{t3}, v{t2}, v{t2}")
        a(f"v_mul_f32 v{t3}, v{t3}, v{t1}")
        a(f"v_add_f32 v{t3}, {f2u(1e-5):#x}, v{t3}")
        a(f"v_rsq_f32 v{t3}, v{t3}")
        a(f"v_mul_f32 v{t2}, v{t2}, v{t3}")
    a(f"v_mov_b32 v{vRho}, v{t2}")
    a(f"v_mul_f32 v{vMu}, v{t0}, v{t2}")

def set_bases(a, delta):
    a(f"s_and_b32 s45, s34, 1\ns_mul_i32 s44, s45, {delta*KB}\nv_add_u32 v6, s44, v5\nv_add_u32 v7, 0x10000, v6")
    a(f"s_xor_b32 s45, s45, 1\ns_mul_i32 s44, s45, {(RING-delta)*KB}\nv_add_u32 v2, s44, v5")
def rdA(a, f0, delta, reg):
    o = f0 % RING
    if o + delta < RING:
        ob = o * KB
        base = 6 if ob < 65536 else 7
        return a.lg(f"ds_read_b128 v[{reg}:{reg+3}], v{base} offset:{ob % 65536}")
    return a.lg(f"ds_read_b128 v[{reg}:{reg+3}], v2 offset:{(o - (RING - delta)) * KB}")

def make_units(nA, segs, G):
    return [(i, t0, min(nA, t0 + G), si) for si, (i0, i1) in enumerate(segs) for i in range(i0, i1) for t0 in range(0, nA, G)]

def kloop2(a, fbase, span, delta, nA, segs, breg, acc0, acc1, stats, G, before=None, after=None, hook=None, D=1):
    units = make_units(nA, segs, G)
    NB = D + 1
    def rd(n, k):
        i, t0, t1, si = units[n]
        return rdA(a, fbase + i * span + t0 + k, delta, VA + ((n % NB) * G + k) * 4)
    def cnt(n): return units[n][2] - units[n][1]
    nbar = [0]
    def barrier():
        if hook: hook(nbar[0], False)
        a("s_barrier")
        if hook: hook(nbar[0], True)
        nbar[0] += 1
    barrier()
    seen = 0
    pend = {}
    for n in range(min(D, len(units))):
        if units[n][3] > seen: barrier(); seen = units[n][3]
        pend[n] = [rd(n, k) for k in range(cnt(n))]
    for n, u in enumerate(units):
        i, t0, t1, si = u
        nx = n + D if n + D < len(units) else None
        if nx is not None and units[nx][3] > seen:
            barrier(); seen = units[nx][3]
        if t0 == 0 and before: before(i)
        b0, b1 = breg(i)
        def m(d, A, B):
            c = "0" if i == 0 else f"v[{d}:{d+3}]"
            a(f"v_mfma_f32_16x16x32_bf16 v[{d}:{d+3}], v[{A}:{A+3}], v[{B}:{B+3}], {c}")
        nn = cnt(nx) if nx is not None else 0
        nxt = []
        for t in range(t0, t1):
            ra = VA + ((n % NB) * G + t - t0) * 4
            a.wait_lg(pend[n][t - t0])
            m(acc0 + 4 * t, ra, b0)
            if len(nxt) < nn: nxt.append(rd(nx, len(nxt)))
            m(acc1 + 4 * t, ra, b1)
            if len(nxt) < nn and (t - t0) % 2 == 0 and nn > (t1 - t0): nxt.append(rd(nx, len(nxt)))
        while len(nxt) < nn: nxt.append(rd(nx, len(nxt)))
        if stats and t1 == nA:
            m(VST, VONE, b0); m(VST + 4, b0, b0)
            if stats == 2: m(VSO, VONE, b1); m(VSO + 4, b1, b1)
        if nx is not None: pend[nx] = nxt
        if t1 == nA and after: after(i)

def loader_kloop2(a, ring, fbase, span, nA, segs, G, D=1, docap=False):
    units = make_units(nA, segs, G)
    cap = fbase + segs[-1][1] * span if docap else None
    loader_bp(a, ring, fbase + segs[0][1] * span, fbase, cap)
    seen = 0
    for n in range(min(D, len(units))):
        if units[n][3] > seen:
            seen = units[n][3]; loader_bp(a, ring, fbase + segs[seen][1] * span, fbase, cap)
    for n, u in enumerate(units):
        nx = n + D if n + D < len(units) else None
        if nx is not None and units[nx][3] > seen:
            seen = units[nx][3]
            loader_bp(a, ring, fbase + segs[seen][1] * span, fbase + u[0] * span, cap)

def store_tiles(a, srcs, ntiles, vaddr16, vaddr8, srd_, soff, imm_stride, sc, tmp=56):
    st = []
    i = 0
    while i < ntiles:
        if i + 1 < ntiles:
            t = tmp + 4 * ((i // 2) % 2)
            a(f"v_mov_b32 v{t}, v{srcs[i]}\nv_mov_b32 v{t+1}, v{srcs[i]+1}\nv_mov_b32 v{t+2}, v{srcs[i+1]}\nv_mov_b32 v{t+3}, v{srcs[i+1]+1}")
            a(f"v_permlane16_swap_b32 v{t}, v{t+2}\nv_permlane16_swap_b32 v{t+1}, v{t+3}")
            st.append(f"buffer_store_dwordx4 v[{t}:{t+3}], v{vaddr16}, s[{srd_}:{srd_+3}], {soff} offen offset:{i*imm_stride} {sc}")
            i += 2
        else:
            st.append(f"buffer_store_dwordx2 v[{srcs[i]}:{srcs[i]+1}], v{vaddr8}, s[{srd_}:{srd_+3}], {soff} offen offset:{i*imm_stride} {sc}")
            i += 1
    if sc == "@SC": xstore(a, "\n".join(st))
    else: a("\n".join(st))

def frag_addr(a, v16, v8, Tsgpr, tmp):
    a(f"v_lshrrev_b32 v{v8}, 1, v4\nv_lshlrev_b32 v{v8}, 8, v{v8}\nv_lshl_add_u32 v{v8}, v3, 4, v{v8}")
    a(f"s_lshl_b32 s45, s{Tsgpr}, 9\nv_add_u32 v{v8}, s45, v{v8}")
    a(f"v_and_b32 v{tmp}, 1, v4\nv_lshl_add_u32 v{v16}, v{tmp}, 9, v{v8}\nv_lshl_add_u32 v{v8}, v{tmp}, 3, v{v8}")

def code_prefetch(a, first, last, wave, nkb=32):
    L = newlab("cpf")
    a(f"s_cmp_eq_u32 s34, {wave}\ns_cbranch_scc0 {L}")
    a(f"s_getpc_b64 s[40:41]")
    here = newlab("pc"); a.label(here)
    a(f"s_sub_u32 s40, s40, {here}-{first}\ns_subb_u32 s41, s41, 0")
    a("v_lshlrev_b32 v8, 6, v1")
    for i in range(nkb // 4):
        a(f"global_load_dword v{10+i}, v8, s[40:41]")
        a("v_add_u32 v8, 4096, v8")
    a.label(L)

def gen_main():
    a = Asm(); name = "main_kernel"
    kernel_begin(a, name, 256)
    a("s_load_dwordx2 s[4:5], s[0:1], 96")
    a("s_load_dwordx2 s[6:7], s[0:1], 0")
    a("s_load_dwordx2 s[24:25], s[0:1], 56")
    a("s_load_dwordx4 s[28:31], s[0:1], 72")
    a("v_and_b32 v1, 63, v0")
    a("v_lshrrev_b32 v2, 6, v0")
    a("v_readfirstlane_b32 s34, v2")
    a("v_and_b32 v3, 15, v1\nv_lshrrev_b32 v4, 4, v1\nv_lshlrev_b32 v5, 4, v1")
    a("s_and_b32 s35, s2, 31\ns_lshr_b32 s36, s2, 5\ns_mov_b32 s37, 0")
    a("s_waitcnt lgkmcnt(0)")
    a("s_mov_b32 s26, s28\ns_mov_b32 s27, s29\ns_mov_b32 s28, s30\ns_mov_b32 s29, s31")
    srd(a, 8, 4, 0, WS_BYTES)
    a("s_lshl_b32 s67, s35, 2\ns_and_b32 s38, s34, 3\ns_add_u32 s67, s67, s38\ns_lshl_b32 s66, s67, 4\ns_xor_b32 s65, s67, 1\ns_mul_i32 s68, s36, 5")
    a(f"s_lshl_b32 s69, s38, 12\ns_mul_i32 s60, s36, {SL*KB}\ns_add_u32 s60, s60, s69\ns_add_u32 s60, s60, {WST}")
    a("s_mov_b32 s59, 0\ns_getreg_b32 s58, hwreg(HW_REG_XCC_ID, 0, 4)\ns_add_u32 s58, s58, 1")
    a("s_cmp_eq_u32 s34, 0\ns_cbranch_scc0 pro_x")
    a(f"s_lshl_b32 s40, s35, 5\ns_lshl_b32 s41, s36, 2\ns_add_u32 s40, s40, s41\ns_add_u32 s40, s40, {XID}\nv_mov_b32 v8, 0\nv_mov_b32 v9, s58")
    a("s_mov_b64 s[42:43], exec\ns_mov_b64 exec, 1\nbuffer_store_dword v9, v8, s[8:11], s40 offen sc1\ns_mov_b64 exec, s[42:43]")
    a.label("pro_x")
    ts(a, "start")
    if "cpf" in sys.argv:
        code_prefetch(a, "main_kernel", "main_kernel_exit", 7)
    a("s_cmp_ge_u32 s34, 4\ns_cbranch_scc0 pro_c")
    loader_issue(a, 0, RING)
    a("s_branch pro_d")
    a.label("pro_c")
    a("v_add_u32 v6, s66, v3")
    a("v_mul_u32_u24 v56, 1280, v6\nv_lshl_add_u32 v56, v4, 3, v56\ns_mul_i32 s40, s36, 160\nv_add_u32 v56, s40, v56")
    srd(a, 12, 6, 0, XBYTES)
    for i in range(5):
        a(f"buffer_load_dwordx2 v[{RES+2*i}:{RES+2*i+1}], v56, s[12:15], 0 offen offset:{i*32}")
    a.label("pro_d")
    a.label("layer_top")
    ring = Ring()
    ld = Asm()
    def tile_offs(base_imm, layer_stride, tile_bytes, ksplit):
        a(f"s_mul_i32 s40, s67, {tile_bytes}\ns_mul_i32 s41, s65, {tile_bytes}")
        if layer_stride:
            a(f"s_mul_i32 s45, s37, {layer_stride}\ns_add_u32 s45, s45, {base_imm}")
        else:
            a(f"s_mov_b32 s45, {base_imm}")
        if ksplit:
            a("s_and_b32 s44, s34, 1\ns_lshl_b32 s44, s44, 10\ns_add_u32 s45, s45, s44")
        a("s_add_u32 s40, s40, s45\ns_add_u32 s41, s41, s45")
    class BL:
        def __init__(self, stride, nslots, sc="sc1"): self.stride, self.n, self.tag, self.cur, self.sc = stride, nslots, {}, 0, sc
        def regs(self, i): r = VB + 8 * (i % self.n); return (r, r + 4)
        def load(self, i):
            o = i * self.stride
            if o - self.cur > 4095 - 1023 * 0 or o - self.cur >= 4096:
                d = (o - self.cur) // 4096 * 4096
                a(f"s_add_u32 s40, s40, {d}\ns_add_u32 s41, s41, {d}"); self.cur += d
            r0, r1 = self.regs(i)
            if "noB" in sys.argv and i >= 2:
                self.tag[i] = a.nvm; return
            a.vm(f"buffer_load_dwordx4 v[{r0}:{r0+3}], v5, s[8:11], s40 offen offset:{o - self.cur} {self.sc}")
            self.tag[i] = a.vm(f"buffer_load_dwordx4 v[{r1}:{r1+3}], v5, s[8:11], s41 offen offset:{o - self.cur} {self.sc}")
    def flag_line(dst, kind, tile_sgpr=None, pair=False, layer_delta=0):
        a(f"s_lshl_b32 s{dst}, s37, 13")
        if pair: a(f"s_and_b32 s45, s67, -2\ns_lshl_b32 s45, s45, 6")
        else: a(f"s_lshl_b32 s45, s{tile_sgpr}, 6")
        a(f"s_add_u32 s{dst}, s{dst}, s45\ns_add_u32 s{dst}, s{dst}, {XF + kind*16384 + layer_delta}")
    def reduce_pair(acc0, acc1, NT, stats, t0=56):
        a(f"s_and_b32 s45, s34, 3\ns_lshl_b32 s44, s45, 13\ns_add_u32 s44, s44, {KVL}\nv_add_u32 v{t0}, s44, v5")
        for t in range(NT): a(f"ds_write_b128 v{t0}, v[{acc1+4*t}:{acc1+4*t+3}] offset:{t*1024}")
        if stats:
            a(f"ds_write_b128 v{t0}, v[{VSO}:{VSO+3}] offset:{6*1024}\nds_write_b128 v{t0}, v[{VSO+4}:{VSO+7}] offset:{7*1024}")
        a(f"s_xor_b32 s45, s45, 1\ns_lshl_b32 s44, s45, 13\ns_add_u32 s44, s44, {KVL}\nv_add_u32 v{t0+1}, s44, v5")
        a("s_waitcnt lgkmcnt(0)\ns_barrier")
        for t in range(NT): a(f"ds_read_b128 v[{VA+4*t}:{VA+4*t+3}], v{t0+1} offset:{t*1024}")
        if stats:
            a(f"ds_read_b128 v[{VSO}:{VSO+3}], v{t0+1} offset:{6*1024}\nds_read_b128 v[{VSO+4}:{VSO+7}], v{t0+1} offset:{7*1024}")
        a("s_waitcnt lgkmcnt(0)")
        for t in range(NT * 4): a(f"v_add_f32 v{acc0+t}, v{acc0+t}, v{VA+t}")
        if stats:
            for t in range(8): a(f"v_add_f32 v{VST+t}, v{VST+t}, v{VSO+t}")
    ones = lambda: a("v_mov_b32 v52, 0x3f803f80\nv_mov_b32 v53, 0x3f803f80\nv_mov_b32 v54, 0x3f803f80\nv_mov_b32 v55, 0x3f803f80")
    DEP = 2 if 'dep1' not in sys.argv else 1
    A0, A1 = 204, 224
    a("s_cmp_ge_u32 s34, 4\ns_cbranch_scc1 ld_qkv")
    a.nvm = 0; a.nlg = 0
    a(f"s_mul_i32 s45, s36, 384\ns_add_u32 s45, s45, {CSQ}\nv_lshlrev_b32 v58, 4, v4")
    for i in range(6): a(f"buffer_load_dwordx4 v[{8+4*i}:{8+4*i+3}], v58, s[8:11], s45 offen offset:{i*64}")
    a(f"s_min_u32 s46, s36, 2\ns_lshl_b32 s46, s46, 6\ns_add_u32 s46, s46, {BKV}")
    a(f"buffer_load_dwordx4 v[32:35], v58, s[8:11], s46 offen")
    ones(); set_bases(a, 1)
    a("s_cmp_eq_u32 s37, 0\ns_cbranch_scc1 qkv_l0")
    flag_line(46, 3, pair=True, layer_delta=-8192)
    await_flags(a, 0x00FF00FF, 46)
    a.label("qkv_l0")
    ts(a, "qkv_ready")
    tile_offs(XF0, X2 - XF0, 20480, True)
    bl = BL(2048, 10)
    for i in range(10): bl.load(i)
    kloop2(a, FQ, 2, 1, 1, [(0, 10)], bl.regs, A0, A1, 2, 1, before=lambda i: a.wait_vm(bl.tag[i]), D=DEP)
    ld.label("ld_qkv")
    loader_kloop2(ld, ring, FQ, 2, 1, [(0, 10)], 1, D=DEP)
    ts(a, "qkv_p1")
    reduce_pair(A0, A1, 1, True)
    ld("s_barrier")
    stats_finalize(a, VST, VST + 4, 60, 61, 56, False)
    qs = DH ** -0.5 * LOG2E
    a(f"v_mul_f32 v62, {f2u(qs):#x}, v60\nv_mul_f32 v63, {f2u(qs):#x}, v61")
    a("s_cmp_lt_u32 s36, 3\ns_cbranch_scc0 qkv_nokv")
    i = 5
    for r in range(4):
        a(f"v_fma_f32 v{48+r}, -v61, v{8+4*i+r}, v{32+r}")
        a(f"v_fma_f32 v{48+r}, v60, v{A0+r}, v{48+r}")
    a("v_cvt_pk_bf16_f32 v52, v48, v49\nv_cvt_pk_bf16_f32 v53, v50, v51")
    a("s_and_b32 s38, s34, 1")
    a(f"s_and_b32 s41, s34, 3\ns_lshl_b32 s41, s41, 10\ns_add_u32 s41, s41, {KVL + 32*KB}")
    a(f"s_lshr_b32 s47, s67, 1\ns_lshl_b32 s47, s47, 12\ns_mul_i32 s48, s37, {KVB[1]-KVB[0]}\ns_add_u32 s47, s47, s48\ns_add_u32 s47, s47, {KVB[0]}")
    def vwrite(rowoff, hstride):
        a(f"v_bfe_u32 v54, v3, 2, 1\nv_mul_u32_u24 v54, {hstride}, v54")
        a("v_bfe_u32 v55, v3, 3, 1\nv_lshl_add_u32 v54, v55, 3, v54")
        a("v_and_b32 v55, 3, v3\nv_lshl_add_u32 v54, v55, 1, v54")
        a(f"v_add3_u32 v54, v54, v{rowoff}, s41")
        a("ds_write_b16 v54, v52\nds_write_b16_d16_hi v54, v52 offset:16\nds_write_b16 v54, v53 offset:32\nds_write_b16_d16_hi v54, v53 offset:48")
    a("s_cmp_eq_u32 s36, 0\ns_cbranch_scc1 qkv_kvA")
    a("s_cmp_eq_u32 s36, 1\ns_cbranch_scc1 qkv_kvB")
    a("v_lshlrev_b32 v47, 3, v3\nv_add_u32 v47, s41, v47\nv_add_u32 v54, 128, v47\nv_cmp_eq_u32 vcc, 3, v4\nv_cndmask_b32 v47, v47, v54, vcc")
    a("v_cmp_eq_u32 vcc, 0, v4\nv_cmp_eq_u32 s[48:49], 3, v4\ns_or_b64 vcc, vcc, s[48:49]")
    a("s_and_saveexec_b64 s[50:51], vcc")
    a("ds_write_b64 v47, v[52:53]")
    a("s_andn2_b64 exec, s[50:51], exec")
    a("v_lshlrev_b32 v47, 6, v4\nv_add_u32 v47, 192, v47")
    vwrite(47, 128)
    a("s_mov_b64 exec, s[50:51]")
    a("v_and_b32 v47, 7, v1\nv_lshlrev_b32 v47, 4, v47\nv_bfe_u32 v54, v1, 3, 2")
    a("s_lshl_b32 s49, s38, 7\ns_add_u32 s49, s49, 1024\ns_lshl_b32 s50, s38, 10\ns_add_u32 s50, s50, 2304")
    a("v_mov_b32 v55, s49\ns_add_u32 s51, s49, 256\nv_mov_b32 v50, s51\nv_cmp_eq_u32 vcc, 1, v54\nv_cndmask_b32 v55, v55, v50, vcc")
    a("v_mov_b32 v50, s50\nv_cmp_eq_u32 vcc, 2, v54\nv_cndmask_b32 v55, v55, v50, vcc")
    a("s_add_u32 s51, s50, 512\nv_mov_b32 v50, s51\nv_cmp_eq_u32 vcc, 3, v54\nv_cndmask_b32 v55, v55, v50, vcc")
    a("v_add_u32 v47, v47, v55")
    a("s_branch qkv_kvout")
    a.label("qkv_kvB")
    a("v_lshlrev_b32 v47, 6, v4")
    vwrite(47, 256)
    a("v_lshlrev_b32 v47, 4, v3\nv_and_b32 v54, 1, v4\nv_lshl_add_u32 v47, v54, 9, v47\ns_lshl_b32 s49, s38, 10\ns_add_u32 s49, s49, 2048\nv_add_u32 v47, s49, v47")
    a("s_branch qkv_kvout")
    a.label("qkv_kvA")
    a("v_lshrrev_b32 v47, 1, v4\nv_lshlrev_b32 v47, 8, v47\nv_lshl_add_u32 v47, v3, 4, v47\nv_and_b32 v54, 1, v4\nv_lshl_add_u32 v47, v54, 3, v47\nv_add_u32 v47, s41, v47")
    a("ds_write_b64 v47, v[52:53]")
    a("s_lshl_b32 s49, s38, 8\nv_lshlrev_b32 v47, 4, v3\nv_and_b32 v54, 1, v4\nv_lshl_add_u32 v47, v54, 9, v47\nv_add_u32 v47, s49, v47")
    a.label("qkv_kvout")
    a("v_add_u32 v54, s41, v5")
    a("s_waitcnt lgkmcnt(0)")
    a("s_mov_b64 s[50:51], exec\ns_mov_b64 exec, 0xffffffff")
    a("ds_read_b128 v[48:51], v54\ns_waitcnt lgkmcnt(0)")
    a("buffer_store_dwordx4 v[48:51], v47, s[8:11], s47 offen sc1")
    a("s_mov_b64 exec, s[50:51]")
    a.label("qkv_nokv")
    ts(a, "qkv_kv")
    set_bases(a, 5)
    segs = [(0, 2), (2, 4), (4, 6), (6, 8), (8, 10)]
    def kvhook(si, after):
        if si != (3 if DEP == 2 else 2): return
        if not after:
            a("s_waitcnt vmcnt(0)")
        else:
            Lx = newlab("kvpub")
            a(f"s_cmp_eq_u32 s34, 0\ns_cbranch_scc0 {Lx}\ns_cmp_lt_u32 s36, 3\ns_cbranch_scc0 {Lx}")
            a(f"s_lshl_b32 s46, s37, 13\ns_lshr_b32 s45, s35, 3\ns_lshl_b32 s45, s45, 11\ns_add_u32 s46, s46, s45\ns_add_u32 s46, s46, {KVF}\nv_lshlrev_b32 v56, 8, v1\nv_mov_b32 v57, 1")
            a("s_mov_b64 s[42:43], exec\ns_mov_b64 exec, 0xff")
            a("buffer_atomic_add v57, v56, s[8:11], s46 offen")
            a("s_mov_b64 exec, s[42:43]")
            a.label(Lx)
    kloop2(a, FQ + 20, 10, 5, 5, segs, bl.regs, A0, A1, 0, 5, hook=kvhook, D=DEP)
    loader_kloop2(ld, ring, FQ + 20, 10, 5, segs, 5, D=DEP)
    ts(a, "qkv_kloop")
    KV0 = 32
    def K1(b): return KV0 + 16 * b
    def K2(b): return KV0 + 16 * b + 4
    def V1(b): return KV0 + 16 * b + 8
    def ldK(b):
        a(f"buffer_load_dwordx4 v[{K1(b)}:{K1(b)+3}], v5, s[8:11], s47 offen sc1")
        a(f"buffer_load_dwordx2 v[{K2(b)}:{K2(b)+1}], v170, s[8:11], s47 offen offset:1024 sc1")
    def ldV(b, h):
        a(f"buffer_load_dwordx4 v[{V1(b)+4*h}:{V1(b)+4*h+3}], v5, s[8:11], s47 offen offset:{2048+1024*h} sc1")
    def kv_poll_issue():
        a(f"s_and_b32 s38, s34, 3\ns_lshl_b32 s46, s37, 13\ns_lshl_b32 s45, s38, 11\ns_add_u32 s46, s46, s45\ns_and_b32 s45, s2, 7\ns_lshl_b32 s45, s45, 8\ns_add_u32 s46, s46, s45\ns_add_u32 s46, s46, {KVF}\nv_mov_b32 v175, 0")
        a("buffer_load_dword v176, v175, s[8:11], s46 offen sc1")
    def kv_poll_wait():
        Lp, Ld = newlab("kvp"), newlab("kvpd")
        a("s_mov_b32 s48, 0")
        a.label(Lp)
        a("s_add_u32 s48, s48, 1\ns_waitcnt vmcnt(0)")
        a("v_readfirstlane_b32 s45, v176")
        a(f"s_cmp_ge_u32 s45, 24\ns_cbranch_scc1 {Ld}")
        a(f"s_cmp_gt_u32 s48, {SPIN_MAX}\ns_cbranch_scc1 {Ld}")
        a("s_sleep 1\nbuffer_load_dword v176, v175, s[8:11], s46 offen sc1")
        a(f"s_branch {Lp}")
        a.label(Ld)
    def kv_prologue():
        a(f"s_and_b32 s38, s34, 3\ns_mul_i32 s47, s37, {KVB[1]-KVB[0]}\ns_add_u32 s47, s47, {KVB[0]}\ns_lshl_b32 s48, s38, 16\ns_add_u32 s47, s47, s48")
        ldK(0); ldV(0, 0); ldV(0, 1)
        a("s_add_u32 s47, s47, 4096")
        ldK(1)
    a("v_lshlrev_b32 v170, 3, v1")
    kv_poll_issue()
    reduce_pair(A0, A1, 5, False, t0=194)
    ld("s_barrier")
    kv_poll_wait()
    kv_prologue()
    a("s_and_b32 s38, s34, 3\ns_lshl_b32 s38, s38, 4\nv_add_u32 v184, s38, v3\nv_mul_u32_u24 v184, 192, v184")
    a(f"v_add_u32 v184, {KVL + 36*KB}, v184")
    for i in range(5):
        for r in range(4):
            a(f"v_mul_f32 v{188+r}, v63, v{8+4*i+r}")
            a(f"v_fma_f32 v{188+r}, v62, v{A0+4*i+r}, -v{188+r}")
        a(f"v_cvt_pk_bf16_f32 v192, v188, v189\nv_cvt_pk_bf16_f32 v193, v190, v191")
        a(f"v_add_u32 v185, {4*i}, v4\nv_mul_u32_u24 v186, 52, v185\nv_lshrrev_b32 v186, 8, v186\nv_add_u32 v185, v185, v186\nv_lshl_add_u32 v185, v185, 3, v184")
        a("ds_write_b64 v185, v[192:193]")
    a("s_waitcnt lgkmcnt(0)")
    a("s_barrier")
    loader_bp(ld, ring, None, FO)
    ld("s_branch att_top")
    a.label("att_top")
    ts(a, "qkv_done")
    QB_, P, SA, SB, O = 8, 64, 72, 88, 104
    def Q1(i): return QB_ + 6 * i
    def Q2(i): return QB_ + 6 * i + 4
    a("v_and_b32 v6, 31, v1\nv_lshrrev_b32 v7, 5, v1\nv_lshlrev_b32 v170, 3, v1")
    a("s_cmp_ge_u32 s34, 4\ns_cbranch_scc0 att_q")
    kv_poll_issue()
    a.label("att_q")
    a("s_and_b32 s38, s34, 3\ns_lshr_b32 s39, s34, 2")
    a("v_lshrrev_b32 v171, 2, v6\nv_mul_u32_u24 v171, 192, v171\nv_and_b32 v172, 3, v6\nv_mul_u32_u24 v172, 48, v172\nv_add_u32 v171, v171, v172")
    for i in range(4):
        a(f"s_add_u32 s40, s38, {i}\ns_and_b32 s40, s40, 3\ns_lshl_b32 s41, s39, 2\ns_add_u32 s40, s40, s41\ns_mul_i32 s40, s40, {8*192}\ns_add_u32 s40, s40, {KVL + 36*KB}")
        a(f"v_add_u32 v173, s40, v171\nv_lshl_add_u32 v174, v7, 4, v173")
        a(f"ds_read_b128 v[{Q1(i)}:{Q1(i)+3}], v174\nds_read_b64 v[{Q2(i)}:{Q2(i)+1}], v173 offset:32")
    FLAGW = KVL + 48 * KB - 64
    a("s_mov_b32 s57, 0")
    a("s_waitcnt lgkmcnt(0)")
    a("v_cmp_eq_u32 vcc, 1, v7")
    for i in range(4):
        a(f"v_cndmask_b32 v{Q2(i)}, v{Q2(i)}, 0, vcc\nv_cndmask_b32 v{Q2(i)+1}, v{Q2(i)+1}, 0, vcc")
    a("s_cmp_ge_u32 s34, 4\ns_cbranch_scc0 att_go")
    kv_poll_wait()
    a.label("att_main")
    kv_prologue()
    a.label("att_go")
    ts(a, "kv_ready")
    for r in range(64): a(f"v_mov_b32 v{O+r}, 0")
    def qk1(Sd, b, i): a(f"v_mfma_f32_32x32x16_bf16 v[{Sd}:{Sd+15}], v[{K1(b)}:{K1(b)+3}], v[{Q1(i)}:{Q1(i)+3}], 0")
    def qk2(Sd, b, i): a(f"v_mfma_f32_32x32x8_bf16 v[{Sd}:{Sd+15}], v[{K2(b)}:{K2(b)+1}], v[{Q2(i)}:{Q2(i)+1}], v[{Sd}:{Sd+15}]")
    def pv(i, b, h): a(f"v_mfma_f32_32x32x16_bf16 v[{O+16*i}:{O+16*i+15}], v[{V1(b)+4*h}:{V1(b)+4*h+3}], v[{P+4*h}:{P+4*h+3}], v[{O+16*i}:{O+16*i+15}]")
    for r in range(4, 8): a(f"v_mov_b32 v{P+r}, 0\nv_mov_b32 v{V1(1)+r}, 0\nv_mov_b32 v{SB+8+r}, 0")
    a("s_waitcnt vmcnt(4)")
    qk1(SA, 0, 0); qk2(SA, 0, 0)
    a("s_mov_b32 s49, 0")
    a("s_cmp_eq_u32 s37, 0\ns_cbranch_scc0 att_nochk")
    a(f"s_lshl_b32 s46, s35, 5\ns_add_u32 s46, s46, {XID}")
    await_flags(a, 0xFF, 46, vtmp=175)
    a("s_mov_b64 s[42:43], exec\ns_mov_b64 exec, 0xff\nv_cmp_ne_u32 vcc, s58, v176\ns_cmp_eq_u64 vcc, 0\ns_cselect_b32 s59, 1, 0\ns_mov_b64 exec, s[42:43]")
    if "noxcd" in sys.argv: a("s_mov_b32 s59, 0")
    a.label("att_nochk")
    PFQ = int([x for x in sys.argv if x.startswith("pfq=")][0][4:]) if any(x.startswith("pfq=") for x in sys.argv) else 96
    PF = "nopf" not in sys.argv
    if PF:
        a(f"s_mul_i32 s88, s36, {SL*KB}\ns_lshr_b32 s45, s35, 3\ns_mul_i32 s45, s45, {PFQ*KB}\ns_add_u32 s88, s88, s45\ns_add_u32 s88, s88, {WST + 224*KB}")
        a(f"s_lshl_b32 s45, s34, 12\ns_add_u32 s88, s88, s45\ns_add_u32 s89, s88, 32768\ns_add_u32 s90, s88, 65536")
        if "nopfw" in sys.argv: a(f"s_mov_b32 s88, {KVB[0]}\ns_mov_b32 s89, s88\ns_mov_b32 s90, s88")
        a("s_and_b32 s40, s34, 3\ns_lshl_b32 s41, s35, 2\ns_add_u32 s40, s40, s41")
        a("s_cmp_ge_u32 s34, 4\ns_cbranch_scc1 dst_h")
        a(f"s_mul_i32 s41, s40, 20480\ns_mul_i32 s45, s36, 2560\ns_add_u32 s41, s41, s45")
        a(f"s_mul_i32 s91, s37, {OB[1]-OB[0]}\ns_add_u32 s91, s91, {OB[0]}\ns_add_u32 s91, s91, s41")
        a(f"s_mul_i32 s92, s37, {X1[1]-X1[0]}\ns_add_u32 s92, s92, {X1[0]}\ns_add_u32 s92, s92, s41")
        a(f"s_add_u32 s93, s41, {X2}\ns_mov_b32 s61, 3\ns_mov_b32 s62, 39")
        a("s_branch dst_d")
        a.label("dst_h")
        a("s_lshr_b32 s44, s36, 1\ns_mul_i32 s44, s44, 27\ns_and_b32 s45, s36, 1\ns_mul_i32 s45, s45, 14\ns_add_u32 s44, s44, s45\ns_lshl_b32 s44, s44, 9")
        a(f"s_mul_i32 s41, s40, 55296\ns_add_u32 s44, s44, s41\ns_mul_i32 s45, s37, {HB[1]-HB[0]}\ns_add_u32 s44, s44, s45\ns_add_u32 s91, s44, {HB[0]}")
        a("s_add_u32 s92, s91, 4096\ns_mov_b32 s93, s92\ns_mov_b32 s61, 4\ns_bitcmp1_b32 s36, 0\ns_cselect_b32 s62, 39, 47")
        a.label("dst_d")
        a("s_mov_b32 s94, s93\ns_mov_b32 s95, s93")
    if "noout" not in sys.argv:
        a("s_cmp_eq_u32 s37, 1\ns_cbranch_scc0 outpf_d\ns_cmp_ge_u32 s34, 4\ns_cbranch_scc0 outpf_d")
        srd(a, 16, 28, 0, XBYTES)
        a("v_add_u32 v179, s66, v3\nv_mul_u32_u24 v179, 1280, v179\nv_lshl_add_u32 v179, v4, 6, v179\ns_mul_i32 s40, s36, 160\ns_and_b32 s40, s40, -64\nv_add_u32 v179, s40, v179")
        a("buffer_load_dword v178, v179, s[16:19], 0 offen")
        a.label("outpf_d")
    a("s_nop 7")
    ts(a, "att_start")
    a.label("att_loop")
    if "altprio" in sys.argv:
        a("s_lshr_b32 s45, s34, 2\ns_add_u32 s45, s45, s49\ns_bitcmp1_b32 s45, 0\ns_cbranch_scc1 att_p1\ns_setprio 0\ns_branch att_p2")
        a.label("att_p1"); a("s_setprio 1"); a.label("att_p2")
    if "hiprio" in sys.argv:
        a("s_cmp_ge_u32 s34, 4\ns_cbranch_scc0 att_p2\ns_setprio 1"); a.label("att_p2")
    ex = lambda Sc, r: a(f"v_exp_f32 v{Sc+r}, v{Sc+r}")
    cv = lambda Sc, q: a(f"v_cvt_pk_bf16_f32 v{P+q}, v{Sc+2*q}, v{Sc+2*q+1}")
    for kk in range(2):
        b = kk
        for q in range(4):
            u = kk * 4 + q
            Sc, Sn = (SA, SB) if u % 2 == 0 else (SB, SA)
            pq, pb = (q - 1) % 4, (b if q > 0 else 1 - b)
            nq, nb = (q + 1) % 4, (b if q < 3 else 1 - b)
            if "altprio2" in sys.argv and q == 0:
                L1, L2 = newlab("ap"), newlab("ap")
                a(f"s_lshr_b32 s45, s34, 2\ns_bitcmp1_b32 s45, 0\ns_cbranch_scc1 {L1}\ns_setprio {kk}\ns_branch {L2}")
                a.label(L1); a(f"s_setprio {1-kk}"); a.label(L2)
            ex(Sc, 0); ex(Sc, 1); cv(Sn, 6); cv(Sn, 7); ex(Sc, 2); ex(Sc, 3)
            if q == 3: a(f"s_waitcnt vmcnt({3 if (PF and kk == 1) else 2})")
            qk1(Sn, nb, nq)
            ex(Sc, 4); ex(Sc, 5); cv(Sc, 0); cv(Sc, 1); ex(Sc, 6); ex(Sc, 7)
            qk2(Sn, nb, nq)
            if q == 3:
                a("s_add_u32 s47, s47, 4096")
                ldK(b)
                if PF and kk == 0:
                    a("s_mov_b32 m0, s49\ns_cmp_lt_u32 s49, s61\ns_cselect_b32 s63, 63, s62\ns_movrels_b32 s50, s88")
                    a("v_min_u32 v177, s63, v1\nv_lshlrev_b32 v177, 6, v177")
                    a("buffer_load_dword v178, v177, s[8:11], s50 offen")
            ex(Sc, 8); ex(Sc, 9); cv(Sc, 2); cv(Sc, 3); ex(Sc, 10); ex(Sc, 11)
            pv(pq, pb, 1)
            if q == 0: ldV(1 - b, 0)
            if q == 1: ldV(1 - b, 1)
            ex(Sc, 12); ex(Sc, 13); cv(Sc, 4); cv(Sc, 5); ex(Sc, 14); ex(Sc, 15)
            if q == 0: a(f"s_waitcnt vmcnt({4 if (PF and kk == 1) else 3})")
            pv(q, b, 0)
    a("s_add_u32 s49, s49, 1\ns_cmp_lt_u32 s49, 8\ns_cbranch_scc1 att_loop")
    a("s_setprio 0")
    cv(SB, 6); cv(SB, 7)
    pv(3, 1, 1)
    ts(a, "att_loop_end")
    a(f"s_mul_i32 s40, s34, {3*1536}\ns_add_u32 s40, s40, {KVL}\nv_add_u32 v171, s40, v5\nv_add_u32 v172, s40, v170\nv_add_u32 v172, 1024, v172")
    for r in (1, 2, 3):
        t = 72 + 8 * (r - 1)
        for q in range(5): a(f"v_cvt_pk_bf16_f32 v{t+q}, v{O+16*r+2*q}, v{O+16*r+2*q+1}")
        a(f"v_mov_b32 v{t+5}, v{O+16*r+10}")
        a(f"ds_write_b128 v171, v[{t}:{t+3}] offset:{(r-1)*1536}\nds_write_b64 v172, v[{t+4}:{t+5}] offset:{(r-1)*1536}")
    a(f"v_mov_b32 v175, {FLAGW}\nv_mov_b32 v176, 0\nds_write_b32 v175, v176")
    a("s_waitcnt lgkmcnt(0)\ns_barrier")
    for r in (1, 2, 3):
        t = 72 + 8 * (r - 1)
        a(f"s_sub_u32 s41, s38, {r}\ns_and_b32 s41, s41, 3\ns_lshl_b32 s45, s39, 2\ns_add_u32 s41, s41, s45\ns_mul_i32 s41, s41, {3*1536}\ns_add_u32 s41, s41, {KVL + (r-1)*1536}")
        a(f"v_add_u32 v171, s41, v5\nv_add_u32 v172, s41, v170")
        a(f"ds_read_b128 v[{t}:{t+3}], v171\nds_read_b64 v[{t+4}:{t+5}], v172 offset:1024")
    a("s_waitcnt vmcnt(0) lgkmcnt(0)")
    for r in (1, 2, 3):
        t = 72 + 8 * (r - 1)
        for q in range(5):
            unpack2(a, 173, 174, t + q)
            a(f"v_add_f32 v{O+2*q}, v{O+2*q}, v173\nv_add_f32 v{O+2*q+1}, v{O+2*q+1}, v174")
        a(f"v_add_f32 v{O+10}, v{O+10}, v{t+5}")
    a("s_cmp_eq_u32 s57, 1\ns_cbranch_scc1 att_fin")
    a("v_mov_b32 v173, 0")
    for r in range(10): a(f"v_fma_f32 v173, v{O+r}, 0, v173")
    a(f"v_cmp_lt_f32 vcc, {f2u(2.0**-60):#x}, v{O+10}")
    a(f"v_mov_b32 v174, {f2u(2.0**60):#x}\nv_cmp_gt_f32 s[40:41], v174, v{O+10}\ns_and_b64 vcc, vcc, s[40:41]")
    a("v_cmp_eq_f32 s[40:41], 0, v173\ns_and_b64 vcc, vcc, s[40:41]")
    if "forcefb" in sys.argv: a("s_mov_b64 vcc, 0")
    a("s_cmp_eq_u64 vcc, -1\ns_cbranch_scc1 att_okw")
    a(f"v_mov_b32 v175, {FLAGW}\nv_mov_b32 v176, 1\nds_write_b32 v175, v176\ns_waitcnt lgkmcnt(0)")
    a.label("att_okw")
    a("s_barrier")
    a(f"v_mov_b32 v175, {FLAGW}\nds_read_b32 v176, v175\ns_waitcnt lgkmcnt(0)\nv_readfirstlane_b32 s40, v176")
    a("s_cmp_eq_u32 s40, 0\ns_cbranch_scc0 att_fallback")
    a.label("att_fin")
    ts(a, "att_red")
    a(f"v_rcp_f32 v173, v{O+10}")
    for r in range(10): a(f"v_mul_f32 v{O+r}, v{O+r}, v173")
    for q in range(5): a(f"v_cvt_pk_bf16_f32 v{P+q}, v{O+2*q}, v{O+2*q+1}")
    a(f"s_mul_i32 s40, s34, 1280\ns_add_u32 s40, s40, {KVL + 36864}")
    a("v_lshrrev_b32 v171, 2, v6\nv_mul_u32_u24 v171, 160, v171\nv_and_b32 v172, 3, v6\nv_mul_u32_u24 v172, 40, v172\nv_mul_u32_u24 v173, 20, v7\nv_add3_u32 v171, v171, v172, v173")
    a("v_add_u32 v171, s40, v171")
    for q in range(5): a(f"ds_write_b32 v171, v{P+q} offset:{4*q}")
    a("v_and_b32 v172, 7, v1\nv_lshrrev_b32 v173, 3, v1")
    a("v_mul_u32_u24 v174, 160, v172\nv_lshl_add_u32 v174, v173, 4, v174\nv_add_u32 v174, s40, v174")
    a("s_waitcnt lgkmcnt(0)")
    a("ds_read_b128 v[72:75], v174\nds_read_b128 v[76:79], v174 offset:128")
    a("s_and_b32 s41, s34, 1\ns_lshl_b32 s41, s41, 7\nv_lshlrev_b32 v172, 4, v172\nv_lshl_add_u32 v172, v173, 8, v172\nv_add_u32 v172, s41, v172")
    a(f"s_lshl_b32 s41, s35, 2\ns_lshr_b32 s45, s34, 1\ns_add_u32 s48, s41, s45\ns_mul_i32 s41, s48, 20480\ns_mul_i32 s45, s36, 2560\ns_add_u32 s41, s41, s45\ns_mul_i32 s45, s37, {OB[1]-OB[0]}\ns_add_u32 s41, s41, s45\ns_add_u32 s41, s41, {OB[0]}")
    a("s_waitcnt lgkmcnt(0)")
    xstore(a, "buffer_store_dwordx4 v[72:75], v172, s[8:11], s41 offen @SC\ns_mov_b64 s[42:43], exec\ns_mov_b64 exec, 0xffff\nbuffer_store_dwordx4 v[76:79], v172, s[8:11], s41 offen offset:2048 @SC\ns_mov_b64 exec, s[42:43]")
    flag_line(46, 0, tile_sgpr=48)
    a("s_lshl_b32 s45, s36, 3\ns_add_u32 s46, s46, s45\ns_and_b32 s45, s34, 1\ns_lshl_b32 s45, s45, 2\ns_add_u32 s46, s46, s45")
    set_flag(a, 46, vtmp=175)
    ts(a, "att_done")
    a("s_cmp_ge_u32 s34, 4\ns_cbranch_scc1 ld_wo")
    a.nvm = 0; a.nlg = 0
    set_bases(a, 5)
    flag_line(46, 0, pair=True)
    await_flags(a, 0xFFFFFFFF, 46)
    ts(a, "wo_ready")
    tile_offs(OB[0], OB[1] - OB[0], 20480, True)
    bl = BL(2048, 10)
    for i in range(10): bl.load(i)
    segs = [(0, 5), (5, 10)]
    kloop2(a, FO, 10, 5, 5, segs, bl.regs, A0, A1, 0, 5, before=lambda i: a.wait_vm(bl.tag[i]), D=DEP)
    ld.label("ld_wo")
    ring.drained()
    loader_kloop2(ld, ring, FO, 10, 5, segs, 5, D=DEP, docap=('capwo' in sys.argv))
    ts(a, "wo_kloop")
    reduce_pair(A0, A1, 5, False)
    loader_bp(ld, ring, None, F1)
    frag_addr(a, 60, 61, 68, 62)
    tile_offs(X1[0], X1[1] - X1[0], 20480, False)
    for i in range(5):
        unpack2(a, 48, 49, RES + 2 * i); unpack2(a, 50, 51, RES + 2 * i + 1)
        for r in range(4): a(f"v_add_f32 v{48+r}, v{48+r}, v{A0+4*i+r}")
        a(f"v_cvt_pk_bf16_f32 v{RES+2*i}, v48, v49\nv_cvt_pk_bf16_f32 v{RES+2*i+1}, v50, v51")
    store_tiles(a, [RES + 2 * i for i in range(5)], 5, 60, 61, 8, "s40", 512, "@SC", tmp=48)
    flag_line(46, 1, tile_sgpr=67)
    a("s_lshl_b32 s45, s36, 2\ns_add_u32 s46, s46, s45")
    set_flag(a, 46)
    ts(a, "wo_done")
    a.nvm = 0; a.nlg = 0
    a("s_lshr_b32 s52, s36, 1\ns_mul_i32 s52, s52, 27\ns_and_b32 s53, s36, 1\ns_mul_i32 s53, s53, 14\ns_add_u32 s52, s52, s53")
    a("s_and_b32 s53, s34, 1\ns_mul_i32 s53, s53, 7\ns_add_u32 s52, s52, s53")
    srd(a, 20, 24, 0, F * 2)
    a("s_lshl_b32 s47, s52, 5\nv_lshlrev_b32 v60, 3, v4\nv_add_u32 v60, s47, v60")
    B1R = 232
    for i in range(7): a(f"buffer_load_dwordx2 v[{B1R+2*i}:{B1R+2*i+1}], v60, s[20:23], 0 offen offset:{i*32}")
    a(f"s_mul_i32 s45, s36, 896\ns_lshl_b32 s44, s53, 6\ns_add_u32 s45, s45, s44\ns_add_u32 s45, s45, {CS1}\nv_lshlrev_b32 v58, 4, v4")
    for i in range(7): a(f"buffer_load_dwordx4 v[{8+4*i}:{8+4*i+3}], v58, s[8:11], s45 offen offset:{i*64}")
    ones(); set_bases(a, 7)
    flag_line(46, 1, pair=True)
    await_flags(a, 0x00FF00FF, 46)
    ts(a, "fc1_ready")
    tile_offs(X1[0], X1[1] - X1[0], 20480, False)
    bl = BL(1024, 10, sc=('' if 'fc1plain' in sys.argv else 'sc1'))
    for i in range(10): bl.load(i)
    segs = [(2 * s_, 2 * s_ + 2) for s_ in range(10)]
    C0, C1 = 176, 204
    kloop2(a, F1, 14, 7, 7, segs, bl.regs, C0, C1, 1, 4, before=lambda i: a.wait_vm(bl.tag[i]),
           after=lambda i: bl.load(i + 10) if i + 10 < 20 else None)
    ld.label("ld_fc1")
    loader_kloop2(ld, ring, F1, 14, 7, segs, 4, docap=('capfc1' in sys.argv))
    ts(a, "fc1_kloop")
    stats_finalize(a, VST, VST + 4, 60, 61, 56, True)
    a(f"s_and_b32 s45, s34, 3\ns_lshl_b32 s44, s45, 9\ns_add_u32 s44, s44, {KVL}\nv_lshlrev_b32 v56, 3, v1\nv_add_u32 v57, s44, v56")
    a("ds_write_b64 v57, v[60:61]")
    a(f"s_xor_b32 s45, s45, 1\ns_lshl_b32 s44, s45, 9\ns_add_u32 s44, s44, {KVL}\nv_add_u32 v57, s44, v56")
    a("s_waitcnt lgkmcnt(0)\ns_barrier")
    loader_bp(ld, ring, None, F2)
    a("ds_read_b64 v[62:63], v57")
    frag_addr(a, 58, 59, 52, 56)
    tile_offs(HB[0], HB[1] - HB[0], 55296, False)
    c0 = -2.0 * math.sqrt(2.0 / math.pi) * LOG2E
    c1 = c0 * 0.044715
    a(f"v_mov_b32 v40, {f2u(c0):#x}\nv_mov_b32 v41, v40\nv_mov_b32 v42, {f2u(c1):#x}\nv_mov_b32 v43, v42\nv_mov_b32 v46, 1.0\nv_mov_b32 v47, 1.0")
    a("s_waitcnt lgkmcnt(0)")
    def gelu_tile(i, acc, dst):
        unpack2(a, 52, 53, B1R + 2 * i); unpack2(a, 54, 55, B1R + 2 * i + 1)
        for h in range(2): a(f"v_pk_fma_f32 v[{52+2*h}:{53+2*h}], v[38:39], v[{8+4*i+2*h}:{8+4*i+2*h+1}], v[{52+2*h}:{53+2*h}]")
        for h in range(2): a(f"v_pk_fma_f32 v[{52+2*h}:{53+2*h}], v[36:37], v[{acc+4*i+2*h}:{acc+4*i+2*h+1}], v[{52+2*h}:{53+2*h}]")
        for h in range(2): a(f"v_pk_mul_f32 v[{144+2*h}:{145+2*h}], v[{52+2*h}:{53+2*h}], v[{52+2*h}:{53+2*h}]")
        for h in range(2): a(f"v_pk_fma_f32 v[{144+2*h}:{145+2*h}], v[{144+2*h}:{145+2*h}], v[42:43], v[40:41]")
        for h in range(2): a(f"v_pk_mul_f32 v[{144+2*h}:{145+2*h}], v[{144+2*h}:{145+2*h}], v[{52+2*h}:{53+2*h}]")
        for r in range(4): a(f"v_exp_f32 v{144+r}, v{144+r}")
        for h in range(2): a(f"v_pk_add_f32 v[{144+2*h}:{145+2*h}], v[{144+2*h}:{145+2*h}], v[46:47]")
        for r in range(4): a(f"v_rcp_f32 v{144+r}, v{144+r}")
        for h in range(2): a(f"v_pk_mul_f32 v[{52+2*h}:{53+2*h}], v[{52+2*h}:{53+2*h}], v[{144+2*h}:{145+2*h}]")
        a(f"v_cvt_pk_bf16_f32 v{dst}, v52, v53\nv_cvt_pk_bf16_f32 v{dst+1}, v54, v55")
    for tilesel in range(2):
        acc, rho, mu, so = (C0, 60, 61, "s40") if tilesel == 0 else (C1, 62, 63, "s41")
        a(f"v_mov_b32 v36, v{rho}\nv_mov_b32 v37, v{rho}\nv_sub_f32 v38, 0, v{mu}\nv_mov_b32 v39, v38")
        for p in range(3):
            t = 152 + 4 * (p % 2)
            gelu_tile(2 * p, acc, t); gelu_tile(2 * p + 1, acc, t + 2)
            a(f"v_permlane16_swap_b32 v{t}, v{t+2}\nv_permlane16_swap_b32 v{t+1}, v{t+3}")
            xstore(a, f"buffer_store_dwordx4 v[{t}:{t+3}], v58, s[8:11], {so} offen offset:{p*1024} @SC")
        sk = newlab("fc1sk")
        a(f"s_and_b32 s45, s36, s34\ns_bitcmp1_b32 s45, 0\ns_cbranch_scc1 {sk}")
        gelu_tile(6, acc, 160)
        xstore(a, f"buffer_store_dwordx2 v[160:161], v59, s[8:11], {so} offen offset:3072 @SC")
        a.label(sk)
    flag_line(46, 2, tile_sgpr=67)
    flag_line(47, 2, tile_sgpr=65)
    a("s_lshl_b32 s45, s36, 3\ns_and_b32 s44, s34, 1\ns_lshl_b32 s44, s44, 2\ns_add_u32 s45, s45, s44\ns_add_u32 s46, s46, s45\ns_add_u32 s47, s47, s45")
    set_flag(a, 46, second=47)
    ts(a, "fc1_done")
    a.nvm = 0; a.nlg = 0
    srd(a, 20, 26, 0, D * 2)
    a("v_lshlrev_b32 v58, 3, v4\ns_mul_i32 s40, s36, 160\nv_add_u32 v58, s40, v58")
    for i in range(5): a(f"buffer_load_dwordx2 v[{8+2*i}:{9+2*i}], v58, s[20:23], 0 offen offset:{i*32}")
    set_bases(a, 5)
    flag_line(46, 2, pair=True)
    await_flags(a, 0xFFFFFFFF, 46)
    ts(a, "fc2_ready")
    tile_offs(HB[0], HB[1] - HB[0], 55296, True)
    bl = BL(2048, 10)
    for i in range(10): bl.load(i)
    segs = [(2 * s_, min(27, 2 * s_ + 2)) for s_ in range(14)]
    SEGTS[0] = True
    kloop2(a, F2, 10, 5, 5, segs, bl.regs, A0, A1, 0, 5, before=lambda i: a.wait_vm(bl.tag[i]),
           after=lambda i: bl.load(i + 10) if i + 10 < 27 else None, D=DEP)
    ld.label("ld_fc2")
    LDTS[0] = True
    loader_kloop2(ld, ring, F2, 10, 5, segs, 5, D=DEP, docap=('capfc2' in sys.argv))
    ts(a, "fc2_kloop")
    reduce_pair(A0, A1, 5, False)
    loader_bp(ld, ring, None, SL)
    assert ring.I == SLP + RING
    for i in range(5):
        unpack2(a, 48, 49, RES + 2 * i); unpack2(a, 50, 51, RES + 2 * i + 1)
        unpack2(a, 52, 53, 8 + 2 * i); unpack2(a, 54, 55, 8 + 2 * i + 1)
        for r in range(4): a(f"v_add_f32 v{52+r}, v{52+r}, v{A0+4*i+r}")
        for r in range(4): a(f"v_add_f32 v{48+r}, v{48+r}, v{52+r}")
        a(f"v_cvt_pk_bf16_f32 v{RES+2*i}, v48, v49\nv_cvt_pk_bf16_f32 v{RES+2*i+1}, v50, v51")
    a("s_cmp_eq_u32 s37, 0\ns_cbranch_scc0 fc2_last")
    frag_addr(a, 60, 61, 68, 62)
    tile_offs(X2, 0, 20480, False)
    store_tiles(a, [RES + 2 * i for i in range(5)], 5, 60, 61, 8, "s40", 512, "@SC", tmp=48)
    flag_line(46, 3, tile_sgpr=67)
    a("s_lshl_b32 s45, s36, 2\ns_add_u32 s46, s46, s45")
    set_flag(a, 46)
    a("s_branch fc2_fin")
    a.label("fc2_last")
    srd(a, 16, 28, 0, XBYTES)
    a("v_add_u32 v62, s66, v3\nv_mul_u32_u24 v60, 1280, v62\ns_mul_i32 s40, s36, 160\nv_add_u32 v60, s40, v60")
    a("v_lshl_add_u32 v61, v4, 3, v60")
    a("v_and_b32 v62, 1, v4\nv_lshl_add_u32 v60, v62, 5, v60\nv_lshrrev_b32 v62, 1, v4\nv_lshl_add_u32 v60, v62, 4, v60")
    store_tiles(a, [RES + 2 * i for i in range(5)], 5, 60, 61, 16, "0", 32, "", tmp=48)
    a.label("fc2_fin")
    ts(a, "fc2_done")
    a("s_branch layer_end")
    ld("s_branch layer_end")
    a.out += ld.out
    fbk = Asm()
    fbk.label("att_fallback")
    fbk("s_barrier")
    for i in range(4): fbk(f"v_mov_b32 v{181+i}, 0xff800000")
    fbk(f"s_mul_i32 s47, s37, {KVB[1]-KVB[0]}\ns_add_u32 s47, s47, {KVB[0]}\ns_lshl_b32 s48, s38, 16\ns_add_u32 s47, s47, s48\ns_mov_b32 s49, 0")
    fbk.label("fb_loop")
    fbk(f"buffer_load_dwordx4 v[{K1(0)}:{K1(0)+3}], v5, s[8:11], s47 offen sc1")
    fbk(f"buffer_load_dwordx2 v[{K2(0)}:{K2(0)+1}], v170, s[8:11], s47 offen offset:1024 sc1")
    fbk("s_waitcnt vmcnt(0)")
    for i in range(4):
        fbk(f"v_mfma_f32_32x32x16_bf16 v[{SA}:{SA+15}], v[{K1(0)}:{K1(0)+3}], v[{Q1(i)}:{Q1(i)+3}], 0")
        fbk(f"v_mfma_f32_32x32x8_bf16 v[{SA}:{SA+15}], v[{K2(0)}:{K2(0)+1}], v[{Q2(i)}:{Q2(i)+1}], v[{SA}:{SA+15}]")
        for r in range(0, 16, 2): fbk(f"v_max3_f32 v{181+i}, v{181+i}, v{SA+r}, v{SA+r+1}")
    fbk("s_add_u32 s47, s47, 4096\ns_add_u32 s49, s49, 1\ns_cmp_lt_u32 s49, 16\ns_cbranch_scc1 fb_loop")
    fbk("v_xor_b32 v171, 32, v1\nv_lshlrev_b32 v171, 2, v171")
    for i in range(4):
        fbk(f"ds_bpermute_b32 v172, v171, v{181+i}\ns_waitcnt lgkmcnt(0)\nv_max_f32 v{181+i}, v{181+i}, v172")
    fbk("v_lshlrev_b32 v171, 2, v6")
    for i in range(4):
        fbk(f"s_add_u32 s40, s38, {i}\ns_and_b32 s40, s40, 3\ns_lshl_b32 s41, s39, 2\ns_add_u32 s40, s40, s41\ns_lshl_b32 s40, s40, 9\ns_lshl_b32 s41, s38, 7\ns_add_u32 s41, s41, s40\ns_add_u32 s41, s41, {KVL}")
        fbk(f"v_add_u32 v172, s41, v171\nds_write_b32 v172, v{181+i}")
    fbk("s_waitcnt lgkmcnt(0)\ns_barrier")
    for i in range(4):
        fbk(f"s_add_u32 s40, s38, {i}\ns_and_b32 s40, s40, 3\ns_lshl_b32 s41, s39, 2\ns_add_u32 s40, s40, s41\ns_lshl_b32 s40, s40, 9\ns_add_u32 s40, s40, {KVL}")
        fbk(f"v_add_u32 v172, s40, v171\nds_read_b32 v173, v172\nds_read_b32 v174, v172 offset:128\nds_read_b32 v175, v172 offset:256\nds_read_b32 v176, v172 offset:384")
        fbk("s_waitcnt lgkmcnt(0)\nv_max_f32 v173, v173, v174\nv_max3_f32 v173, v173, v175, v176")
        fbk("v_sub_f32 v173, 0, v173\nv_cvt_pk_bf16_f32 v174, v173, v173\nv_lshlrev_b32 v175, 16, v174\nv_sub_f32 v175, v173, v175\nv_cvt_pk_bf16_f32 v176, v173, v175")
        fbk(f"v_cmp_eq_u32 vcc, 1, v7\nv_cndmask_b32 v{Q2(i)}, v{Q2(i)}, v176, vcc")
    fbk("s_mov_b32 s57, 1\ns_barrier\ns_branch att_main")
    a.out += fbk.out
    a.label("layer_end")
    if PROFILE:
        a(f"s_cmp_eq_u32 s34, {4 if PROFLD else 0}\ns_cbranch_scc0 prof_skip")
        a(f"s_lshl_b32 s40, s2, 8\ns_lshl_b32 s41, s37, 7\ns_add_u32 s40, s40, s41\ns_add_u32 s40, s40, {TSB}\nv_mov_b32 v8, 0\ns_mov_b64 s[42:43], exec\ns_mov_b64 exec, 1")
        for i in range(Prof.n):
            a(f"v_mov_b32 v9, s{70+i}\nbuffer_store_dword v9, v8, s[8:11], s40 offen offset:{4*i}\ns_nop 0")
        a("s_mov_b64 exec, s[42:43]")
        a.label("prof_skip")
    a(f"s_add_u32 s37, s37, 1\ns_cmp_lt_u32 s37, 2\ns_cbranch_scc1 layer_top")
    a("s_waitcnt vmcnt(0)")
    a("s_endpgm")
    kernel_end(a, name)
    return a.out, descriptor(name, 256), (name, 256, 512, LDS_BYTES)

def build(path, kernels):
    hdr = []
    for k in kernels:
        name, grid, block, lds = k[2]
        hdr.append(f"; @launch kernel={name} grid=({grid},1,1) block=({block},1,1) lds={lds}")
    body = ['.amdgcn_target "amdgcn-amd-amdhsa--gfx950"', ".text"]
    descs = []
    nfix = 0
    for k in kernels:
        lines, n = fix_hazards(k[0])
        nfix += n
        body += lines
        descs.append(k[1])
    txt = "\n".join(hdr) + "\n" + "\n".join(body) + '\n.section .rodata,"a"\n' + "".join(".p2align 6\n" + d for d in descs)
    open(path, "w").write(txt)
    print("written", path, len(txt), "bytes; hazard nops at", nfix, "sites")

if __name__ == "__main__":
    out = [x for x in sys.argv[1:] if x.endswith(".s")]
    build(out[0] if out else "v10.s", [gen_prep(), gen_main()])
    json.dump(dict(WST=WST, CSQ=CSQ, BKV=BKV, CS1=CS1, KVB=KVB, KMAX=KMAX, OB=OB, X1=X1, X2=X2, HB=HB, TSB=TSB, XF=XF, KVF=KVF, TSN=TSN, ver=3, XF0=XF0), open("layout.json", "w"))
```

```python
import sys, math, json, struct
sys.path.insert(0, "gen")
from asmdsl import *

S, D, F, H, DH = 2048, 640, 1728, 32, 20
KB = 1024
PROFSEG = "profseg" in sys.argv
PROFILE = "prof" in sys.argv or "profld" in sys.argv or PROFSEG
PROFLD = "profld" in sys.argv
off = 0
def alloc(n, align=4096):
    global off
    off = (off + align - 1) // align * align
    o = off; off += n; return o
SL = 770
RING = 112
SLP = 784
FQ, FO, F1, F2 = 0, 120, 220, 500
WST = alloc(8 * SL * KB + 16 * KB)
CSQ = alloc(8 * 96 * 4)
BKV = alloc(3 * 16 * 4)
CS1 = alloc(8 * 224 * 4)
FLAGS = alloc(16384 + 4 * 16384 + 4096, 4096)
KVF = FLAGS
XF = FLAGS + 16384
XID = FLAGS + 16384 + 4 * 16384
FLAG_BYTES = 16384 + 4 * 16384 + 4096
KVB = [alloc(64 * 4096), alloc(64 * 4096)]
KMAX = [alloc(1024), alloc(1024)]
OB = [alloc(S * D * 2), alloc(S * D * 2)]
X1 = [alloc(S * D * 2), alloc(S * D * 2)]
HB = [alloc(S * F * 2), alloc(S * F * 2)]
X2 = alloc(S * D * 2)
XF0 = alloc(S * D * 2)
TSB = alloc(256 * 64 * 4)
WS_BYTES = 268435456
XBYTES = S * D * 2
LOG2E = 1.4426950408889634
def f2u(x): return struct.unpack("<I", struct.pack("<f", x))[0]
KVL = RING * KB
LDS_BYTES = 160 * KB
SPIN_MAX = 200000

def srd(a, s, ptr_pair, off, nbytes):
    if off:
        a(f"s_add_u32 s{s}, s{ptr_pair}, {off}")
        a(f"s_addc_u32 s{s+1}, s{ptr_pair+1}, 0")
    else:
        a(f"s_mov_b32 s{s}, s{ptr_pair}")
        a(f"s_mov_b32 s{s+1}, s{ptr_pair+1}")
    a(f"s_mov_b32 s{s+2}, {nbytes}")
    a(f"s_mov_b32 s{s+3}, 0x20000")
def srd_dyn(a, s, ptr_pair, off_sgpr, nbytes):
    a(f"s_add_u32 s{s}, s{ptr_pair}, s{off_sgpr}")
    a(f"s_addc_u32 s{s+1}, s{ptr_pair+1}, 0")
    a(f"s_mov_b32 s{s+2}, {nbytes}")
    a(f"s_mov_b32 s{s+3}, 0x20000")

def kernel_begin(a, name, nwg):
    a(f".globl {name}")
    a(".p2align 8")
    a(f".type {name},@function")
    a.out.append(f"{name}:")
    a(f"s_cmp_ge_u32 s2, {nwg}")
    a(f"s_cbranch_scc1 {name}_exit")
def kernel_end(a, name):
    a.label(f"{name}_exit")
    a("s_endpgm")
def descriptor(name, vgpr, sgpr=102):
    vg = (vgpr + 7) // 8 * 8
    return f""".amdhsa_kernel {name}
  .amdhsa_next_free_vgpr {vg}
  .amdhsa_next_free_sgpr {sgpr}
  .amdhsa_accum_offset {min(vg,256)}
  .amdhsa_group_segment_fixed_size 0
  .amdhsa_kernarg_size 104
  .amdhsa_user_sgpr_count 2
  .amdhsa_user_sgpr_kernarg_segment_ptr 1
  .amdhsa_system_sgpr_workgroup_id_x 1
  .amdhsa_float_denorm_mode_32 3
  .amdhsa_float_denorm_mode_16_64 3
.end_amdhsa_kernel
"""

PSC = " sc1" if "psc1" in sys.argv else (" nt" if "pnt" in sys.argv else (" sc0 sc1" if "psc01" in sys.argv else ""))
def gen_prep():
    a = Asm(); name = "prep_kernel"
    kernel_begin(a, name, 256)
    a("s_load_dwordx2 s[52:53], s[0:1], 0")
    a("s_load_dwordx2 s[4:5], s[0:1], 96")
    a("s_load_dwordx2 s[6:7], s[0:1], 8")
    a("s_load_dwordx4 s[24:27], s[0:1], 16")
    a("s_load_dwordx2 s[28:29], s[0:1], 32")
    a("s_load_dwordx2 s[30:31], s[0:1], 48")
    a("s_load_dwordx2 s[32:33], s[0:1], 64")
    a("v_and_b32 v1, 63, v0")
    a("v_lshrrev_b32 v2, 6, v0")
    a("v_readfirstlane_b32 s34, v2")
    a("v_and_b32 v3, 15, v1")
    a("v_lshrrev_b32 v4, 4, v1")
    a("v_lshlrev_b32 v5, 4, v1")
    a("s_waitcnt lgkmcnt(0)")
    srd(a, 8, 4, 0, WS_BYTES)
    if "cpf2" in sys.argv:
        a("s_cmp_eq_u32 s34, 3\ns_cbranch_scc0 prep_cpf")
        a("s_getpc_b64 s[40:41]")
        a.label("prep_pc")
        a("s_add_u32 s40, s40, main_kernel-prep_pc\ns_addc_u32 s41, s41, 0")
        a("v_lshlrev_b32 v8, 6, v1")
        for i in range(8):
            a(f"global_load_dword v{110}, v8, s[40:41]")
            a("v_add_u32 v8, 4096, v8")
        a.label("prep_cpf")
    srd(a, 12, 52, 0, XBYTES)
    a("s_lshl_b32 s35, s2, 2\ns_add_u32 s35, s35, s34")
    a("v_mul_u32_u24 v7, 1280, v3\nv_lshl_add_u32 v7, v4, 4, v7")
    for q in range(3):
        a(f"s_add_u32 s36, s35, {q*1024}")
        a("s_mul_i32 s37, s36, 3277\ns_lshr_b32 s37, s37, 16")
        a("s_mul_i32 s38, s37, 20\ns_sub_u32 s38, s36, s38")
        a("s_mul_i32 s39, s37, 20480\ns_lshl_b32 s38, s38, 6\ns_add_u32 s39, s39, s38")
        a(f"buffer_load_dwordx4 v[{16+4*q}:{19+4*q}], v7, s[12:15], s39 offen")
        a(f"s_lshl_b32 s{54+q}, s36, 10\ns_add_u32 s{54+q}, s{54+q}, {XF0}")
    a("s_mov_b32 s57, s35")
    xs_n = [0]
    def xstores():
        L = f"prep_xd{xs_n[0]}"; xs_n[0] += 1
        for q in range(3):
            if q == 2: a(f"s_cmp_lt_u32 s57, 512\ns_cbranch_scc0 {L}")
            a(f"buffer_store_dwordx4 v[{16+4*q}:{19+4*q}], v5, s[8:11], s{54+q} offen" + PSC)
        a.label(L)
    a("s_cmp_ge_u32 s2, 252\ns_cbranch_scc0 prep_go")
    a("s_waitcnt vmcnt(0)")
    xstores()
    a("s_branch prep_done")
    a.label("prep_go")
    def gather(voff, srdn, rowbytes, soff_base_sgpr, nfr, ks_stride_bytes):
        for f in range(nfr):
            for jj in range(8):
                a(f"s_add_u32 s40, s{soff_base_sgpr}, {f*ks_stride_bytes + jj*rowbytes}")
                a(f"buffer_load_ushort v{64+8*f+jj}, v{voff}, s[{srdn}:{srdn+3}], s40 offen")
    def pack(nfr):
        a("s_waitcnt vmcnt(0)")
        xstores()
        for f in range(nfr):
            for q in range(4):
                a(f"v_lshl_or_b32 v{32+4*f+q}, v{64+8*f+2*q+1}, 16, v{64+8*f+2*q}")
    def colsum_and_store(dst_soff_sgpr, dst_ks_stride, cs_off_sgpr):
        a("v_mov_b32 v132, 0x3f803f80\nv_mov_b32 v133, 0x3f803f80\nv_mov_b32 v134, 0x3f803f80\nv_mov_b32 v135, 0x3f803f80")
        pack(5)
        for f in range(5):
            a(f"s_add_u32 s40, s{dst_soff_sgpr}, {f*dst_ks_stride}")
            a(f"buffer_store_dwordx4 v[{32+4*f}:{35+4*f}], v5, s[8:11], s40 offen" + PSC)
            a(f"v_mfma_f32_16x16x32_bf16 v[28:31], v[{32+4*f}:{35+4*f}], v[132:135], " + ("0" if f == 0 else "v[28:31]"))
        a("v_lshlrev_b32 v6, 4, v4")
        a("s_lshl_b32 s41, s34, 6")
        a("v_add_u32 v6, s41, v6")
        a("v_cmp_eq_u32 vcc, 0, v3")
        a("s_and_saveexec_b64 s[42:43], vcc")
        a("ds_write_b128 v6, v[28:31]")
        a("s_mov_b64 exec, s[42:43]")
        a("s_waitcnt lgkmcnt(0)")
        a("s_barrier")
        a("v_lshlrev_b32 v6, 2, v0")
        a("v_cmp_gt_u32 vcc, 16, v0")
        a("s_and_saveexec_b64 s[42:43], vcc")
        a(f"s_cbranch_execz {name}_exit")
        a("ds_read_b32 v7, v6\nds_read_b32 v8, v6 offset:64\nds_read_b32 v9, v6 offset:128\nds_read_b32 v10, v6 offset:192")
        a("s_waitcnt lgkmcnt(0)")
        a("v_add_f32 v7, v7, v8\nv_add_f32 v9, v9, v10\nv_add_f32 v7, v7, v9")
        a(f"buffer_store_dword v7, v6, s[8:11], s{cs_off_sgpr} offen")
        a("s_waitcnt vmcnt(0)")
        a("s_endpgm")
    a("s_cmp_lt_u32 s2, 40\ns_cbranch_scc1 prep_wq")
    a("s_cmp_lt_u32 s2, 43\ns_cbranch_scc1 prep_kv")
    a("s_cmp_lt_u32 s2, 151\ns_cbranch_scc1 prep_w1")
    a("s_branch prep_plain")
    a.label("prep_wq")
    srd(a, 12, 6, 0, D * D * 2)
    a("s_mul_i32 s35, s2, 52429\ns_lshr_b32 s35, s35, 18")
    a("s_mul_i32 s36, s35, 5\ns_sub_u32 s36, s2, s36")
    a("v_mul_u32_u24 v7, 10240, v4")
    a("s_lshl_b32 s37, s2, 5")
    a("v_lshl_add_u32 v7, v3, 1, v7\nv_add_u32 v7, s37, v7")
    a(f"s_mul_i32 s38, s34, {5*32*1280}")
    gather(7, 12, 1280, 38, 5, 32 * 1280)
    a(f"s_mul_i32 s44, s35, {SL*KB}\ns_mul_i32 s45, s34, {25*KB}\ns_add_u32 s44, s44, s45\ns_lshl_b32 s45, s36, 10\ns_add_u32 s44, s44, s45\ns_add_u32 s44, s44, {WST + (FQ+20)*KB}")
    a(f"s_mul_i32 s46, s35, 384\ns_lshl_b32 s45, s36, 6\ns_add_u32 s46, s46, s45\ns_add_u32 s46, s46, {CSQ}")
    colsum_and_store(44, 5 * KB, 46)
    a.label("prep_kv")
    srd(a, 12, 24, 0, D * DH * 2)
    srd(a, 16, 26, 0, D * DH * 2)
    a("s_sub_u32 s35, s2, 40")
    for r in range(64, 104): a(f"v_mov_b32 v{r}, 0")
    BIG = 0x40000000
    a("v_and_b32 v8, 3, v3\nv_lshrrev_b32 v9, 2, v3")
    a("s_cmp_eq_u32 s35, 0\ns_cbranch_scc1 prep_kv0")
    a("s_cmp_eq_u32 s35, 1\ns_cbranch_scc1 prep_kv1")
    a(f"v_mov_b32 v10, {BIG}\nv_mov_b32 v11, {BIG}")
    a("v_lshlrev_b32 v12, 1, v3\nv_add_u32 v12, 32, v12")
    a("v_cmp_gt_u32 vcc, 4, v3\nv_cndmask_b32 v10, v10, v12, vcc")
    a("v_lshlrev_b32 v12, 1, v8")
    a("v_add_u32 v13, 16, v12\nv_add_u32 v14, 36, v12")
    a("v_cmp_eq_u32 vcc, 1, v9\nv_cndmask_b32 v11, v11, v13, vcc")
    a("v_cmp_eq_u32 vcc, 2, v9\nv_cndmask_b32 v11, v11, v14, vcc")
    a(f"v_mov_b32 v12, {BIG}\nv_cmp_lt_u32 vcc, 1, v8\nv_cndmask_b32 v11, v11, v12, vcc")
    a("s_branch prep_kvgo")
    a.label("prep_kv0")
    a(f"v_lshlrev_b32 v10, 1, v3\nv_mov_b32 v11, {BIG}")
    a("s_branch prep_kvgo")
    a.label("prep_kv1")
    a(f"v_mov_b32 v10, {BIG}")
    a("v_mov_b32 v11, 0\nv_cmp_eq_u32 vcc, 1, v9\nv_cndmask_b32 v11, v11, 10, vcc")
    a("v_cmp_eq_u32 vcc, 2, v9\nv_cndmask_b32 v11, v11, 4, vcc")
    a("v_cmp_eq_u32 vcc, 3, v9\nv_cndmask_b32 v11, v11, 14, vcc")
    a("v_add_u32 v11, v11, v8\nv_lshlrev_b32 v11, 1, v11")
    a.label("prep_kvgo")
    a("v_mul_u32_u24 v12, 320, v4")
    a("v_add_u32 v10, v10, v12\nv_add_u32 v11, v11, v12")
    a(f"s_mul_i32 s38, s34, {5*32*40}")
    a(f"v_cmp_gt_u32 vcc, {BIG}, v10\ns_and_saveexec_b64 s[48:49], vcc")
    a("s_cbranch_execz prep_kv_skipk")
    gather(10, 12, 40, 38, 5, 32 * 40)
    a.label("prep_kv_skipk")
    a("s_mov_b64 exec, s[48:49]")
    a(f"v_cmp_gt_u32 vcc, {BIG}, v11\ns_and_saveexec_b64 s[48:49], vcc")
    a("s_cbranch_execz prep_kv_skipv")
    gather(11, 16, 40, 38, 5, 32 * 40)
    a.label("prep_kv_skipv")
    a("s_mov_b64 exec, s[48:49]")
    a(f"s_mul_i32 s44, s35, {SL*KB}\ns_mul_i32 s45, s34, {5*KB}\ns_add_u32 s44, s44, s45\ns_add_u32 s44, s44, {WST + FQ*KB}")
    a(f"s_mul_i32 s46, s35, 384\ns_add_u32 s46, s46, {CSQ + 5*64}")
    colsum_and_store(44, 1 * KB, 46)
    a.label("prep_w1")
    srd(a, 12, 30, 0, D * F * 2)
    a("s_sub_u32 s35, s2, 43")
    a("s_mul_i32 s36, s35, 2428\ns_lshr_b32 s36, s36, 16")
    a("s_mul_i32 s37, s36, 27\ns_sub_u32 s37, s35, s37")
    a("s_lshl_b32 s36, s36, 1")
    a("s_cmp_ge_u32 s37, 14\ns_cbranch_scc0 prep_w1a")
    a("s_add_u32 s36, s36, 1\ns_sub_u32 s37, s37, 14")
    a.label("prep_w1a")
    a("v_mul_u32_u24 v7, 27648, v4")
    a("s_lshl_b32 s39, s35, 5")
    a("v_lshl_add_u32 v7, v3, 1, v7\nv_add_u32 v7, s39, v7")
    a(f"s_mul_i32 s38, s34, {5*32*3456}")
    gather(7, 12, 3456, 38, 5, 32 * 3456)
    a(f"s_mul_i32 s44, s36, {SL*KB}\ns_mul_i32 s45, s34, {5*14*KB}\ns_add_u32 s44, s44, s45\ns_lshl_b32 s45, s37, 10\ns_add_u32 s44, s44, s45\ns_add_u32 s44, s44, {WST + F1*KB}")
    a(f"s_mul_i32 s46, s36, 896\ns_lshl_b32 s45, s37, 6\ns_add_u32 s46, s46, s45\ns_add_u32 s46, s46, {CS1}")
    colsum_and_store(44, 14 * KB, 46)
    a.label("prep_plain")
    a("s_sub_u32 s35, s2, 151\ns_lshl_b32 s35, s35, 2\ns_add_u32 s35, s35, s34")
    a("s_cmp_lt_u32 s35, 120\ns_cbranch_scc1 prep_wo")
    a("s_sub_u32 s35, s35, 120")
    a("s_cmp_ge_u32 s35, 280\ns_cbranch_scc1 prep_bias")
    srd(a, 12, 32, 0, F * D * 2)
    a(f"s_mov_b32 s50, {WST + F2*KB}\ns_mov_b32 s51, 6\ns_mov_b32 s52, 2")
    a("s_branch prep_pl2")
    a.label("prep_wo")
    srd(a, 12, 28, 0, D * D * 2)
    a(f"s_mov_b32 s50, {WST + FO*KB}\ns_mov_b32 s51, 2\ns_mov_b32 s52, 0")
    a.label("prep_pl2")
    a("s_mul_i32 s36, s35, 1639\ns_lshr_b32 s36, s36, 16")
    a("s_mul_i32 s37, s36, 40\ns_sub_u32 s37, s35, s37")
    a("s_mul_i32 s38, s37, 52429\ns_lshr_b32 s38, s38, 18")
    a("s_mul_i32 s39, s38, 5\ns_sub_u32 s39, s37, s39")
    a("v_mul_u32_u24 v7, 10240, v4")
    a("s_lshl_b32 s45, s37, 5")
    a("v_lshl_add_u32 v7, v3, 1, v7\nv_add_u32 v7, s45, v7")
    a(f"s_mul_i32 s44, s38, {SL*KB}\ns_add_u32 s44, s44, s50\ns_mul_i32 s45, s36, {40*KB}\ns_add_u32 s44, s44, s45\ns_lshl_b32 s45, s39, 10\ns_add_u32 s44, s44, s45")
    a(f"s_mul_i32 s38, s36, {8*32*1280}")
    gather(7, 12, 1280, 38, 8, 32 * 1280)
    pack(8)
    for f in range(8):
        if f >= 4:
            a(f"s_cmp_eq_u32 s36, s51\ns_cbranch_scc0 prep_st{f}")
            a(f"s_cmp_gt_u32 s52, {f-4}\ns_cbranch_scc0 prep_done")
            a.label(f"prep_st{f}")
        a(f"s_add_u32 s40, s44, {f*5*KB}")
        a(f"buffer_store_dwordx4 v[{32+4*f}:{35+4*f}], v5, s[8:11], s40 offen" + PSC)
    a.label("prep_done")
    a("s_waitcnt vmcnt(0)")
    a("s_endpgm")
    a.label("prep_bias")
    a("s_waitcnt vmcnt(0)")
    xstores()
    a("v_mov_b32 v8, 0\nv_mov_b32 v9, 0\nv_mov_b32 v10, 0\nv_mov_b32 v11, 0")
    a("v_lshlrev_b32 v6, 4, v0")
    nz = FLAG_BYTES // 4096
    for r in range(nz):
        a(f"s_mov_b32 s40, {FLAGS + r*4096}\nbuffer_store_dwordx4 v[8:11], v6, s[8:11], s40 offen")
    a("s_cmp_eq_u32 s35, 280\ns_cbranch_scc0 prep_done2")
    a("v_mov_b32 v7, 0")
    for idx in (32 + 6, 32 + 10, 32 + 12, 32 + 13):
        a(f"v_cmp_eq_u32 vcc, {idx}, v1\nv_cndmask_b32 v7, v7, 1.0, vcc")
    a("v_lshlrev_b32 v6, 2, v1\nv_cmp_gt_u32 vcc, 48, v1\ns_and_saveexec_b64 s[42:43], vcc")
    a(f"s_mov_b32 s40, {BKV}\nbuffer_store_dword v7, v6, s[8:11], s40 offen")
    a.label("prep_done2")
    a("s_waitcnt vmcnt(0)")
    a("s_endpgm")
    kernel_end(a, name)
    return a.out, descriptor(name, 144), (name, 256, 256, 1024)

VB, VA, VST, VSO, VONE, RES = 64, 144, 36, 44, 52, 246

class Prof:
    n = 0
LDTS = [False]
SEGTS = [False]
def ts(a, label, loader=False, seg=False):
    if not PROFILE: return
    if PROFLD != loader: return
    if PROFSEG != seg: return
    if Prof.n >= 26: return
    i = Prof.n; Prof.n += 1
    assert i < 26, i
    a(f"s_memtime s[98:99]\ns_waitcnt lgkmcnt(0)\ns_mov_b32 s{70+i}, s98")
    TSN.append(label)
TSN = []

def unpack2(a, dlo, dhi, src):
    a(f"v_lshlrev_b32 v{dlo}, 16, v{src}")
    a(f"v_and_b32 v{dhi}, 0xffff0000, v{src}")

uid = [0]
def newlab(p):
    uid[0] += 1
    return f"{p}_{uid[0]}"

def await_flags(a, mask, off_sgpr, vtmp=56):
    L, Dn = newlab("poll"), newlab("polld")
    a(f"v_lshlrev_b32 v{vtmp}, 2, v1")
    a(f"s_mov_b64 s[42:43], exec\ns_mov_b64 exec, {mask:#x}\ns_mov_b32 s44, 0")
    a.label(L)
    a(f"buffer_load_dword v{vtmp+1}, v{vtmp}, s[8:11], s{off_sgpr} offen sc1")
    a("s_add_u32 s44, s44, 1")
    a("s_waitcnt vmcnt(0)")
    a(f"v_cmp_eq_u32 vcc, 0, v{vtmp+1}")
    a(f"s_cmp_eq_u64 vcc, 0\ns_cbranch_scc1 {Dn}")
    a(f"s_cmp_gt_u32 s44, {SPIN_MAX}\ns_cbranch_scc1 {Dn}")
    a(f"s_sleep 1\ns_branch {L}")
    a.label(Dn)
    a("s_mov_b64 exec, s[42:43]")

def set_flag(a, off_sgpr, vtmp=56, second=None):
    L1, L2 = newlab("sf"), newlab("sf")
    a("s_waitcnt vmcnt(0)")
    a(f"v_mov_b32 v{vtmp}, 0\nv_mov_b32 v{vtmp+1}, 1")
    a("s_mov_b64 s[42:43], exec\ns_mov_b64 exec, 1")
    a(f"s_cmp_eq_u32 s59, 1\ns_cbranch_scc1 {L1}")
    a(f"buffer_store_dword v{vtmp+1}, v{vtmp}, s[8:11], s{off_sgpr} offen sc1")
    if second is not None: a(f"buffer_store_dword v{vtmp+1}, v{vtmp}, s[8:11], s{second} offen sc1")
    a(f"s_branch {L2}")
    a.label(L1)
    a(f"buffer_store_dword v{vtmp+1}, v{vtmp}, s[8:11], s{off_sgpr} offen")
    if second is not None: a(f"buffer_store_dword v{vtmp+1}, v{vtmp}, s[8:11], s{second} offen")
    a.label(L2)
    a("s_mov_b64 exec, s[42:43]")

def xstore(a, text):
    L1, L2 = newlab("xs"), newlab("xs")
    a(f"s_cmp_eq_u32 s59, 1\ns_cbranch_scc1 {L1}")
    a(text.replace("@SC", "sc1"))
    a(f"s_branch {L2}")
    a.label(L1)
    a(text.replace("@SC", ""))
    a.label(L2)

def xf_off(a, dst, kind, extra_sgpr=None, extra_imm=0):
    a(f"s_lshl_b32 s{dst}, s37, 13\ns_lshl_b32 s45, s35, 8\ns_add_u32 s{dst}, s{dst}, s45")
    a(f"s_and_b32 s45, s34, 3\ns_lshl_b32 s45, s45, 6\ns_add_u32 s{dst}, s{dst}, s45")
    a(f"s_add_u32 s{dst}, s{dst}, {XF + kind*16384 + extra_imm}")
    if extra_sgpr is not None: a(f"s_add_u32 s{dst}, s{dst}, s{extra_sgpr}")

SIDES = [(224, 272), (512, 560)] if "noside" not in sys.argv else []
def is_side(f): return any(a_ <= f < b_ for a_, b_ in SIDES)
def rho(f):
    return f - sum(max(0, min(f, b_) - a_) for a_, b_ in SIDES)
def rho_inv(r):
    f = r
    for a_, b_ in SIDES:
        if f >= a_: f += b_ - a_
    return f
def lds_of(f):
    for a_, b_ in SIDES:
        if a_ <= f < b_: return KVL + (f - a_) * KB
    return (rho(f) % RING) * KB
SLR = rho(SL)
class Ring:
    def __init__(self):
        self.I = RING
        self.q = [f for f in range(0, RING, 16) for _ in range(4)]
        self.side = set()
    def drained(self): self.q = []
def loader_issue(a, frm, upto, ring=None):
    assert frm % 16 == 0 and upto % 16 == 0
    skip = None
    for r in range(frm, upto, 16):
        if r == SLP or (r > SLP and r == frm):
            skip = newlab("ldsk")
            a(f"s_cmp_eq_u32 s37, 1\ns_cbranch_scc1 {skip}")
        if SLR <= r < SLP: continue
        f = rho_inv(r % SLP)
        a(f"s_add_u32 m0, s69, {(r % RING) * KB}")
        a(f"s_add_u32 s44, s60, {f * KB}")
        for q in range(4):
            a(f"buffer_load_dwordx4 v5, s[8:11], s44 offen offset:{q*1024} lds")
            if ring is not None and r < SLP: ring.q.append(f)
    if skip: a.label(skip)

def side_issue(a, ring, k):
    a_, b_ = SIDES[k]
    for f in range(a_, b_, 16):
        a(f"s_add_u32 m0, s69, {KVL + (f - a_) * KB}")
        a(f"s_add_u32 s44, s60, {f * KB}")
        for q in range(4):
            a(f"buffer_load_dwordx4 v5, s[8:11], s44 offen offset:{q*1024} lds")
            ring.q.append(f)
    ring.side.add(k)

def ring_refill(a, ring, consumed, cap=None):
    c = SLP if consumed >= SL else rho(consumed)
    upto = (c + RING) // 16 * 16
    if cap is not None: upto = min(upto, (rho(cap) + 15) // 16 * 16)
    if upto > ring.I:
        loader_issue(a, ring.I, upto, ring)
        ring.I = upto

def loader_bp(a, ring, need, consumed, cap=None, refill=True):
    if need is not None:
        assert rho(need) <= ring.I, (need, ring.I)
        for k, (a_, b_) in enumerate(SIDES):
            if need > a_ and consumed < b_: assert k in ring.side, (need, k)
        last = -1
        for i, f in enumerate(ring.q):
            if f is not None and f < need: last = i
        if last >= 0:
            n = len(ring.q) - 1 - last
            a(f"s_waitcnt vmcnt({min(n,63)})")
            ring.q = ring.q[last + 1:]
    a("s_barrier")
    if refill: ring_refill(a, ring, consumed, cap)

def stats_finalize(a, accS, accQ, vRho, vMu, tmp, double_ln):
    t0, t1, t2, t3 = tmp, tmp + 1, tmp + 2, tmp + 3
    a(f"v_and_b32 v{t0}, 3, v1")
    a(f"v_mov_b32 v{t1}, v{accQ}")
    for r in (1, 2, 3):
        a(f"v_cmp_eq_u32 vcc, {r}, v{t0}")
        a(f"v_cndmask_b32 v{t1}, v{t1}, v{accQ+r}, vcc")
    a(f"v_lshrrev_b32 v{t2}, 2, v3\nv_lshlrev_b32 v{t2}, 4, v{t2}\nv_add_u32 v{t2}, v{t2}, v3\nv_lshlrev_b32 v{t2}, 2, v{t2}")
    a(f"ds_bpermute_b32 v{t1}, v{t2}, v{t1}")
    a(f"v_mul_f32 v{t0}, {f2u(1.0/D):#x}, v{accS}")
    a("s_waitcnt lgkmcnt(0)")
    a(f"v_mul_f32 v{t1}, {f2u(1.0/D):#x}, v{t1}")
    a(f"v_fma_f32 v{t1}, -v{t0}, v{t0}, v{t1}")
    a(f"v_max_f32 v{t1}, 0, v{t1}")
    a(f"v_add_f32 v{t2}, {f2u(1e-5):#x}, v{t1}")
    a(f"v_rsq_f32 v{t2}, v{t2}")
    if double_ln:
        a(f"v_mul_f32 v{t3}, v{t2}, v{t2}")
        a(f"v_mul_f32 v{t3}, v{t3}, v{t1}")
        a(f"v_add_f32 v{t3}, {f2u(1e-5):#x}, v{t3}")
        a(f"v_rsq_f32 v{t3}, v{t3}")
        a(f"v_mul_f32 v{t2}, v{t2}, v{t3}")
    a(f"v_mov_b32 v{vRho}, v{t2}")
    a(f"v_mul_f32 v{vMu}, v{t0}, v{t2}")

def set_bases(a, delta):
    a(f"s_and_b32 s45, s34, 1\ns_mul_i32 s44, s45, {delta*KB}\nv_add_u32 v6, s44, v5\nv_add_u32 v7, 0x10000, v6\nv_add_u32 v59, {KVL}, v6")
    a(f"s_xor_b32 s45, s45, 1\ns_mul_i32 s44, s45, {(RING-delta)*KB}\nv_add_u32 v2, s44, v5")
def rdA(a, f0, delta, reg):
    a0, a1 = lds_of(f0), lds_of(f0 + delta)
    if not is_side(f0) and not is_side(f0 + delta):
        if a1 - a0 == delta * KB:
            base = 6 if a0 < 65536 else 7
            return a.lg(f"ds_read_b128 v[{reg}:{reg+3}], v{base} offset:{a0 % 65536}")
        if a1 - a0 == (delta - RING) * KB:
            return a.lg(f"ds_read_b128 v[{reg}:{reg+3}], v2 offset:{a0 - (RING - delta) * KB}")
    if is_side(f0) and is_side(f0 + delta) and a1 - a0 == delta * KB:
        return a.lg(f"ds_read_b128 v[{reg}:{reg+3}], v59 offset:{a0 - KVL}")
    a(f"s_mov_b32 s44, {a1}\ns_bitcmp1_b32 s34, 0\ns_cselect_b32 s45, s44, {a0}\nv_add_u32 v58, s45, v5")
    return a.lg(f"ds_read_b128 v[{reg}:{reg+3}], v58")

def make_units(nA, segs, G):
    return [(i, t0, min(nA, t0 + G), si) for si, (i0, i1) in enumerate(segs) for i in range(i0, i1) for t0 in range(0, nA, G)]

def kloop2(a, fbase, span, delta, nA, segs, breg, acc0, acc1, stats, G, before=None, after=None, hook=None, D=1):
    units = make_units(nA, segs, G)
    NB = D + 1
    def rd(n, k):
        i, t0, t1, si = units[n]
        return rdA(a, fbase + i * span + t0 + k, delta, VA + ((n % NB) * G + k) * 4)
    def cnt(n): return units[n][2] - units[n][1]
    nbar = [0]
    def barrier():
        if hook: hook(nbar[0], False)
        a("s_barrier")
        if hook: hook(nbar[0], True)
        nbar[0] += 1
    barrier()
    seen = 0
    pend = {}
    for n in range(min(D, len(units))):
        if units[n][3] > seen: barrier(); seen = units[n][3]
        pend[n] = [rd(n, k) for k in range(cnt(n))]
    for n, u in enumerate(units):
        i, t0, t1, si = u
        nx = n + D if n + D < len(units) else None
        if nx is not None and units[nx][3] > seen:
            barrier(); seen = units[nx][3]
        if t0 == 0 and before: before(i)
        b0, b1 = breg(i)
        def m(d, A, B):
            c = "0" if i == 0 else f"v[{d}:{d+3}]"
            a(f"v_mfma_f32_16x16x32_bf16 v[{d}:{d+3}], v[{A}:{A+3}], v[{B}:{B+3}], {c}")
        nn = cnt(nx) if nx is not None else 0
        nxt = []
        for t in range(t0, t1):
            ra = VA + ((n % NB) * G + t - t0) * 4
            a.wait_lg(pend[n][t - t0])
            m(acc0 + 4 * t, ra, b0)
            if len(nxt) < nn: nxt.append(rd(nx, len(nxt)))
            m(acc1 + 4 * t, ra, b1)
            if len(nxt) < nn and (t - t0) % 2 == 0 and nn > (t1 - t0): nxt.append(rd(nx, len(nxt)))
        while len(nxt) < nn: nxt.append(rd(nx, len(nxt)))
        if stats and t1 == nA:
            m(VST, VONE, b0); m(VST + 4, b0, b0)
            if stats == 2: m(VSO, VONE, b1); m(VSO + 4, b1, b1)
        if nx is not None: pend[nx] = nxt
        if t1 == nA and after: after(i)

def loader_kloop2(a, ring, fbase, span, nA, segs, G, D=1, docap=False):
    units = make_units(nA, segs, G)
    cap = fbase + segs[-1][1] * span if docap else None
    loader_bp(a, ring, fbase + segs[0][1] * span, fbase, cap)
    seen = 0
    for n in range(min(D, len(units))):
        if units[n][3] > seen:
            seen = units[n][3]; loader_bp(a, ring, fbase + segs[seen][1] * span, fbase, cap)
    for n, u in enumerate(units):
        nx = n + D if n + D < len(units) else None
        if nx is not None and units[nx][3] > seen:
            seen = units[nx][3]
            loader_bp(a, ring, fbase + segs[seen][1] * span, fbase + u[0] * span, cap)

def store_tiles(a, srcs, ntiles, vaddr16, vaddr8, srd_, soff, imm_stride, sc, tmp=56):
    st = []
    i = 0
    while i < ntiles:
        if i + 1 < ntiles:
            t = tmp + 4 * ((i // 2) % 2)
            a(f"v_mov_b32 v{t}, v{srcs[i]}\nv_mov_b32 v{t+1}, v{srcs[i]+1}\nv_mov_b32 v{t+2}, v{srcs[i+1]}\nv_mov_b32 v{t+3}, v{srcs[i+1]+1}")
            a(f"v_permlane16_swap_b32 v{t}, v{t+2}\nv_permlane16_swap_b32 v{t+1}, v{t+3}")
            st.append(f"buffer_store_dwordx4 v[{t}:{t+3}], v{vaddr16}, s[{srd_}:{srd_+3}], {soff} offen offset:{i*imm_stride} {sc}")
            i += 2
        else:
            st.append(f"buffer_store_dwordx2 v[{srcs[i]}:{srcs[i]+1}], v{vaddr8}, s[{srd_}:{srd_+3}], {soff} offen offset:{i*imm_stride} {sc}")
            i += 1
    if sc == "@SC": xstore(a, "\n".join(st))
    else: a("\n".join(st))

def frag_addr(a, v16, v8, Tsgpr, tmp):
    a(f"v_lshrrev_b32 v{v8}, 1, v4\nv_lshlrev_b32 v{v8}, 8, v{v8}\nv_lshl_add_u32 v{v8}, v3, 4, v{v8}")
    a(f"s_lshl_b32 s45, s{Tsgpr}, 9\nv_add_u32 v{v8}, s45, v{v8}")
    a(f"v_and_b32 v{tmp}, 1, v4\nv_lshl_add_u32 v{v16}, v{tmp}, 9, v{v8}\nv_lshl_add_u32 v{v8}, v{tmp}, 3, v{v8}")

def code_prefetch(a, first, last, wave, nkb=32):
    L = newlab("cpf")
    a(f"s_cmp_eq_u32 s34, {wave}\ns_cbranch_scc0 {L}")
    a(f"s_getpc_b64 s[40:41]")
    here = newlab("pc"); a.label(here)
    a(f"s_sub_u32 s40, s40, {here}-{first}\ns_subb_u32 s41, s41, 0")
    a("v_lshlrev_b32 v8, 6, v1")
    for i in range(nkb // 4):
        a(f"global_load_dword v{10+i}, v8, s[40:41]")
        a("v_add_u32 v8, 4096, v8")
    a.label(L)

def gen_main():
    a = Asm(); name = "main_kernel"
    kernel_begin(a, name, 256)
    a("s_load_dwordx2 s[4:5], s[0:1], 96")
    a("s_load_dwordx2 s[6:7], s[0:1], 0")
    a("s_load_dwordx2 s[24:25], s[0:1], 56")
    a("s_load_dwordx4 s[28:31], s[0:1], 72")
    a("v_and_b32 v1, 63, v0")
    a("v_lshrrev_b32 v2, 6, v0")
    a("v_readfirstlane_b32 s34, v2")
    a("v_and_b32 v3, 15, v1\nv_lshrrev_b32 v4, 4, v1\nv_lshlrev_b32 v5, 4, v1")
    a("s_and_b32 s35, s2, 31\ns_lshr_b32 s36, s2, 5\ns_mov_b32 s37, 0")
    a("s_waitcnt lgkmcnt(0)")
    a("s_mov_b32 s26, s28\ns_mov_b32 s27, s29\ns_mov_b32 s28, s30\ns_mov_b32 s29, s31")
    srd(a, 8, 4, 0, WS_BYTES)
    a("s_lshl_b32 s67, s35, 2\ns_and_b32 s38, s34, 3\ns_add_u32 s67, s67, s38\ns_lshl_b32 s66, s67, 4\ns_xor_b32 s65, s67, 1\ns_mul_i32 s68, s36, 5")
    a(f"s_lshl_b32 s69, s38, 12\ns_mul_i32 s60, s36, {SL*KB}\ns_add_u32 s60, s60, s69\ns_add_u32 s60, s60, {WST}")
    a("s_mov_b32 s59, 0\ns_getreg_b32 s58, hwreg(HW_REG_XCC_ID, 0, 4)\ns_add_u32 s58, s58, 1")
    a("s_cmp_eq_u32 s34, 0\ns_cbranch_scc0 pro_x")
    a(f"s_lshl_b32 s40, s35, 5\ns_lshl_b32 s41, s36, 2\ns_add_u32 s40, s40, s41\ns_add_u32 s40, s40, {XID}\nv_mov_b32 v8, 0\nv_mov_b32 v9, s58")
    a("s_mov_b64 s[42:43], exec\ns_mov_b64 exec, 1\nbuffer_store_dword v9, v8, s[8:11], s40 offen sc1\ns_mov_b64 exec, s[42:43]")
    a.label("pro_x")
    ts(a, "start")
    if "cpf" in sys.argv:
        code_prefetch(a, "main_kernel", "main_kernel_exit", 7)
    a("s_cmp_ge_u32 s34, 4\ns_cbranch_scc0 pro_c")
    loader_issue(a, 0, 32 if "lateW" in sys.argv else RING)
    a("s_branch pro_d")
    a.label("pro_c")
    a("v_add_u32 v6, s66, v3")
    a("v_mul_u32_u24 v56, 1280, v6\nv_lshl_add_u32 v56, v4, 3, v56\ns_mul_i32 s40, s36, 160\nv_add_u32 v56, s40, v56")
    srd(a, 12, 6, 0, XBYTES)
    for i in range(5):
        a(f"buffer_load_dwordx2 v[{RES+2*i}:{RES+2*i+1}], v56, s[12:15], 0 offen offset:{i*32}")
    a.label("pro_d")
    a.label("layer_top")
    ring = Ring()
    ld = Asm()
    def tile_offs(base_imm, layer_stride, tile_bytes, ksplit):
        a(f"s_mul_i32 s40, s67, {tile_bytes}\ns_mul_i32 s41, s65, {tile_bytes}")
        if layer_stride:
            a(f"s_mul_i32 s45, s37, {layer_stride}\ns_add_u32 s45, s45, {base_imm}")
        else:
            a(f"s_mov_b32 s45, {base_imm}")
        if ksplit:
            a("s_and_b32 s44, s34, 1\ns_lshl_b32 s44, s44, 10\ns_add_u32 s45, s45, s44")
        a("s_add_u32 s40, s40, s45\ns_add_u32 s41, s41, s45")
    class BL:
        def __init__(self, stride, nslots, sc="sc1"): self.stride, self.n, self.tag, self.cur, self.sc = stride, nslots, {}, 0, sc
        def regs(self, i): r = VB + 8 * (i % self.n); return (r, r + 4)
        def load(self, i):
            o = i * self.stride
            if o - self.cur > 4095 - 1023 * 0 or o - self.cur >= 4096:
                d = (o - self.cur) // 4096 * 4096
                a(f"s_add_u32 s40, s40, {d}\ns_add_u32 s41, s41, {d}"); self.cur += d
            r0, r1 = self.regs(i)
            if "noB" in sys.argv and i >= 2:
                self.tag[i] = a.nvm; return
            a.vm(f"buffer_load_dwordx4 v[{r0}:{r0+3}], v5, s[8:11], s40 offen offset:{o - self.cur} {self.sc}")
            self.tag[i] = a.vm(f"buffer_load_dwordx4 v[{r1}:{r1+3}], v5, s[8:11], s41 offen offset:{o - self.cur} {self.sc}")
    def flag_line(dst, kind, tile_sgpr=None, pair=False, layer_delta=0):
        a(f"s_lshl_b32 s{dst}, s37, 13")
        if pair: a(f"s_and_b32 s45, s67, -2\ns_lshl_b32 s45, s45, 6")
        else: a(f"s_lshl_b32 s45, s{tile_sgpr}, 6")
        a(f"s_add_u32 s{dst}, s{dst}, s45\ns_add_u32 s{dst}, s{dst}, {XF + kind*16384 + layer_delta}")
    def reduce_pair(acc0, acc1, NT, stats, t0=56, cbar=False):
        a(f"s_and_b32 s45, s34, 3\ns_lshl_b32 s44, s45, 13\ns_add_u32 s44, s44, {KVL}\nv_add_u32 v{t0}, s44, v5")
        for t in range(NT): a(f"ds_write_b128 v{t0}, v[{acc1+4*t}:{acc1+4*t+3}] offset:{t*1024}")
        if stats:
            a(f"ds_write_b128 v{t0}, v[{VSO}:{VSO+3}] offset:{6*1024}\nds_write_b128 v{t0}, v[{VSO+4}:{VSO+7}] offset:{7*1024}")
        a(f"s_xor_b32 s45, s45, 1\ns_lshl_b32 s44, s45, 13\ns_add_u32 s44, s44, {KVL}\nv_add_u32 v{t0+1}, s44, v5")
        a("s_waitcnt lgkmcnt(0)\ns_barrier")
        for t in range(NT): a(f"ds_read_b128 v[{VA+4*t}:{VA+4*t+3}], v{t0+1} offset:{t*1024}")
        if stats:
            a(f"ds_read_b128 v[{VSO}:{VSO+3}], v{t0+1} offset:{6*1024}\nds_read_b128 v[{VSO+4}:{VSO+7}], v{t0+1} offset:{7*1024}")
        a("s_waitcnt lgkmcnt(0)")
        if cbar: a("s_barrier")
        for t in range(NT * 4): a(f"v_add_f32 v{acc0+t}, v{acc0+t}, v{VA+t}")
        if stats:
            for t in range(8): a(f"v_add_f32 v{VST+t}, v{VST+t}, v{VSO+t}")
    ones = lambda: a("v_mov_b32 v52, 0x3f803f80\nv_mov_b32 v53, 0x3f803f80\nv_mov_b32 v54, 0x3f803f80\nv_mov_b32 v55, 0x3f803f80")
    DEP = 2 if 'dep1' not in sys.argv else 1
    A0, A1 = 204, 224
    a("s_cmp_ge_u32 s34, 4\ns_cbranch_scc1 ld_qkv")
    a.nvm = 0; a.nlg = 0
    a(f"s_mul_i32 s45, s36, 384\ns_add_u32 s45, s45, {CSQ}\nv_lshlrev_b32 v58, 4, v4")
    for i in range(6): a(f"buffer_load_dwordx4 v[{8+4*i}:{8+4*i+3}], v58, s[8:11], s45 offen offset:{i*64}")
    a(f"s_min_u32 s46, s36, 2\ns_lshl_b32 s46, s46, 6\ns_add_u32 s46, s46, {BKV}")
    a(f"buffer_load_dwordx4 v[32:35], v58, s[8:11], s46 offen")
    ones(); set_bases(a, 1)
    a("s_cmp_eq_u32 s37, 0\ns_cbranch_scc1 qkv_l0")
    flag_line(46, 3, pair=True, layer_delta=-8192)
    await_flags(a, 0x00FF00FF, 46)
    a.label("qkv_l0")
    ts(a, "qkv_ready")
    tile_offs(XF0, X2 - XF0, 20480, True)
    bl = BL(2048, 10)
    for i in range(10): bl.load(i)
    kloop2(a, FQ, 2, 1, 1, [(0, 10)], bl.regs, A0, A1, 2, 1, before=lambda i: a.wait_vm(bl.tag[i]), D=DEP)
    ld.label("ld_qkv")
    if "lateW" in sys.argv:
        ld("s_cmp_eq_u32 s37, 0\ns_cbranch_scc0 ld_qkv1\ns_waitcnt vmcnt(0)\ns_barrier")
        loader_issue(ld, 32, RING)
        ld("s_branch ld_qkv2")
        ld.label("ld_qkv1")
    loader_kloop2(ld, ring, FQ, 2, 1, [(0, 10)], 1, D=DEP)
    if "lateW" in sys.argv: ld.label("ld_qkv2")
    ts(a, "qkv_p1")
    reduce_pair(A0, A1, 1, True)
    ld("s_barrier")
    stats_finalize(a, VST, VST + 4, 60, 61, 56, False)
    qs = DH ** -0.5 * LOG2E
    a(f"v_mul_f32 v62, {f2u(qs):#x}, v60\nv_mul_f32 v63, {f2u(qs):#x}, v61")
    a("s_cmp_lt_u32 s36, 3\ns_cbranch_scc0 qkv_nokv")
    i = 5
    for r in range(4):
        a(f"v_fma_f32 v{48+r}, -v61, v{8+4*i+r}, v{32+r}")
        a(f"v_fma_f32 v{48+r}, v60, v{A0+r}, v{48+r}")
    a("v_cvt_pk_bf16_f32 v52, v48, v49\nv_cvt_pk_bf16_f32 v53, v50, v51")
    a("s_and_b32 s38, s34, 1")
    a(f"s_and_b32 s41, s34, 3\ns_lshl_b32 s41, s41, 10\ns_add_u32 s41, s41, {KVL + 32*KB}")
    a(f"s_lshr_b32 s47, s67, 1\ns_lshl_b32 s47, s47, 12\ns_mul_i32 s48, s37, {KVB[1]-KVB[0]}\ns_add_u32 s47, s47, s48\ns_add_u32 s47, s47, {KVB[0]}")
    def vwrite(rowoff, hstride):
        a(f"v_bfe_u32 v54, v3, 2, 1\nv_mul_u32_u24 v54, {hstride}, v54")
        a("v_bfe_u32 v55, v3, 3, 1\nv_lshl_add_u32 v54, v55, 3, v54")
        a("v_and_b32 v55, 3, v3\nv_lshl_add_u32 v54, v55, 1, v54")
        a(f"v_add3_u32 v54, v54, v{rowoff}, s41")
        a("ds_write_b16 v54, v52\nds_write_b16_d16_hi v54, v52 offset:16\nds_write_b16 v54, v53 offset:32\nds_write_b16_d16_hi v54, v53 offset:48")
    a("s_cmp_eq_u32 s36, 0\ns_cbranch_scc1 qkv_kvA")
    a("s_cmp_eq_u32 s36, 1\ns_cbranch_scc1 qkv_kvB")
    a("v_lshlrev_b32 v47, 3, v3\nv_add_u32 v47, s41, v47\nv_add_u32 v54, 128, v47\nv_cmp_eq_u32 vcc, 3, v4\nv_cndmask_b32 v47, v47, v54, vcc")
    a("v_cmp_eq_u32 vcc, 0, v4\nv_cmp_eq_u32 s[48:49], 3, v4\ns_or_b64 vcc, vcc, s[48:49]")
    a("s_and_saveexec_b64 s[50:51], vcc")
    a("ds_write_b64 v47, v[52:53]")
    a("s_andn2_b64 exec, s[50:51], exec")
    a("v_lshlrev_b32 v47, 6, v4\nv_add_u32 v47, 192, v47")
    vwrite(47, 128)
    a("s_mov_b64 exec, s[50:51]")
    a("v_and_b32 v47, 7, v1\nv_lshlrev_b32 v47, 4, v47\nv_bfe_u32 v54, v1, 3, 2")
    a("s_lshl_b32 s49, s38, 7\ns_add_u32 s49, s49, 1024\ns_lshl_b32 s50, s38, 10\ns_add_u32 s50, s50, 2304")
    a("v_mov_b32 v55, s49\ns_add_u32 s51, s49, 256\nv_mov_b32 v50, s51\nv_cmp_eq_u32 vcc, 1, v54\nv_cndmask_b32 v55, v55, v50, vcc")
    a("v_mov_b32 v50, s50\nv_cmp_eq_u32 vcc, 2, v54\nv_cndmask_b32 v55, v55, v50, vcc")
    a("s_add_u32 s51, s50, 512\nv_mov_b32 v50, s51\nv_cmp_eq_u32 vcc, 3, v54\nv_cndmask_b32 v55, v55, v50, vcc")
    a("v_add_u32 v47, v47, v55")
    a("s_branch qkv_kvout")
    a.label("qkv_kvB")
    a("v_lshlrev_b32 v47, 6, v4")
    vwrite(47, 256)
    a("v_lshlrev_b32 v47, 4, v3\nv_and_b32 v54, 1, v4\nv_lshl_add_u32 v47, v54, 9, v47\ns_lshl_b32 s49, s38, 10\ns_add_u32 s49, s49, 2048\nv_add_u32 v47, s49, v47")
    a("s_branch qkv_kvout")
    a.label("qkv_kvA")
    a("v_lshrrev_b32 v47, 1, v4\nv_lshlrev_b32 v47, 8, v47\nv_lshl_add_u32 v47, v3, 4, v47\nv_and_b32 v54, 1, v4\nv_lshl_add_u32 v47, v54, 3, v47\nv_add_u32 v47, s41, v47")
    a("ds_write_b64 v47, v[52:53]")
    a("s_lshl_b32 s49, s38, 8\nv_lshlrev_b32 v47, 4, v3\nv_and_b32 v54, 1, v4\nv_lshl_add_u32 v47, v54, 9, v47\nv_add_u32 v47, s49, v47")
    a.label("qkv_kvout")
    a("v_add_u32 v54, s41, v5")
    a("s_waitcnt lgkmcnt(0)")
    a("s_mov_b64 s[50:51], exec\ns_mov_b64 exec, 0xffffffff")
    a("ds_read_b128 v[48:51], v54\ns_waitcnt lgkmcnt(0)")
    a("buffer_store_dwordx4 v[48:51], v47, s[8:11], s47 offen sc1")
    a("s_mov_b64 exec, s[50:51]")
    a.label("qkv_nokv")
    ts(a, "qkv_kv")
    set_bases(a, 5)
    segs = [(0, 2), (2, 4), (4, 6), (6, 8), (8, 10)]
    def kvhook(si, after):
        if si != (3 if DEP == 2 else 2): return
        if not after:
            a("s_waitcnt vmcnt(0)")
        else:
            Lx = newlab("kvpub")
            a(f"s_cmp_eq_u32 s34, 0\ns_cbranch_scc0 {Lx}\ns_cmp_lt_u32 s36, 3\ns_cbranch_scc0 {Lx}")
            a(f"s_lshl_b32 s46, s37, 13\ns_lshr_b32 s45, s35, 3\ns_lshl_b32 s45, s45, 11\ns_add_u32 s46, s46, s45\ns_add_u32 s46, s46, {KVF}\nv_lshlrev_b32 v56, 8, v1\nv_mov_b32 v57, 1")
            a("s_mov_b64 s[42:43], exec\ns_mov_b64 exec, 0xff")
            a("buffer_atomic_add v57, v56, s[8:11], s46 offen")
            a("s_mov_b64 exec, s[42:43]")
            a.label(Lx)
    kloop2(a, FQ + 20, 10, 5, 5, segs, bl.regs, A0, A1, 0, 5, hook=kvhook, D=DEP)
    loader_kloop2(ld, ring, FQ + 20, 10, 5, segs, 5, D=DEP)
    ts(a, "qkv_kloop")
    KV0 = 32
    def K1(b): return KV0 + 16 * b
    def K2(b): return KV0 + 16 * b + 4
    def V1(b): return KV0 + 16 * b + 8
    def ldK(b):
        a(f"buffer_load_dwordx4 v[{K1(b)}:{K1(b)+3}], v5, s[8:11], s47 offen sc1")
        a(f"buffer_load_dwordx2 v[{K2(b)}:{K2(b)+1}], v170, s[8:11], s47 offen offset:1024 sc1")
    def ldV(b, h):
        a(f"buffer_load_dwordx4 v[{V1(b)+4*h}:{V1(b)+4*h+3}], v5, s[8:11], s47 offen offset:{2048+1024*h} sc1")
    def kv_poll_issue():
        a(f"s_and_b32 s38, s34, 3\ns_lshl_b32 s46, s37, 13\ns_lshl_b32 s45, s38, 11\ns_add_u32 s46, s46, s45\ns_and_b32 s45, s2, 7\ns_lshl_b32 s45, s45, 8\ns_add_u32 s46, s46, s45\ns_add_u32 s46, s46, {KVF}\nv_mov_b32 v175, 0")
        a("buffer_load_dword v176, v175, s[8:11], s46 offen sc1")
    def kv_poll_wait():
        Lp, Ld = newlab("kvp"), newlab("kvpd")
        a("s_mov_b32 s48, 0\nv_mov_b32 v175, 0")
        a.label(Lp)
        a("s_add_u32 s48, s48, 1\ns_waitcnt vmcnt(0)")
        a("v_readfirstlane_b32 s45, v176")
        a(f"s_cmp_ge_u32 s45, 24\ns_cbranch_scc1 {Ld}")
        a(f"s_cmp_gt_u32 s48, {SPIN_MAX}\ns_cbranch_scc1 {Ld}")
        a("s_sleep 1\nbuffer_load_dword v176, v175, s[8:11], s46 offen sc1")
        a(f"s_branch {Lp}")
        a.label(Ld)
    def kv_prologue():
        a(f"s_and_b32 s38, s34, 3\ns_mul_i32 s47, s37, {KVB[1]-KVB[0]}\ns_add_u32 s47, s47, {KVB[0]}\ns_lshl_b32 s48, s38, 16\ns_add_u32 s47, s47, s48")
        ldK(0); ldV(0, 0); ldV(0, 1)
        a("s_add_u32 s47, s47, 4096")
        ldK(1)
    a("v_lshlrev_b32 v170, 3, v1")
    kv_poll_issue()
    reduce_pair(A0, A1, 5, False, t0=194)
    ld("s_barrier")
    kv_poll_wait()
    kv_prologue()
    a("s_and_b32 s38, s34, 3\ns_lshl_b32 s38, s38, 4\nv_add_u32 v184, s38, v3\nv_mul_u32_u24 v184, 192, v184")
    a(f"v_add_u32 v184, {KVL + 36*KB}, v184")
    for i in range(5):
        for r in range(4):
            a(f"v_mul_f32 v{188+r}, v63, v{8+4*i+r}")
            a(f"v_fma_f32 v{188+r}, v62, v{A0+4*i+r}, -v{188+r}")
        a(f"v_cvt_pk_bf16_f32 v192, v188, v189\nv_cvt_pk_bf16_f32 v193, v190, v191")
        a(f"v_add_u32 v185, {4*i}, v4\nv_mul_u32_u24 v186, 52, v185\nv_lshrrev_b32 v186, 8, v186\nv_add_u32 v185, v185, v186\nv_lshl_add_u32 v185, v185, 3, v184")
        a("ds_write_b64 v185, v[192:193]")
    a("s_waitcnt lgkmcnt(0)")
    a("s_barrier")
    loader_bp(ld, ring, None, FO)
    ld("s_branch att_top")
    a.label("att_top")
    ts(a, "qkv_done")
    QB_, P, SA, SB, O = 8, 64, 72, 88, 104
    def Q1(i): return QB_ + 6 * i
    def Q2(i): return QB_ + 6 * i + 4
    a("v_and_b32 v6, 31, v1\nv_lshrrev_b32 v7, 5, v1\nv_lshlrev_b32 v170, 3, v1")
    a("s_cmp_ge_u32 s34, 4\ns_cbranch_scc0 att_q")
    kv_poll_issue()
    a.label("att_q")
    a("s_and_b32 s38, s34, 3\ns_lshr_b32 s39, s34, 2")
    a("v_lshrrev_b32 v171, 2, v6\nv_mul_u32_u24 v171, 192, v171\nv_and_b32 v172, 3, v6\nv_mul_u32_u24 v172, 48, v172\nv_add_u32 v171, v171, v172")
    for i in range(4):
        a(f"s_add_u32 s40, s38, {i}\ns_and_b32 s40, s40, 3\ns_lshl_b32 s41, s39, 2\ns_add_u32 s40, s40, s41\ns_mul_i32 s40, s40, {8*192}\ns_add_u32 s40, s40, {KVL + 36*KB}")
        a(f"v_add_u32 v173, s40, v171\nv_lshl_add_u32 v174, v7, 4, v173")
        a(f"ds_read_b128 v[{Q1(i)}:{Q1(i)+3}], v174\nds_read_b64 v[{Q2(i)}:{Q2(i)+1}], v173 offset:32")
    FLAGW = KVL + 48 * KB - 64
    a("s_mov_b32 s57, 0")
    a("s_waitcnt lgkmcnt(0)")
    a("v_cmp_eq_u32 vcc, 1, v7")
    for i in range(4):
        a(f"v_cndmask_b32 v{Q2(i)}, v{Q2(i)}, 0, vcc\nv_cndmask_b32 v{Q2(i)+1}, v{Q2(i)+1}, 0, vcc")
    a("s_cmp_ge_u32 s34, 4\ns_cbranch_scc0 att_go")
    kv_poll_wait()
    a.label("att_main")
    kv_prologue()
    a.label("att_go")
    ts(a, "kv_ready")
    for r in range(64): a(f"v_mov_b32 v{O+r}, 0")
    def qk1(Sd, b, i): a(f"v_mfma_f32_32x32x16_bf16 v[{Sd}:{Sd+15}], v[{K1(b)}:{K1(b)+3}], v[{Q1(i)}:{Q1(i)+3}], 0")
    def qk2(Sd, b, i): a(f"v_mfma_f32_32x32x8_bf16 v[{Sd}:{Sd+15}], v[{K2(b)}:{K2(b)+1}], v[{Q2(i)}:{Q2(i)+1}], v[{Sd}:{Sd+15}]")
    def pv(i, b, h): a(f"v_mfma_f32_32x32x16_bf16 v[{O+16*i}:{O+16*i+15}], v[{V1(b)+4*h}:{V1(b)+4*h+3}], v[{P+4*h}:{P+4*h+3}], v[{O+16*i}:{O+16*i+15}]")
    for r in range(4, 8): a(f"v_mov_b32 v{P+r}, 0\nv_mov_b32 v{V1(1)+r}, 0\nv_mov_b32 v{SB+8+r}, 0")
    a("s_waitcnt vmcnt(4)")
    qk1(SA, 0, 0); qk2(SA, 0, 0)
    a("s_mov_b32 s49, 0")
    a("s_cmp_eq_u32 s37, 0\ns_cbranch_scc0 att_nochk")
    a(f"s_lshl_b32 s46, s35, 5\ns_add_u32 s46, s46, {XID}")
    await_flags(a, 0xFF, 46, vtmp=175)
    a("s_mov_b64 s[42:43], exec\ns_mov_b64 exec, 0xff\nv_cmp_ne_u32 vcc, s58, v176\ns_cmp_eq_u64 vcc, 0\ns_cselect_b32 s59, 1, 0\ns_mov_b64 exec, s[42:43]")
    if "noxcd" in sys.argv: a("s_mov_b32 s59, 0")
    a.label("att_nochk")
    PFQ = int([x for x in sys.argv if x.startswith("pfq=")][0][4:]) if any(x.startswith("pfq=") for x in sys.argv) else 96
    PF = "nopf" not in sys.argv
    if PF:
        a(f"s_mul_i32 s88, s36, {SL*KB}\ns_lshr_b32 s45, s35, 3\ns_mul_i32 s45, s45, {PFQ*KB}\ns_add_u32 s88, s88, s45\ns_add_u32 s88, s88, {WST + 224*KB}")
        a(f"s_lshl_b32 s45, s34, 12\ns_add_u32 s88, s88, s45\ns_add_u32 s89, s88, 32768\ns_add_u32 s90, s88, 65536")
        if "nopfw" in sys.argv: a(f"s_mov_b32 s88, {KVB[0]}\ns_mov_b32 s89, s88\ns_mov_b32 s90, s88")
        a("s_and_b32 s40, s34, 3\ns_lshl_b32 s41, s35, 2\ns_add_u32 s40, s40, s41")
        a("s_cmp_ge_u32 s34, 4\ns_cbranch_scc1 dst_h")
        a(f"s_mul_i32 s41, s40, 20480\ns_mul_i32 s45, s36, 2560\ns_add_u32 s41, s41, s45")
        a(f"s_mul_i32 s91, s37, {OB[1]-OB[0]}\ns_add_u32 s91, s91, {OB[0]}\ns_add_u32 s91, s91, s41")
        a(f"s_mul_i32 s92, s37, {X1[1]-X1[0]}\ns_add_u32 s92, s92, {X1[0]}\ns_add_u32 s92, s92, s41")
        a(f"s_add_u32 s93, s41, {X2}\ns_mov_b32 s61, 3\ns_mov_b32 s62, 39")
        a("s_branch dst_d")
        a.label("dst_h")
        a("s_lshr_b32 s44, s36, 1\ns_mul_i32 s44, s44, 27\ns_and_b32 s45, s36, 1\ns_mul_i32 s45, s45, 14\ns_add_u32 s44, s44, s45\ns_lshl_b32 s44, s44, 9")
        a(f"s_mul_i32 s41, s40, 55296\ns_add_u32 s44, s44, s41\ns_mul_i32 s45, s37, {HB[1]-HB[0]}\ns_add_u32 s44, s44, s45\ns_add_u32 s91, s44, {HB[0]}")
        a("s_add_u32 s92, s91, 4096\ns_mov_b32 s93, s92\ns_mov_b32 s61, 4\ns_bitcmp1_b32 s36, 0\ns_cselect_b32 s62, 39, 47")
        a.label("dst_d")
        a("s_mov_b32 s94, s93\ns_mov_b32 s95, s93")
    if "noout" not in sys.argv:
        a("s_cmp_eq_u32 s37, 1\ns_cbranch_scc0 outpf_d\ns_cmp_ge_u32 s34, 4\ns_cbranch_scc0 outpf_d")
        srd(a, 16, 28, 0, XBYTES)
        a("v_add_u32 v179, s66, v3\nv_mul_u32_u24 v179, 1280, v179\nv_lshl_add_u32 v179, v4, 6, v179\ns_mul_i32 s40, s36, 160\ns_and_b32 s40, s40, -64\nv_add_u32 v179, s40, v179")
        a("buffer_load_dword v178, v179, s[16:19], 0 offen")
        a.label("outpf_d")
    a("s_nop 7")
    ts(a, "att_start")
    a.label("att_loop")
    if "altprio" in sys.argv:
        a("s_lshr_b32 s45, s34, 2\ns_add_u32 s45, s45, s49\ns_bitcmp1_b32 s45, 0\ns_cbranch_scc1 att_p1\ns_setprio 0\ns_branch att_p2")
        a.label("att_p1"); a("s_setprio 1"); a.label("att_p2")
    if "hiprio" in sys.argv:
        a("s_cmp_ge_u32 s34, 4\ns_cbranch_scc0 att_p2\ns_setprio 1"); a.label("att_p2")
    ex = lambda Sc, r: a(f"v_exp_f32 v{Sc+r}, v{Sc+r}")
    cv = lambda Sc, q: a(f"v_cvt_pk_bf16_f32 v{P+q}, v{Sc+2*q}, v{Sc+2*q+1}")
    for kk in range(2):
        b = kk
        for q in range(4):
            u = kk * 4 + q
            Sc, Sn = (SA, SB) if u % 2 == 0 else (SB, SA)
            pq, pb = (q - 1) % 4, (b if q > 0 else 1 - b)
            nq, nb = (q + 1) % 4, (b if q < 3 else 1 - b)
            if "altprio2" in sys.argv and q == 0:
                L1, L2 = newlab("ap"), newlab("ap")
                a(f"s_lshr_b32 s45, s34, 2\ns_bitcmp1_b32 s45, 0\ns_cbranch_scc1 {L1}\ns_setprio {kk}\ns_branch {L2}")
                a.label(L1); a(f"s_setprio {1-kk}"); a.label(L2)
            ex(Sc, 0); ex(Sc, 1); cv(Sn, 6); cv(Sn, 7); ex(Sc, 2); ex(Sc, 3)
            if q == 3: a(f"s_waitcnt vmcnt({3 if (PF and kk == 1) else 2})")
            qk1(Sn, nb, nq)
            ex(Sc, 4); ex(Sc, 5); cv(Sc, 0); cv(Sc, 1); ex(Sc, 6); ex(Sc, 7)
            qk2(Sn, nb, nq)
            if q == 3:
                a("s_add_u32 s47, s47, 4096")
                ldK(b)
                if PF and kk == 0:
                    a("s_mov_b32 m0, s49\ns_cmp_lt_u32 s49, s61\ns_cselect_b32 s63, 63, s62\ns_movrels_b32 s50, s88")
                    a("v_min_u32 v177, s63, v1\nv_lshlrev_b32 v177, 6, v177")
                    a("buffer_load_dword v178, v177, s[8:11], s50 offen")
            ex(Sc, 8); ex(Sc, 9); cv(Sc, 2); cv(Sc, 3); ex(Sc, 10); ex(Sc, 11)
            pv(pq, pb, 1)
            if q == 0: ldV(1 - b, 0)
            if q == 1: ldV(1 - b, 1)
            ex(Sc, 12); ex(Sc, 13); cv(Sc, 4); cv(Sc, 5); ex(Sc, 14); ex(Sc, 15)
            if q == 0: a(f"s_waitcnt vmcnt({4 if (PF and kk == 1) else 3})")
            pv(q, b, 0)
    a("s_add_u32 s49, s49, 1\ns_cmp_lt_u32 s49, 8\ns_cbranch_scc1 att_loop")
    a("s_setprio 0")
    cv(SB, 6); cv(SB, 7)
    pv(3, 1, 1)
    ts(a, "att_loop_end")
    a(f"s_mul_i32 s40, s34, {3*1536}\ns_add_u32 s40, s40, {KVL}\nv_add_u32 v171, s40, v5\nv_add_u32 v172, s40, v170\nv_add_u32 v172, 1024, v172")
    for r in (1, 2, 3):
        t = 72 + 8 * (r - 1)
        for q in range(5): a(f"v_cvt_pk_bf16_f32 v{t+q}, v{O+16*r+2*q}, v{O+16*r+2*q+1}")
        a(f"v_mov_b32 v{t+5}, v{O+16*r+10}")
        a(f"ds_write_b128 v171, v[{t}:{t+3}] offset:{(r-1)*1536}\nds_write_b64 v172, v[{t+4}:{t+5}] offset:{(r-1)*1536}")
    a(f"v_mov_b32 v175, {FLAGW}\nv_mov_b32 v176, 0\nds_write_b32 v175, v176")
    a("s_waitcnt lgkmcnt(0)\ns_barrier")
    for r in (1, 2, 3):
        t = 72 + 8 * (r - 1)
        a(f"s_sub_u32 s41, s38, {r}\ns_and_b32 s41, s41, 3\ns_lshl_b32 s45, s39, 2\ns_add_u32 s41, s41, s45\ns_mul_i32 s41, s41, {3*1536}\ns_add_u32 s41, s41, {KVL + (r-1)*1536}")
        a(f"v_add_u32 v171, s41, v5\nv_add_u32 v172, s41, v170")
        a(f"ds_read_b128 v[{t}:{t+3}], v171\nds_read_b64 v[{t+4}:{t+5}], v172 offset:1024")
    a("s_waitcnt vmcnt(0) lgkmcnt(0)")
    for r in (1, 2, 3):
        t = 72 + 8 * (r - 1)
        for q in range(5):
            unpack2(a, 173, 174, t + q)
            a(f"v_add_f32 v{O+2*q}, v{O+2*q}, v173\nv_add_f32 v{O+2*q+1}, v{O+2*q+1}, v174")
        a(f"v_add_f32 v{O+10}, v{O+10}, v{t+5}")
    a("s_cmp_eq_u32 s57, 1\ns_cbranch_scc1 att_fin")
    a("v_mov_b32 v173, 0")
    for r in range(10): a(f"v_fma_f32 v173, v{O+r}, 0, v173")
    a(f"v_cmp_lt_f32 vcc, {f2u(2.0**-60):#x}, v{O+10}")
    a(f"v_mov_b32 v174, {f2u(2.0**60):#x}\nv_cmp_gt_f32 s[40:41], v174, v{O+10}\ns_and_b64 vcc, vcc, s[40:41]")
    a("v_cmp_eq_f32 s[40:41], 0, v173\ns_and_b64 vcc, vcc, s[40:41]")
    if "forcefb" in sys.argv: a("s_mov_b64 vcc, 0")
    a("s_cmp_eq_u64 vcc, -1\ns_cbranch_scc1 att_okw")
    a(f"v_mov_b32 v175, {FLAGW}\nv_mov_b32 v176, 1\nds_write_b32 v175, v176\ns_waitcnt lgkmcnt(0)")
    a.label("att_okw")
    a("s_barrier")
    a(f"v_mov_b32 v175, {FLAGW}\nds_read_b32 v176, v175\ns_waitcnt lgkmcnt(0)\nv_readfirstlane_b32 s40, v176")
    a("s_cmp_eq_u32 s40, 0\ns_cbranch_scc0 att_fallback")
    a.label("att_fin")
    ts(a, "att_red")
    a(f"v_rcp_f32 v173, v{O+10}")
    for r in range(10): a(f"v_mul_f32 v{O+r}, v{O+r}, v173")
    for q in range(5): a(f"v_cvt_pk_bf16_f32 v{P+q}, v{O+2*q}, v{O+2*q+1}")
    a(f"s_mul_i32 s40, s34, 1280\ns_add_u32 s40, s40, {KVL + 36864}")
    a("v_lshrrev_b32 v171, 2, v6\nv_mul_u32_u24 v171, 160, v171\nv_and_b32 v172, 3, v6\nv_mul_u32_u24 v172, 40, v172\nv_mul_u32_u24 v173, 20, v7\nv_add3_u32 v171, v171, v172, v173")
    a("v_add_u32 v171, s40, v171")
    for q in range(5): a(f"ds_write_b32 v171, v{P+q} offset:{4*q}")
    a("v_and_b32 v172, 7, v1\nv_lshrrev_b32 v173, 3, v1")
    a("v_mul_u32_u24 v174, 160, v172\nv_lshl_add_u32 v174, v173, 4, v174\nv_add_u32 v174, s40, v174")
    a("s_waitcnt lgkmcnt(0)")
    a("ds_read_b128 v[72:75], v174\nds_read_b128 v[76:79], v174 offset:128")
    a("s_and_b32 s41, s34, 1\ns_lshl_b32 s41, s41, 7\nv_lshlrev_b32 v172, 4, v172\nv_lshl_add_u32 v172, v173, 8, v172\nv_add_u32 v172, s41, v172")
    a(f"s_lshl_b32 s41, s35, 2\ns_lshr_b32 s45, s34, 1\ns_add_u32 s48, s41, s45\ns_mul_i32 s41, s48, 20480\ns_mul_i32 s45, s36, 2560\ns_add_u32 s41, s41, s45\ns_mul_i32 s45, s37, {OB[1]-OB[0]}\ns_add_u32 s41, s41, s45\ns_add_u32 s41, s41, {OB[0]}")
    a("s_waitcnt lgkmcnt(0)")
    xstore(a, "buffer_store_dwordx4 v[72:75], v172, s[8:11], s41 offen @SC\ns_mov_b64 s[42:43], exec\ns_mov_b64 exec, 0xffff\nbuffer_store_dwordx4 v[76:79], v172, s[8:11], s41 offen offset:2048 @SC\ns_mov_b64 exec, s[42:43]")
    flag_line(46, 0, tile_sgpr=48)
    a("s_lshl_b32 s45, s36, 3\ns_add_u32 s46, s46, s45\ns_and_b32 s45, s34, 1\ns_lshl_b32 s45, s45, 2\ns_add_u32 s46, s46, s45")
    set_flag(a, 46, vtmp=175)
    ts(a, "att_done")
    a("s_cmp_ge_u32 s34, 4\ns_cbranch_scc1 ld_wo")
    a.nvm = 0; a.nlg = 0
    set_bases(a, 5)
    flag_line(46, 0, pair=True)
    await_flags(a, 0xFFFFFFFF, 46)
    ts(a, "wo_ready")
    tile_offs(OB[0], OB[1] - OB[0], 20480, True)
    bl = BL(2048, 10)
    for i in range(10): bl.load(i)
    segs = [(0, 5), (5, 10)]
    kloop2(a, FO, 10, 5, 5, segs, bl.regs, A0, A1, 0, 5, before=lambda i: a.wait_vm(bl.tag[i]), D=DEP)
    ld.label("ld_wo")
    ring.drained()
    loader_kloop2(ld, ring, FO, 10, 5, segs, 5, D=DEP, docap=('capwo' in sys.argv))
    ts(a, "wo_kloop")
    reduce_pair(A0, A1, 5, False, cbar=bool(SIDES))
    if SIDES:
        ld("s_barrier\ns_barrier")
        side_issue(ld, ring, 0); ring_refill(ld, ring, F1)
    else:
        loader_bp(ld, ring, None, F1)
    frag_addr(a, 60, 61, 68, 62)
    tile_offs(X1[0], X1[1] - X1[0], 20480, False)
    for i in range(5):
        unpack2(a, 48, 49, RES + 2 * i); unpack2(a, 50, 51, RES + 2 * i + 1)
        for r in range(4): a(f"v_add_f32 v{48+r}, v{48+r}, v{A0+4*i+r}")
        a(f"v_cvt_pk_bf16_f32 v{RES+2*i}, v48, v49\nv_cvt_pk_bf16_f32 v{RES+2*i+1}, v50, v51")
    store_tiles(a, [RES + 2 * i for i in range(5)], 5, 60, 61, 8, "s40", 512, "@SC", tmp=48)
    flag_line(46, 1, tile_sgpr=67)
    a("s_lshl_b32 s45, s36, 2\ns_add_u32 s46, s46, s45")
    set_flag(a, 46)
    ts(a, "wo_done")
    a.nvm = 0; a.nlg = 0
    a("s_lshr_b32 s52, s36, 1\ns_mul_i32 s52, s52, 27\ns_and_b32 s53, s36, 1\ns_mul_i32 s53, s53, 14\ns_add_u32 s52, s52, s53")
    a("s_and_b32 s53, s34, 1\ns_mul_i32 s53, s53, 7\ns_add_u32 s52, s52, s53")
    srd(a, 20, 24, 0, F * 2)
    a("s_lshl_b32 s47, s52, 5\nv_lshlrev_b32 v60, 3, v4\nv_add_u32 v60, s47, v60")
    B1R = 232
    for i in range(7): a(f"buffer_load_dwordx2 v[{B1R+2*i}:{B1R+2*i+1}], v60, s[20:23], 0 offen offset:{i*32}")
    a(f"s_mul_i32 s45, s36, 896\ns_lshl_b32 s44, s53, 6\ns_add_u32 s45, s45, s44\ns_add_u32 s45, s45, {CS1}\nv_lshlrev_b32 v58, 4, v4")
    for i in range(7): a(f"buffer_load_dwordx4 v[{8+4*i}:{8+4*i+3}], v58, s[8:11], s45 offen offset:{i*64}")
    ones(); set_bases(a, 7)
    flag_line(46, 1, pair=True)
    await_flags(a, 0x00FF00FF, 46)
    ts(a, "fc1_ready")
    tile_offs(X1[0], X1[1] - X1[0], 20480, False)
    bl = BL(1024, 10, sc=('' if 'fc1plain' in sys.argv else 'sc1'))
    for i in range(10): bl.load(i)
    segs = [(2 * s_, 2 * s_ + 2) for s_ in range(10)]
    C0, C1 = 176, 204
    kloop2(a, F1, 14, 7, 7, segs, bl.regs, C0, C1, 1, 4, before=lambda i: a.wait_vm(bl.tag[i]),
           after=lambda i: bl.load(i + 10) if i + 10 < 20 else None)
    ld.label("ld_fc1")
    loader_kloop2(ld, ring, F1, 14, 7, segs, 4, docap=('capfc1' in sys.argv))
    ts(a, "fc1_kloop")
    stats_finalize(a, VST, VST + 4, 60, 61, 56, True)
    a(f"s_and_b32 s45, s34, 3\ns_lshl_b32 s44, s45, 9\ns_add_u32 s44, s44, {KVL}\nv_lshlrev_b32 v56, 3, v1\nv_add_u32 v57, s44, v56")
    a("ds_write_b64 v57, v[60:61]")
    a(f"s_xor_b32 s45, s45, 1\ns_lshl_b32 s44, s45, 9\ns_add_u32 s44, s44, {KVL}\nv_add_u32 v57, s44, v56")
    a("s_waitcnt lgkmcnt(0)\ns_barrier")
    a("ds_read_b64 v[62:63], v57")
    if SIDES:
        a("s_waitcnt lgkmcnt(0)\ns_barrier")
        ld("s_barrier\ns_barrier")
        side_issue(ld, ring, 1); ring_refill(ld, ring, F2)
    else:
        loader_bp(ld, ring, None, F2)
    frag_addr(a, 58, 59, 52, 56)
    tile_offs(HB[0], HB[1] - HB[0], 55296, False)
    c0 = -2.0 * math.sqrt(2.0 / math.pi) * LOG2E
    c1 = c0 * 0.044715
    a(f"v_mov_b32 v40, {f2u(c0):#x}\nv_mov_b32 v41, v40\nv_mov_b32 v42, {f2u(c1):#x}\nv_mov_b32 v43, v42\nv_mov_b32 v46, 1.0\nv_mov_b32 v47, 1.0")
    a("s_waitcnt lgkmcnt(0)")
    def gelu_tile(i, acc, dst):
        unpack2(a, 52, 53, B1R + 2 * i); unpack2(a, 54, 55, B1R + 2 * i + 1)
        for h in range(2): a(f"v_pk_fma_f32 v[{52+2*h}:{53+2*h}], v[38:39], v[{8+4*i+2*h}:{8+4*i+2*h+1}], v[{52+2*h}:{53+2*h}]")
        for h in range(2): a(f"v_pk_fma_f32 v[{52+2*h}:{53+2*h}], v[36:37], v[{acc+4*i+2*h}:{acc+4*i+2*h+1}], v[{52+2*h}:{53+2*h}]")
        for h in range(2): a(f"v_pk_mul_f32 v[{144+2*h}:{145+2*h}], v[{52+2*h}:{53+2*h}], v[{52+2*h}:{53+2*h}]")
        for h in range(2): a(f"v_pk_fma_f32 v[{144+2*h}:{145+2*h}], v[{144+2*h}:{145+2*h}], v[42:43], v[40:41]")
        for h in range(2): a(f"v_pk_mul_f32 v[{144+2*h}:{145+2*h}], v[{144+2*h}:{145+2*h}], v[{52+2*h}:{53+2*h}]")
        for r in range(4): a(f"v_exp_f32 v{144+r}, v{144+r}")
        for h in range(2): a(f"v_pk_add_f32 v[{144+2*h}:{145+2*h}], v[{144+2*h}:{145+2*h}], v[46:47]")
        for r in range(4): a(f"v_rcp_f32 v{144+r}, v{144+r}")
        for h in range(2): a(f"v_pk_mul_f32 v[{52+2*h}:{53+2*h}], v[{52+2*h}:{53+2*h}], v[{144+2*h}:{145+2*h}]")
        a(f"v_cvt_pk_bf16_f32 v{dst}, v52, v53\nv_cvt_pk_bf16_f32 v{dst+1}, v54, v55")
    for tilesel in range(2):
        acc, rho, mu, so = (C0, 60, 61, "s40") if tilesel == 0 else (C1, 62, 63, "s41")
        a(f"v_mov_b32 v36, v{rho}\nv_mov_b32 v37, v{rho}\nv_sub_f32 v38, 0, v{mu}\nv_mov_b32 v39, v38")
        for p in range(3):
            t = 152 + 4 * (p % 2)
            gelu_tile(2 * p, acc, t); gelu_tile(2 * p + 1, acc, t + 2)
            a(f"v_permlane16_swap_b32 v{t}, v{t+2}\nv_permlane16_swap_b32 v{t+1}, v{t+3}")
            xstore(a, f"buffer_store_dwordx4 v[{t}:{t+3}], v58, s[8:11], {so} offen offset:{p*1024} @SC")
        sk = newlab("fc1sk")
        a(f"s_and_b32 s45, s36, s34\ns_bitcmp1_b32 s45, 0\ns_cbranch_scc1 {sk}")
        gelu_tile(6, acc, 160)
        xstore(a, f"buffer_store_dwordx2 v[160:161], v59, s[8:11], {so} offen offset:3072 @SC")
        a.label(sk)
    flag_line(46, 2, tile_sgpr=67)
    flag_line(47, 2, tile_sgpr=65)
    a("s_lshl_b32 s45, s36, 3\ns_and_b32 s44, s34, 1\ns_lshl_b32 s44, s44, 2\ns_add_u32 s45, s45, s44\ns_add_u32 s46, s46, s45\ns_add_u32 s47, s47, s45")
    set_flag(a, 46, second=47)
    ts(a, "fc1_done")
    a.nvm = 0; a.nlg = 0
    srd(a, 20, 26, 0, D * 2)
    a("v_lshlrev_b32 v58, 3, v4\ns_mul_i32 s40, s36, 160\nv_add_u32 v58, s40, v58")
    for i in range(5): a(f"buffer_load_dwordx2 v[{8+2*i}:{9+2*i}], v58, s[20:23], 0 offen offset:{i*32}")
    set_bases(a, 5)
    flag_line(46, 2, pair=True)
    await_flags(a, 0xFFFFFFFF, 46)
    ts(a, "fc2_ready")
    tile_offs(HB[0], HB[1] - HB[0], 55296, True)
    bl = BL(2048, 10)
    for i in range(10): bl.load(i)
    segs = [(2 * s_, min(27, 2 * s_ + 2)) for s_ in range(14)]
    SEGTS[0] = True
    kloop2(a, F2, 10, 5, 5, segs, bl.regs, A0, A1, 0, 5, before=lambda i: a.wait_vm(bl.tag[i]),
           after=lambda i: bl.load(i + 10) if i + 10 < 27 else None, D=DEP)
    ld.label("ld_fc2")
    loader_kloop2(ld, ring, F2, 10, 5, segs, 5, D=DEP, docap=('capfc2' in sys.argv))
    ts(a, "fc2_kloop")
    reduce_pair(A0, A1, 5, False)
    loader_bp(ld, ring, None, SL)
    assert ring.I == SLP + RING
    for i in range(5):
        unpack2(a, 48, 49, RES + 2 * i); unpack2(a, 50, 51, RES + 2 * i + 1)
        unpack2(a, 52, 53, 8 + 2 * i); unpack2(a, 54, 55, 8 + 2 * i + 1)
        for r in range(4): a(f"v_add_f32 v{52+r}, v{52+r}, v{A0+4*i+r}")
        for r in range(4): a(f"v_add_f32 v{48+r}, v{48+r}, v{52+r}")
        a(f"v_cvt_pk_bf16_f32 v{RES+2*i}, v48, v49\nv_cvt_pk_bf16_f32 v{RES+2*i+1}, v50, v51")
    a("s_cmp_eq_u32 s37, 0\ns_cbranch_scc0 fc2_last")
    frag_addr(a, 60, 61, 68, 62)
    tile_offs(X2, 0, 20480, False)
    store_tiles(a, [RES + 2 * i for i in range(5)], 5, 60, 61, 8, "s40", 512, "@SC", tmp=48)
    flag_line(46, 3, tile_sgpr=67)
    a("s_lshl_b32 s45, s36, 2\ns_add_u32 s46, s46, s45")
    set_flag(a, 46)
    a("s_branch fc2_fin")
    a.label("fc2_last")
    srd(a, 16, 28, 0, XBYTES)
    a("v_add_u32 v62, s66, v3\nv_mul_u32_u24 v60, 1280, v62\ns_mul_i32 s40, s36, 160\nv_add_u32 v60, s40, v60")
    a("v_lshl_add_u32 v61, v4, 3, v60")
    a("v_and_b32 v62, 1, v4\nv_lshl_add_u32 v60, v62, 5, v60\nv_lshrrev_b32 v62, 1, v4\nv_lshl_add_u32 v60, v62, 4, v60")
    store_tiles(a, [RES + 2 * i for i in range(5)], 5, 60, 61, 16, "0", 32, "", tmp=48)
    a.label("fc2_fin")
    ts(a, "fc2_done")
    a("s_branch layer_end")
    ld("s_branch layer_end")
    a.out += ld.out
    fbk = Asm()
    fbk.label("att_fallback")
    fbk("s_barrier")
    for i in range(4): fbk(f"v_mov_b32 v{181+i}, 0xff800000")
    fbk(f"s_mul_i32 s47, s37, {KVB[1]-KVB[0]}\ns_add_u32 s47, s47, {KVB[0]}\ns_lshl_b32 s48, s38, 16\ns_add_u32 s47, s47, s48\ns_mov_b32 s49, 0")
    fbk.label("fb_loop")
    fbk(f"buffer_load_dwordx4 v[{K1(0)}:{K1(0)+3}], v5, s[8:11], s47 offen sc1")
    fbk(f"buffer_load_dwordx2 v[{K2(0)}:{K2(0)+1}], v170, s[8:11], s47 offen offset:1024 sc1")
    fbk("s_waitcnt vmcnt(0)")
    for i in range(4):
        fbk(f"v_mfma_f32_32x32x16_bf16 v[{SA}:{SA+15}], v[{K1(0)}:{K1(0)+3}], v[{Q1(i)}:{Q1(i)+3}], 0")
        fbk(f"v_mfma_f32_32x32x8_bf16 v[{SA}:{SA+15}], v[{K2(0)}:{K2(0)+1}], v[{Q2(i)}:{Q2(i)+1}], v[{SA}:{SA+15}]")
        for r in range(0, 16, 2): fbk(f"v_max3_f32 v{181+i}, v{181+i}, v{SA+r}, v{SA+r+1}")
    fbk("s_add_u32 s47, s47, 4096\ns_add_u32 s49, s49, 1\ns_cmp_lt_u32 s49, 16\ns_cbranch_scc1 fb_loop")
    fbk("v_xor_b32 v171, 32, v1\nv_lshlrev_b32 v171, 2, v171")
    for i in range(4):
        fbk(f"ds_bpermute_b32 v172, v171, v{181+i}\ns_waitcnt lgkmcnt(0)\nv_max_f32 v{181+i}, v{181+i}, v172")
    fbk("v_lshlrev_b32 v171, 2, v6")
    for i in range(4):
        fbk(f"s_add_u32 s40, s38, {i}\ns_and_b32 s40, s40, 3\ns_lshl_b32 s41, s39, 2\ns_add_u32 s40, s40, s41\ns_lshl_b32 s40, s40, 9\ns_lshl_b32 s41, s38, 7\ns_add_u32 s41, s41, s40\ns_add_u32 s41, s41, {KVL}")
        fbk(f"v_add_u32 v172, s41, v171\nds_write_b32 v172, v{181+i}")
    fbk("s_waitcnt lgkmcnt(0)\ns_barrier")
    for i in range(4):
        fbk(f"s_add_u32 s40, s38, {i}\ns_and_b32 s40, s40, 3\ns_lshl_b32 s41, s39, 2\ns_add_u32 s40, s40, s41\ns_lshl_b32 s40, s40, 9\ns_add_u32 s40, s40, {KVL}")
        fbk(f"v_add_u32 v172, s40, v171\nds_read_b32 v173, v172\nds_read_b32 v174, v172 offset:128\nds_read_b32 v175, v172 offset:256\nds_read_b32 v176, v172 offset:384")
        fbk("s_waitcnt lgkmcnt(0)\nv_max_f32 v173, v173, v174\nv_max3_f32 v173, v173, v175, v176")
        fbk("v_sub_f32 v173, 0, v173\nv_cvt_pk_bf16_f32 v174, v173, v173\nv_lshlrev_b32 v175, 16, v174\nv_sub_f32 v175, v173, v175\nv_cvt_pk_bf16_f32 v176, v173, v175")
        fbk(f"v_cmp_eq_u32 vcc, 1, v7\nv_cndmask_b32 v{Q2(i)}, v{Q2(i)}, v176, vcc")
    fbk("s_mov_b32 s57, 1\ns_barrier\ns_branch att_main")
    a.out += fbk.out
    a.label("layer_end")
    if PROFILE:
        a(f"s_cmp_eq_u32 s34, {4 if PROFLD else 0}\ns_cbranch_scc0 prof_skip")
        a(f"s_lshl_b32 s40, s2, 8\ns_lshl_b32 s41, s37, 7\ns_add_u32 s40, s40, s41\ns_add_u32 s40, s40, {TSB}\nv_mov_b32 v8, 0\ns_mov_b64 s[42:43], exec\ns_mov_b64 exec, 1")
        for i in range(Prof.n):
            a(f"v_mov_b32 v9, s{70+i}\nbuffer_store_dword v9, v8, s[8:11], s40 offen offset:{4*i}\ns_nop 0")
        a("s_mov_b64 exec, s[42:43]")
        a.label("prof_skip")
    a(f"s_add_u32 s37, s37, 1\ns_cmp_lt_u32 s37, 2\ns_cbranch_scc1 layer_top")
    a("s_waitcnt vmcnt(0)")
    a("s_endpgm")
    kernel_end(a, name)
    return a.out, descriptor(name, 256), (name, 256, 512, LDS_BYTES)

def build(path, kernels):
    hdr = []
    for k in kernels:
        name, grid, block, lds = k[2]
        hdr.append(f"; @launch kernel={name} grid=({grid},1,1) block=({block},1,1) lds={lds}")
    body = ['.amdgcn_target "amdgcn-amd-amdhsa--gfx950"', ".text"]
    descs = []
    nfix = 0
    for k in kernels:
        lines, n = fix_hazards(k[0])
        nfix += n
        body += lines
        descs.append(k[1])
    txt = "\n".join(hdr) + "\n" + "\n".join(body) + '\n.section .rodata,"a"\n' + "".join(".p2align 6\n" + d for d in descs)
    open(path, "w").write(txt)
    print("written", path, len(txt), "bytes; hazard nops at", nfix, "sites")

if __name__ == "__main__":
    out = [x for x in sys.argv[1:] if x.endswith(".s")]
    build(out[0] if out else "v10.s", [gen_prep(), gen_main()])
    json.dump(dict(WST=WST, CSQ=CSQ, BKV=BKV, CS1=CS1, KVB=KVB, KMAX=KMAX, OB=OB, X1=X1, X2=X2, HB=HB, TSB=TSB, XF=XF, KVF=KVF, TSN=TSN, ver=3, XF0=XF0), open("layout.json", "w"))
```

```python
import sys, math, json, struct
sys.path.insert(0, "gen")
from asmdsl import *

S, D, F, H, DH = 2048, 640, 1728, 32, 20
KB = 1024
PROFSEG = "profseg" in sys.argv
PROFOUT = "profout" in sys.argv
PROFILE = "prof" in sys.argv or "profld" in sys.argv or PROFSEG or PROFOUT
PROFLD = "profld" in sys.argv
off = 0
def alloc(n, align=4096):
    global off
    off = (off + align - 1) // align * align
    o = off; off += n; return o
SL = 770
RING = 112
SLP = 784
FQ, FO, F1, F2 = 0, 120, 220, 500
WST = alloc(8 * SL * KB + 16 * KB)
CSQ = alloc(8 * 96 * 4)
BKV = alloc(3 * 16 * 4)
CS1 = alloc(8 * 224 * 4)
FLAGS = alloc(16384 + 4 * 16384 + 4096, 4096)
KVF = FLAGS
XF = FLAGS + 16384
XID = FLAGS + 16384 + 4 * 16384
FLAG_BYTES = 16384 + 4 * 16384 + 4096
KVB = [alloc(64 * 4096), alloc(64 * 4096)]
KMAX = [alloc(1024), alloc(1024)]
OB = [alloc(S * D * 2), alloc(S * D * 2)]
X1 = [alloc(S * D * 2), alloc(S * D * 2)]
HB = [alloc(S * F * 2), alloc(S * F * 2)]
X2 = alloc(S * D * 2)
XF0 = alloc(S * D * 2)
TSB = alloc(256 * 64 * 4)
WS_BYTES = 268435456
XBYTES = S * D * 2
LOG2E = 1.4426950408889634
def f2u(x): return struct.unpack("<I", struct.pack("<f", x))[0]
KVL = RING * KB
LDS_BYTES = 160 * KB
SPIN_MAX = 200000

def srd(a, s, ptr_pair, off, nbytes):
    if off:
        a(f"s_add_u32 s{s}, s{ptr_pair}, {off}")
        a(f"s_addc_u32 s{s+1}, s{ptr_pair+1}, 0")
    else:
        a(f"s_mov_b32 s{s}, s{ptr_pair}")
        a(f"s_mov_b32 s{s+1}, s{ptr_pair+1}")
    a(f"s_mov_b32 s{s+2}, {nbytes}")
    a(f"s_mov_b32 s{s+3}, 0x20000")
def srd_dyn(a, s, ptr_pair, off_sgpr, nbytes):
    a(f"s_add_u32 s{s}, s{ptr_pair}, s{off_sgpr}")
    a(f"s_addc_u32 s{s+1}, s{ptr_pair+1}, 0")
    a(f"s_mov_b32 s{s+2}, {nbytes}")
    a(f"s_mov_b32 s{s+3}, 0x20000")

def kernel_begin(a, name, nwg):
    a(f".globl {name}")
    a(".p2align 8")
    a(f".type {name},@function")
    a.out.append(f"{name}:")
    a(f"s_cmp_ge_u32 s2, {nwg}")
    a(f"s_cbranch_scc1 {name}_exit")
def kernel_end(a, name):
    a.label(f"{name}_exit")
    a("s_endpgm")
def descriptor(name, vgpr, sgpr=102):
    vg = (vgpr + 7) // 8 * 8
    return f""".amdhsa_kernel {name}
  .amdhsa_next_free_vgpr {vg}
  .amdhsa_next_free_sgpr {sgpr}
  .amdhsa_accum_offset {min(vg,256)}
  .amdhsa_group_segment_fixed_size 0
  .amdhsa_kernarg_size 104
  .amdhsa_user_sgpr_count 2
  .amdhsa_user_sgpr_kernarg_segment_ptr 1
  .amdhsa_system_sgpr_workgroup_id_x 1
  .amdhsa_float_denorm_mode_32 3
  .amdhsa_float_denorm_mode_16_64 3
.end_amdhsa_kernel
"""

PSC = " sc1" if "psc1" in sys.argv else (" nt" if "pnt" in sys.argv else (" sc0 sc1" if "psc01" in sys.argv else ""))
def gen_prep():
    a = Asm(); name = "prep_kernel"
    kernel_begin(a, name, 256)
    a("s_load_dwordx2 s[52:53], s[0:1], 0")
    a("s_load_dwordx2 s[4:5], s[0:1], 96")
    a("s_load_dwordx2 s[6:7], s[0:1], 8")
    a("s_load_dwordx4 s[24:27], s[0:1], 16")
    a("s_load_dwordx2 s[28:29], s[0:1], 32")
    a("s_load_dwordx2 s[30:31], s[0:1], 48")
    a("s_load_dwordx2 s[32:33], s[0:1], 64")
    a("v_and_b32 v1, 63, v0")
    a("v_lshrrev_b32 v2, 6, v0")
    a("v_readfirstlane_b32 s34, v2")
    a("v_and_b32 v3, 15, v1")
    a("v_lshrrev_b32 v4, 4, v1")
    a("v_lshlrev_b32 v5, 4, v1")
    a("s_waitcnt lgkmcnt(0)")
    srd(a, 8, 4, 0, WS_BYTES)
    if "cpf2" in sys.argv:
        a("s_cmp_eq_u32 s34, 3\ns_cbranch_scc0 prep_cpf")
        a("s_getpc_b64 s[40:41]")
        a.label("prep_pc")
        a("s_add_u32 s40, s40, main_kernel-prep_pc\ns_addc_u32 s41, s41, 0")
        a("v_lshlrev_b32 v8, 6, v1")
        for i in range(8):
            a(f"global_load_dword v{110}, v8, s[40:41]")
            a("v_add_u32 v8, 4096, v8")
        a.label("prep_cpf")
    srd(a, 12, 52, 0, XBYTES)
    a("s_lshl_b32 s35, s2, 2\ns_add_u32 s35, s35, s34")
    a("v_mul_u32_u24 v7, 1280, v3\nv_lshl_add_u32 v7, v4, 4, v7")
    for q in range(3):
        a(f"s_add_u32 s36, s35, {q*1024}")
        a("s_mul_i32 s37, s36, 3277\ns_lshr_b32 s37, s37, 16")
        a("s_mul_i32 s38, s37, 20\ns_sub_u32 s38, s36, s38")
        a("s_mul_i32 s39, s37, 20480\ns_lshl_b32 s38, s38, 6\ns_add_u32 s39, s39, s38")
        a(f"buffer_load_dwordx4 v[{16+4*q}:{19+4*q}], v7, s[12:15], s39 offen")
        a(f"s_lshl_b32 s{54+q}, s36, 10\ns_add_u32 s{54+q}, s{54+q}, {XF0}")
    a("s_mov_b32 s57, s35")
    xs_n = [0]
    def xstores():
        L = f"prep_xd{xs_n[0]}"; xs_n[0] += 1
        for q in range(3):
            if q == 2: a(f"s_cmp_lt_u32 s57, 512\ns_cbranch_scc0 {L}")
            a(f"buffer_store_dwordx4 v[{16+4*q}:{19+4*q}], v5, s[8:11], s{54+q} offen" + PSC)
        a.label(L)
    a("s_cmp_ge_u32 s2, 252\ns_cbranch_scc0 prep_go")
    a("s_waitcnt vmcnt(0)")
    xstores()
    a("s_branch prep_done")
    a.label("prep_go")
    def gather(voff, srdn, rowbytes, soff_base_sgpr, nfr, ks_stride_bytes):
        for f in range(nfr):
            for jj in range(8):
                a(f"s_add_u32 s40, s{soff_base_sgpr}, {f*ks_stride_bytes + jj*rowbytes}")
                a(f"buffer_load_ushort v{64+8*f+jj}, v{voff}, s[{srdn}:{srdn+3}], s40 offen")
    def pack(nfr):
        a("s_waitcnt vmcnt(0)")
        xstores()
        for f in range(nfr):
            for q in range(4):
                a(f"v_lshl_or_b32 v{32+4*f+q}, v{64+8*f+2*q+1}, 16, v{64+8*f+2*q}")
    def colsum_and_store(dst_soff_sgpr, dst_ks_stride, cs_off_sgpr):
        a("v_mov_b32 v132, 0x3f803f80\nv_mov_b32 v133, 0x3f803f80\nv_mov_b32 v134, 0x3f803f80\nv_mov_b32 v135, 0x3f803f80")
        pack(5)
        for f in range(5):
            a(f"s_add_u32 s40, s{dst_soff_sgpr}, {f*dst_ks_stride}")
            a(f"buffer_store_dwordx4 v[{32+4*f}:{35+4*f}], v5, s[8:11], s40 offen" + PSC)
            a(f"v_mfma_f32_16x16x32_bf16 v[28:31], v[{32+4*f}:{35+4*f}], v[132:135], " + ("0" if f == 0 else "v[28:31]"))
        a("v_lshlrev_b32 v6, 4, v4")
        a("s_lshl_b32 s41, s34, 6")
        a("v_add_u32 v6, s41, v6")
        a("v_cmp_eq_u32 vcc, 0, v3")
        a("s_and_saveexec_b64 s[42:43], vcc")
        a("ds_write_b128 v6, v[28:31]")
        a("s_mov_b64 exec, s[42:43]")
        a("s_waitcnt lgkmcnt(0)")
        a("s_barrier")
        a("v_lshlrev_b32 v6, 2, v0")
        a("v_cmp_gt_u32 vcc, 16, v0")
        a("s_and_saveexec_b64 s[42:43], vcc")
        a(f"s_cbranch_execz {name}_exit")
        a("ds_read_b32 v7, v6\nds_read_b32 v8, v6 offset:64\nds_read_b32 v9, v6 offset:128\nds_read_b32 v10, v6 offset:192")
        a("s_waitcnt lgkmcnt(0)")
        a("v_add_f32 v7, v7, v8\nv_add_f32 v9, v9, v10\nv_add_f32 v7, v7, v9")
        a(f"buffer_store_dword v7, v6, s[8:11], s{cs_off_sgpr} offen")
        a("s_waitcnt vmcnt(0)")
        a("s_endpgm")
    a("s_cmp_lt_u32 s2, 40\ns_cbranch_scc1 prep_wq")
    a("s_cmp_lt_u32 s2, 43\ns_cbranch_scc1 prep_kv")
    a("s_cmp_lt_u32 s2, 151\ns_cbranch_scc1 prep_w1")
    a("s_branch prep_plain")
    a.label("prep_wq")
    srd(a, 12, 6, 0, D * D * 2)
    a("s_mul_i32 s35, s2, 52429\ns_lshr_b32 s35, s35, 18")
    a("s_mul_i32 s36, s35, 5\ns_sub_u32 s36, s2, s36")
    a("v_mul_u32_u24 v7, 10240, v4")
    a("s_lshl_b32 s37, s2, 5")
    a("v_lshl_add_u32 v7, v3, 1, v7\nv_add_u32 v7, s37, v7")
    a(f"s_mul_i32 s38, s34, {5*32*1280}")
    gather(7, 12, 1280, 38, 5, 32 * 1280)
    a(f"s_mul_i32 s44, s35, {SL*KB}\ns_mul_i32 s45, s34, {25*KB}\ns_add_u32 s44, s44, s45\ns_lshl_b32 s45, s36, 10\ns_add_u32 s44, s44, s45\ns_add_u32 s44, s44, {WST + (FQ+20)*KB}")
    a(f"s_mul_i32 s46, s35, 384\ns_lshl_b32 s45, s36, 6\ns_add_u32 s46, s46, s45\ns_add_u32 s46, s46, {CSQ}")
    colsum_and_store(44, 5 * KB, 46)
    a.label("prep_kv")
    srd(a, 12, 24, 0, D * DH * 2)
    srd(a, 16, 26, 0, D * DH * 2)
    a("s_sub_u32 s35, s2, 40")
    for r in range(64, 104): a(f"v_mov_b32 v{r}, 0")
    BIG = 0x40000000
    a("v_and_b32 v8, 3, v3\nv_lshrrev_b32 v9, 2, v3")
    a("s_cmp_eq_u32 s35, 0\ns_cbranch_scc1 prep_kv0")
    a("s_cmp_eq_u32 s35, 1\ns_cbranch_scc1 prep_kv1")
    a(f"v_mov_b32 v10, {BIG}\nv_mov_b32 v11, {BIG}")
    a("v_lshlrev_b32 v12, 1, v3\nv_add_u32 v12, 32, v12")
    a("v_cmp_gt_u32 vcc, 4, v3\nv_cndmask_b32 v10, v10, v12, vcc")
    a("v_lshlrev_b32 v12, 1, v8")
    a("v_add_u32 v13, 16, v12\nv_add_u32 v14, 36, v12")
    a("v_cmp_eq_u32 vcc, 1, v9\nv_cndmask_b32 v11, v11, v13, vcc")
    a("v_cmp_eq_u32 vcc, 2, v9\nv_cndmask_b32 v11, v11, v14, vcc")
    a(f"v_mov_b32 v12, {BIG}\nv_cmp_lt_u32 vcc, 1, v8\nv_cndmask_b32 v11, v11, v12, vcc")
    a("s_branch prep_kvgo")
    a.label("prep_kv0")
    a(f"v_lshlrev_b32 v10, 1, v3\nv_mov_b32 v11, {BIG}")
    a("s_branch prep_kvgo")
    a.label("prep_kv1")
    a(f"v_mov_b32 v10, {BIG}")
    a("v_mov_b32 v11, 0\nv_cmp_eq_u32 vcc, 1, v9\nv_cndmask_b32 v11, v11, 10, vcc")
    a("v_cmp_eq_u32 vcc, 2, v9\nv_cndmask_b32 v11, v11, 4, vcc")
    a("v_cmp_eq_u32 vcc, 3, v9\nv_cndmask_b32 v11, v11, 14, vcc")
    a("v_add_u32 v11, v11, v8\nv_lshlrev_b32 v11, 1, v11")
    a.label("prep_kvgo")
    a("v_mul_u32_u24 v12, 320, v4")
    a("v_add_u32 v10, v10, v12\nv_add_u32 v11, v11, v12")
    a(f"s_mul_i32 s38, s34, {5*32*40}")
    a(f"v_cmp_gt_u32 vcc, {BIG}, v10\ns_and_saveexec_b64 s[48:49], vcc")
    a("s_cbranch_execz prep_kv_skipk")
    gather(10, 12, 40, 38, 5, 32 * 40)
    a.label("prep_kv_skipk")
    a("s_mov_b64 exec, s[48:49]")
    a(f"v_cmp_gt_u32 vcc, {BIG}, v11\ns_and_saveexec_b64 s[48:49], vcc")
    a("s_cbranch_execz prep_kv_skipv")
    gather(11, 16, 40, 38, 5, 32 * 40)
    a.label("prep_kv_skipv")
    a("s_mov_b64 exec, s[48:49]")
    a(f"s_mul_i32 s44, s35, {SL*KB}\ns_mul_i32 s45, s34, {5*KB}\ns_add_u32 s44, s44, s45\ns_add_u32 s44, s44, {WST + FQ*KB}")
    a(f"s_mul_i32 s46, s35, 384\ns_add_u32 s46, s46, {CSQ + 5*64}")
    colsum_and_store(44, 1 * KB, 46)
    a.label("prep_w1")
    srd(a, 12, 30, 0, D * F * 2)
    a("s_sub_u32 s35, s2, 43")
    a("s_mul_i32 s36, s35, 2428\ns_lshr_b32 s36, s36, 16")
    a("s_mul_i32 s37, s36, 27\ns_sub_u32 s37, s35, s37")
    a("s_lshl_b32 s36, s36, 1")
    a("s_cmp_ge_u32 s37, 14\ns_cbranch_scc0 prep_w1a")
    a("s_add_u32 s36, s36, 1\ns_sub_u32 s37, s37, 14")
    a.label("prep_w1a")
    a("v_mul_u32_u24 v7, 27648, v4")
    a("s_lshl_b32 s39, s35, 5")
    a("v_lshl_add_u32 v7, v3, 1, v7\nv_add_u32 v7, s39, v7")
    a(f"s_mul_i32 s38, s34, {5*32*3456}")
    gather(7, 12, 3456, 38, 5, 32 * 3456)
    a(f"s_mul_i32 s44, s36, {SL*KB}\ns_mul_i32 s45, s34, {5*14*KB}\ns_add_u32 s44, s44, s45\ns_lshl_b32 s45, s37, 10\ns_add_u32 s44, s44, s45\ns_add_u32 s44, s44, {WST + F1*KB}")
    a(f"s_mul_i32 s46, s36, 896\ns_lshl_b32 s45, s37, 6\ns_add_u32 s46, s46, s45\ns_add_u32 s46, s46, {CS1}")
    colsum_and_store(44, 14 * KB, 46)
    a.label("prep_plain")
    a("s_sub_u32 s35, s2, 151\ns_lshl_b32 s35, s35, 2\ns_add_u32 s35, s35, s34")
    a("s_cmp_lt_u32 s35, 120\ns_cbranch_scc1 prep_wo")
    a("s_sub_u32 s35, s35, 120")
    a("s_cmp_ge_u32 s35, 280\ns_cbranch_scc1 prep_bias")
    srd(a, 12, 32, 0, F * D * 2)
    a(f"s_mov_b32 s50, {WST + F2*KB}\ns_mov_b32 s51, 6\ns_mov_b32 s52, 2")
    a("s_branch prep_pl2")
    a.label("prep_wo")
    srd(a, 12, 28, 0, D * D * 2)
    a(f"s_mov_b32 s50, {WST + FO*KB}\ns_mov_b32 s51, 2\ns_mov_b32 s52, 0")
    a.label("prep_pl2")
    a("s_mul_i32 s36, s35, 1639\ns_lshr_b32 s36, s36, 16")
    a("s_mul_i32 s37, s36, 40\ns_sub_u32 s37, s35, s37")
    a("s_mul_i32 s38, s37, 52429\ns_lshr_b32 s38, s38, 18")
    a("s_mul_i32 s39, s38, 5\ns_sub_u32 s39, s37, s39")
    a("v_mul_u32_u24 v7, 10240, v4")
    a("s_lshl_b32 s45, s37, 5")
    a("v_lshl_add_u32 v7, v3, 1, v7\nv_add_u32 v7, s45, v7")
    a(f"s_mul_i32 s44, s38, {SL*KB}\ns_add_u32 s44, s44, s50\ns_mul_i32 s45, s36, {40*KB}\ns_add_u32 s44, s44, s45\ns_lshl_b32 s45, s39, 10\ns_add_u32 s44, s44, s45")
    a(f"s_mul_i32 s38, s36, {8*32*1280}")
    gather(7, 12, 1280, 38, 8, 32 * 1280)
    pack(8)
    for f in range(8):
        if f >= 4:
            a(f"s_cmp_eq_u32 s36, s51\ns_cbranch_scc0 prep_st{f}")
            a(f"s_cmp_gt_u32 s52, {f-4}\ns_cbranch_scc0 prep_done")
            a.label(f"prep_st{f}")
        a(f"s_add_u32 s40, s44, {f*5*KB}")
        a(f"buffer_store_dwordx4 v[{32+4*f}:{35+4*f}], v5, s[8:11], s40 offen" + PSC)
    a.label("prep_done")
    a("s_waitcnt vmcnt(0)")
    a("s_endpgm")
    a.label("prep_bias")
    a("s_waitcnt vmcnt(0)")
    xstores()
    a("v_mov_b32 v8, 0\nv_mov_b32 v9, 0\nv_mov_b32 v10, 0\nv_mov_b32 v11, 0")
    a("v_lshlrev_b32 v6, 4, v0")
    nz = FLAG_BYTES // 4096
    for r in range(nz):
        a(f"s_mov_b32 s40, {FLAGS + r*4096}\nbuffer_store_dwordx4 v[8:11], v6, s[8:11], s40 offen")
    a("s_cmp_eq_u32 s35, 280\ns_cbranch_scc0 prep_done2")
    a("v_mov_b32 v7, 0")
    for idx in (32 + 6, 32 + 10, 32 + 12, 32 + 13):
        a(f"v_cmp_eq_u32 vcc, {idx}, v1\nv_cndmask_b32 v7, v7, 1.0, vcc")
    a("v_lshlrev_b32 v6, 2, v1\nv_cmp_gt_u32 vcc, 48, v1\ns_and_saveexec_b64 s[42:43], vcc")
    a(f"s_mov_b32 s40, {BKV}\nbuffer_store_dword v7, v6, s[8:11], s40 offen")
    a.label("prep_done2")
    a("s_waitcnt vmcnt(0)")
    a("s_endpgm")
    kernel_end(a, name)
    return a.out, descriptor(name, 144), (name, 256, 256, 1024)

VB, VA, VST, VSO, VONE, RES = 64, 144, 36, 44, 52, 246

class Prof:
    n = 0
LDTS = [False]
SEGTS = [False]
def ts(a, label, loader=False, seg=False):
    if not PROFILE: return
    if PROFLD != loader: return
    if PROFSEG != seg: return
    if Prof.n >= 26: return
    i = Prof.n; Prof.n += 1
    assert i < 26, i
    a(f"s_memtime s[98:99]\ns_waitcnt lgkmcnt(0)\ns_mov_b32 s{70+i}, s98")
    TSN.append(label)
TSN = []

def unpack2(a, dlo, dhi, src):
    a(f"v_lshlrev_b32 v{dlo}, 16, v{src}")
    a(f"v_and_b32 v{dhi}, 0xffff0000, v{src}")

uid = [0]
def newlab(p):
    uid[0] += 1
    return f"{p}_{uid[0]}"

def await_flags(a, mask, off_sgpr, vtmp=56):
    L, Dn = newlab("poll"), newlab("polld")
    a(f"v_lshlrev_b32 v{vtmp}, 2, v1")
    a(f"s_mov_b64 s[42:43], exec\ns_mov_b64 exec, {mask:#x}\ns_mov_b32 s44, 0")
    a.label(L)
    a(f"buffer_load_dword v{vtmp+1}, v{vtmp}, s[8:11], s{off_sgpr} offen sc1")
    a("s_add_u32 s44, s44, 1")
    a("s_waitcnt vmcnt(0)")
    a(f"v_cmp_eq_u32 vcc, 0, v{vtmp+1}")
    a(f"s_cmp_eq_u64 vcc, 0\ns_cbranch_scc1 {Dn}")
    a(f"s_cmp_gt_u32 s44, {SPIN_MAX}\ns_cbranch_scc1 {Dn}")
    a(f"s_sleep 1\ns_branch {L}")
    a.label(Dn)
    a("s_mov_b64 exec, s[42:43]")

def set_flag(a, off_sgpr, vtmp=56, second=None):
    L1, L2 = newlab("sf"), newlab("sf")
    a("s_waitcnt vmcnt(0)")
    a(f"v_mov_b32 v{vtmp}, 0\nv_mov_b32 v{vtmp+1}, 1")
    a("s_mov_b64 s[42:43], exec\ns_mov_b64 exec, 1")
    a(f"s_cmp_eq_u32 s59, 1\ns_cbranch_scc1 {L1}")
    a(f"buffer_store_dword v{vtmp+1}, v{vtmp}, s[8:11], s{off_sgpr} offen sc1")
    if second is not None: a(f"buffer_store_dword v{vtmp+1}, v{vtmp}, s[8:11], s{second} offen sc1")
    a(f"s_branch {L2}")
    a.label(L1)
    a(f"buffer_store_dword v{vtmp+1}, v{vtmp}, s[8:11], s{off_sgpr} offen")
    if second is not None: a(f"buffer_store_dword v{vtmp+1}, v{vtmp}, s[8:11], s{second} offen")
    a.label(L2)
    a("s_mov_b64 exec, s[42:43]")

def xstore(a, text):
    L1, L2 = newlab("xs"), newlab("xs")
    a(f"s_cmp_eq_u32 s59, 1\ns_cbranch_scc1 {L1}")
    a(text.replace("@SC", "sc1"))
    a(f"s_branch {L2}")
    a.label(L1)
    a(text.replace("@SC", ""))
    a.label(L2)

def xf_off(a, dst, kind, extra_sgpr=None, extra_imm=0):
    a(f"s_lshl_b32 s{dst}, s37, 13\ns_lshl_b32 s45, s35, 8\ns_add_u32 s{dst}, s{dst}, s45")
    a(f"s_and_b32 s45, s34, 3\ns_lshl_b32 s45, s45, 6\ns_add_u32 s{dst}, s{dst}, s45")
    a(f"s_add_u32 s{dst}, s{dst}, {XF + kind*16384 + extra_imm}")
    if extra_sgpr is not None: a(f"s_add_u32 s{dst}, s{dst}, s{extra_sgpr}")

SIDES = [(224, 272), (512, 560)] if "noside" not in sys.argv else []
def is_side(f): return any(a_ <= f < b_ for a_, b_ in SIDES)
def rho(f):
    return f - sum(max(0, min(f, b_) - a_) for a_, b_ in SIDES)
def rho_inv(r):
    f = r
    for a_, b_ in SIDES:
        if f >= a_: f += b_ - a_
    return f
def lds_of(f):
    for a_, b_ in SIDES:
        if a_ <= f < b_: return KVL + (f - a_) * KB
    return (rho(f) % RING) * KB
SLR = rho(SL)
class Ring:
    def __init__(self):
        self.I = RING
        self.q = [f for f in range(0, RING, 16) for _ in range(4)]
        self.side = set()
    def drained(self): self.q = []
def loader_issue(a, frm, upto, ring=None):
    assert frm % 16 == 0 and upto % 16 == 0
    skip = None
    for r in range(frm, upto, 16):
        if r == SLP or (r > SLP and r == frm):
            skip = newlab("ldsk")
            a(f"s_cmp_eq_u32 s37, 1\ns_cbranch_scc1 {skip}")
        if SLR <= r < SLP: continue
        f = rho_inv(r % SLP)
        a(f"s_add_u32 m0, s69, {(r % RING) * KB}")
        a(f"s_add_u32 s44, s60, {f * KB}")
        for q in range(4):
            a(f"buffer_load_dwordx4 v5, s[8:11], s44 offen offset:{q*1024} lds")
            if ring is not None and r < SLP: ring.q.append(f)
    if skip: a.label(skip)

def side_issue(a, ring, k):
    a_, b_ = SIDES[k]
    for f in range(a_, b_, 16):
        a(f"s_add_u32 m0, s69, {KVL + (f - a_) * KB}")
        a(f"s_add_u32 s44, s60, {f * KB}")
        for q in range(4):
            a(f"buffer_load_dwordx4 v5, s[8:11], s44 offen offset:{q*1024} lds")
            ring.q.append(f)
    ring.side.add(k)

def ring_refill(a, ring, consumed, cap=None):
    c = SLP if consumed >= SL else rho(consumed)
    upto = (c + RING) // 16 * 16
    if cap is not None: upto = min(upto, (rho(cap) + 15) // 16 * 16)
    if upto > ring.I:
        loader_issue(a, ring.I, upto, ring)
        ring.I = upto

def loader_bp(a, ring, need, consumed, cap=None, refill=True):
    if need is not None:
        assert rho(need) <= ring.I, (need, ring.I)
        for k, (a_, b_) in enumerate(SIDES):
            if need > a_ and consumed < b_: assert k in ring.side, (need, k)
        last = -1
        for i, f in enumerate(ring.q):
            if f is not None and f < need: last = i
        if last >= 0:
            n = len(ring.q) - 1 - last
            a(f"s_waitcnt vmcnt({min(n,63)})")
            ring.q = ring.q[last + 1:]
    a("s_barrier")
    if refill: ring_refill(a, ring, consumed, cap)

def stats_finalize(a, accS, accQ, vRho, vMu, tmp, double_ln):
    t0, t1, t2, t3 = tmp, tmp + 1, tmp + 2, tmp + 3
    a(f"v_and_b32 v{t0}, 3, v1")
    a(f"v_mov_b32 v{t1}, v{accQ}")
    for r in (1, 2, 3):
        a(f"v_cmp_eq_u32 vcc, {r}, v{t0}")
        a(f"v_cndmask_b32 v{t1}, v{t1}, v{accQ+r}, vcc")
    a(f"v_lshrrev_b32 v{t2}, 2, v3\nv_lshlrev_b32 v{t2}, 4, v{t2}\nv_add_u32 v{t2}, v{t2}, v3\nv_lshlrev_b32 v{t2}, 2, v{t2}")
    a(f"ds_bpermute_b32 v{t1}, v{t2}, v{t1}")
    a(f"v_mul_f32 v{t0}, {f2u(1.0/D):#x}, v{accS}")
    a("s_waitcnt lgkmcnt(0)")
    a(f"v_mul_f32 v{t1}, {f2u(1.0/D):#x}, v{t1}")
    a(f"v_fma_f32 v{t1}, -v{t0}, v{t0}, v{t1}")
    a(f"v_max_f32 v{t1}, 0, v{t1}")
    a(f"v_add_f32 v{t2}, {f2u(1e-5):#x}, v{t1}")
    a(f"v_rsq_f32 v{t2}, v{t2}")
    if double_ln:
        a(f"v_mul_f32 v{t3}, v{t2}, v{t2}")
        a(f"v_mul_f32 v{t3}, v{t3}, v{t1}")
        a(f"v_add_f32 v{t3}, {f2u(1e-5):#x}, v{t3}")
        a(f"v_rsq_f32 v{t3}, v{t3}")
        a(f"v_mul_f32 v{t2}, v{t2}, v{t3}")
    a(f"v_mov_b32 v{vRho}, v{t2}")
    a(f"v_mul_f32 v{vMu}, v{t0}, v{t2}")

def set_bases(a, delta):
    a(f"s_and_b32 s45, s34, 1\ns_mul_i32 s44, s45, {delta*KB}\nv_add_u32 v6, s44, v5\nv_add_u32 v7, 0x10000, v6\nv_add_u32 v59, {KVL}, v6")
    a(f"s_xor_b32 s45, s45, 1\ns_mul_i32 s44, s45, {(RING-delta)*KB}\nv_add_u32 v2, s44, v5")
def rdA(a, f0, delta, reg):
    a0, a1 = lds_of(f0), lds_of(f0 + delta)
    if not is_side(f0) and not is_side(f0 + delta):
        if a1 - a0 == delta * KB:
            base = 6 if a0 < 65536 else 7
            return a.lg(f"ds_read_b128 v[{reg}:{reg+3}], v{base} offset:{a0 % 65536}")
        if a1 - a0 == (delta - RING) * KB:
            return a.lg(f"ds_read_b128 v[{reg}:{reg+3}], v2 offset:{a0 - (RING - delta) * KB}")
    if is_side(f0) and is_side(f0 + delta) and a1 - a0 == delta * KB:
        return a.lg(f"ds_read_b128 v[{reg}:{reg+3}], v59 offset:{a0 - KVL}")
    a(f"s_mov_b32 s44, {a1}\ns_bitcmp1_b32 s34, 0\ns_cselect_b32 s45, s44, {a0}\nv_add_u32 v58, s45, v5")
    return a.lg(f"ds_read_b128 v[{reg}:{reg+3}], v58")

def make_units(nA, segs, G):
    return [(i, t0, min(nA, t0 + G), si) for si, (i0, i1) in enumerate(segs) for i in range(i0, i1) for t0 in range(0, nA, G)]

def kloop2(a, fbase, span, delta, nA, segs, breg, acc0, acc1, stats, G, before=None, after=None, hook=None, D=1):
    units = make_units(nA, segs, G)
    NB = D + 1
    def rd(n, k):
        i, t0, t1, si = units[n]
        return rdA(a, fbase + i * span + t0 + k, delta, VA + ((n % NB) * G + k) * 4)
    def cnt(n): return units[n][2] - units[n][1]
    nbar = [0]
    def barrier():
        if hook: hook(nbar[0], False)
        a("s_barrier")
        if hook: hook(nbar[0], True)
        nbar[0] += 1
    barrier()
    seen = 0
    pend = {}
    for n in range(min(D, len(units))):
        if units[n][3] > seen: barrier(); seen = units[n][3]
        pend[n] = [rd(n, k) for k in range(cnt(n))]
    for n, u in enumerate(units):
        i, t0, t1, si = u
        nx = n + D if n + D < len(units) else None
        if nx is not None and units[nx][3] > seen:
            barrier(); seen = units[nx][3]
        if t0 == 0 and before: before(i)
        b0, b1 = breg(i)
        def m(d, A, B):
            c = "0" if i == 0 else f"v[{d}:{d+3}]"
            a(f"v_mfma_f32_16x16x32_bf16 v[{d}:{d+3}], v[{A}:{A+3}], v[{B}:{B+3}], {c}")
        nn = cnt(nx) if nx is not None else 0
        nxt = []
        for t in range(t0, t1):
            ra = VA + ((n % NB) * G + t - t0) * 4
            a.wait_lg(pend[n][t - t0])
            m(acc0 + 4 * t, ra, b0)
            if len(nxt) < nn: nxt.append(rd(nx, len(nxt)))
            m(acc1 + 4 * t, ra, b1)
            if len(nxt) < nn and (t - t0) % 2 == 0 and nn > (t1 - t0): nxt.append(rd(nx, len(nxt)))
        while len(nxt) < nn: nxt.append(rd(nx, len(nxt)))
        if stats and t1 == nA:
            m(VST, VONE, b0); m(VST + 4, b0, b0)
            if stats == 2: m(VSO, VONE, b1); m(VSO + 4, b1, b1)
        if nx is not None: pend[nx] = nxt
        if t1 == nA and after: after(i)

def loader_kloop2(a, ring, fbase, span, nA, segs, G, D=1, docap=False):
    units = make_units(nA, segs, G)
    cap = fbase + segs[-1][1] * span if docap else None
    loader_bp(a, ring, fbase + segs[0][1] * span, fbase, cap)
    seen = 0
    for n in range(min(D, len(units))):
        if units[n][3] > seen:
            seen = units[n][3]; loader_bp(a, ring, fbase + segs[seen][1] * span, fbase, cap)
    for n, u in enumerate(units):
        nx = n + D if n + D < len(units) else None
        if nx is not None and units[nx][3] > seen:
            seen = units[nx][3]
            loader_bp(a, ring, fbase + segs[seen][1] * span, fbase + u[0] * span, cap)

def store_tiles(a, srcs, ntiles, vaddr16, vaddr8, srd_, soff, imm_stride, sc, tmp=56):
    st = []
    i = 0
    while i < ntiles:
        if i + 1 < ntiles:
            t = tmp + 4 * ((i // 2) % 2)
            a(f"v_mov_b32 v{t}, v{srcs[i]}\nv_mov_b32 v{t+1}, v{srcs[i]+1}\nv_mov_b32 v{t+2}, v{srcs[i+1]}\nv_mov_b32 v{t+3}, v{srcs[i+1]+1}")
            a(f"v_permlane16_swap_b32 v{t}, v{t+2}\nv_permlane16_swap_b32 v{t+1}, v{t+3}")
            st.append(f"buffer_store_dwordx4 v[{t}:{t+3}], v{vaddr16}, s[{srd_}:{srd_+3}], {soff} offen offset:{i*imm_stride} {sc}")
            i += 2
        else:
            st.append(f"buffer_store_dwordx2 v[{srcs[i]}:{srcs[i]+1}], v{vaddr8}, s[{srd_}:{srd_+3}], {soff} offen offset:{i*imm_stride} {sc}")
            i += 1
    if sc == "@SC": xstore(a, "\n".join(st))
    else: a("\n".join(st))

def frag_addr(a, v16, v8, Tsgpr, tmp):
    a(f"v_lshrrev_b32 v{v8}, 1, v4\nv_lshlrev_b32 v{v8}, 8, v{v8}\nv_lshl_add_u32 v{v8}, v3, 4, v{v8}")
    a(f"s_lshl_b32 s45, s{Tsgpr}, 9\nv_add_u32 v{v8}, s45, v{v8}")
    a(f"v_and_b32 v{tmp}, 1, v4\nv_lshl_add_u32 v{v16}, v{tmp}, 9, v{v8}\nv_lshl_add_u32 v{v8}, v{tmp}, 3, v{v8}")

def code_prefetch(a, first, last, wave, nkb=32):
    L = newlab("cpf")
    a(f"s_cmp_eq_u32 s34, {wave}\ns_cbranch_scc0 {L}")
    a(f"s_getpc_b64 s[40:41]")
    here = newlab("pc"); a.label(here)
    a(f"s_sub_u32 s40, s40, {here}-{first}\ns_subb_u32 s41, s41, 0")
    a("v_lshlrev_b32 v8, 6, v1")
    for i in range(nkb // 4):
        a(f"global_load_dword v{10+i}, v8, s[40:41]")
        a("v_add_u32 v8, 4096, v8")
    a.label(L)

def gen_main():
    a = Asm(); name = "main_kernel"
    kernel_begin(a, name, 256)
    a("s_load_dwordx2 s[4:5], s[0:1], 96")
    a("s_load_dwordx2 s[6:7], s[0:1], 0")
    a("s_load_dwordx2 s[24:25], s[0:1], 56")
    a("s_load_dwordx4 s[28:31], s[0:1], 72")
    a("v_and_b32 v1, 63, v0")
    a("v_lshrrev_b32 v2, 6, v0")
    a("v_readfirstlane_b32 s34, v2")
    a("v_and_b32 v3, 15, v1\nv_lshrrev_b32 v4, 4, v1\nv_lshlrev_b32 v5, 4, v1")
    a("s_and_b32 s35, s2, 31\ns_lshr_b32 s36, s2, 5\ns_mov_b32 s37, 0")
    a("s_waitcnt lgkmcnt(0)")
    a("s_mov_b32 s26, s28\ns_mov_b32 s27, s29\ns_mov_b32 s28, s30\ns_mov_b32 s29, s31")
    srd(a, 8, 4, 0, WS_BYTES)
    a("s_lshl_b32 s67, s35, 2\ns_and_b32 s38, s34, 3\ns_add_u32 s67, s67, s38\ns_lshl_b32 s66, s67, 4\ns_xor_b32 s65, s67, 1\ns_mul_i32 s68, s36, 5")
    a(f"s_lshl_b32 s69, s38, 12\ns_mul_i32 s60, s36, {SL*KB}\ns_add_u32 s60, s60, s69\ns_add_u32 s60, s60, {WST}")
    a("s_mov_b32 s59, 0\ns_getreg_b32 s58, hwreg(HW_REG_XCC_ID, 0, 4)\ns_add_u32 s58, s58, 1")
    a("s_cmp_eq_u32 s34, 0\ns_cbranch_scc0 pro_x")
    a(f"s_lshl_b32 s40, s35, 5\ns_lshl_b32 s41, s36, 2\ns_add_u32 s40, s40, s41\ns_add_u32 s40, s40, {XID}\nv_mov_b32 v8, 0\nv_mov_b32 v9, s58")
    a("s_mov_b64 s[42:43], exec\ns_mov_b64 exec, 1\nbuffer_store_dword v9, v8, s[8:11], s40 offen sc1\ns_mov_b64 exec, s[42:43]")
    a.label("pro_x")
    ts(a, "start")
    if PROFOUT: a("s_memrealtime s[96:97]\ns_waitcnt lgkmcnt(0)")
    if "cpf" in sys.argv:
        code_prefetch(a, "main_kernel", "main_kernel_exit", 7)
    a("s_cmp_ge_u32 s34, 4\ns_cbranch_scc0 pro_c")
    loader_issue(a, 0, 32 if "lateW" in sys.argv else RING)
    a("s_branch pro_d")
    a.label("pro_c")
    a("v_add_u32 v6, s66, v3")
    a("v_mul_u32_u24 v56, 1280, v6\nv_lshl_add_u32 v56, v4, 3, v56\ns_mul_i32 s40, s36, 160\nv_add_u32 v56, s40, v56")
    srd(a, 12, 6, 0, XBYTES)
    for i in range(5):
        a(f"buffer_load_dwordx2 v[{RES+2*i}:{RES+2*i+1}], v56, s[12:15], 0 offen offset:{i*32}")
    a.label("pro_d")
    a.label("layer_top")
    ring = Ring()
    ld = Asm()
    def tile_offs(base_imm, layer_stride, tile_bytes, ksplit):
        a(f"s_mul_i32 s40, s67, {tile_bytes}\ns_mul_i32 s41, s65, {tile_bytes}")
        if layer_stride:
            a(f"s_mul_i32 s45, s37, {layer_stride}\ns_add_u32 s45, s45, {base_imm}")
        else:
            a(f"s_mov_b32 s45, {base_imm}")
        if ksplit:
            a("s_and_b32 s44, s34, 1\ns_lshl_b32 s44, s44, 10\ns_add_u32 s45, s45, s44")
        a("s_add_u32 s40, s40, s45\ns_add_u32 s41, s41, s45")
    class BL:
        def __init__(self, stride, nslots, sc="sc1"): self.stride, self.n, self.tag, self.cur, self.sc = stride, nslots, {}, 0, sc
        def regs(self, i): r = VB + 8 * (i % self.n); return (r, r + 4)
        def load(self, i):
            o = i * self.stride
            if o - self.cur > 4095 - 1023 * 0 or o - self.cur >= 4096:
                d = (o - self.cur) // 4096 * 4096
                a(f"s_add_u32 s40, s40, {d}\ns_add_u32 s41, s41, {d}"); self.cur += d
            r0, r1 = self.regs(i)
            if "noB" in sys.argv and i >= 2:
                self.tag[i] = a.nvm; return
            a.vm(f"buffer_load_dwordx4 v[{r0}:{r0+3}], v5, s[8:11], s40 offen offset:{o - self.cur} {self.sc}")
            self.tag[i] = a.vm(f"buffer_load_dwordx4 v[{r1}:{r1+3}], v5, s[8:11], s41 offen offset:{o - self.cur} {self.sc}")
    def flag_line(dst, kind, tile_sgpr=None, pair=False, layer_delta=0):
        a(f"s_lshl_b32 s{dst}, s37, 13")
        if pair: a(f"s_and_b32 s45, s67, -2\ns_lshl_b32 s45, s45, 6")
        else: a(f"s_lshl_b32 s45, s{tile_sgpr}, 6")
        a(f"s_add_u32 s{dst}, s{dst}, s45\ns_add_u32 s{dst}, s{dst}, {XF + kind*16384 + layer_delta}")
    def reduce_pair(acc0, acc1, NT, stats, t0=56, cbar=False):
        a(f"s_and_b32 s45, s34, 3\ns_lshl_b32 s44, s45, 13\ns_add_u32 s44, s44, {KVL}\nv_add_u32 v{t0}, s44, v5")
        for t in range(NT): a(f"ds_write_b128 v{t0}, v[{acc1+4*t}:{acc1+4*t+3}] offset:{t*1024}")
        if stats:
            a(f"ds_write_b128 v{t0}, v[{VSO}:{VSO+3}] offset:{6*1024}\nds_write_b128 v{t0}, v[{VSO+4}:{VSO+7}] offset:{7*1024}")
        a(f"s_xor_b32 s45, s45, 1\ns_lshl_b32 s44, s45, 13\ns_add_u32 s44, s44, {KVL}\nv_add_u32 v{t0+1}, s44, v5")
        a("s_waitcnt lgkmcnt(0)\ns_barrier")
        for t in range(NT): a(f"ds_read_b128 v[{VA+4*t}:{VA+4*t+3}], v{t0+1} offset:{t*1024}")
        if stats:
            a(f"ds_read_b128 v[{VSO}:{VSO+3}], v{t0+1} offset:{6*1024}\nds_read_b128 v[{VSO+4}:{VSO+7}], v{t0+1} offset:{7*1024}")
        a("s_waitcnt lgkmcnt(0)")
        if cbar: a("s_barrier")
        for t in range(NT * 4): a(f"v_add_f32 v{acc0+t}, v{acc0+t}, v{VA+t}")
        if stats:
            for t in range(8): a(f"v_add_f32 v{VST+t}, v{VST+t}, v{VSO+t}")
    ones = lambda: a("v_mov_b32 v52, 0x3f803f80\nv_mov_b32 v53, 0x3f803f80\nv_mov_b32 v54, 0x3f803f80\nv_mov_b32 v55, 0x3f803f80")
    DEP = 2 if 'dep1' not in sys.argv else 1
    A0, A1 = 204, 224
    a("s_cmp_ge_u32 s34, 4\ns_cbranch_scc1 ld_qkv")
    a.nvm = 0; a.nlg = 0
    a(f"s_mul_i32 s45, s36, 384\ns_add_u32 s45, s45, {CSQ}\nv_lshlrev_b32 v58, 4, v4")
    for i in range(6): a(f"buffer_load_dwordx4 v[{8+4*i}:{8+4*i+3}], v58, s[8:11], s45 offen offset:{i*64}")
    a(f"s_min_u32 s46, s36, 2\ns_lshl_b32 s46, s46, 6\ns_add_u32 s46, s46, {BKV}")
    a(f"buffer_load_dwordx4 v[32:35], v58, s[8:11], s46 offen")
    ones(); set_bases(a, 1)
    a("s_cmp_eq_u32 s37, 0\ns_cbranch_scc1 qkv_l0")
    flag_line(46, 3, pair=True, layer_delta=-8192)
    await_flags(a, 0x00FF00FF, 46)
    a.label("qkv_l0")
    ts(a, "qkv_ready")
    tile_offs(XF0, X2 - XF0, 20480, True)
    bl = BL(2048, 10)
    for i in range(10): bl.load(i)
    kloop2(a, FQ, 2, 1, 1, [(0, 10)], bl.regs, A0, A1, 2, 1, before=lambda i: a.wait_vm(bl.tag[i]), D=DEP)
    ld.label("ld_qkv")
    if "lateW" in sys.argv:
        ld("s_cmp_eq_u32 s37, 0\ns_cbranch_scc0 ld_qkv1\ns_waitcnt vmcnt(0)\ns_barrier")
        loader_issue(ld, 32, RING)
        ld("s_branch ld_qkv2")
        ld.label("ld_qkv1")
    loader_kloop2(ld, ring, FQ, 2, 1, [(0, 10)], 1, D=DEP)
    if "lateW" in sys.argv: ld.label("ld_qkv2")
    ts(a, "qkv_p1")
    reduce_pair(A0, A1, 1, True)
    ld("s_barrier")
    stats_finalize(a, VST, VST + 4, 60, 61, 56, False)
    qs = DH ** -0.5 * LOG2E
    a(f"v_mul_f32 v62, {f2u(qs):#x}, v60\nv_mul_f32 v63, {f2u(qs):#x}, v61")
    a("s_cmp_lt_u32 s36, 3\ns_cbranch_scc0 qkv_nokv")
    i = 5
    for r in range(4):
        a(f"v_fma_f32 v{48+r}, -v61, v{8+4*i+r}, v{32+r}")
        a(f"v_fma_f32 v{48+r}, v60, v{A0+r}, v{48+r}")
    a("v_cvt_pk_bf16_f32 v52, v48, v49\nv_cvt_pk_bf16_f32 v53, v50, v51")
    a("s_and_b32 s38, s34, 1")
    a(f"s_and_b32 s41, s34, 3\ns_lshl_b32 s41, s41, 10\ns_add_u32 s41, s41, {KVL + 32*KB}")
    a(f"s_lshr_b32 s47, s67, 1\ns_lshl_b32 s47, s47, 12\ns_mul_i32 s48, s37, {KVB[1]-KVB[0]}\ns_add_u32 s47, s47, s48\ns_add_u32 s47, s47, {KVB[0]}")
    def vwrite(rowoff, hstride):
        a(f"v_bfe_u32 v54, v3, 2, 1\nv_mul_u32_u24 v54, {hstride}, v54")
        a("v_bfe_u32 v55, v3, 3, 1\nv_lshl_add_u32 v54, v55, 3, v54")
        a("v_and_b32 v55, 3, v3\nv_lshl_add_u32 v54, v55, 1, v54")
        a(f"v_add3_u32 v54, v54, v{rowoff}, s41")
        a("ds_write_b16 v54, v52\nds_write_b16_d16_hi v54, v52 offset:16\nds_write_b16 v54, v53 offset:32\nds_write_b16_d16_hi v54, v53 offset:48")
    a("s_cmp_eq_u32 s36, 0\ns_cbranch_scc1 qkv_kvA")
    a("s_cmp_eq_u32 s36, 1\ns_cbranch_scc1 qkv_kvB")
    a("v_lshlrev_b32 v47, 3, v3\nv_add_u32 v47, s41, v47\nv_add_u32 v54, 128, v47\nv_cmp_eq_u32 vcc, 3, v4\nv_cndmask_b32 v47, v47, v54, vcc")
    a("v_cmp_eq_u32 vcc, 0, v4\nv_cmp_eq_u32 s[48:49], 3, v4\ns_or_b64 vcc, vcc, s[48:49]")
    a("s_and_saveexec_b64 s[50:51], vcc")
    a("ds_write_b64 v47, v[52:53]")
    a("s_andn2_b64 exec, s[50:51], exec")
    a("v_lshlrev_b32 v47, 6, v4\nv_add_u32 v47, 192, v47")
    vwrite(47, 128)
    a("s_mov_b64 exec, s[50:51]")
    a("v_and_b32 v47, 7, v1\nv_lshlrev_b32 v47, 4, v47\nv_bfe_u32 v54, v1, 3, 2")
    a("s_lshl_b32 s49, s38, 7\ns_add_u32 s49, s49, 1024\ns_lshl_b32 s50, s38, 10\ns_add_u32 s50, s50, 2304")
    a("v_mov_b32 v55, s49\ns_add_u32 s51, s49, 256\nv_mov_b32 v50, s51\nv_cmp_eq_u32 vcc, 1, v54\nv_cndmask_b32 v55, v55, v50, vcc")
    a("v_mov_b32 v50, s50\nv_cmp_eq_u32 vcc, 2, v54\nv_cndmask_b32 v55, v55, v50, vcc")
    a("s_add_u32 s51, s50, 512\nv_mov_b32 v50, s51\nv_cmp_eq_u32 vcc, 3, v54\nv_cndmask_b32 v55, v55, v50, vcc")
    a("v_add_u32 v47, v47, v55")
    a("s_branch qkv_kvout")
    a.label("qkv_kvB")
    a("v_lshlrev_b32 v47, 6, v4")
    vwrite(47, 256)
    a("v_lshlrev_b32 v47, 4, v3\nv_and_b32 v54, 1, v4\nv_lshl_add_u32 v47, v54, 9, v47\ns_lshl_b32 s49, s38, 10\ns_add_u32 s49, s49, 2048\nv_add_u32 v47, s49, v47")
    a("s_branch qkv_kvout")
    a.label("qkv_kvA")
    a("v_lshrrev_b32 v47, 1, v4\nv_lshlrev_b32 v47, 8, v47\nv_lshl_add_u32 v47, v3, 4, v47\nv_and_b32 v54, 1, v4\nv_lshl_add_u32 v47, v54, 3, v47\nv_add_u32 v47, s41, v47")
    a("ds_write_b64 v47, v[52:53]")
    a("s_lshl_b32 s49, s38, 8\nv_lshlrev_b32 v47, 4, v3\nv_and_b32 v54, 1, v4\nv_lshl_add_u32 v47, v54, 9, v47\nv_add_u32 v47, s49, v47")
    a.label("qkv_kvout")
    a("v_add_u32 v54, s41, v5")
    a("s_waitcnt lgkmcnt(0)")
    a("s_mov_b64 s[50:51], exec\ns_mov_b64 exec, 0xffffffff")
    a("ds_read_b128 v[48:51], v54\ns_waitcnt lgkmcnt(0)")
    a("buffer_store_dwordx4 v[48:51], v47, s[8:11], s47 offen sc1")
    a("s_mov_b64 exec, s[50:51]")
    a.label("qkv_nokv")
    ts(a, "qkv_kv")
    set_bases(a, 5)
    segs = [(0, 2), (2, 4), (4, 6), (6, 8), (8, 10)]
    def kvhook(si, after):
        if si != (3 if DEP == 2 else 2): return
        if not after:
            a("s_waitcnt vmcnt(0)")
        else:
            Lx = newlab("kvpub")
            a(f"s_cmp_eq_u32 s34, 0\ns_cbranch_scc0 {Lx}\ns_cmp_lt_u32 s36, 3\ns_cbranch_scc0 {Lx}")
            a(f"s_lshl_b32 s46, s37, 13\ns_lshr_b32 s45, s35, 3\ns_lshl_b32 s45, s45, 11\ns_add_u32 s46, s46, s45\ns_add_u32 s46, s46, {KVF}\nv_lshlrev_b32 v56, 8, v1\nv_mov_b32 v57, 1")
            a("s_mov_b64 s[42:43], exec\ns_mov_b64 exec, 0xff")
            a("buffer_atomic_add v57, v56, s[8:11], s46 offen")
            a("s_mov_b64 exec, s[42:43]")
            a.label(Lx)
    kloop2(a, FQ + 20, 10, 5, 5, segs, bl.regs, A0, A1, 0, 5, hook=kvhook, D=DEP)
    loader_kloop2(ld, ring, FQ + 20, 10, 5, segs, 5, D=DEP)
    ts(a, "qkv_kloop")
    KV0 = 32
    def K1(b): return KV0 + 16 * b
    def K2(b): return KV0 + 16 * b + 4
    def V1(b): return KV0 + 16 * b + 8
    def ldK(b):
        a(f"buffer_load_dwordx4 v[{K1(b)}:{K1(b)+3}], v5, s[8:11], s47 offen sc1")
        a(f"buffer_load_dwordx2 v[{K2(b)}:{K2(b)+1}], v170, s[8:11], s47 offen offset:1024 sc1")
    def ldV(b, h):
        a(f"buffer_load_dwordx4 v[{V1(b)+4*h}:{V1(b)+4*h+3}], v5, s[8:11], s47 offen offset:{2048+1024*h} sc1")
    def kv_poll_issue():
        a(f"s_and_b32 s38, s34, 3\ns_lshl_b32 s46, s37, 13\ns_lshl_b32 s45, s38, 11\ns_add_u32 s46, s46, s45\ns_and_b32 s45, s2, 7\ns_lshl_b32 s45, s45, 8\ns_add_u32 s46, s46, s45\ns_add_u32 s46, s46, {KVF}\nv_mov_b32 v175, 0")
        a("buffer_load_dword v176, v175, s[8:11], s46 offen sc1")
    def kv_poll_wait():
        Lp, Ld = newlab("kvp"), newlab("kvpd")
        a("s_mov_b32 s48, 0\nv_mov_b32 v175, 0")
        a.label(Lp)
        a("s_add_u32 s48, s48, 1\ns_waitcnt vmcnt(0)")
        a("v_readfirstlane_b32 s45, v176")
        a(f"s_cmp_ge_u32 s45, 24\ns_cbranch_scc1 {Ld}")
        a(f"s_cmp_gt_u32 s48, {SPIN_MAX}\ns_cbranch_scc1 {Ld}")
        a("s_sleep 1\nbuffer_load_dword v176, v175, s[8:11], s46 offen sc1")
        a(f"s_branch {Lp}")
        a.label(Ld)
    def kv_prologue():
        a(f"s_and_b32 s38, s34, 3\ns_mul_i32 s47, s37, {KVB[1]-KVB[0]}\ns_add_u32 s47, s47, {KVB[0]}\ns_lshl_b32 s48, s38, 16\ns_add_u32 s47, s47, s48")
        ldK(0); ldV(0, 0); ldV(0, 1)
        a("s_add_u32 s47, s47, 4096")
        ldK(1)
    a("v_lshlrev_b32 v170, 3, v1")
    kv_poll_issue()
    reduce_pair(A0, A1, 5, False, t0=194)
    ld("s_barrier")
    kv_poll_wait()
    kv_prologue()
    a("s_and_b32 s38, s34, 3\ns_lshl_b32 s38, s38, 4\nv_add_u32 v184, s38, v3\nv_mul_u32_u24 v184, 192, v184")
    a(f"v_add_u32 v184, {KVL + 36*KB}, v184")
    for i in range(5):
        for r in range(4):
            a(f"v_mul_f32 v{188+r}, v63, v{8+4*i+r}")
            a(f"v_fma_f32 v{188+r}, v62, v{A0+4*i+r}, -v{188+r}")
        a(f"v_cvt_pk_bf16_f32 v192, v188, v189\nv_cvt_pk_bf16_f32 v193, v190, v191")
        a(f"v_add_u32 v185, {4*i}, v4\nv_mul_u32_u24 v186, 52, v185\nv_lshrrev_b32 v186, 8, v186\nv_add_u32 v185, v185, v186\nv_lshl_add_u32 v185, v185, 3, v184")
        a("ds_write_b64 v185, v[192:193]")
    a("s_waitcnt lgkmcnt(0)")
    a("s_barrier")
    loader_bp(ld, ring, None, FO)
    ld("s_branch att_top")
    a.label("att_top")
    ts(a, "qkv_done")
    QB_, P, SA, SB, O = 8, 64, 72, 88, 104
    def Q1(i): return QB_ + 6 * i
    def Q2(i): return QB_ + 6 * i + 4
    a("v_and_b32 v6, 31, v1\nv_lshrrev_b32 v7, 5, v1\nv_lshlrev_b32 v170, 3, v1")
    a("s_cmp_ge_u32 s34, 4\ns_cbranch_scc0 att_q")
    kv_poll_issue()
    a.label("att_q")
    a("s_and_b32 s38, s34, 3\ns_lshr_b32 s39, s34, 2")
    a("v_lshrrev_b32 v171, 2, v6\nv_mul_u32_u24 v171, 192, v171\nv_and_b32 v172, 3, v6\nv_mul_u32_u24 v172, 48, v172\nv_add_u32 v171, v171, v172")
    for i in range(4):
        a(f"s_add_u32 s40, s38, {i}\ns_and_b32 s40, s40, 3\ns_lshl_b32 s41, s39, 2\ns_add_u32 s40, s40, s41\ns_mul_i32 s40, s40, {8*192}\ns_add_u32 s40, s40, {KVL + 36*KB}")
        a(f"v_add_u32 v173, s40, v171\nv_lshl_add_u32 v174, v7, 4, v173")
        a(f"ds_read_b128 v[{Q1(i)}:{Q1(i)+3}], v174\nds_read_b64 v[{Q2(i)}:{Q2(i)+1}], v173 offset:32")
    FLAGW = KVL + 48 * KB - 64
    a("s_mov_b32 s57, 0")
    a("s_waitcnt lgkmcnt(0)")
    a("v_cmp_eq_u32 vcc, 1, v7")
    for i in range(4):
        a(f"v_cndmask_b32 v{Q2(i)}, v{Q2(i)}, 0, vcc\nv_cndmask_b32 v{Q2(i)+1}, v{Q2(i)+1}, 0, vcc")
    a("s_cmp_ge_u32 s34, 4\ns_cbranch_scc0 att_go")
    kv_poll_wait()
    a.label("att_main")
    kv_prologue()
    a.label("att_go")
    ts(a, "kv_ready")
    for r in range(64): a(f"v_mov_b32 v{O+r}, 0")
    def qk1(Sd, b, i): a(f"v_mfma_f32_32x32x16_bf16 v[{Sd}:{Sd+15}], v[{K1(b)}:{K1(b)+3}], v[{Q1(i)}:{Q1(i)+3}], 0")
    def qk2(Sd, b, i): a(f"v_mfma_f32_32x32x8_bf16 v[{Sd}:{Sd+15}], v[{K2(b)}:{K2(b)+1}], v[{Q2(i)}:{Q2(i)+1}], v[{Sd}:{Sd+15}]")
    def pv(i, b, h): a(f"v_mfma_f32_32x32x16_bf16 v[{O+16*i}:{O+16*i+15}], v[{V1(b)+4*h}:{V1(b)+4*h+3}], v[{P+4*h}:{P+4*h+3}], v[{O+16*i}:{O+16*i+15}]")
    for r in range(4, 8): a(f"v_mov_b32 v{P+r}, 0\nv_mov_b32 v{V1(1)+r}, 0\nv_mov_b32 v{SB+8+r}, 0")
    a("s_waitcnt vmcnt(4)")
    qk1(SA, 0, 0); qk2(SA, 0, 0)
    a("s_mov_b32 s49, 0")
    a("s_cmp_eq_u32 s37, 0\ns_cbranch_scc0 att_nochk")
    a(f"s_lshl_b32 s46, s35, 5\ns_add_u32 s46, s46, {XID}")
    await_flags(a, 0xFF, 46, vtmp=175)
    a("s_mov_b64 s[42:43], exec\ns_mov_b64 exec, 0xff\nv_cmp_ne_u32 vcc, s58, v176\ns_cmp_eq_u64 vcc, 0\ns_cselect_b32 s59, 1, 0\ns_mov_b64 exec, s[42:43]")
    if "noxcd" in sys.argv: a("s_mov_b32 s59, 0")
    a.label("att_nochk")
    PFQ = int([x for x in sys.argv if x.startswith("pfq=")][0][4:]) if any(x.startswith("pfq=") for x in sys.argv) else 96
    PF = "nopf" not in sys.argv
    if PF:
        a(f"s_mul_i32 s88, s36, {SL*KB}\ns_lshr_b32 s45, s35, 3\ns_mul_i32 s45, s45, {PFQ*KB}\ns_add_u32 s88, s88, s45\ns_add_u32 s88, s88, {WST + 224*KB}")
        a(f"s_lshl_b32 s45, s34, 12\ns_add_u32 s88, s88, s45\ns_add_u32 s89, s88, 32768\ns_add_u32 s90, s88, 65536")
        if "nopfw" in sys.argv: a(f"s_mov_b32 s88, {KVB[0]}\ns_mov_b32 s89, s88\ns_mov_b32 s90, s88")
        a("s_and_b32 s40, s34, 3\ns_lshl_b32 s41, s35, 2\ns_add_u32 s40, s40, s41")
        a("s_cmp_ge_u32 s34, 4\ns_cbranch_scc1 dst_h")
        a(f"s_mul_i32 s41, s40, 20480\ns_mul_i32 s45, s36, 2560\ns_add_u32 s41, s41, s45")
        a(f"s_mul_i32 s91, s37, {OB[1]-OB[0]}\ns_add_u32 s91, s91, {OB[0]}\ns_add_u32 s91, s91, s41")
        a(f"s_mul_i32 s92, s37, {X1[1]-X1[0]}\ns_add_u32 s92, s92, {X1[0]}\ns_add_u32 s92, s92, s41")
        a(f"s_add_u32 s93, s41, {X2}\ns_mov_b32 s61, 3\ns_mov_b32 s62, 39")
        a("s_branch dst_d")
        a.label("dst_h")
        a("s_lshr_b32 s44, s36, 1\ns_mul_i32 s44, s44, 27\ns_and_b32 s45, s36, 1\ns_mul_i32 s45, s45, 14\ns_add_u32 s44, s44, s45\ns_lshl_b32 s44, s44, 9")
        a(f"s_mul_i32 s41, s40, 55296\ns_add_u32 s44, s44, s41\ns_mul_i32 s45, s37, {HB[1]-HB[0]}\ns_add_u32 s44, s44, s45\ns_add_u32 s91, s44, {HB[0]}")
        a("s_add_u32 s92, s91, 4096\ns_mov_b32 s93, s92\ns_mov_b32 s61, 4\ns_bitcmp1_b32 s36, 0\ns_cselect_b32 s62, 39, 47")
        a.label("dst_d")
        a("s_mov_b32 s94, s93\ns_mov_b32 s95, s93")
    if "noout" not in sys.argv:
        a("s_cmp_eq_u32 s37, 1\ns_cbranch_scc0 outpf_d\ns_cmp_ge_u32 s34, 4\ns_cbranch_scc0 outpf_d")
        srd(a, 16, 28, 0, XBYTES)
        a("v_add_u32 v179, s66, v3\nv_mul_u32_u24 v179, 1280, v179\nv_lshl_add_u32 v179, v4, 6, v179\ns_mul_i32 s40, s36, 160\ns_and_b32 s40, s40, -64\nv_add_u32 v179, s40, v179")
        a("buffer_load_dword v178, v179, s[16:19], 0 offen")
        a.label("outpf_d")
    a("s_nop 7")
    ts(a, "att_start")
    a.label("att_loop")
    if "altprio" in sys.argv:
        a("s_lshr_b32 s45, s34, 2\ns_add_u32 s45, s45, s49\ns_bitcmp1_b32 s45, 0\ns_cbranch_scc1 att_p1\ns_setprio 0\ns_branch att_p2")
        a.label("att_p1"); a("s_setprio 1"); a.label("att_p2")
    if "hiprio" in sys.argv:
        a("s_cmp_ge_u32 s34, 4\ns_cbranch_scc0 att_p2\ns_setprio 1"); a.label("att_p2")
    ex = lambda Sc, r: a(f"v_exp_f32 v{Sc+r}, v{Sc+r}")
    cv = lambda Sc, q: a(f"v_cvt_pk_bf16_f32 v{P+q}, v{Sc+2*q}, v{Sc+2*q+1}")
    for kk in range(2):
        b = kk
        for q in range(4):
            u = kk * 4 + q
            Sc, Sn = (SA, SB) if u % 2 == 0 else (SB, SA)
            pq, pb = (q - 1) % 4, (b if q > 0 else 1 - b)
            nq, nb = (q + 1) % 4, (b if q < 3 else 1 - b)
            if "altprio2" in sys.argv and q == 0:
                L1, L2 = newlab("ap"), newlab("ap")
                a(f"s_lshr_b32 s45, s34, 2\ns_bitcmp1_b32 s45, 0\ns_cbranch_scc1 {L1}\ns_setprio {kk}\ns_branch {L2}")
                a.label(L1); a(f"s_setprio {1-kk}"); a.label(L2)
            ex(Sc, 0); ex(Sc, 1); cv(Sn, 6); cv(Sn, 7); ex(Sc, 2); ex(Sc, 3)
            if q == 3: a(f"s_waitcnt vmcnt({3 if (PF and kk == 1) else 2})")
            qk1(Sn, nb, nq)
            ex(Sc, 4); ex(Sc, 5); cv(Sc, 0); cv(Sc, 1); ex(Sc, 6); ex(Sc, 7)
            qk2(Sn, nb, nq)
            if q == 3:
                a("s_add_u32 s47, s47, 4096")
                ldK(b)
                if PF and kk == 0:
                    a("s_mov_b32 m0, s49\ns_cmp_lt_u32 s49, s61\ns_cselect_b32 s63, 63, s62\ns_movrels_b32 s50, s88")
                    a("v_min_u32 v177, s63, v1\nv_lshlrev_b32 v177, 6, v177")
                    a("buffer_load_dword v178, v177, s[8:11], s50 offen")
            ex(Sc, 8); ex(Sc, 9); cv(Sc, 2); cv(Sc, 3); ex(Sc, 10); ex(Sc, 11)
            pv(pq, pb, 1)
            if q == 0: ldV(1 - b, 0)
            if q == 1: ldV(1 - b, 1)
            ex(Sc, 12); ex(Sc, 13); cv(Sc, 4); cv(Sc, 5); ex(Sc, 14); ex(Sc, 15)
            if q == 0: a(f"s_waitcnt vmcnt({4 if (PF and kk == 1) else 3})")
            pv(q, b, 0)
    a("s_add_u32 s49, s49, 1\ns_cmp_lt_u32 s49, 8\ns_cbranch_scc1 att_loop")
    a("s_setprio 0")
    cv(SB, 6); cv(SB, 7)
    pv(3, 1, 1)
    ts(a, "att_loop_end")
    a(f"s_mul_i32 s40, s34, {3*1536}\ns_add_u32 s40, s40, {KVL}\nv_add_u32 v171, s40, v5\nv_add_u32 v172, s40, v170\nv_add_u32 v172, 1024, v172")
    for r in (1, 2, 3):
        t = 72 + 8 * (r - 1)
        for q in range(5): a(f"v_cvt_pk_bf16_f32 v{t+q}, v{O+16*r+2*q}, v{O+16*r+2*q+1}")
        a(f"v_mov_b32 v{t+5}, v{O+16*r+10}")
        a(f"ds_write_b128 v171, v[{t}:{t+3}] offset:{(r-1)*1536}\nds_write_b64 v172, v[{t+4}:{t+5}] offset:{(r-1)*1536}")
    a(f"v_mov_b32 v175, {FLAGW}\nv_mov_b32 v176, 0\nds_write_b32 v175, v176")
    a("s_waitcnt lgkmcnt(0)\ns_barrier")
    for r in (1, 2, 3):
        t = 72 + 8 * (r - 1)
        a(f"s_sub_u32 s41, s38, {r}\ns_and_b32 s41, s41, 3\ns_lshl_b32 s45, s39, 2\ns_add_u32 s41, s41, s45\ns_mul_i32 s41, s41, {3*1536}\ns_add_u32 s41, s41, {KVL + (r-1)*1536}")
        a(f"v_add_u32 v171, s41, v5\nv_add_u32 v172, s41, v170")
        a(f"ds_read_b128 v[{t}:{t+3}], v171\nds_read_b64 v[{t+4}:{t+5}], v172 offset:1024")
    a("s_waitcnt vmcnt(0) lgkmcnt(0)")
    for r in (1, 2, 3):
        t = 72 + 8 * (r - 1)
        for q in range(5):
            unpack2(a, 173, 174, t + q)
            a(f"v_add_f32 v{O+2*q}, v{O+2*q}, v173\nv_add_f32 v{O+2*q+1}, v{O+2*q+1}, v174")
        a(f"v_add_f32 v{O+10}, v{O+10}, v{t+5}")
    a("s_cmp_eq_u32 s57, 1\ns_cbranch_scc1 att_fin")
    a("v_mov_b32 v173, 0")
    for r in range(10): a(f"v_fma_f32 v173, v{O+r}, 0, v173")
    a(f"v_cmp_lt_f32 vcc, {f2u(2.0**-60):#x}, v{O+10}")
    a(f"v_mov_b32 v174, {f2u(2.0**60):#x}\nv_cmp_gt_f32 s[40:41], v174, v{O+10}\ns_and_b64 vcc, vcc, s[40:41]")
    a("v_cmp_eq_f32 s[40:41], 0, v173\ns_and_b64 vcc, vcc, s[40:41]")
    if "forcefb" in sys.argv: a("s_mov_b64 vcc, 0")
    a("s_cmp_eq_u64 vcc, -1\ns_cbranch_scc1 att_okw")
    a(f"v_mov_b32 v175, {FLAGW}\nv_mov_b32 v176, 1\nds_write_b32 v175, v176\ns_waitcnt lgkmcnt(0)")
    a.label("att_okw")
    a("s_barrier")
    a(f"v_mov_b32 v175, {FLAGW}\nds_read_b32 v176, v175\ns_waitcnt lgkmcnt(0)\nv_readfirstlane_b32 s40, v176")
    a("s_cmp_eq_u32 s40, 0\ns_cbranch_scc0 att_fallback")
    a.label("att_fin")
    ts(a, "att_red")
    a(f"v_rcp_f32 v173, v{O+10}")
    for r in range(10): a(f"v_mul_f32 v{O+r}, v{O+r}, v173")
    for q in range(5): a(f"v_cvt_pk_bf16_f32 v{P+q}, v{O+2*q}, v{O+2*q+1}")
    a(f"s_mul_i32 s40, s34, 1280\ns_add_u32 s40, s40, {KVL + 36864}")
    a("v_lshrrev_b32 v171, 2, v6\nv_mul_u32_u24 v171, 160, v171\nv_and_b32 v172, 3, v6\nv_mul_u32_u24 v172, 40, v172\nv_mul_u32_u24 v173, 20, v7\nv_add3_u32 v171, v171, v172, v173")
    a("v_add_u32 v171, s40, v171")
    for q in range(5): a(f"ds_write_b32 v171, v{P+q} offset:{4*q}")
    a("v_and_b32 v172, 7, v1\nv_lshrrev_b32 v173, 3, v1")
    a("v_mul_u32_u24 v174, 160, v172\nv_lshl_add_u32 v174, v173, 4, v174\nv_add_u32 v174, s40, v174")
    a("s_waitcnt lgkmcnt(0)")
    a("ds_read_b128 v[72:75], v174\nds_read_b128 v[76:79], v174 offset:128")
    a("s_and_b32 s41, s34, 1\ns_lshl_b32 s41, s41, 7\nv_lshlrev_b32 v172, 4, v172\nv_lshl_add_u32 v172, v173, 8, v172\nv_add_u32 v172, s41, v172")
    a(f"s_lshl_b32 s41, s35, 2\ns_lshr_b32 s45, s34, 1\ns_add_u32 s48, s41, s45\ns_mul_i32 s41, s48, 20480\ns_mul_i32 s45, s36, 2560\ns_add_u32 s41, s41, s45\ns_mul_i32 s45, s37, {OB[1]-OB[0]}\ns_add_u32 s41, s41, s45\ns_add_u32 s41, s41, {OB[0]}")
    a("s_waitcnt lgkmcnt(0)")
    xstore(a, "buffer_store_dwordx4 v[72:75], v172, s[8:11], s41 offen @SC\ns_mov_b64 s[42:43], exec\ns_mov_b64 exec, 0xffff\nbuffer_store_dwordx4 v[76:79], v172, s[8:11], s41 offen offset:2048 @SC\ns_mov_b64 exec, s[42:43]")
    flag_line(46, 0, tile_sgpr=48)
    a("s_lshl_b32 s45, s36, 3\ns_add_u32 s46, s46, s45\ns_and_b32 s45, s34, 1\ns_lshl_b32 s45, s45, 2\ns_add_u32 s46, s46, s45")
    set_flag(a, 46, vtmp=175)
    ts(a, "att_done")
    a("s_cmp_ge_u32 s34, 4\ns_cbranch_scc1 ld_wo")
    a.nvm = 0; a.nlg = 0
    set_bases(a, 5)
    flag_line(46, 0, pair=True)
    await_flags(a, 0xFFFFFFFF, 46)
    ts(a, "wo_ready")
    tile_offs(OB[0], OB[1] - OB[0], 20480, True)
    bl = BL(2048, 10)
    for i in range(10): bl.load(i)
    segs = [(0, 5), (5, 10)]
    kloop2(a, FO, 10, 5, 5, segs, bl.regs, A0, A1, 0, 5, before=lambda i: a.wait_vm(bl.tag[i]), D=DEP)
    ld.label("ld_wo")
    ring.drained()
    loader_kloop2(ld, ring, FO, 10, 5, segs, 5, D=DEP, docap=('capwo' in sys.argv))
    ts(a, "wo_kloop")
    reduce_pair(A0, A1, 5, False, cbar=bool(SIDES))
    if SIDES:
        ld("s_barrier\ns_barrier")
        side_issue(ld, ring, 0); ring_refill(ld, ring, F1)
    else:
        loader_bp(ld, ring, None, F1)
    frag_addr(a, 60, 61, 68, 62)
    tile_offs(X1[0], X1[1] - X1[0], 20480, False)
    for i in range(5):
        unpack2(a, 48, 49, RES + 2 * i); unpack2(a, 50, 51, RES + 2 * i + 1)
        for r in range(4): a(f"v_add_f32 v{48+r}, v{48+r}, v{A0+4*i+r}")
        a(f"v_cvt_pk_bf16_f32 v{RES+2*i}, v48, v49\nv_cvt_pk_bf16_f32 v{RES+2*i+1}, v50, v51")
    store_tiles(a, [RES + 2 * i for i in range(5)], 5, 60, 61, 8, "s40", 512, "@SC", tmp=48)
    flag_line(46, 1, tile_sgpr=67)
    a("s_lshl_b32 s45, s36, 2\ns_add_u32 s46, s46, s45")
    set_flag(a, 46)
    ts(a, "wo_done")
    a.nvm = 0; a.nlg = 0
    a("s_lshr_b32 s52, s36, 1\ns_mul_i32 s52, s52, 27\ns_and_b32 s53, s36, 1\ns_mul_i32 s53, s53, 14\ns_add_u32 s52, s52, s53")
    a("s_and_b32 s53, s34, 1\ns_mul_i32 s53, s53, 7\ns_add_u32 s52, s52, s53")
    srd(a, 20, 24, 0, F * 2)
    a("s_lshl_b32 s47, s52, 5\nv_lshlrev_b32 v60, 3, v4\nv_add_u32 v60, s47, v60")
    B1R = 232
    for i in range(7): a(f"buffer_load_dwordx2 v[{B1R+2*i}:{B1R+2*i+1}], v60, s[20:23], 0 offen offset:{i*32}")
    a(f"s_mul_i32 s45, s36, 896\ns_lshl_b32 s44, s53, 6\ns_add_u32 s45, s45, s44\ns_add_u32 s45, s45, {CS1}\nv_lshlrev_b32 v58, 4, v4")
    for i in range(7): a(f"buffer_load_dwordx4 v[{8+4*i}:{8+4*i+3}], v58, s[8:11], s45 offen offset:{i*64}")
    ones(); set_bases(a, 7)
    flag_line(46, 1, pair=True)
    await_flags(a, 0x00FF00FF, 46)
    ts(a, "fc1_ready")
    tile_offs(X1[0], X1[1] - X1[0], 20480, False)
    bl = BL(1024, 10, sc=('' if 'fc1plain' in sys.argv else 'sc1'))
    for i in range(10): bl.load(i)
    segs = [(2 * s_, 2 * s_ + 2) for s_ in range(10)]
    C0, C1 = 176, 204
    kloop2(a, F1, 14, 7, 7, segs, bl.regs, C0, C1, 1, 4, before=lambda i: a.wait_vm(bl.tag[i]),
           after=lambda i: bl.load(i + 10) if i + 10 < 20 else None)
    ld.label("ld_fc1")
    loader_kloop2(ld, ring, F1, 14, 7, segs, 4, docap=('capfc1' in sys.argv))
    ts(a, "fc1_kloop")
    stats_finalize(a, VST, VST + 4, 60, 61, 56, True)
    a(f"s_and_b32 s45, s34, 3\ns_lshl_b32 s44, s45, 9\ns_add_u32 s44, s44, {KVL}\nv_lshlrev_b32 v56, 3, v1\nv_add_u32 v57, s44, v56")
    a("ds_write_b64 v57, v[60:61]")
    a(f"s_xor_b32 s45, s45, 1\ns_lshl_b32 s44, s45, 9\ns_add_u32 s44, s44, {KVL}\nv_add_u32 v57, s44, v56")
    a("s_waitcnt lgkmcnt(0)\ns_barrier")
    a("ds_read_b64 v[62:63], v57")
    if SIDES:
        a("s_waitcnt lgkmcnt(0)\ns_barrier")
        ld("s_barrier\ns_barrier")
        side_issue(ld, ring, 1); ring_refill(ld, ring, F2)
    else:
        loader_bp(ld, ring, None, F2)
    frag_addr(a, 58, 59, 52, 56)
    tile_offs(HB[0], HB[1] - HB[0], 55296, False)
    c0 = -2.0 * math.sqrt(2.0 / math.pi) * LOG2E
    c1 = c0 * 0.044715
    a(f"v_mov_b32 v40, {f2u(c0):#x}\nv_mov_b32 v41, v40\nv_mov_b32 v42, {f2u(c1):#x}\nv_mov_b32 v43, v42\nv_mov_b32 v46, 1.0\nv_mov_b32 v47, 1.0")
    a("s_waitcnt lgkmcnt(0)")
    def gelu_tile(i, acc, dst):
        unpack2(a, 52, 53, B1R + 2 * i); unpack2(a, 54, 55, B1R + 2 * i + 1)
        for h in range(2): a(f"v_pk_fma_f32 v[{52+2*h}:{53+2*h}], v[38:39], v[{8+4*i+2*h}:{8+4*i+2*h+1}], v[{52+2*h}:{53+2*h}]")
        for h in range(2): a(f"v_pk_fma_f32 v[{52+2*h}:{53+2*h}], v[36:37], v[{acc+4*i+2*h}:{acc+4*i+2*h+1}], v[{52+2*h}:{53+2*h}]")
        for h in range(2): a(f"v_pk_mul_f32 v[{144+2*h}:{145+2*h}], v[{52+2*h}:{53+2*h}], v[{52+2*h}:{53+2*h}]")
        for h in range(2): a(f"v_pk_fma_f32 v[{144+2*h}:{145+2*h}], v[{144+2*h}:{145+2*h}], v[42:43], v[40:41]")
        for h in range(2): a(f"v_pk_mul_f32 v[{144+2*h}:{145+2*h}], v[{144+2*h}:{145+2*h}], v[{52+2*h}:{53+2*h}]")
        for r in range(4): a(f"v_exp_f32 v{144+r}, v{144+r}")
        for h in range(2): a(f"v_pk_add_f32 v[{144+2*h}:{145+2*h}], v[{144+2*h}:{145+2*h}], v[46:47]")
        for r in range(4): a(f"v_rcp_f32 v{144+r}, v{144+r}")
        for h in range(2): a(f"v_pk_mul_f32 v[{52+2*h}:{53+2*h}], v[{52+2*h}:{53+2*h}], v[{144+2*h}:{145+2*h}]")
        a(f"v_cvt_pk_bf16_f32 v{dst}, v52, v53\nv_cvt_pk_bf16_f32 v{dst+1}, v54, v55")
    for tilesel in range(2):
        acc, rho, mu, so = (C0, 60, 61, "s40") if tilesel == 0 else (C1, 62, 63, "s41")
        a(f"v_mov_b32 v36, v{rho}\nv_mov_b32 v37, v{rho}\nv_sub_f32 v38, 0, v{mu}\nv_mov_b32 v39, v38")
        for p in range(3):
            t = 152 + 4 * (p % 2)
            gelu_tile(2 * p, acc, t); gelu_tile(2 * p + 1, acc, t + 2)
            a(f"v_permlane16_swap_b32 v{t}, v{t+2}\nv_permlane16_swap_b32 v{t+1}, v{t+3}")
            xstore(a, f"buffer_store_dwordx4 v[{t}:{t+3}], v58, s[8:11], {so} offen offset:{p*1024} @SC")
        sk = newlab("fc1sk")
        a(f"s_and_b32 s45, s36, s34\ns_bitcmp1_b32 s45, 0\ns_cbranch_scc1 {sk}")
        gelu_tile(6, acc, 160)
        xstore(a, f"buffer_store_dwordx2 v[160:161], v59, s[8:11], {so} offen offset:3072 @SC")
        a.label(sk)
    flag_line(46, 2, tile_sgpr=67)
    flag_line(47, 2, tile_sgpr=65)
    a("s_lshl_b32 s45, s36, 3\ns_and_b32 s44, s34, 1\ns_lshl_b32 s44, s44, 2\ns_add_u32 s45, s45, s44\ns_add_u32 s46, s46, s45\ns_add_u32 s47, s47, s45")
    set_flag(a, 46, second=47)
    ts(a, "fc1_done")
    a.nvm = 0; a.nlg = 0
    srd(a, 20, 26, 0, D * 2)
    a("v_lshlrev_b32 v58, 3, v4\ns_mul_i32 s40, s36, 160\nv_add_u32 v58, s40, v58")
    for i in range(5): a(f"buffer_load_dwordx2 v[{8+2*i}:{9+2*i}], v58, s[20:23], 0 offen offset:{i*32}")
    set_bases(a, 5)
    flag_line(46, 2, pair=True)
    await_flags(a, 0xFFFFFFFF, 46)
    ts(a, "fc2_ready")
    tile_offs(HB[0], HB[1] - HB[0], 55296, True)
    bl = BL(2048, 10)
    for i in range(10): bl.load(i)
    segs = [(2 * s_, min(27, 2 * s_ + 2)) for s_ in range(14)]
    SEGTS[0] = True
    kloop2(a, F2, 10, 5, 5, segs, bl.regs, A0, A1, 0, 5, before=lambda i: a.wait_vm(bl.tag[i]),
           after=lambda i: bl.load(i + 10) if i + 10 < 27 else None, D=DEP)
    ld.label("ld_fc2")
    if any(x.startswith("wb") for x in sys.argv):
        Lw = newlab("wb")
        ld(f"s_cmp_eq_u32 s37, 1\ns_cbranch_scc0 {Lw}\ns_cmp_eq_u32 s34, 7\ns_cbranch_scc0 {Lw}")
        if "wb8" in sys.argv: ld(f"s_cmp_lt_u32 s2, 8\ns_cbranch_scc0 {Lw}")
        ld("buffer_wbl2 sc1")
        ring.q.append(None)
        ld.label(Lw)
    loader_kloop2(ld, ring, F2, 10, 5, segs, 5, D=DEP, docap=('capfc2' in sys.argv))
    ts(a, "fc2_kloop")
    reduce_pair(A0, A1, 5, False)
    loader_bp(ld, ring, None, SL)
    assert ring.I == SLP + RING
    for i in range(5):
        unpack2(a, 48, 49, RES + 2 * i); unpack2(a, 50, 51, RES + 2 * i + 1)
        unpack2(a, 52, 53, 8 + 2 * i); unpack2(a, 54, 55, 8 + 2 * i + 1)
        for r in range(4): a(f"v_add_f32 v{52+r}, v{52+r}, v{A0+4*i+r}")
        for r in range(4): a(f"v_add_f32 v{48+r}, v{48+r}, v{52+r}")
        a(f"v_cvt_pk_bf16_f32 v{RES+2*i}, v48, v49\nv_cvt_pk_bf16_f32 v{RES+2*i+1}, v50, v51")
    a("s_cmp_eq_u32 s37, 0\ns_cbranch_scc0 fc2_last")
    frag_addr(a, 60, 61, 68, 62)
    tile_offs(X2, 0, 20480, False)
    store_tiles(a, [RES + 2 * i for i in range(5)], 5, 60, 61, 8, "s40", 512, "@SC", tmp=48)
    flag_line(46, 3, tile_sgpr=67)
    a("s_lshl_b32 s45, s36, 2\ns_add_u32 s46, s46, s45")
    set_flag(a, 46)
    a("s_branch fc2_fin")
    a.label("fc2_last")
    srd(a, 16, 28, 0, XBYTES)
    a("v_add_u32 v62, s66, v3\nv_mul_u32_u24 v60, 1280, v62\ns_mul_i32 s40, s36, 160\nv_add_u32 v60, s40, v60")
    a("v_lshl_add_u32 v61, v4, 3, v60")
    a("v_and_b32 v62, 1, v4\nv_lshl_add_u32 v60, v62, 5, v60\nv_lshrrev_b32 v62, 1, v4\nv_lshl_add_u32 v60, v62, 4, v60")
    store_tiles(a, [RES + 2 * i for i in range(5)], 5, 60, 61, 16, "0", 32, "", tmp=48)
    a.label("fc2_fin")
    ts(a, "fc2_done")
    a("s_branch layer_end")
    ld("s_branch layer_end")
    a.out += ld.out
    fbk = Asm()
    fbk.label("att_fallback")
    fbk("s_barrier")
    for i in range(4): fbk(f"v_mov_b32 v{181+i}, 0xff800000")
    fbk(f"s_mul_i32 s47, s37, {KVB[1]-KVB[0]}\ns_add_u32 s47, s47, {KVB[0]}\ns_lshl_b32 s48, s38, 16\ns_add_u32 s47, s47, s48\ns_mov_b32 s49, 0")
    fbk.label("fb_loop")
    fbk(f"buffer_load_dwordx4 v[{K1(0)}:{K1(0)+3}], v5, s[8:11], s47 offen sc1")
    fbk(f"buffer_load_dwordx2 v[{K2(0)}:{K2(0)+1}], v170, s[8:11], s47 offen offset:1024 sc1")
    fbk("s_waitcnt vmcnt(0)")
    for i in range(4):
        fbk(f"v_mfma_f32_32x32x16_bf16 v[{SA}:{SA+15}], v[{K1(0)}:{K1(0)+3}], v[{Q1(i)}:{Q1(i)+3}], 0")
        fbk(f"v_mfma_f32_32x32x8_bf16 v[{SA}:{SA+15}], v[{K2(0)}:{K2(0)+1}], v[{Q2(i)}:{Q2(i)+1}], v[{SA}:{SA+15}]")
        for r in range(0, 16, 2): fbk(f"v_max3_f32 v{181+i}, v{181+i}, v{SA+r}, v{SA+r+1}")
    fbk("s_add_u32 s47, s47, 4096\ns_add_u32 s49, s49, 1\ns_cmp_lt_u32 s49, 16\ns_cbranch_scc1 fb_loop")
    fbk("v_xor_b32 v171, 32, v1\nv_lshlrev_b32 v171, 2, v171")
    for i in range(4):
        fbk(f"ds_bpermute_b32 v172, v171, v{181+i}\ns_waitcnt lgkmcnt(0)\nv_max_f32 v{181+i}, v{181+i}, v172")
    fbk("v_lshlrev_b32 v171, 2, v6")
    for i in range(4):
        fbk(f"s_add_u32 s40, s38, {i}\ns_and_b32 s40, s40, 3\ns_lshl_b32 s41, s39, 2\ns_add_u32 s40, s40, s41\ns_lshl_b32 s40, s40, 9\ns_lshl_b32 s41, s38, 7\ns_add_u32 s41, s41, s40\ns_add_u32 s41, s41, {KVL}")
        fbk(f"v_add_u32 v172, s41, v171\nds_write_b32 v172, v{181+i}")
    fbk("s_waitcnt lgkmcnt(0)\ns_barrier")
    for i in range(4):
        fbk(f"s_add_u32 s40, s38, {i}\ns_and_b32 s40, s40, 3\ns_lshl_b32 s41, s39, 2\ns_add_u32 s40, s40, s41\ns_lshl_b32 s40, s40, 9\ns_add_u32 s40, s40, {KVL}")
        fbk(f"v_add_u32 v172, s40, v171\nds_read_b32 v173, v172\nds_read_b32 v174, v172 offset:128\nds_read_b32 v175, v172 offset:256\nds_read_b32 v176, v172 offset:384")
        fbk("s_waitcnt lgkmcnt(0)\nv_max_f32 v173, v173, v174\nv_max3_f32 v173, v173, v175, v176")
        fbk("v_sub_f32 v173, 0, v173\nv_cvt_pk_bf16_f32 v174, v173, v173\nv_lshlrev_b32 v175, 16, v174\nv_sub_f32 v175, v173, v175\nv_cvt_pk_bf16_f32 v176, v173, v175")
        fbk(f"v_cmp_eq_u32 vcc, 1, v7\nv_cndmask_b32 v{Q2(i)}, v{Q2(i)}, v176, vcc")
    fbk("s_mov_b32 s57, 1\ns_barrier\ns_branch att_main")
    a.out += fbk.out
    a.label("layer_end")
    if PROFILE:
        a(f"s_cmp_eq_u32 s34, {4 if PROFLD else 0}\ns_cbranch_scc0 prof_skip")
        a(f"s_lshl_b32 s40, s2, 8\ns_lshl_b32 s41, s37, 7\ns_add_u32 s40, s40, s41\ns_add_u32 s40, s40, {TSB}\nv_mov_b32 v8, 0\ns_mov_b64 s[42:43], exec\ns_mov_b64 exec, 1")
        for i in range(Prof.n):
            a(f"v_mov_b32 v9, s{70+i}\nbuffer_store_dword v9, v8, s[8:11], s40 offen offset:{4*i}\ns_nop 0")
        a("s_mov_b64 exec, s[42:43]")
        a.label("prof_skip")
    if PROFOUT:
        a("s_cmp_eq_u32 s34, 0\ns_cbranch_scc0 po_skip")
        a("s_cmp_eq_u32 s37, 0\ns_cbranch_scc0 po_l1")
        for i in range(1, Prof.n):
            a(f"s_sub_u32 s40, s{70+i}, s{70+i-1}\nv_writelane_b32 v0, s40, {i}")
        a("s_branch po_skip")
        a.label("po_l1")
        for i in range(1, Prof.n):
            a(f"s_sub_u32 s40, s{70+i}, s{70+i-1}\nv_writelane_b32 v0, s40, {24+i}")
        a.label("po_skip")
    a(f"s_add_u32 s37, s37, 1\ns_cmp_lt_u32 s37, 2\ns_cbranch_scc1 layer_top")
    if PROFOUT:
        a("s_waitcnt vmcnt(0)\ns_barrier\ns_cmp_eq_u32 s34, 0\ns_cbranch_scc0 po_end")
        srd(a, 16, 28, 0, XBYTES)
        a("s_memrealtime s[98:99]\ns_waitcnt lgkmcnt(0)\ns_sub_u32 s98, s98, s96\nv_writelane_b32 v0, s98, 47")
        a("v_cvt_f32_u32 v8, v0\nv_cvt_pk_bf16_f32 v8, v8, v8\nv_lshlrev_b32 v9, 1, v1")
        a(f"s_mul_i32 s40, s35, {64*1280}\ns_mul_i32 s41, s36, 160\ns_add_u32 s40, s40, s41")
        a("v_cmp_gt_u32 vcc, 48, v1\ns_and_saveexec_b64 s[42:43], vcc\nbuffer_store_short v8, v9, s[16:19], s40 offen\ns_mov_b64 exec, s[42:43]")
        a.label("po_end")
    a("s_waitcnt vmcnt(0)")
    a("s_endpgm")
    kernel_end(a, name)
    return a.out, descriptor(name, 256), (name, 256, 512, LDS_BYTES)

def build(path, kernels):
    hdr = []
    for k in kernels:
        name, grid, block, lds = k[2]
        hdr.append(f"; @launch kernel={name} grid=({grid},1,1) block=({block},1,1) lds={lds}")
    body = ['.amdgcn_target "amdgcn-amd-amdhsa--gfx950"', ".text"]
    descs = []
    nfix = 0
    for k in kernels:
        lines, n = fix_hazards(k[0])
        nfix += n
        body += lines
        descs.append(k[1])
    txt = "\n".join(hdr) + "\n" + "\n".join(body) + '\n.section .rodata,"a"\n' + "".join(".p2align 6\n" + d for d in descs)
    open(path, "w").write(txt)
    print("written", path, len(txt), "bytes; hazard nops at", nfix, "sites")

if __name__ == "__main__":
    out = [x for x in sys.argv[1:] if x.endswith(".s")]
    build(out[0] if out else "v10.s", [gen_prep(), gen_main()])
    json.dump(dict(WST=WST, CSQ=CSQ, BKV=BKV, CS1=CS1, KVB=KVB, KMAX=KMAX, OB=OB, X1=X1, X2=X2, HB=HB, TSB=TSB, XF=XF, KVF=KVF, TSN=TSN, ver=3, XF0=XF0), open("layout.json", "w"))
```

```python
import sys, math, json, struct
sys.path.insert(0, "gen")
from asmdsl import *

S, D, F, H, DH = 2048, 640, 1728, 32, 20
KB = 1024
PROFSEG = "profseg" in sys.argv
PROFOUT = "profout" in sys.argv
PROFILE = "prof" in sys.argv or "profld" in sys.argv or PROFSEG or PROFOUT
PROFLD = "profld" in sys.argv
off = 0
def alloc(n, align=4096):
    global off
    off = (off + align - 1) // align * align
    o = off; off += n; return o
SL = 770
RING = 112
SLP = 784
FQ, FO, F1, F2 = 0, 120, 220, 500
WST = alloc(8 * SL * KB + 16 * KB)
CSQ = alloc(8 * 96 * 4)
BKV = alloc(3 * 16 * 4)
CS1 = alloc(8 * 224 * 4)
FLAGS = alloc(16384 + 4 * 16384 + 4096, 4096)
KVF = FLAGS
XF = FLAGS + 16384
XID = FLAGS + 16384 + 4 * 16384
FLAG_BYTES = 16384 + 4 * 16384 + 4096
KVB = [alloc(64 * 4096), alloc(64 * 4096)]
KMAX = [alloc(1024), alloc(1024)]
OB = [alloc(S * D * 2), alloc(S * D * 2)]
X1 = [alloc(S * D * 2), alloc(S * D * 2)]
HB = [alloc(S * F * 2), alloc(S * F * 2)]
X2 = alloc(S * D * 2)
XF0 = alloc(S * D * 2)
TSB = alloc(256 * 64 * 4)
WS_BYTES = 268435456
XBYTES = S * D * 2
LOG2E = 1.4426950408889634
def f2u(x): return struct.unpack("<I", struct.pack("<f", x))[0]
KVL = RING * KB
LDS_BYTES = 160 * KB
SPIN_MAX = 200000

def srd(a, s, ptr_pair, off, nbytes):
    if off:
        a(f"s_add_u32 s{s}, s{ptr_pair}, {off}")
        a(f"s_addc_u32 s{s+1}, s{ptr_pair+1}, 0")
    else:
        a(f"s_mov_b32 s{s}, s{ptr_pair}")
        a(f"s_mov_b32 s{s+1}, s{ptr_pair+1}")
    a(f"s_mov_b32 s{s+2}, {nbytes}")
    a(f"s_mov_b32 s{s+3}, 0x20000")
def srd_dyn(a, s, ptr_pair, off_sgpr, nbytes):
    a(f"s_add_u32 s{s}, s{ptr_pair}, s{off_sgpr}")
    a(f"s_addc_u32 s{s+1}, s{ptr_pair+1}, 0")
    a(f"s_mov_b32 s{s+2}, {nbytes}")
    a(f"s_mov_b32 s{s+3}, 0x20000")

def kernel_begin(a, name, nwg):
    a(f".globl {name}")
    a(".p2align 8")
    a(f".type {name},@function")
    a.out.append(f"{name}:")
    a(f"s_cmp_ge_u32 s2, {nwg}")
    a(f"s_cbranch_scc1 {name}_exit")
def kernel_end(a, name):
    a.label(f"{name}_exit")
    a("s_endpgm")
def descriptor(name, vgpr, sgpr=102):
    vg = (vgpr + 7) // 8 * 8
    return f""".amdhsa_kernel {name}
  .amdhsa_next_free_vgpr {vg}
  .amdhsa_next_free_sgpr {sgpr}
  .amdhsa_accum_offset {min(vg,256)}
  .amdhsa_group_segment_fixed_size 0
  .amdhsa_kernarg_size 104
  .amdhsa_user_sgpr_count 2
  .amdhsa_user_sgpr_kernarg_segment_ptr 1
  .amdhsa_system_sgpr_workgroup_id_x 1
  .amdhsa_float_denorm_mode_32 3
  .amdhsa_float_denorm_mode_16_64 3
.end_amdhsa_kernel
"""

PSC = " sc1" if "psc1" in sys.argv else (" nt" if "pnt" in sys.argv else (" sc0 sc1" if "psc01" in sys.argv else ""))
def gen_prep():
    a = Asm(); name = "prep_kernel"
    kernel_begin(a, name, 256)
    a("s_load_dwordx2 s[52:53], s[0:1], 0")
    a("s_load_dwordx2 s[4:5], s[0:1], 96")
    a("s_load_dwordx2 s[6:7], s[0:1], 8")
    a("s_load_dwordx4 s[24:27], s[0:1], 16")
    a("s_load_dwordx2 s[28:29], s[0:1], 32")
    a("s_load_dwordx2 s[30:31], s[0:1], 48")
    a("s_load_dwordx2 s[32:33], s[0:1], 64")
    a("v_and_b32 v1, 63, v0")
    a("v_lshrrev_b32 v2, 6, v0")
    a("v_readfirstlane_b32 s34, v2")
    a("v_and_b32 v3, 15, v1")
    a("v_lshrrev_b32 v4, 4, v1")
    a("v_lshlrev_b32 v5, 4, v1")
    a("s_waitcnt lgkmcnt(0)")
    srd(a, 8, 4, 0, WS_BYTES)
    if "cpf2" in sys.argv:
        a("s_cmp_eq_u32 s34, 3\ns_cbranch_scc0 prep_cpf")
        a("s_getpc_b64 s[40:41]")
        a.label("prep_pc")
        a("s_add_u32 s40, s40, main_kernel-prep_pc\ns_addc_u32 s41, s41, 0")
        a("v_lshlrev_b32 v8, 6, v1")
        for i in range(8):
            a(f"global_load_dword v{110}, v8, s[40:41]")
            a("v_add_u32 v8, 4096, v8")
        a.label("prep_cpf")
    srd(a, 12, 52, 0, XBYTES)
    a("s_lshl_b32 s35, s2, 2\ns_add_u32 s35, s35, s34")
    a("v_mul_u32_u24 v7, 1280, v3\nv_lshl_add_u32 v7, v4, 4, v7")
    for q in range(3):
        a(f"s_add_u32 s36, s35, {q*1024}")
        a("s_mul_i32 s37, s36, 3277\ns_lshr_b32 s37, s37, 16")
        a("s_mul_i32 s38, s37, 20\ns_sub_u32 s38, s36, s38")
        a("s_mul_i32 s39, s37, 20480\ns_lshl_b32 s38, s38, 6\ns_add_u32 s39, s39, s38")
        a(f"buffer_load_dwordx4 v[{16+4*q}:{19+4*q}], v7, s[12:15], s39 offen")
        a(f"s_lshl_b32 s{54+q}, s36, 10\ns_add_u32 s{54+q}, s{54+q}, {XF0}")
    a("s_mov_b32 s57, s35")
    xs_n = [0]
    def xstores():
        L = f"prep_xd{xs_n[0]}"; xs_n[0] += 1
        for q in range(3):
            if q == 2: a(f"s_cmp_lt_u32 s57, 512\ns_cbranch_scc0 {L}")
            a(f"buffer_store_dwordx4 v[{16+4*q}:{19+4*q}], v5, s[8:11], s{54+q} offen" + PSC)
        a.label(L)
    a("s_cmp_ge_u32 s2, 252\ns_cbranch_scc0 prep_go")
    a("s_waitcnt vmcnt(0)")
    xstores()
    a("s_branch prep_done")
    a.label("prep_go")
    def gather(voff, srdn, rowbytes, soff_base_sgpr, nfr, ks_stride_bytes):
        for f in range(nfr):
            for jj in range(8):
                a(f"s_add_u32 s40, s{soff_base_sgpr}, {f*ks_stride_bytes + jj*rowbytes}")
                a(f"buffer_load_ushort v{64+8*f+jj}, v{voff}, s[{srdn}:{srdn+3}], s40 offen")
    def pack(nfr):
        a("s_waitcnt vmcnt(0)")
        xstores()
        for f in range(nfr):
            for q in range(4):
                a(f"v_lshl_or_b32 v{32+4*f+q}, v{64+8*f+2*q+1}, 16, v{64+8*f+2*q}")
    def colsum_and_store(dst_soff_sgpr, dst_ks_stride, cs_off_sgpr):
        a("v_mov_b32 v132, 0x3f803f80\nv_mov_b32 v133, 0x3f803f80\nv_mov_b32 v134, 0x3f803f80\nv_mov_b32 v135, 0x3f803f80")
        pack(5)
        for f in range(5):
            a(f"s_add_u32 s40, s{dst_soff_sgpr}, {f*dst_ks_stride}")
            a(f"buffer_store_dwordx4 v[{32+4*f}:{35+4*f}], v5, s[8:11], s40 offen" + PSC)
            a(f"v_mfma_f32_16x16x32_bf16 v[28:31], v[{32+4*f}:{35+4*f}], v[132:135], " + ("0" if f == 0 else "v[28:31]"))
        a("v_lshlrev_b32 v6, 4, v4")
        a("s_lshl_b32 s41, s34, 6")
        a("v_add_u32 v6, s41, v6")
        a("v_cmp_eq_u32 vcc, 0, v3")
        a("s_and_saveexec_b64 s[42:43], vcc")
        a("ds_write_b128 v6, v[28:31]")
        a("s_mov_b64 exec, s[42:43]")
        a("s_waitcnt lgkmcnt(0)")
        a("s_barrier")
        a("v_lshlrev_b32 v6, 2, v0")
        a("v_cmp_gt_u32 vcc, 16, v0")
        a("s_and_saveexec_b64 s[42:43], vcc")
        a(f"s_cbranch_execz {name}_exit")
        a("ds_read_b32 v7, v6\nds_read_b32 v8, v6 offset:64\nds_read_b32 v9, v6 offset:128\nds_read_b32 v10, v6 offset:192")
        a("s_waitcnt lgkmcnt(0)")
        a("v_add_f32 v7, v7, v8\nv_add_f32 v9, v9, v10\nv_add_f32 v7, v7, v9")
        a(f"buffer_store_dword v7, v6, s[8:11], s{cs_off_sgpr} offen")
        a("s_waitcnt vmcnt(0)")
        a("s_endpgm")
    a("s_cmp_lt_u32 s2, 40\ns_cbranch_scc1 prep_wq")
    a("s_cmp_lt_u32 s2, 43\ns_cbranch_scc1 prep_kv")
    a("s_cmp_lt_u32 s2, 151\ns_cbranch_scc1 prep_w1")
    a("s_branch prep_plain")
    a.label("prep_wq")
    srd(a, 12, 6, 0, D * D * 2)
    a("s_mul_i32 s35, s2, 52429\ns_lshr_b32 s35, s35, 18")
    a("s_mul_i32 s36, s35, 5\ns_sub_u32 s36, s2, s36")
    a("v_mul_u32_u24 v7, 10240, v4")
    a("s_lshl_b32 s37, s2, 5")
    a("v_lshl_add_u32 v7, v3, 1, v7\nv_add_u32 v7, s37, v7")
    a(f"s_mul_i32 s38, s34, {5*32*1280}")
    gather(7, 12, 1280, 38, 5, 32 * 1280)
    a(f"s_mul_i32 s44, s35, {SL*KB}\ns_mul_i32 s45, s34, {25*KB}\ns_add_u32 s44, s44, s45\ns_lshl_b32 s45, s36, 10\ns_add_u32 s44, s44, s45\ns_add_u32 s44, s44, {WST + (FQ+20)*KB}")
    a(f"s_mul_i32 s46, s35, 384\ns_lshl_b32 s45, s36, 6\ns_add_u32 s46, s46, s45\ns_add_u32 s46, s46, {CSQ}")
    colsum_and_store(44, 5 * KB, 46)
    a.label("prep_kv")
    srd(a, 12, 24, 0, D * DH * 2)
    srd(a, 16, 26, 0, D * DH * 2)
    a("s_sub_u32 s35, s2, 40")
    for r in range(64, 104): a(f"v_mov_b32 v{r}, 0")
    BIG = 0x40000000
    a("v_and_b32 v8, 3, v3\nv_lshrrev_b32 v9, 2, v3")
    a("s_cmp_eq_u32 s35, 0\ns_cbranch_scc1 prep_kv0")
    a("s_cmp_eq_u32 s35, 1\ns_cbranch_scc1 prep_kv1")
    a(f"v_mov_b32 v10, {BIG}\nv_mov_b32 v11, {BIG}")
    a("v_lshlrev_b32 v12, 1, v3\nv_add_u32 v12, 32, v12")
    a("v_cmp_gt_u32 vcc, 4, v3\nv_cndmask_b32 v10, v10, v12, vcc")
    a("v_lshlrev_b32 v12, 1, v8")
    a("v_add_u32 v13, 16, v12\nv_add_u32 v14, 36, v12")
    a("v_cmp_eq_u32 vcc, 1, v9\nv_cndmask_b32 v11, v11, v13, vcc")
    a("v_cmp_eq_u32 vcc, 2, v9\nv_cndmask_b32 v11, v11, v14, vcc")
    a(f"v_mov_b32 v12, {BIG}\nv_cmp_lt_u32 vcc, 1, v8\nv_cndmask_b32 v11, v11, v12, vcc")
    a("s_branch prep_kvgo")
    a.label("prep_kv0")
    a(f"v_lshlrev_b32 v10, 1, v3\nv_mov_b32 v11, {BIG}")
    a("s_branch prep_kvgo")
    a.label("prep_kv1")
    a(f"v_mov_b32 v10, {BIG}")
    a("v_mov_b32 v11, 0\nv_cmp_eq_u32 vcc, 1, v9\nv_cndmask_b32 v11, v11, 10, vcc")
    a("v_cmp_eq_u32 vcc, 2, v9\nv_cndmask_b32 v11, v11, 4, vcc")
    a("v_cmp_eq_u32 vcc, 3, v9\nv_cndmask_b32 v11, v11, 14, vcc")
    a("v_add_u32 v11, v11, v8\nv_lshlrev_b32 v11, 1, v11")
    a.label("prep_kvgo")
    a("v_mul_u32_u24 v12, 320, v4")
    a("v_add_u32 v10, v10, v12\nv_add_u32 v11, v11, v12")
    a(f"s_mul_i32 s38, s34, {5*32*40}")
    a(f"v_cmp_gt_u32 vcc, {BIG}, v10\ns_and_saveexec_b64 s[48:49], vcc")
    a("s_cbranch_execz prep_kv_skipk")
    gather(10, 12, 40, 38, 5, 32 * 40)
    a.label("prep_kv_skipk")
    a("s_mov_b64 exec, s[48:49]")
    a(f"v_cmp_gt_u32 vcc, {BIG}, v11\ns_and_saveexec_b64 s[48:49], vcc")
    a("s_cbranch_execz prep_kv_skipv")
    gather(11, 16, 40, 38, 5, 32 * 40)
    a.label("prep_kv_skipv")
    a("s_mov_b64 exec, s[48:49]")
    a(f"s_mul_i32 s44, s35, {SL*KB}\ns_mul_i32 s45, s34, {5*KB}\ns_add_u32 s44, s44, s45\ns_add_u32 s44, s44, {WST + FQ*KB}")
    a(f"s_mul_i32 s46, s35, 384\ns_add_u32 s46, s46, {CSQ + 5*64}")
    colsum_and_store(44, 1 * KB, 46)
    a.label("prep_w1")
    srd(a, 12, 30, 0, D * F * 2)
    a("s_sub_u32 s35, s2, 43")
    a("s_mul_i32 s36, s35, 2428\ns_lshr_b32 s36, s36, 16")
    a("s_mul_i32 s37, s36, 27\ns_sub_u32 s37, s35, s37")
    a("s_lshl_b32 s36, s36, 1")
    a("s_cmp_ge_u32 s37, 14\ns_cbranch_scc0 prep_w1a")
    a("s_add_u32 s36, s36, 1\ns_sub_u32 s37, s37, 14")
    a.label("prep_w1a")
    a("v_mul_u32_u24 v7, 27648, v4")
    a("s_lshl_b32 s39, s35, 5")
    a("v_lshl_add_u32 v7, v3, 1, v7\nv_add_u32 v7, s39, v7")
    a(f"s_mul_i32 s38, s34, {5*32*3456}")
    gather(7, 12, 3456, 38, 5, 32 * 3456)
    a(f"s_mul_i32 s44, s36, {SL*KB}\ns_mul_i32 s45, s34, {5*14*KB}\ns_add_u32 s44, s44, s45\ns_lshl_b32 s45, s37, 10\ns_add_u32 s44, s44, s45\ns_add_u32 s44, s44, {WST + F1*KB}")
    a(f"s_mul_i32 s46, s36, 896\ns_lshl_b32 s45, s37, 6\ns_add_u32 s46, s46, s45\ns_add_u32 s46, s46, {CS1}")
    colsum_and_store(44, 14 * KB, 46)
    a.label("prep_plain")
    a("s_sub_u32 s35, s2, 151\ns_lshl_b32 s35, s35, 2\ns_add_u32 s35, s35, s34")
    a("s_cmp_lt_u32 s35, 120\ns_cbranch_scc1 prep_wo")
    a("s_sub_u32 s35, s35, 120")
    a("s_cmp_ge_u32 s35, 280\ns_cbranch_scc1 prep_bias")
    srd(a, 12, 32, 0, F * D * 2)
    a(f"s_mov_b32 s50, {WST + F2*KB}\ns_mov_b32 s51, 6\ns_mov_b32 s52, 2")
    a("s_branch prep_pl2")
    a.label("prep_wo")
    srd(a, 12, 28, 0, D * D * 2)
    a(f"s_mov_b32 s50, {WST + FO*KB}\ns_mov_b32 s51, 2\ns_mov_b32 s52, 0")
    a.label("prep_pl2")
    a("s_mul_i32 s36, s35, 1639\ns_lshr_b32 s36, s36, 16")
    a("s_mul_i32 s37, s36, 40\ns_sub_u32 s37, s35, s37")
    a("s_mul_i32 s38, s37, 52429\ns_lshr_b32 s38, s38, 18")
    a("s_mul_i32 s39, s38, 5\ns_sub_u32 s39, s37, s39")
    a("v_mul_u32_u24 v7, 10240, v4")
    a("s_lshl_b32 s45, s37, 5")
    a("v_lshl_add_u32 v7, v3, 1, v7\nv_add_u32 v7, s45, v7")
    a(f"s_mul_i32 s44, s38, {SL*KB}\ns_add_u32 s44, s44, s50\ns_mul_i32 s45, s36, {40*KB}\ns_add_u32 s44, s44, s45\ns_lshl_b32 s45, s39, 10\ns_add_u32 s44, s44, s45")
    a(f"s_mul_i32 s38, s36, {8*32*1280}")
    gather(7, 12, 1280, 38, 8, 32 * 1280)
    pack(8)
    for f in range(8):
        if f >= 4:
            a(f"s_cmp_eq_u32 s36, s51\ns_cbranch_scc0 prep_st{f}")
            a(f"s_cmp_gt_u32 s52, {f-4}\ns_cbranch_scc0 prep_done")
            a.label(f"prep_st{f}")
        a(f"s_add_u32 s40, s44, {f*5*KB}")
        a(f"buffer_store_dwordx4 v[{32+4*f}:{35+4*f}], v5, s[8:11], s40 offen" + PSC)
    a.label("prep_done")
    a("s_waitcnt vmcnt(0)")
    a("s_endpgm")
    a.label("prep_bias")
    a("s_waitcnt vmcnt(0)")
    xstores()
    a("v_mov_b32 v8, 0\nv_mov_b32 v9, 0\nv_mov_b32 v10, 0\nv_mov_b32 v11, 0")
    a("v_lshlrev_b32 v6, 4, v0")
    nz = FLAG_BYTES // 4096
    for r in range(nz):
        a(f"s_mov_b32 s40, {FLAGS + r*4096}\nbuffer_store_dwordx4 v[8:11], v6, s[8:11], s40 offen")
    a("s_cmp_eq_u32 s35, 280\ns_cbranch_scc0 prep_done2")
    a("v_mov_b32 v7, 0")
    for idx in (32 + 6, 32 + 10, 32 + 12, 32 + 13):
        a(f"v_cmp_eq_u32 vcc, {idx}, v1\nv_cndmask_b32 v7, v7, 1.0, vcc")
    a("v_lshlrev_b32 v6, 2, v1\nv_cmp_gt_u32 vcc, 48, v1\ns_and_saveexec_b64 s[42:43], vcc")
    a(f"s_mov_b32 s40, {BKV}\nbuffer_store_dword v7, v6, s[8:11], s40 offen")
    a.label("prep_done2")
    a("s_waitcnt vmcnt(0)")
    a("s_endpgm")
    kernel_end(a, name)
    return a.out, descriptor(name, 144), (name, 256, 256, 1024)

VB, VA, VST, VSO, VONE, RES = 64, 144, 36, 44, 52, 246

class Prof:
    n = 0
LDTS = [False]
SEGTS = [False]
def ts(a, label, loader=False, seg=False):
    if not PROFILE: return
    if PROFLD != loader: return
    if PROFSEG != seg: return
    if Prof.n >= 26: return
    i = Prof.n; Prof.n += 1
    assert i < 26, i
    a(f"s_memtime s[98:99]\ns_waitcnt lgkmcnt(0)\ns_mov_b32 s{70+i}, s98")
    TSN.append(label)
TSN = []

def unpack2(a, dlo, dhi, src):
    a(f"v_lshlrev_b32 v{dlo}, 16, v{src}")
    a(f"v_and_b32 v{dhi}, 0xffff0000, v{src}")

uid = [0]
def newlab(p):
    uid[0] += 1
    return f"{p}_{uid[0]}"

def await_flags(a, mask, off_sgpr, vtmp=56):
    L, Dn = newlab("poll"), newlab("polld")
    a(f"v_lshlrev_b32 v{vtmp}, 2, v1")
    a(f"s_mov_b64 s[42:43], exec\ns_mov_b64 exec, {mask:#x}\ns_mov_b32 s44, 0")
    a.label(L)
    a(f"buffer_load_dword v{vtmp+1}, v{vtmp}, s[8:11], s{off_sgpr} offen sc1")
    a("s_add_u32 s44, s44, 1")
    a("s_waitcnt vmcnt(0)")
    a(f"v_cmp_eq_u32 vcc, 0, v{vtmp+1}")
    a(f"s_cmp_eq_u64 vcc, 0\ns_cbranch_scc1 {Dn}")
    a(f"s_cmp_gt_u32 s44, {SPIN_MAX}\ns_cbranch_scc1 {Dn}")
    a(f"s_sleep 1\ns_branch {L}")
    a.label(Dn)
    a("s_mov_b64 exec, s[42:43]")

def set_flag(a, off_sgpr, vtmp=56, second=None):
    L1, L2 = newlab("sf"), newlab("sf")
    a("s_waitcnt vmcnt(0)")
    a(f"v_mov_b32 v{vtmp}, 0\nv_mov_b32 v{vtmp+1}, 1")
    a("s_mov_b64 s[42:43], exec\ns_mov_b64 exec, 1")
    a(f"s_cmp_eq_u32 s59, 1\ns_cbranch_scc1 {L1}")
    a(f"buffer_store_dword v{vtmp+1}, v{vtmp}, s[8:11], s{off_sgpr} offen sc1")
    if second is not None: a(f"buffer_store_dword v{vtmp+1}, v{vtmp}, s[8:11], s{second} offen sc1")
    a(f"s_branch {L2}")
    a.label(L1)
    a(f"buffer_store_dword v{vtmp+1}, v{vtmp}, s[8:11], s{off_sgpr} offen")
    if second is not None: a(f"buffer_store_dword v{vtmp+1}, v{vtmp}, s[8:11], s{second} offen")
    a.label(L2)
    a("s_mov_b64 exec, s[42:43]")

def xstore(a, text):
    L1, L2 = newlab("xs"), newlab("xs")
    a(f"s_cmp_eq_u32 s59, 1\ns_cbranch_scc1 {L1}")
    a(text.replace("@SC", "sc1"))
    a(f"s_branch {L2}")
    a.label(L1)
    a(text.replace("@SC", ""))
    a.label(L2)

def xf_off(a, dst, kind, extra_sgpr=None, extra_imm=0):
    a(f"s_lshl_b32 s{dst}, s37, 13\ns_lshl_b32 s45, s35, 8\ns_add_u32 s{dst}, s{dst}, s45")
    a(f"s_and_b32 s45, s34, 3\ns_lshl_b32 s45, s45, 6\ns_add_u32 s{dst}, s{dst}, s45")
    a(f"s_add_u32 s{dst}, s{dst}, {XF + kind*16384 + extra_imm}")
    if extra_sgpr is not None: a(f"s_add_u32 s{dst}, s{dst}, s{extra_sgpr}")

SIDES = [(224, 272), (512, 560)] if "noside" not in sys.argv else []
def is_side(f): return any(a_ <= f < b_ for a_, b_ in SIDES)
def rho(f):
    return f - sum(max(0, min(f, b_) - a_) for a_, b_ in SIDES)
def rho_inv(r):
    f = r
    for a_, b_ in SIDES:
        if f >= a_: f += b_ - a_
    return f
def lds_of(f):
    for a_, b_ in SIDES:
        if a_ <= f < b_: return KVL + (f - a_) * KB
    return (rho(f) % RING) * KB
SLR = rho(SL)
class Ring:
    def __init__(self):
        self.I = RING
        self.q = [f for f in range(0, RING, 16) for _ in range(4)]
        self.side = set()
    def drained(self): self.q = []
def loader_issue(a, frm, upto, ring=None):
    assert frm % 16 == 0 and upto % 16 == 0
    skip = None
    for r in range(frm, upto, 16):
        if r == SLP or (r > SLP and r == frm):
            skip = newlab("ldsk")
            a(f"s_cmp_eq_u32 s37, 1\ns_cbranch_scc1 {skip}")
        if SLR <= r < SLP: continue
        f = rho_inv(r % SLP)
        a(f"s_add_u32 m0, s69, {(r % RING) * KB}")
        a(f"s_add_u32 s44, s60, {f * KB}")
        for q in range(4):
            a(f"buffer_load_dwordx4 v5, s[8:11], s44 offen offset:{q*1024} lds")
            if ring is not None and r < SLP: ring.q.append(f)
    if skip: a.label(skip)

def side_issue(a, ring, k):
    a_, b_ = SIDES[k]
    for f in range(a_, b_, 16):
        a(f"s_add_u32 m0, s69, {KVL + (f - a_) * KB}")
        a(f"s_add_u32 s44, s60, {f * KB}")
        for q in range(4):
            a(f"buffer_load_dwordx4 v5, s[8:11], s44 offen offset:{q*1024} lds")
            ring.q.append(f)
    ring.side.add(k)

def ring_refill(a, ring, consumed, cap=None):
    c = SLP if consumed >= SL else rho(consumed)
    upto = (c + RING) // 16 * 16
    if cap is not None: upto = min(upto, (rho(cap) + 15) // 16 * 16)
    if upto > ring.I:
        loader_issue(a, ring.I, upto, ring)
        ring.I = upto

def loader_bp(a, ring, need, consumed, cap=None, refill=True):
    if need is not None:
        assert rho(need) <= ring.I, (need, ring.I)
        for k, (a_, b_) in enumerate(SIDES):
            if need > a_ and consumed < b_: assert k in ring.side, (need, k)
        last = -1
        for i, f in enumerate(ring.q):
            if f is not None and f < need: last = i
        if last >= 0:
            n = len(ring.q) - 1 - last
            a(f"s_waitcnt vmcnt({min(n,63)})")
            ring.q = ring.q[last + 1:]
    a("s_barrier")
    if refill: ring_refill(a, ring, consumed, cap)

def stats_finalize(a, accS, accQ, vRho, vMu, tmp, double_ln):
    t0, t1, t2, t3 = tmp, tmp + 1, tmp + 2, tmp + 3
    a(f"v_and_b32 v{t0}, 3, v1")
    a(f"v_mov_b32 v{t1}, v{accQ}")
    for r in (1, 2, 3):
        a(f"v_cmp_eq_u32 vcc, {r}, v{t0}")
        a(f"v_cndmask_b32 v{t1}, v{t1}, v{accQ+r}, vcc")
    a(f"v_lshrrev_b32 v{t2}, 2, v3\nv_lshlrev_b32 v{t2}, 4, v{t2}\nv_add_u32 v{t2}, v{t2}, v3\nv_lshlrev_b32 v{t2}, 2, v{t2}")
    a(f"ds_bpermute_b32 v{t1}, v{t2}, v{t1}")
    a(f"v_mul_f32 v{t0}, {f2u(1.0/D):#x}, v{accS}")
    a("s_waitcnt lgkmcnt(0)")
    a(f"v_mul_f32 v{t1}, {f2u(1.0/D):#x}, v{t1}")
    a(f"v_fma_f32 v{t1}, -v{t0}, v{t0}, v{t1}")
    a(f"v_max_f32 v{t1}, 0, v{t1}")
    a(f"v_add_f32 v{t2}, {f2u(1e-5):#x}, v{t1}")
    a(f"v_rsq_f32 v{t2}, v{t2}")
    if double_ln:
        a(f"v_mul_f32 v{t3}, v{t2}, v{t2}")
        a(f"v_mul_f32 v{t3}, v{t3}, v{t1}")
        a(f"v_add_f32 v{t3}, {f2u(1e-5):#x}, v{t3}")
        a(f"v_rsq_f32 v{t3}, v{t3}")
        a(f"v_mul_f32 v{t2}, v{t2}, v{t3}")
    a(f"v_mov_b32 v{vRho}, v{t2}")
    a(f"v_mul_f32 v{vMu}, v{t0}, v{t2}")

def set_bases(a, delta):
    a(f"s_and_b32 s45, s34, 1\ns_mul_i32 s44, s45, {delta*KB}\nv_add_u32 v6, s44, v5\nv_add_u32 v7, 0x10000, v6\nv_add_u32 v59, {KVL}, v6")
    a(f"s_xor_b32 s45, s45, 1\ns_mul_i32 s44, s45, {(RING-delta)*KB}\nv_add_u32 v2, s44, v5")
def rdA(a, f0, delta, reg):
    a0, a1 = lds_of(f0), lds_of(f0 + delta)
    if not is_side(f0) and not is_side(f0 + delta):
        if a1 - a0 == delta * KB:
            base = 6 if a0 < 65536 else 7
            return a.lg(f"ds_read_b128 v[{reg}:{reg+3}], v{base} offset:{a0 % 65536}")
        if a1 - a0 == (delta - RING) * KB:
            return a.lg(f"ds_read_b128 v[{reg}:{reg+3}], v2 offset:{a0 - (RING - delta) * KB}")
    if is_side(f0) and is_side(f0 + delta) and a1 - a0 == delta * KB:
        return a.lg(f"ds_read_b128 v[{reg}:{reg+3}], v59 offset:{a0 - KVL}")
    a(f"s_mov_b32 s44, {a1}\ns_bitcmp1_b32 s34, 0\ns_cselect_b32 s45, s44, {a0}\nv_add_u32 v58, s45, v5")
    return a.lg(f"ds_read_b128 v[{reg}:{reg+3}], v58")

def make_units(nA, segs, G):
    return [(i, t0, min(nA, t0 + G), si) for si, (i0, i1) in enumerate(segs) for i in range(i0, i1) for t0 in range(0, nA, G)]

def kloop2(a, fbase, span, delta, nA, segs, breg, acc0, acc1, stats, G, before=None, after=None, hook=None, D=1):
    units = make_units(nA, segs, G)
    NB = D + 1
    def rd(n, k):
        i, t0, t1, si = units[n]
        return rdA(a, fbase + i * span + t0 + k, delta, VA + ((n % NB) * G + k) * 4)
    def cnt(n): return units[n][2] - units[n][1]
    nbar = [0]
    def barrier():
        if hook: hook(nbar[0], False)
        a("s_barrier")
        if hook: hook(nbar[0], True)
        nbar[0] += 1
    barrier()
    seen = 0
    pend = {}
    for n in range(min(D, len(units))):
        if units[n][3] > seen: barrier(); seen = units[n][3]
        pend[n] = [rd(n, k) for k in range(cnt(n))]
    for n, u in enumerate(units):
        i, t0, t1, si = u
        nx = n + D if n + D < len(units) else None
        if nx is not None and units[nx][3] > seen:
            barrier(); seen = units[nx][3]
        if t0 == 0 and before: before(i)
        b0, b1 = breg(i)
        def m(d, A, B):
            c = "0" if i == 0 else f"v[{d}:{d+3}]"
            a(f"v_mfma_f32_16x16x32_bf16 v[{d}:{d+3}], v[{A}:{A+3}], v[{B}:{B+3}], {c}")
        nn = cnt(nx) if nx is not None else 0
        nxt = []
        for t in range(t0, t1):
            ra = VA + ((n % NB) * G + t - t0) * 4
            a.wait_lg(pend[n][t - t0])
            m(acc0 + 4 * t, ra, b0)
            if len(nxt) < nn: nxt.append(rd(nx, len(nxt)))
            m(acc1 + 4 * t, ra, b1)
            if len(nxt) < nn and (t - t0) % 2 == 0 and nn > (t1 - t0): nxt.append(rd(nx, len(nxt)))
        while len(nxt) < nn: nxt.append(rd(nx, len(nxt)))
        if stats and t1 == nA:
            m(VST, VONE, b0); m(VST + 4, b0, b0)
            if stats == 2: m(VSO, VONE, b1); m(VSO + 4, b1, b1)
        if nx is not None: pend[nx] = nxt
        if t1 == nA and after: after(i)

def loader_kloop2(a, ring, fbase, span, nA, segs, G, D=1, docap=False):
    units = make_units(nA, segs, G)
    cap = fbase + segs[-1][1] * span if docap else None
    loader_bp(a, ring, fbase + segs[0][1] * span, fbase, cap)
    seen = 0
    for n in range(min(D, len(units))):
        if units[n][3] > seen:
            seen = units[n][3]; loader_bp(a, ring, fbase + segs[seen][1] * span, fbase, cap)
    for n, u in enumerate(units):
        nx = n + D if n + D < len(units) else None
        if nx is not None and units[nx][3] > seen:
            seen = units[nx][3]
            loader_bp(a, ring, fbase + segs[seen][1] * span, fbase + u[0] * span, cap)

def store_tiles(a, srcs, ntiles, vaddr16, vaddr8, srd_, soff, imm_stride, sc, tmp=56):
    st = []
    i = 0
    while i < ntiles:
        if i + 1 < ntiles:
            t = tmp + 4 * ((i // 2) % 2)
            a(f"v_mov_b32 v{t}, v{srcs[i]}\nv_mov_b32 v{t+1}, v{srcs[i]+1}\nv_mov_b32 v{t+2}, v{srcs[i+1]}\nv_mov_b32 v{t+3}, v{srcs[i+1]+1}")
            a(f"v_permlane16_swap_b32 v{t}, v{t+2}\nv_permlane16_swap_b32 v{t+1}, v{t+3}")
            st.append(f"buffer_store_dwordx4 v[{t}:{t+3}], v{vaddr16}, s[{srd_}:{srd_+3}], {soff} offen offset:{i*imm_stride} {sc}")
            i += 2
        else:
            st.append(f"buffer_store_dwordx2 v[{srcs[i]}:{srcs[i]+1}], v{vaddr8}, s[{srd_}:{srd_+3}], {soff} offen offset:{i*imm_stride} {sc}")
            i += 1
    if sc == "@SC": xstore(a, "\n".join(st))
    else: a("\n".join(st))

def frag_addr(a, v16, v8, Tsgpr, tmp):
    a(f"v_lshrrev_b32 v{v8}, 1, v4\nv_lshlrev_b32 v{v8}, 8, v{v8}\nv_lshl_add_u32 v{v8}, v3, 4, v{v8}")
    a(f"s_lshl_b32 s45, s{Tsgpr}, 9\nv_add_u32 v{v8}, s45, v{v8}")
    a(f"v_and_b32 v{tmp}, 1, v4\nv_lshl_add_u32 v{v16}, v{tmp}, 9, v{v8}\nv_lshl_add_u32 v{v8}, v{tmp}, 3, v{v8}")

def code_prefetch(a, first, last, wave, nkb=32):
    L = newlab("cpf")
    a(f"s_cmp_eq_u32 s34, {wave}\ns_cbranch_scc0 {L}")
    a(f"s_getpc_b64 s[40:41]")
    here = newlab("pc"); a.label(here)
    a(f"s_sub_u32 s40, s40, {here}-{first}\ns_subb_u32 s41, s41, 0")
    a("v_lshlrev_b32 v8, 6, v1")
    for i in range(nkb // 4):
        a(f"global_load_dword v{10+i}, v8, s[40:41]")
        a("v_add_u32 v8, 4096, v8")
    a.label(L)

def gen_main():
    a = Asm(); name = "main_kernel"
    kernel_begin(a, name, 256)
    a("s_load_dwordx2 s[4:5], s[0:1], 96")
    a("s_load_dwordx2 s[6:7], s[0:1], 0")
    a("s_load_dwordx2 s[24:25], s[0:1], 56")
    a("s_load_dwordx4 s[28:31], s[0:1], 72")
    a("v_and_b32 v1, 63, v0")
    a("v_lshrrev_b32 v2, 6, v0")
    a("v_readfirstlane_b32 s34, v2")
    a("v_and_b32 v3, 15, v1\nv_lshrrev_b32 v4, 4, v1\nv_lshlrev_b32 v5, 4, v1")
    a("s_and_b32 s35, s2, 31\ns_lshr_b32 s36, s2, 5\ns_mov_b32 s37, 0")
    a("s_waitcnt lgkmcnt(0)")
    a("s_mov_b32 s26, s28\ns_mov_b32 s27, s29\ns_mov_b32 s28, s30\ns_mov_b32 s29, s31")
    srd(a, 8, 4, 0, WS_BYTES)
    a("s_lshl_b32 s67, s35, 2\ns_and_b32 s38, s34, 3\ns_add_u32 s67, s67, s38\ns_lshl_b32 s66, s67, 4\ns_xor_b32 s65, s67, 1\ns_mul_i32 s68, s36, 5")
    a(f"s_lshl_b32 s69, s38, 12\ns_mul_i32 s60, s36, {SL*KB}\ns_add_u32 s60, s60, s69\ns_add_u32 s60, s60, {WST}")
    a("s_mov_b32 s59, 0\ns_getreg_b32 s58, hwreg(HW_REG_XCC_ID, 0, 4)\ns_add_u32 s58, s58, 1")
    a("s_cmp_eq_u32 s34, 0\ns_cbranch_scc0 pro_x")
    a(f"s_lshl_b32 s40, s35, 5\ns_lshl_b32 s41, s36, 2\ns_add_u32 s40, s40, s41\ns_add_u32 s40, s40, {XID}\nv_mov_b32 v8, 0\nv_mov_b32 v9, s58")
    a("s_mov_b64 s[42:43], exec\ns_mov_b64 exec, 1\nbuffer_store_dword v9, v8, s[8:11], s40 offen sc1\ns_mov_b64 exec, s[42:43]")
    a.label("pro_x")
    ts(a, "start")
    if PROFOUT: a("s_memrealtime s[96:97]\ns_waitcnt lgkmcnt(0)")
    if "cpf" in sys.argv:
        code_prefetch(a, "main_kernel", "main_kernel_exit", 7)
    a("s_cmp_ge_u32 s34, 4\ns_cbranch_scc0 pro_c")
    loader_issue(a, 0, 32 if "lateW" in sys.argv else RING)
    a("s_branch pro_d")
    a.label("pro_c")
    a("v_add_u32 v6, s66, v3")
    a("v_mul_u32_u24 v56, 1280, v6\nv_lshl_add_u32 v56, v4, 3, v56\ns_mul_i32 s40, s36, 160\nv_add_u32 v56, s40, v56")
    srd(a, 12, 6, 0, XBYTES)
    for i in range(5):
        a(f"buffer_load_dwordx2 v[{RES+2*i}:{RES+2*i+1}], v56, s[12:15], 0 offen offset:{i*32}")
    a.label("pro_d")
    a.label("layer_top")
    ring = Ring()
    ld = Asm()
    def tile_offs(base_imm, layer_stride, tile_bytes, ksplit):
        a(f"s_mul_i32 s40, s67, {tile_bytes}\ns_mul_i32 s41, s65, {tile_bytes}")
        if layer_stride:
            a(f"s_mul_i32 s45, s37, {layer_stride}\ns_add_u32 s45, s45, {base_imm}")
        else:
            a(f"s_mov_b32 s45, {base_imm}")
        if ksplit:
            a("s_and_b32 s44, s34, 1\ns_lshl_b32 s44, s44, 10\ns_add_u32 s45, s45, s44")
        a("s_add_u32 s40, s40, s45\ns_add_u32 s41, s41, s45")
    class BL:
        def __init__(self, stride, nslots, sc="sc1"): self.stride, self.n, self.tag, self.cur, self.sc = stride, nslots, {}, 0, sc
        def regs(self, i): r = VB + 8 * (i % self.n); return (r, r + 4)
        def load(self, i):
            o = i * self.stride
            if o - self.cur > 4095 - 1023 * 0 or o - self.cur >= 4096:
                d = (o - self.cur) // 4096 * 4096
                a(f"s_add_u32 s40, s40, {d}\ns_add_u32 s41, s41, {d}"); self.cur += d
            r0, r1 = self.regs(i)
            if "noB" in sys.argv and i >= 2:
                self.tag[i] = a.nvm; return
            a.vm(f"buffer_load_dwordx4 v[{r0}:{r0+3}], v5, s[8:11], s40 offen offset:{o - self.cur} {self.sc}")
            self.tag[i] = a.vm(f"buffer_load_dwordx4 v[{r1}:{r1+3}], v5, s[8:11], s41 offen offset:{o - self.cur} {self.sc}")
    def flag_line(dst, kind, tile_sgpr=None, pair=False, layer_delta=0):
        a(f"s_lshl_b32 s{dst}, s37, 13")
        if pair: a(f"s_and_b32 s45, s67, -2\ns_lshl_b32 s45, s45, 6")
        else: a(f"s_lshl_b32 s45, s{tile_sgpr}, 6")
        a(f"s_add_u32 s{dst}, s{dst}, s45\ns_add_u32 s{dst}, s{dst}, {XF + kind*16384 + layer_delta}")
    def reduce_pair(acc0, acc1, NT, stats, t0=56, cbar=False):
        a(f"s_and_b32 s45, s34, 3\ns_lshl_b32 s44, s45, 13\ns_add_u32 s44, s44, {KVL}\nv_add_u32 v{t0}, s44, v5")
        for t in range(NT): a(f"ds_write_b128 v{t0}, v[{acc1+4*t}:{acc1+4*t+3}] offset:{t*1024}")
        if stats:
            a(f"ds_write_b128 v{t0}, v[{VSO}:{VSO+3}] offset:{6*1024}\nds_write_b128 v{t0}, v[{VSO+4}:{VSO+7}] offset:{7*1024}")
        a(f"s_xor_b32 s45, s45, 1\ns_lshl_b32 s44, s45, 13\ns_add_u32 s44, s44, {KVL}\nv_add_u32 v{t0+1}, s44, v5")
        a("s_waitcnt lgkmcnt(0)\ns_barrier")
        for t in range(NT): a(f"ds_read_b128 v[{VA+4*t}:{VA+4*t+3}], v{t0+1} offset:{t*1024}")
        if stats:
            a(f"ds_read_b128 v[{VSO}:{VSO+3}], v{t0+1} offset:{6*1024}\nds_read_b128 v[{VSO+4}:{VSO+7}], v{t0+1} offset:{7*1024}")
        a("s_waitcnt lgkmcnt(0)")
        if cbar: a("s_barrier")
        for t in range(NT * 4): a(f"v_add_f32 v{acc0+t}, v{acc0+t}, v{VA+t}")
        if stats:
            for t in range(8): a(f"v_add_f32 v{VST+t}, v{VST+t}, v{VSO+t}")
    ones = lambda: a("v_mov_b32 v52, 0x3f803f80\nv_mov_b32 v53, 0x3f803f80\nv_mov_b32 v54, 0x3f803f80\nv_mov_b32 v55, 0x3f803f80")
    DEP = 2 if 'dep1' not in sys.argv else 1
    A0, A1 = 204, 224
    a("s_cmp_ge_u32 s34, 4\ns_cbranch_scc1 ld_qkv")
    a.nvm = 0; a.nlg = 0
    a(f"s_mul_i32 s45, s36, 384\ns_add_u32 s45, s45, {CSQ}\nv_lshlrev_b32 v58, 4, v4")
    for i in range(6): a(f"buffer_load_dwordx4 v[{8+4*i}:{8+4*i+3}], v58, s[8:11], s45 offen offset:{i*64}")
    a(f"s_min_u32 s46, s36, 2\ns_lshl_b32 s46, s46, 6\ns_add_u32 s46, s46, {BKV}")
    a(f"buffer_load_dwordx4 v[32:35], v58, s[8:11], s46 offen")
    ones(); set_bases(a, 1)
    a("s_cmp_eq_u32 s37, 0\ns_cbranch_scc1 qkv_l0")
    flag_line(46, 3, pair=True, layer_delta=-8192)
    await_flags(a, 0x00FF00FF, 46)
    a.label("qkv_l0")
    ts(a, "qkv_ready")
    tile_offs(XF0, X2 - XF0, 20480, True)
    bl = BL(2048, 10)
    for i in range(10): bl.load(i)
    kloop2(a, FQ, 2, 1, 1, [(0, 10)], bl.regs, A0, A1, 2, 1, before=lambda i: a.wait_vm(bl.tag[i]), D=DEP)
    ld.label("ld_qkv")
    if "lateW" in sys.argv:
        ld("s_cmp_eq_u32 s37, 0\ns_cbranch_scc0 ld_qkv1\ns_waitcnt vmcnt(0)\ns_barrier")
        loader_issue(ld, 32, RING)
        ld("s_branch ld_qkv2")
        ld.label("ld_qkv1")
    loader_kloop2(ld, ring, FQ, 2, 1, [(0, 10)], 1, D=DEP)
    if "lateW" in sys.argv: ld.label("ld_qkv2")
    ts(a, "qkv_p1")
    reduce_pair(A0, A1, 1, True)
    ld("s_barrier")
    stats_finalize(a, VST, VST + 4, 60, 61, 56, False)
    qs = DH ** -0.5 * LOG2E
    a(f"v_mul_f32 v62, {f2u(qs):#x}, v60\nv_mul_f32 v63, {f2u(qs):#x}, v61")
    a("s_cmp_lt_u32 s36, 3\ns_cbranch_scc0 qkv_nokv")
    i = 5
    for r in range(4):
        a(f"v_fma_f32 v{48+r}, -v61, v{8+4*i+r}, v{32+r}")
        a(f"v_fma_f32 v{48+r}, v60, v{A0+r}, v{48+r}")
    a("v_cvt_pk_bf16_f32 v52, v48, v49\nv_cvt_pk_bf16_f32 v53, v50, v51")
    a("s_and_b32 s38, s34, 1")
    a(f"s_and_b32 s41, s34, 3\ns_lshl_b32 s41, s41, 10\ns_add_u32 s41, s41, {KVL + 32*KB}")
    a(f"s_lshr_b32 s47, s67, 1\ns_lshl_b32 s47, s47, 12\ns_mul_i32 s48, s37, {KVB[1]-KVB[0]}\ns_add_u32 s47, s47, s48\ns_add_u32 s47, s47, {KVB[0]}")
    def vwrite(rowoff, hstride):
        a(f"v_bfe_u32 v54, v3, 2, 1\nv_mul_u32_u24 v54, {hstride}, v54")
        a("v_bfe_u32 v55, v3, 3, 1\nv_lshl_add_u32 v54, v55, 3, v54")
        a("v_and_b32 v55, 3, v3\nv_lshl_add_u32 v54, v55, 1, v54")
        a(f"v_add3_u32 v54, v54, v{rowoff}, s41")
        a("ds_write_b16 v54, v52\nds_write_b16_d16_hi v54, v52 offset:16\nds_write_b16 v54, v53 offset:32\nds_write_b16_d16_hi v54, v53 offset:48")
    a("s_cmp_eq_u32 s36, 0\ns_cbranch_scc1 qkv_kvA")
    a("s_cmp_eq_u32 s36, 1\ns_cbranch_scc1 qkv_kvB")
    a("v_lshlrev_b32 v47, 3, v3\nv_add_u32 v47, s41, v47\nv_add_u32 v54, 128, v47\nv_cmp_eq_u32 vcc, 3, v4\nv_cndmask_b32 v47, v47, v54, vcc")
    a("v_cmp_eq_u32 vcc, 0, v4\nv_cmp_eq_u32 s[48:49], 3, v4\ns_or_b64 vcc, vcc, s[48:49]")
    a("s_and_saveexec_b64 s[50:51], vcc")
    a("ds_write_b64 v47, v[52:53]")
    a("s_andn2_b64 exec, s[50:51], exec")
    a("v_lshlrev_b32 v47, 6, v4\nv_add_u32 v47, 192, v47")
    vwrite(47, 128)
    a("s_mov_b64 exec, s[50:51]")
    a("v_and_b32 v47, 7, v1\nv_lshlrev_b32 v47, 4, v47\nv_bfe_u32 v54, v1, 3, 2")
    a("s_lshl_b32 s49, s38, 7\ns_add_u32 s49, s49, 1024\ns_lshl_b32 s50, s38, 10\ns_add_u32 s50, s50, 2304")
    a("v_mov_b32 v55, s49\ns_add_u32 s51, s49, 256\nv_mov_b32 v50, s51\nv_cmp_eq_u32 vcc, 1, v54\nv_cndmask_b32 v55, v55, v50, vcc")
    a("v_mov_b32 v50, s50\nv_cmp_eq_u32 vcc, 2, v54\nv_cndmask_b32 v55, v55, v50, vcc")
    a("s_add_u32 s51, s50, 512\nv_mov_b32 v50, s51\nv_cmp_eq_u32 vcc, 3, v54\nv_cndmask_b32 v55, v55, v50, vcc")
    a("v_add_u32 v47, v47, v55")
    if "zrows" in sys.argv:
        a("v_bfe_u32 v54, v1, 3, 1\nv_lshlrev_b32 v54, 9, v54\nv_and_b32 v55, 7, v1\nv_lshl_add_u32 v54, v55, 4, v54\ns_add_u32 s51, s50, 128\nv_add_u32 v54, s51, v54")
        a("v_cmp_le_u32 vcc, 32, v1\nv_cndmask_b32 v47, v47, v54, vcc")
        a("s_mov_b32 s52, 1")
    a("s_branch qkv_kvout")
    a.label("qkv_kvB")
    a("v_lshlrev_b32 v47, 6, v4")
    vwrite(47, 256)
    a("v_lshlrev_b32 v47, 4, v3\nv_and_b32 v54, 1, v4\nv_lshl_add_u32 v47, v54, 9, v47\ns_lshl_b32 s49, s38, 10\ns_add_u32 s49, s49, 2048\nv_add_u32 v47, s49, v47")
    a("s_branch qkv_kvout")
    a.label("qkv_kvA")
    a("v_lshrrev_b32 v47, 1, v4\nv_lshlrev_b32 v47, 8, v47\nv_lshl_add_u32 v47, v3, 4, v47\nv_and_b32 v54, 1, v4\nv_lshl_add_u32 v47, v54, 3, v47\nv_add_u32 v47, s41, v47")
    a("ds_write_b64 v47, v[52:53]")
    a("s_lshl_b32 s49, s38, 8\nv_lshlrev_b32 v47, 4, v3\nv_and_b32 v54, 1, v4\nv_lshl_add_u32 v47, v54, 9, v47\nv_add_u32 v47, s49, v47")
    a.label("qkv_kvout")
    a("v_add_u32 v54, s41, v5")
    a("s_waitcnt lgkmcnt(0)")
    a("s_mov_b64 s[50:51], exec\ns_mov_b64 exec, 0xffffffff")
    a("ds_read_b128 v[48:51], v54\ns_waitcnt lgkmcnt(0)")
    a("buffer_store_dwordx4 v[48:51], v47, s[8:11], s47 offen sc1")
    if "zrows" in sys.argv:
        a("s_cmp_eq_u32 s36, 2\ns_cbranch_scc0 qkv_nz\ns_mov_b32 exec_lo, 0\ns_mov_b32 exec_hi, 0xffff")
        a("v_mov_b32 v48, 0\nv_mov_b32 v49, 0\nv_mov_b32 v50, 0\nv_mov_b32 v51, 0\nbuffer_store_dwordx4 v[48:51], v47, s[8:11], s47 offen sc1")
        a.label("qkv_nz")
    a("s_mov_b64 exec, s[50:51]")
    a.label("qkv_nokv")
    ts(a, "qkv_kv")
    set_bases(a, 5)
    segs = [(0, 2), (2, 4), (4, 6), (6, 8), (8, 10)]
    def kvhook(si, after):
        if si != (3 if DEP == 2 else 2): return
        if not after:
            a("s_waitcnt vmcnt(0)")
        else:
            Lx = newlab("kvpub")
            a(f"s_cmp_eq_u32 s34, 0\ns_cbranch_scc0 {Lx}\ns_cmp_lt_u32 s36, 3\ns_cbranch_scc0 {Lx}")
            a(f"s_lshl_b32 s46, s37, 13\ns_lshr_b32 s45, s35, 3\ns_lshl_b32 s45, s45, 11\ns_add_u32 s46, s46, s45\ns_add_u32 s46, s46, {KVF}\nv_lshlrev_b32 v56, 8, v1\nv_mov_b32 v57, 1")
            a("s_mov_b64 s[42:43], exec\ns_mov_b64 exec, 0xff")
            a("buffer_atomic_add v57, v56, s[8:11], s46 offen")
            a("s_mov_b64 exec, s[42:43]")
            a.label(Lx)
    kloop2(a, FQ + 20, 10, 5, 5, segs, bl.regs, A0, A1, 0, 5, hook=kvhook, D=DEP)
    loader_kloop2(ld, ring, FQ + 20, 10, 5, segs, 5, D=DEP)
    ts(a, "qkv_kloop")
    KV0 = 32
    def K1(b): return KV0 + 16 * b
    def K2(b): return KV0 + 16 * b + 4
    def V1(b): return KV0 + 16 * b + 8
    def ldK(b):
        a(f"buffer_load_dwordx4 v[{K1(b)}:{K1(b)+3}], v5, s[8:11], s47 offen sc1")
        a(f"buffer_load_dwordx2 v[{K2(b)}:{K2(b)+1}], v170, s[8:11], s47 offen offset:1024 sc1")
    def ldV(b, h):
        a(f"buffer_load_dwordx4 v[{V1(b)+4*h}:{V1(b)+4*h+3}], v5, s[8:11], s47 offen offset:{2048+1024*h} sc1")
    def kv_poll_issue():
        a(f"s_and_b32 s38, s34, 3\ns_lshl_b32 s46, s37, 13\ns_lshl_b32 s45, s38, 11\ns_add_u32 s46, s46, s45\ns_and_b32 s45, s2, 7\ns_lshl_b32 s45, s45, 8\ns_add_u32 s46, s46, s45\ns_add_u32 s46, s46, {KVF}\nv_mov_b32 v175, 0")
        a("buffer_load_dword v176, v175, s[8:11], s46 offen sc1")
    def kv_poll_wait():
        Lp, Ld = newlab("kvp"), newlab("kvpd")
        a("s_mov_b32 s48, 0\nv_mov_b32 v175, 0")
        a.label(Lp)
        a("s_add_u32 s48, s48, 1\ns_waitcnt vmcnt(0)")
        a("v_readfirstlane_b32 s45, v176")
        a(f"s_cmp_ge_u32 s45, 24\ns_cbranch_scc1 {Ld}")
        a(f"s_cmp_gt_u32 s48, {SPIN_MAX}\ns_cbranch_scc1 {Ld}")
        a("s_sleep 1\nbuffer_load_dword v176, v175, s[8:11], s46 offen sc1")
        a(f"s_branch {Lp}")
        a.label(Ld)
    def kv_prologue():
        a(f"s_and_b32 s38, s34, 3\ns_mul_i32 s47, s37, {KVB[1]-KVB[0]}\ns_add_u32 s47, s47, {KVB[0]}\ns_lshl_b32 s48, s38, 16\ns_add_u32 s47, s47, s48")
        ldK(0); ldV(0, 0); ldV(0, 1)
        a("s_add_u32 s47, s47, 4096")
        ldK(1)
    a("v_lshlrev_b32 v170, 3, v1")
    kv_poll_issue()
    reduce_pair(A0, A1, 5, False, t0=194)
    ld("s_barrier")
    kv_poll_wait()
    kv_prologue()
    a("s_and_b32 s38, s34, 3\ns_lshl_b32 s38, s38, 4\nv_add_u32 v184, s38, v3\nv_mul_u32_u24 v184, 192, v184")
    a(f"v_add_u32 v184, {KVL + 36*KB}, v184")
    for i in range(5):
        for r in range(4):
            a(f"v_mul_f32 v{188+r}, v63, v{8+4*i+r}")
            a(f"v_fma_f32 v{188+r}, v62, v{A0+4*i+r}, -v{188+r}")
        a(f"v_cvt_pk_bf16_f32 v192, v188, v189\nv_cvt_pk_bf16_f32 v193, v190, v191")
        a(f"v_add_u32 v185, {4*i}, v4\nv_mul_u32_u24 v186, 52, v185\nv_lshrrev_b32 v186, 8, v186\nv_add_u32 v185, v185, v186\nv_lshl_add_u32 v185, v185, 3, v184")
        a("ds_write_b64 v185, v[192:193]")
    a("s_waitcnt lgkmcnt(0)")
    a("s_barrier")
    loader_bp(ld, ring, None, FO)
    ld("s_branch att_top")
    a.label("att_top")
    ts(a, "qkv_done")
    QB_, P, SA, SB, O = 8, 64, 72, 88, 104
    def Q1(i): return QB_ + 6 * i
    def Q2(i): return QB_ + 6 * i + 4
    a("v_and_b32 v6, 31, v1\nv_lshrrev_b32 v7, 5, v1\nv_lshlrev_b32 v170, 3, v1")
    a("s_cmp_ge_u32 s34, 4\ns_cbranch_scc0 att_q")
    kv_poll_issue()
    a.label("att_q")
    a("s_and_b32 s38, s34, 3\ns_lshr_b32 s39, s34, 2")
    a("v_lshrrev_b32 v171, 2, v6\nv_mul_u32_u24 v171, 192, v171\nv_and_b32 v172, 3, v6\nv_mul_u32_u24 v172, 48, v172\nv_add_u32 v171, v171, v172")
    for i in range(4):
        a(f"s_add_u32 s40, s38, {i}\ns_and_b32 s40, s40, 3\ns_lshl_b32 s41, s39, 2\ns_add_u32 s40, s40, s41\ns_mul_i32 s40, s40, {8*192}\ns_add_u32 s40, s40, {KVL + 36*KB}")
        a(f"v_add_u32 v173, s40, v171\nv_lshl_add_u32 v174, v7, 4, v173")
        a(f"ds_read_b128 v[{Q1(i)}:{Q1(i)+3}], v174\nds_read_b64 v[{Q2(i)}:{Q2(i)+1}], v173 offset:32")
    FLAGW = KVL + 48 * KB - 64
    a("s_mov_b32 s57, 0")
    a("s_waitcnt lgkmcnt(0)")
    a("v_cmp_eq_u32 vcc, 1, v7")
    for i in range(4):
        a(f"v_cndmask_b32 v{Q2(i)}, v{Q2(i)}, 0, vcc\nv_cndmask_b32 v{Q2(i)+1}, v{Q2(i)+1}, 0, vcc")
    a("s_cmp_ge_u32 s34, 4\ns_cbranch_scc0 att_go")
    kv_poll_wait()
    a.label("att_main")
    kv_prologue()
    a.label("att_go")
    ts(a, "kv_ready")
    for r in range(64): a(f"v_mov_b32 v{O+r}, 0")
    def qk1(Sd, b, i): a(f"v_mfma_f32_32x32x16_bf16 v[{Sd}:{Sd+15}], v[{K1(b)}:{K1(b)+3}], v[{Q1(i)}:{Q1(i)+3}], 0")
    def qk2(Sd, b, i): a(f"v_mfma_f32_32x32x8_bf16 v[{Sd}:{Sd+15}], v[{K2(b)}:{K2(b)+1}], v[{Q2(i)}:{Q2(i)+1}], v[{Sd}:{Sd+15}]")
    def pv(i, b, h): a(f"v_mfma_f32_32x32x16_bf16 v[{O+16*i}:{O+16*i+15}], v[{V1(b)+4*h}:{V1(b)+4*h+3}], v[{P+4*h}:{P+4*h+3}], v[{O+16*i}:{O+16*i+15}]")
    for r in range(4, 8): a(f"v_mov_b32 v{P+r}, 0\nv_mov_b32 v{V1(1)+r}, 0\nv_mov_b32 v{SB+8+r}, 0")
    a("s_waitcnt vmcnt(4)")
    qk1(SA, 0, 0); qk2(SA, 0, 0)
    a("s_mov_b32 s49, 0")
    a("s_cmp_eq_u32 s37, 0\ns_cbranch_scc0 att_nochk")
    a(f"s_lshl_b32 s46, s35, 5\ns_add_u32 s46, s46, {XID}")
    await_flags(a, 0xFF, 46, vtmp=175)
    a("s_mov_b64 s[42:43], exec\ns_mov_b64 exec, 0xff\nv_cmp_ne_u32 vcc, s58, v176\ns_cmp_eq_u64 vcc, 0\ns_cselect_b32 s59, 1, 0\ns_mov_b64 exec, s[42:43]")
    if "noxcd" in sys.argv: a("s_mov_b32 s59, 0")
    a.label("att_nochk")
    PFQ = int([x for x in sys.argv if x.startswith("pfq=")][0][4:]) if any(x.startswith("pfq=") for x in sys.argv) else 96
    PF = "nopf" not in sys.argv
    if PF:
        a(f"s_mul_i32 s88, s36, {SL*KB}\ns_lshr_b32 s45, s35, 3\ns_mul_i32 s45, s45, {PFQ*KB}\ns_add_u32 s88, s88, s45\ns_add_u32 s88, s88, {WST + 224*KB}")
        a(f"s_lshl_b32 s45, s34, 12\ns_add_u32 s88, s88, s45\ns_add_u32 s89, s88, 32768\ns_add_u32 s90, s88, 65536")
        if "nopfw" in sys.argv: a(f"s_mov_b32 s88, {KVB[0]}\ns_mov_b32 s89, s88\ns_mov_b32 s90, s88")
        a("s_and_b32 s40, s34, 3\ns_lshl_b32 s41, s35, 2\ns_add_u32 s40, s40, s41")
        a("s_cmp_ge_u32 s34, 4\ns_cbranch_scc1 dst_h")
        a(f"s_mul_i32 s41, s40, 20480\ns_mul_i32 s45, s36, 2560\ns_add_u32 s41, s41, s45")
        a(f"s_mul_i32 s91, s37, {OB[1]-OB[0]}\ns_add_u32 s91, s91, {OB[0]}\ns_add_u32 s91, s91, s41")
        a(f"s_mul_i32 s92, s37, {X1[1]-X1[0]}\ns_add_u32 s92, s92, {X1[0]}\ns_add_u32 s92, s92, s41")
        a(f"s_add_u32 s93, s41, {X2}\ns_mov_b32 s61, 3\ns_mov_b32 s62, 39")
        a("s_branch dst_d")
        a.label("dst_h")
        a("s_lshr_b32 s44, s36, 1\ns_mul_i32 s44, s44, 27\ns_and_b32 s45, s36, 1\ns_mul_i32 s45, s45, 14\ns_add_u32 s44, s44, s45\ns_lshl_b32 s44, s44, 9")
        a(f"s_mul_i32 s41, s40, 55296\ns_add_u32 s44, s44, s41\ns_mul_i32 s45, s37, {HB[1]-HB[0]}\ns_add_u32 s44, s44, s45\ns_add_u32 s91, s44, {HB[0]}")
        a("s_add_u32 s92, s91, 4096\ns_mov_b32 s93, s92\ns_mov_b32 s61, 4\ns_bitcmp1_b32 s36, 0\ns_cselect_b32 s62, 39, 47")
        a.label("dst_d")
        a("s_mov_b32 s94, s93\ns_mov_b32 s95, s93")
    if "noout" not in sys.argv:
        a("s_cmp_eq_u32 s37, 1\ns_cbranch_scc0 outpf_d\ns_cmp_ge_u32 s34, 4\ns_cbranch_scc0 outpf_d")
        srd(a, 16, 28, 0, XBYTES)
        a("v_add_u32 v179, s66, v3\nv_mul_u32_u24 v179, 1280, v179\nv_lshl_add_u32 v179, v4, 6, v179\ns_mul_i32 s40, s36, 160\ns_and_b32 s40, s40, -64\nv_add_u32 v179, s40, v179")
        a("buffer_load_dword v178, v179, s[16:19], 0 offen")
        a.label("outpf_d")
    a("s_nop 7")
    ts(a, "att_start")
    a.label("att_loop")
    if "altprio" in sys.argv:
        a("s_lshr_b32 s45, s34, 2\ns_add_u32 s45, s45, s49\ns_bitcmp1_b32 s45, 0\ns_cbranch_scc1 att_p1\ns_setprio 0\ns_branch att_p2")
        a.label("att_p1"); a("s_setprio 1"); a.label("att_p2")
    if "hiprio" in sys.argv:
        a("s_cmp_ge_u32 s34, 4\ns_cbranch_scc0 att_p2\ns_setprio 1"); a.label("att_p2")
    ex = lambda Sc, r: a(f"v_exp_f32 v{Sc+r}, v{Sc+r}")
    cv = lambda Sc, q: a(f"v_cvt_pk_bf16_f32 v{P+q}, v{Sc+2*q}, v{Sc+2*q+1}")
    for kk in range(2):
        b = kk
        for q in range(4):
            u = kk * 4 + q
            Sc, Sn = (SA, SB) if u % 2 == 0 else (SB, SA)
            pq, pb = (q - 1) % 4, (b if q > 0 else 1 - b)
            nq, nb = (q + 1) % 4, (b if q < 3 else 1 - b)
            if "altprio2" in sys.argv and q == 0:
                L1, L2 = newlab("ap"), newlab("ap")
                a(f"s_lshr_b32 s45, s34, 2\ns_bitcmp1_b32 s45, 0\ns_cbranch_scc1 {L1}\ns_setprio {kk}\ns_branch {L2}")
                a.label(L1); a(f"s_setprio {1-kk}"); a.label(L2)
            ex(Sc, 0); ex(Sc, 1); cv(Sn, 6); cv(Sn, 7); ex(Sc, 2); ex(Sc, 3)
            if q == 3: a(f"s_waitcnt vmcnt({3 if (PF and kk == 1) else 2})")
            qk1(Sn, nb, nq)
            ex(Sc, 4); ex(Sc, 5); cv(Sc, 0); cv(Sc, 1); ex(Sc, 6); ex(Sc, 7)
            qk2(Sn, nb, nq)
            if q == 3:
                a("s_add_u32 s47, s47, 4096")
                ldK(b)
                if PF and kk == 0:
                    a("s_mov_b32 m0, s49\ns_cmp_lt_u32 s49, s61\ns_cselect_b32 s63, 63, s62\ns_movrels_b32 s50, s88")
                    a("v_min_u32 v177, s63, v1\nv_lshlrev_b32 v177, 6, v177")
                    a("buffer_load_dword v178, v177, s[8:11], s50 offen")
            ex(Sc, 8); ex(Sc, 9); cv(Sc, 2); cv(Sc, 3); ex(Sc, 10); ex(Sc, 11)
            pv(pq, pb, 1)
            if q == 0: ldV(1 - b, 0)
            if q == 1: ldV(1 - b, 1)
            ex(Sc, 12); ex(Sc, 13); cv(Sc, 4); cv(Sc, 5); ex(Sc, 14); ex(Sc, 15)
            if q == 0: a(f"s_waitcnt vmcnt({4 if (PF and kk == 1) else 3})")
            pv(q, b, 0)
    a("s_add_u32 s49, s49, 1\ns_cmp_lt_u32 s49, 8\ns_cbranch_scc1 att_loop")
    a("s_setprio 0")
    cv(SB, 6); cv(SB, 7)
    pv(3, 1, 1)
    ts(a, "att_loop_end")
    a(f"s_mul_i32 s40, s34, {3*1536}\ns_add_u32 s40, s40, {KVL}\nv_add_u32 v171, s40, v5\nv_add_u32 v172, s40, v170\nv_add_u32 v172, 1024, v172")
    for r in (1, 2, 3):
        t = 72 + 8 * (r - 1)
        for q in range(5): a(f"v_cvt_pk_bf16_f32 v{t+q}, v{O+16*r+2*q}, v{O+16*r+2*q+1}")
        a(f"v_mov_b32 v{t+5}, v{O+16*r+10}")
        a(f"ds_write_b128 v171, v[{t}:{t+3}] offset:{(r-1)*1536}\nds_write_b64 v172, v[{t+4}:{t+5}] offset:{(r-1)*1536}")
    a(f"v_mov_b32 v175, {FLAGW}\nv_mov_b32 v176, 0\nds_write_b32 v175, v176")
    a("s_waitcnt lgkmcnt(0)\ns_barrier")
    for r in (1, 2, 3):
        t = 72 + 8 * (r - 1)
        a(f"s_sub_u32 s41, s38, {r}\ns_and_b32 s41, s41, 3\ns_lshl_b32 s45, s39, 2\ns_add_u32 s41, s41, s45\ns_mul_i32 s41, s41, {3*1536}\ns_add_u32 s41, s41, {KVL + (r-1)*1536}")
        a(f"v_add_u32 v171, s41, v5\nv_add_u32 v172, s41, v170")
        a(f"ds_read_b128 v[{t}:{t+3}], v171\nds_read_b64 v[{t+4}:{t+5}], v172 offset:1024")
    a("s_waitcnt vmcnt(0) lgkmcnt(0)")
    for r in (1, 2, 3):
        t = 72 + 8 * (r - 1)
        for q in range(5):
            unpack2(a, 173, 174, t + q)
            a(f"v_add_f32 v{O+2*q}, v{O+2*q}, v173\nv_add_f32 v{O+2*q+1}, v{O+2*q+1}, v174")
        a(f"v_add_f32 v{O+10}, v{O+10}, v{t+5}")
    a("s_cmp_eq_u32 s57, 1\ns_cbranch_scc1 att_fin")
    a("v_mov_b32 v173, 0")
    for r in range(10): a(f"v_fma_f32 v173, v{O+r}, 0, v173")
    a(f"v_cmp_lt_f32 vcc, {f2u(2.0**-60):#x}, v{O+10}")
    a(f"v_mov_b32 v174, {f2u(2.0**60):#x}\nv_cmp_gt_f32 s[40:41], v174, v{O+10}\ns_and_b64 vcc, vcc, s[40:41]")
    a("v_cmp_eq_f32 s[40:41], 0, v173\ns_and_b64 vcc, vcc, s[40:41]")
    if "forcefb" in sys.argv: a("s_mov_b64 vcc, 0")
    a("s_cmp_eq_u64 vcc, -1\ns_cbranch_scc1 att_okw")
    a(f"v_mov_b32 v175, {FLAGW}\nv_mov_b32 v176, 1\nds_write_b32 v175, v176\ns_waitcnt lgkmcnt(0)")
    a.label("att_okw")
    a("s_barrier")
    a(f"v_mov_b32 v175, {FLAGW}\nds_read_b32 v176, v175\ns_waitcnt lgkmcnt(0)\nv_readfirstlane_b32 s40, v176")
    a("s_cmp_eq_u32 s40, 0\ns_cbranch_scc0 att_fallback")
    a.label("att_fin")
    ts(a, "att_red")
    a(f"v_rcp_f32 v173, v{O+10}")
    for r in range(10): a(f"v_mul_f32 v{O+r}, v{O+r}, v173")
    for q in range(5): a(f"v_cvt_pk_bf16_f32 v{P+q}, v{O+2*q}, v{O+2*q+1}")
    a(f"s_mul_i32 s40, s34, 1280\ns_add_u32 s40, s40, {KVL + 36864}")
    a("v_lshrrev_b32 v171, 2, v6\nv_mul_u32_u24 v171, 160, v171\nv_and_b32 v172, 3, v6\nv_mul_u32_u24 v172, 40, v172\nv_mul_u32_u24 v173, 20, v7\nv_add3_u32 v171, v171, v172, v173")
    a("v_add_u32 v171, s40, v171")
    for q in range(5): a(f"ds_write_b32 v171, v{P+q} offset:{4*q}")
    a("v_and_b32 v172, 7, v1\nv_lshrrev_b32 v173, 3, v1")
    a("v_mul_u32_u24 v174, 160, v172\nv_lshl_add_u32 v174, v173, 4, v174\nv_add_u32 v174, s40, v174")
    a("s_waitcnt lgkmcnt(0)")
    a("ds_read_b128 v[72:75], v174\nds_read_b128 v[76:79], v174 offset:128")
    a("s_and_b32 s41, s34, 1\ns_lshl_b32 s41, s41, 7\nv_lshlrev_b32 v172, 4, v172\nv_lshl_add_u32 v172, v173, 8, v172\nv_add_u32 v172, s41, v172")
    a(f"s_lshl_b32 s41, s35, 2\ns_lshr_b32 s45, s34, 1\ns_add_u32 s48, s41, s45\ns_mul_i32 s41, s48, 20480\ns_mul_i32 s45, s36, 2560\ns_add_u32 s41, s41, s45\ns_mul_i32 s45, s37, {OB[1]-OB[0]}\ns_add_u32 s41, s41, s45\ns_add_u32 s41, s41, {OB[0]}")
    a("s_waitcnt lgkmcnt(0)")
    xstore(a, "buffer_store_dwordx4 v[72:75], v172, s[8:11], s41 offen @SC\ns_mov_b64 s[42:43], exec\ns_mov_b64 exec, 0xffff\nbuffer_store_dwordx4 v[76:79], v172, s[8:11], s41 offen offset:2048 @SC\ns_mov_b64 exec, s[42:43]")
    flag_line(46, 0, tile_sgpr=48)
    a("s_lshl_b32 s45, s36, 3\ns_add_u32 s46, s46, s45\ns_and_b32 s45, s34, 1\ns_lshl_b32 s45, s45, 2\ns_add_u32 s46, s46, s45")
    set_flag(a, 46, vtmp=175)
    ts(a, "att_done")
    a("s_cmp_ge_u32 s34, 4\ns_cbranch_scc1 ld_wo")
    a.nvm = 0; a.nlg = 0
    set_bases(a, 5)
    flag_line(46, 0, pair=True)
    await_flags(a, 0xFFFFFFFF, 46)
    ts(a, "wo_ready")
    tile_offs(OB[0], OB[1] - OB[0], 20480, True)
    bl = BL(2048, 10)
    for i in range(10): bl.load(i)
    segs = [(0, 5), (5, 10)]
    kloop2(a, FO, 10, 5, 5, segs, bl.regs, A0, A1, 0, 5, before=lambda i: a.wait_vm(bl.tag[i]), D=DEP)
    ld.label("ld_wo")
    ring.drained()
    loader_kloop2(ld, ring, FO, 10, 5, segs, 5, D=DEP, docap=('capwo' in sys.argv))
    ts(a, "wo_kloop")
    reduce_pair(A0, A1, 5, False, cbar=bool(SIDES))
    if SIDES:
        ld("s_barrier\ns_barrier")
        side_issue(ld, ring, 0); ring_refill(ld, ring, F1)
    else:
        loader_bp(ld, ring, None, F1)
    frag_addr(a, 60, 61, 68, 62)
    tile_offs(X1[0], X1[1] - X1[0], 20480, False)
    for i in range(5):
        unpack2(a, 48, 49, RES + 2 * i); unpack2(a, 50, 51, RES + 2 * i + 1)
        for r in range(4): a(f"v_add_f32 v{48+r}, v{48+r}, v{A0+4*i+r}")
        a(f"v_cvt_pk_bf16_f32 v{RES+2*i}, v48, v49\nv_cvt_pk_bf16_f32 v{RES+2*i+1}, v50, v51")
    store_tiles(a, [RES + 2 * i for i in range(5)], 5, 60, 61, 8, "s40", 512, "@SC", tmp=48)
    flag_line(46, 1, tile_sgpr=67)
    a("s_lshl_b32 s45, s36, 2\ns_add_u32 s46, s46, s45")
    set_flag(a, 46)
    ts(a, "wo_done")
    a.nvm = 0; a.nlg = 0
    a("s_lshr_b32 s52, s36, 1\ns_mul_i32 s52, s52, 27\ns_and_b32 s53, s36, 1\ns_mul_i32 s53, s53, 14\ns_add_u32 s52, s52, s53")
    a("s_and_b32 s53, s34, 1\ns_mul_i32 s53, s53, 7\ns_add_u32 s52, s52, s53")
    srd(a, 20, 24, 0, F * 2)
    a("s_lshl_b32 s47, s52, 5\nv_lshlrev_b32 v60, 3, v4\nv_add_u32 v60, s47, v60")
    B1R = 232
    for i in range(7): a(f"buffer_load_dwordx2 v[{B1R+2*i}:{B1R+2*i+1}], v60, s[20:23], 0 offen offset:{i*32}")
    a(f"s_mul_i32 s45, s36, 896\ns_lshl_b32 s44, s53, 6\ns_add_u32 s45, s45, s44\ns_add_u32 s45, s45, {CS1}\nv_lshlrev_b32 v58, 4, v4")
    for i in range(7): a(f"buffer_load_dwordx4 v[{8+4*i}:{8+4*i+3}], v58, s[8:11], s45 offen offset:{i*64}")
    ones(); set_bases(a, 7)
    flag_line(46, 1, pair=True)
    await_flags(a, 0x00FF00FF, 46)
    ts(a, "fc1_ready")
    tile_offs(X1[0], X1[1] - X1[0], 20480, False)
    bl = BL(1024, 10, sc=('' if 'fc1plain' in sys.argv else 'sc1'))
    for i in range(10): bl.load(i)
    segs = [(2 * s_, 2 * s_ + 2) for s_ in range(10)]
    C0, C1 = 176, 204
    kloop2(a, F1, 14, 7, 7, segs, bl.regs, C0, C1, 1, 4, before=lambda i: a.wait_vm(bl.tag[i]),
           after=lambda i: bl.load(i + 10) if i + 10 < 20 else None)
    ld.label("ld_fc1")
    loader_kloop2(ld, ring, F1, 14, 7, segs, 4, docap=('capfc1' in sys.argv))
    ts(a, "fc1_kloop")
    stats_finalize(a, VST, VST + 4, 60, 61, 56, True)
    a(f"s_and_b32 s45, s34, 3\ns_lshl_b32 s44, s45, 9\ns_add_u32 s44, s44, {KVL}\nv_lshlrev_b32 v56, 3, v1\nv_add_u32 v57, s44, v56")
    a("ds_write_b64 v57, v[60:61]")
    a(f"s_xor_b32 s45, s45, 1\ns_lshl_b32 s44, s45, 9\ns_add_u32 s44, s44, {KVL}\nv_add_u32 v57, s44, v56")
    a("s_waitcnt lgkmcnt(0)\ns_barrier")
    a("ds_read_b64 v[62:63], v57")
    if SIDES:
        a("s_waitcnt lgkmcnt(0)\ns_barrier")
        ld("s_barrier\ns_barrier")
        side_issue(ld, ring, 1); ring_refill(ld, ring, F2)
    else:
        loader_bp(ld, ring, None, F2)
    frag_addr(a, 58, 59, 52, 56)
    tile_offs(HB[0], HB[1] - HB[0], 55296, False)
    c0 = -2.0 * math.sqrt(2.0 / math.pi) * LOG2E
    c1 = c0 * 0.044715
    a(f"v_mov_b32 v40, {f2u(c0):#x}\nv_mov_b32 v41, v40\nv_mov_b32 v42, {f2u(c1):#x}\nv_mov_b32 v43, v42\nv_mov_b32 v46, 1.0\nv_mov_b32 v47, 1.0")
    a("s_waitcnt lgkmcnt(0)")
    def gelu_tile(i, acc, dst):
        unpack2(a, 52, 53, B1R + 2 * i); unpack2(a, 54, 55, B1R + 2 * i + 1)
        for h in range(2): a(f"v_pk_fma_f32 v[{52+2*h}:{53+2*h}], v[38:39], v[{8+4*i+2*h}:{8+4*i+2*h+1}], v[{52+2*h}:{53+2*h}]")
        for h in range(2): a(f"v_pk_fma_f32 v[{52+2*h}:{53+2*h}], v[36:37], v[{acc+4*i+2*h}:{acc+4*i+2*h+1}], v[{52+2*h}:{53+2*h}]")
        for h in range(2): a(f"v_pk_mul_f32 v[{144+2*h}:{145+2*h}], v[{52+2*h}:{53+2*h}], v[{52+2*h}:{53+2*h}]")
        for h in range(2): a(f"v_pk_fma_f32 v[{144+2*h}:{145+2*h}], v[{144+2*h}:{145+2*h}], v[42:43], v[40:41]")
        for h in range(2): a(f"v_pk_mul_f32 v[{144+2*h}:{145+2*h}], v[{144+2*h}:{145+2*h}], v[{52+2*h}:{53+2*h}]")
        for r in range(4): a(f"v_exp_f32 v{144+r}, v{144+r}")
        for h in range(2): a(f"v_pk_add_f32 v[{144+2*h}:{145+2*h}], v[{144+2*h}:{145+2*h}], v[46:47]")
        for r in range(4): a(f"v_rcp_f32 v{144+r}, v{144+r}")
        for h in range(2): a(f"v_pk_mul_f32 v[{52+2*h}:{53+2*h}], v[{52+2*h}:{53+2*h}], v[{144+2*h}:{145+2*h}]")
        a(f"v_cvt_pk_bf16_f32 v{dst}, v52, v53\nv_cvt_pk_bf16_f32 v{dst+1}, v54, v55")
    for tilesel in range(2):
        acc, rho, mu, so = (C0, 60, 61, "s40") if tilesel == 0 else (C1, 62, 63, "s41")
        a(f"v_mov_b32 v36, v{rho}\nv_mov_b32 v37, v{rho}\nv_sub_f32 v38, 0, v{mu}\nv_mov_b32 v39, v38")
        for p in range(3):
            t = 152 + 4 * (p % 2)
            gelu_tile(2 * p, acc, t); gelu_tile(2 * p + 1, acc, t + 2)
            a(f"v_permlane16_swap_b32 v{t}, v{t+2}\nv_permlane16_swap_b32 v{t+1}, v{t+3}")
            xstore(a, f"buffer_store_dwordx4 v[{t}:{t+3}], v58, s[8:11], {so} offen offset:{p*1024} @SC")
        sk = newlab("fc1sk")
        a(f"s_and_b32 s45, s36, s34\ns_bitcmp1_b32 s45, 0\ns_cbranch_scc1 {sk}")
        gelu_tile(6, acc, 160)
        xstore(a, f"buffer_store_dwordx2 v[160:161], v59, s[8:11], {so} offen offset:3072 @SC")
        a.label(sk)
    flag_line(46, 2, tile_sgpr=67)
    flag_line(47, 2, tile_sgpr=65)
    a("s_lshl_b32 s45, s36, 3\ns_and_b32 s44, s34, 1\ns_lshl_b32 s44, s44, 2\ns_add_u32 s45, s45, s44\ns_add_u32 s46, s46, s45\ns_add_u32 s47, s47, s45")
    set_flag(a, 46, second=47)
    ts(a, "fc1_done")
    a.nvm = 0; a.nlg = 0
    srd(a, 20, 26, 0, D * 2)
    a("v_lshlrev_b32 v58, 3, v4\ns_mul_i32 s40, s36, 160\nv_add_u32 v58, s40, v58")
    for i in range(5): a(f"buffer_load_dwordx2 v[{8+2*i}:{9+2*i}], v58, s[20:23], 0 offen offset:{i*32}")
    set_bases(a, 5)
    flag_line(46, 2, pair=True)
    await_flags(a, 0xFFFFFFFF, 46)
    ts(a, "fc2_ready")
    tile_offs(HB[0], HB[1] - HB[0], 55296, True)
    bl = BL(2048, 10)
    for i in range(10): bl.load(i)
    segs = [(2 * s_, min(27, 2 * s_ + 2)) for s_ in range(14)]
    SEGTS[0] = True
    kloop2(a, F2, 10, 5, 5, segs, bl.regs, A0, A1, 0, 5, before=lambda i: a.wait_vm(bl.tag[i]),
           after=lambda i: bl.load(i + 10) if i + 10 < 27 else None, D=DEP)
    ld.label("ld_fc2")
    if any(x.startswith("wb") for x in sys.argv):
        Lw = newlab("wb")
        ld(f"s_cmp_eq_u32 s37, 1\ns_cbranch_scc0 {Lw}\ns_cmp_eq_u32 s34, 7\ns_cbranch_scc0 {Lw}")
        if "wb8" in sys.argv: ld(f"s_cmp_lt_u32 s2, 8\ns_cbranch_scc0 {Lw}")
        ld("buffer_wbl2 sc1")
        ld.label(Lw)
    loader_kloop2(ld, ring, F2, 10, 5, segs, 5, D=DEP, docap=('capfc2' in sys.argv))
    ts(a, "fc2_kloop")
    reduce_pair(A0, A1, 5, False)
    loader_bp(ld, ring, None, SL)
    assert ring.I == SLP + RING
    for i in range(5):
        unpack2(a, 48, 49, RES + 2 * i); unpack2(a, 50, 51, RES + 2 * i + 1)
        unpack2(a, 52, 53, 8 + 2 * i); unpack2(a, 54, 55, 8 + 2 * i + 1)
        for r in range(4): a(f"v_add_f32 v{52+r}, v{52+r}, v{A0+4*i+r}")
        for r in range(4): a(f"v_add_f32 v{48+r}, v{48+r}, v{52+r}")
        a(f"v_cvt_pk_bf16_f32 v{RES+2*i}, v48, v49\nv_cvt_pk_bf16_f32 v{RES+2*i+1}, v50, v51")
    a("s_cmp_eq_u32 s37, 0\ns_cbranch_scc0 fc2_last")
    frag_addr(a, 60, 61, 68, 62)
    tile_offs(X2, 0, 20480, False)
    store_tiles(a, [RES + 2 * i for i in range(5)], 5, 60, 61, 8, "s40", 512, "@SC", tmp=48)
    flag_line(46, 3, tile_sgpr=67)
    a("s_lshl_b32 s45, s36, 2\ns_add_u32 s46, s46, s45")
    set_flag(a, 46)
    a("s_branch fc2_fin")
    a.label("fc2_last")
    srd(a, 16, 28, 0, XBYTES)
    a("v_add_u32 v62, s66, v3\nv_mul_u32_u24 v60, 1280, v62\ns_mul_i32 s40, s36, 160\nv_add_u32 v60, s40, v60")
    a("v_lshl_add_u32 v61, v4, 3, v60")
    a("v_and_b32 v62, 1, v4\nv_lshl_add_u32 v60, v62, 5, v60\nv_lshrrev_b32 v62, 1, v4\nv_lshl_add_u32 v60, v62, 4, v60")
    store_tiles(a, [RES + 2 * i for i in range(5)], 5, 60, 61, 16, "0", 32, "", tmp=48)
    a.label("fc2_fin")
    ts(a, "fc2_done")
    a("s_branch layer_end")
    ld("s_branch layer_end")
    a.out += ld.out
    fbk = Asm()
    fbk.label("att_fallback")
    fbk("s_barrier")
    for i in range(4): fbk(f"v_mov_b32 v{181+i}, 0xff800000")
    fbk(f"s_mul_i32 s47, s37, {KVB[1]-KVB[0]}\ns_add_u32 s47, s47, {KVB[0]}\ns_lshl_b32 s48, s38, 16\ns_add_u32 s47, s47, s48\ns_mov_b32 s49, 0")
    fbk.label("fb_loop")
    fbk(f"buffer_load_dwordx4 v[{K1(0)}:{K1(0)+3}], v5, s[8:11], s47 offen sc1")
    fbk(f"buffer_load_dwordx2 v[{K2(0)}:{K2(0)+1}], v170, s[8:11], s47 offen offset:1024 sc1")
    fbk("s_waitcnt vmcnt(0)")
    for i in range(4):
        fbk(f"v_mfma_f32_32x32x16_bf16 v[{SA}:{SA+15}], v[{K1(0)}:{K1(0)+3}], v[{Q1(i)}:{Q1(i)+3}], 0")
        fbk(f"v_mfma_f32_32x32x8_bf16 v[{SA}:{SA+15}], v[{K2(0)}:{K2(0)+1}], v[{Q2(i)}:{Q2(i)+1}], v[{SA}:{SA+15}]")
        for r in range(0, 16, 2): fbk(f"v_max3_f32 v{181+i}, v{181+i}, v{SA+r}, v{SA+r+1}")
    fbk("s_add_u32 s47, s47, 4096\ns_add_u32 s49, s49, 1\ns_cmp_lt_u32 s49, 16\ns_cbranch_scc1 fb_loop")
    fbk("v_xor_b32 v171, 32, v1\nv_lshlrev_b32 v171, 2, v171")
    for i in range(4):
        fbk(f"ds_bpermute_b32 v172, v171, v{181+i}\ns_waitcnt lgkmcnt(0)\nv_max_f32 v{181+i}, v{181+i}, v172")
    fbk("v_lshlrev_b32 v171, 2, v6")
    for i in range(4):
        fbk(f"s_add_u32 s40, s38, {i}\ns_and_b32 s40, s40, 3\ns_lshl_b32 s41, s39, 2\ns_add_u32 s40, s40, s41\ns_lshl_b32 s40, s40, 9\ns_lshl_b32 s41, s38, 7\ns_add_u32 s41, s41, s40\ns_add_u32 s41, s41, {KVL}")
        fbk(f"v_add_u32 v172, s41, v171\nds_write_b32 v172, v{181+i}")
    fbk("s_waitcnt lgkmcnt(0)\ns_barrier")
    for i in range(4):
        fbk(f"s_add_u32 s40, s38, {i}\ns_and_b32 s40, s40, 3\ns_lshl_b32 s41, s39, 2\ns_add_u32 s40, s40, s41\ns_lshl_b32 s40, s40, 9\ns_add_u32 s40, s40, {KVL}")
        fbk(f"v_add_u32 v172, s40, v171\nds_read_b32 v173, v172\nds_read_b32 v174, v172 offset:128\nds_read_b32 v175, v172 offset:256\nds_read_b32 v176, v172 offset:384")
        fbk("s_waitcnt lgkmcnt(0)\nv_max_f32 v173, v173, v174\nv_max3_f32 v173, v173, v175, v176")
        fbk("v_sub_f32 v173, 0, v173\nv_cvt_pk_bf16_f32 v174, v173, v173\nv_lshlrev_b32 v175, 16, v174\nv_sub_f32 v175, v173, v175\nv_cvt_pk_bf16_f32 v176, v173, v175")
        fbk(f"v_cmp_eq_u32 vcc, 1, v7\nv_cndmask_b32 v{Q2(i)}, v{Q2(i)}, v176, vcc")
    fbk("s_mov_b32 s57, 1\ns_barrier\ns_branch att_main")
    a.out += fbk.out
    a.label("layer_end")
    if PROFILE:
        a(f"s_cmp_eq_u32 s34, {4 if PROFLD else 0}\ns_cbranch_scc0 prof_skip")
        a(f"s_lshl_b32 s40, s2, 8\ns_lshl_b32 s41, s37, 7\ns_add_u32 s40, s40, s41\ns_add_u32 s40, s40, {TSB}\nv_mov_b32 v8, 0\ns_mov_b64 s[42:43], exec\ns_mov_b64 exec, 1")
        for i in range(Prof.n):
            a(f"v_mov_b32 v9, s{70+i}\nbuffer_store_dword v9, v8, s[8:11], s40 offen offset:{4*i}\ns_nop 0")
        a("s_mov_b64 exec, s[42:43]")
        a.label("prof_skip")
    if PROFOUT:
        a("s_cmp_eq_u32 s34, 0\ns_cbranch_scc0 po_skip")
        a("s_cmp_eq_u32 s37, 0\ns_cbranch_scc0 po_l1")
        for i in range(1, Prof.n):
            a(f"s_sub_u32 s40, s{70+i}, s{70+i-1}\nv_writelane_b32 v0, s40, {i}")
        a("s_branch po_skip")
        a.label("po_l1")
        for i in range(1, Prof.n):
            a(f"s_sub_u32 s40, s{70+i}, s{70+i-1}\nv_writelane_b32 v0, s40, {24+i}")
        a.label("po_skip")
    a(f"s_add_u32 s37, s37, 1\ns_cmp_lt_u32 s37, 2\ns_cbranch_scc1 layer_top")
    if PROFOUT:
        a("s_waitcnt vmcnt(0)\ns_barrier\ns_cmp_eq_u32 s34, 0\ns_cbranch_scc0 po_end")
        srd(a, 16, 28, 0, XBYTES)
        a("s_memrealtime s[98:99]\ns_waitcnt lgkmcnt(0)\ns_sub_u32 s98, s98, s96\nv_writelane_b32 v0, s98, 47")
        a("v_cvt_f32_u32 v8, v0\nv_cvt_pk_bf16_f32 v8, v8, v8\nv_lshlrev_b32 v9, 1, v1")
        a(f"s_mul_i32 s40, s35, {64*1280}\ns_mul_i32 s41, s36, 160\ns_add_u32 s40, s40, s41")
        a("v_cmp_gt_u32 vcc, 48, v1\ns_and_saveexec_b64 s[42:43], vcc\nbuffer_store_short v8, v9, s[16:19], s40 offen\ns_mov_b64 exec, s[42:43]")
        a.label("po_end")
    a("s_waitcnt vmcnt(0)")
    a("s_endpgm")
    kernel_end(a, name)
    return a.out, descriptor(name, 256), (name, 256, 512, LDS_BYTES)

def build(path, kernels):
    hdr = []
    for k in kernels:
        name, grid, block, lds = k[2]
        hdr.append(f"; @launch kernel={name} grid=({grid},1,1) block=({block},1,1) lds={lds}")
    body = ['.amdgcn_target "amdgcn-amd-amdhsa--gfx950"', ".text"]
    descs = []
    nfix = 0
    for k in kernels:
        lines, n = fix_hazards(k[0])
        nfix += n
        body += lines
        descs.append(k[1])
    txt = "\n".join(hdr) + "\n" + "\n".join(body) + '\n.section .rodata,"a"\n' + "".join(".p2align 6\n" + d for d in descs)
    open(path, "w").write(txt)
    print("written", path, len(txt), "bytes; hazard nops at", nfix, "sites")

if __name__ == "__main__":
    out = [x for x in sys.argv[1:] if x.endswith(".s")]
    build(out[0] if out else "v10.s", [gen_prep(), gen_main()])
    json.dump(dict(WST=WST, CSQ=CSQ, BKV=BKV, CS1=CS1, KVB=KVB, KMAX=KMAX, OB=OB, X1=X1, X2=X2, HB=HB, TSB=TSB, XF=XF, KVF=KVF, TSN=TSN, ver=3, XF0=XF0), open("layout.json", "w"))
```

```python
import sys, math, json, struct
sys.path.insert(0, "gen")
from asmdsl import *

S, D, F, H, DH = 2048, 640, 1728, 32, 20
KB = 1024
PROFSEG = "profseg" in sys.argv
PROFOUT = "profout" in sys.argv
PROFILE = "prof" in sys.argv or "profld" in sys.argv or PROFSEG or PROFOUT
PROFLD = "profld" in sys.argv
off = 0
def alloc(n, align=4096):
    global off
    off = (off + align - 1) // align * align
    o = off; off += n; return o
SL = 770
RING = 112
SLP = 784
FQ, FO, F1, F2 = 0, 120, 220, 500
WST = alloc(8 * SL * KB + 16 * KB)
CSQ = alloc(8 * 96 * 4)
BKV = alloc(3 * 16 * 4)
CS1 = alloc(8 * 224 * 4)
FLAGS = alloc(16384 + 4 * 16384 + 4096, 4096)
KVF = FLAGS
XF = FLAGS + 16384
XID = FLAGS + 16384 + 4 * 16384
FLAG_BYTES = 16384 + 4 * 16384 + 4096
KVB = [alloc(64 * 4096), alloc(64 * 4096)]
KMAX = [alloc(1024), alloc(1024)]
OB = [alloc(S * D * 2), alloc(S * D * 2)]
X1 = [alloc(S * D * 2), alloc(S * D * 2)]
HB = [alloc(S * F * 2), alloc(S * F * 2)]
X2 = alloc(S * D * 2)
XF0 = alloc(S * D * 2)
TSB = alloc(256 * 64 * 4)
WS_BYTES = 268435456
XBYTES = S * D * 2
LOG2E = 1.4426950408889634
def f2u(x): return struct.unpack("<I", struct.pack("<f", x))[0]
KVL = RING * KB
LDS_BYTES = 160 * KB
SPIN_MAX = 200000

def srd(a, s, ptr_pair, off, nbytes):
    if off:
        a(f"s_add_u32 s{s}, s{ptr_pair}, {off}")
        a(f"s_addc_u32 s{s+1}, s{ptr_pair+1}, 0")
    else:
        a(f"s_mov_b32 s{s}, s{ptr_pair}")
        a(f"s_mov_b32 s{s+1}, s{ptr_pair+1}")
    a(f"s_mov_b32 s{s+2}, {nbytes}")
    a(f"s_mov_b32 s{s+3}, 0x20000")
def srd_dyn(a, s, ptr_pair, off_sgpr, nbytes):
    a(f"s_add_u32 s{s}, s{ptr_pair}, s{off_sgpr}")
    a(f"s_addc_u32 s{s+1}, s{ptr_pair+1}, 0")
    a(f"s_mov_b32 s{s+2}, {nbytes}")
    a(f"s_mov_b32 s{s+3}, 0x20000")

def kernel_begin(a, name, nwg):
    a(f".globl {name}")
    a(".p2align 8")
    a(f".type {name},@function")
    a.out.append(f"{name}:")
    a(f"s_cmp_ge_u32 s2, {nwg}")
    a(f"s_cbranch_scc1 {name}_exit")
def kernel_end(a, name):
    a.label(f"{name}_exit")
    a("s_endpgm")
def descriptor(name, vgpr, sgpr=102):
    vg = (vgpr + 7) // 8 * 8
    return f""".amdhsa_kernel {name}
  .amdhsa_next_free_vgpr {vg}
  .amdhsa_next_free_sgpr {sgpr}
  .amdhsa_accum_offset {min(vg,256)}
  .amdhsa_group_segment_fixed_size 0
  .amdhsa_kernarg_size 104
  .amdhsa_user_sgpr_count 2
  .amdhsa_user_sgpr_kernarg_segment_ptr 1
  .amdhsa_system_sgpr_workgroup_id_x 1
  .amdhsa_float_denorm_mode_32 3
  .amdhsa_float_denorm_mode_16_64 3
.end_amdhsa_kernel
"""

PSC = " sc1" if "psc1" in sys.argv else (" nt" if "pnt" in sys.argv else (" sc0 sc1" if "psc01" in sys.argv else ""))
def gen_prep():
    a = Asm(); name = "prep_kernel"
    kernel_begin(a, name, 256)
    a("s_load_dwordx2 s[52:53], s[0:1], 0")
    a("s_load_dwordx2 s[4:5], s[0:1], 96")
    a("s_load_dwordx2 s[6:7], s[0:1], 8")
    a("s_load_dwordx4 s[24:27], s[0:1], 16")
    a("s_load_dwordx2 s[28:29], s[0:1], 32")
    a("s_load_dwordx2 s[30:31], s[0:1], 48")
    a("s_load_dwordx2 s[32:33], s[0:1], 64")
    a("v_and_b32 v1, 63, v0")
    a("v_lshrrev_b32 v2, 6, v0")
    a("v_readfirstlane_b32 s34, v2")
    a("v_and_b32 v3, 15, v1")
    a("v_lshrrev_b32 v4, 4, v1")
    a("v_lshlrev_b32 v5, 4, v1")
    a("s_waitcnt lgkmcnt(0)")
    srd(a, 8, 4, 0, WS_BYTES)
    if "cpf2" in sys.argv:
        a("s_cmp_eq_u32 s34, 3\ns_cbranch_scc0 prep_cpf")
        a("s_getpc_b64 s[40:41]")
        a.label("prep_pc")
        a("s_add_u32 s40, s40, main_kernel-prep_pc\ns_addc_u32 s41, s41, 0")
        a("v_lshlrev_b32 v8, 6, v1")
        for i in range(8):
            a(f"global_load_dword v{110}, v8, s[40:41]")
            a("v_add_u32 v8, 4096, v8")
        a.label("prep_cpf")
    srd(a, 12, 52, 0, XBYTES)
    a("s_lshl_b32 s35, s2, 2\ns_add_u32 s35, s35, s34")
    a("v_mul_u32_u24 v7, 1280, v3\nv_lshl_add_u32 v7, v4, 4, v7")
    for q in range(3):
        a(f"s_add_u32 s36, s35, {q*1024}")
        a("s_mul_i32 s37, s36, 3277\ns_lshr_b32 s37, s37, 16")
        a("s_mul_i32 s38, s37, 20\ns_sub_u32 s38, s36, s38")
        a("s_mul_i32 s39, s37, 20480\ns_lshl_b32 s38, s38, 6\ns_add_u32 s39, s39, s38")
        a(f"buffer_load_dwordx4 v[{16+4*q}:{19+4*q}], v7, s[12:15], s39 offen")
        a(f"s_lshl_b32 s{54+q}, s36, 10\ns_add_u32 s{54+q}, s{54+q}, {XF0}")
    a("s_mov_b32 s57, s35")
    xs_n = [0]
    def xstores():
        L = f"prep_xd{xs_n[0]}"; xs_n[0] += 1
        for q in range(3):
            if q == 2: a(f"s_cmp_lt_u32 s57, 512\ns_cbranch_scc0 {L}")
            a(f"buffer_store_dwordx4 v[{16+4*q}:{19+4*q}], v5, s[8:11], s{54+q} offen" + PSC)
        a.label(L)
    a("s_cmp_ge_u32 s2, 252\ns_cbranch_scc0 prep_go")
    a("s_waitcnt vmcnt(0)")
    xstores()
    a("s_branch prep_done")
    a.label("prep_go")
    def gather(voff, srdn, rowbytes, soff_base_sgpr, nfr, ks_stride_bytes):
        for f in range(nfr):
            for jj in range(8):
                a(f"s_add_u32 s40, s{soff_base_sgpr}, {f*ks_stride_bytes + jj*rowbytes}")
                a(f"buffer_load_ushort v{64+8*f+jj}, v{voff}, s[{srdn}:{srdn+3}], s40 offen")
    def pack(nfr):
        a("s_waitcnt vmcnt(0)")
        xstores()
        for f in range(nfr):
            for q in range(4):
                a(f"v_lshl_or_b32 v{32+4*f+q}, v{64+8*f+2*q+1}, 16, v{64+8*f+2*q}")
    def colsum_and_store(dst_soff_sgpr, dst_ks_stride, cs_off_sgpr):
        a("v_mov_b32 v132, 0x3f803f80\nv_mov_b32 v133, 0x3f803f80\nv_mov_b32 v134, 0x3f803f80\nv_mov_b32 v135, 0x3f803f80")
        pack(5)
        for f in range(5):
            a(f"s_add_u32 s40, s{dst_soff_sgpr}, {f*dst_ks_stride}")
            a(f"buffer_store_dwordx4 v[{32+4*f}:{35+4*f}], v5, s[8:11], s40 offen" + PSC)
            a(f"v_mfma_f32_16x16x32_bf16 v[28:31], v[{32+4*f}:{35+4*f}], v[132:135], " + ("0" if f == 0 else "v[28:31]"))
        a("v_lshlrev_b32 v6, 4, v4")
        a("s_lshl_b32 s41, s34, 6")
        a("v_add_u32 v6, s41, v6")
        a("v_cmp_eq_u32 vcc, 0, v3")
        a("s_and_saveexec_b64 s[42:43], vcc")
        a("ds_write_b128 v6, v[28:31]")
        a("s_mov_b64 exec, s[42:43]")
        a("s_waitcnt lgkmcnt(0)")
        a("s_barrier")
        a("v_lshlrev_b32 v6, 2, v0")
        a("v_cmp_gt_u32 vcc, 16, v0")
        a("s_and_saveexec_b64 s[42:43], vcc")
        a(f"s_cbranch_execz {name}_exit")
        a("ds_read_b32 v7, v6\nds_read_b32 v8, v6 offset:64\nds_read_b32 v9, v6 offset:128\nds_read_b32 v10, v6 offset:192")
        a("s_waitcnt lgkmcnt(0)")
        a("v_add_f32 v7, v7, v8\nv_add_f32 v9, v9, v10\nv_add_f32 v7, v7, v9")
        a(f"buffer_store_dword v7, v6, s[8:11], s{cs_off_sgpr} offen")
        a("s_waitcnt vmcnt(0)")
        a("s_endpgm")
    a("s_cmp_lt_u32 s2, 40\ns_cbranch_scc1 prep_wq")
    a("s_cmp_lt_u32 s2, 43\ns_cbranch_scc1 prep_kv")
    a("s_cmp_lt_u32 s2, 151\ns_cbranch_scc1 prep_w1")
    a("s_branch prep_plain")
    a.label("prep_wq")
    srd(a, 12, 6, 0, D * D * 2)
    a("s_mul_i32 s35, s2, 52429\ns_lshr_b32 s35, s35, 18")
    a("s_mul_i32 s36, s35, 5\ns_sub_u32 s36, s2, s36")
    a("v_mul_u32_u24 v7, 10240, v4")
    a("s_lshl_b32 s37, s2, 5")
    a("v_lshl_add_u32 v7, v3, 1, v7\nv_add_u32 v7, s37, v7")
    a(f"s_mul_i32 s38, s34, {5*32*1280}")
    gather(7, 12, 1280, 38, 5, 32 * 1280)
    a(f"s_mul_i32 s44, s35, {SL*KB}\ns_mul_i32 s45, s34, {25*KB}\ns_add_u32 s44, s44, s45\ns_lshl_b32 s45, s36, 10\ns_add_u32 s44, s44, s45\ns_add_u32 s44, s44, {WST + (FQ+20)*KB}")
    a(f"s_mul_i32 s46, s35, 384\ns_lshl_b32 s45, s36, 6\ns_add_u32 s46, s46, s45\ns_add_u32 s46, s46, {CSQ}")
    colsum_and_store(44, 5 * KB, 46)
    a.label("prep_kv")
    srd(a, 12, 24, 0, D * DH * 2)
    srd(a, 16, 26, 0, D * DH * 2)
    a("s_sub_u32 s35, s2, 40")
    for r in range(64, 104): a(f"v_mov_b32 v{r}, 0")
    BIG = 0x40000000
    a("v_and_b32 v8, 3, v3\nv_lshrrev_b32 v9, 2, v3")
    a("s_cmp_eq_u32 s35, 0\ns_cbranch_scc1 prep_kv0")
    a("s_cmp_eq_u32 s35, 1\ns_cbranch_scc1 prep_kv1")
    a(f"v_mov_b32 v10, {BIG}\nv_mov_b32 v11, {BIG}")
    a("v_lshlrev_b32 v12, 1, v3\nv_add_u32 v12, 32, v12")
    a("v_cmp_gt_u32 vcc, 4, v3\nv_cndmask_b32 v10, v10, v12, vcc")
    a("v_lshlrev_b32 v12, 1, v8")
    a("v_add_u32 v13, 16, v12\nv_add_u32 v14, 36, v12")
    a("v_cmp_eq_u32 vcc, 1, v9\nv_cndmask_b32 v11, v11, v13, vcc")
    a("v_cmp_eq_u32 vcc, 2, v9\nv_cndmask_b32 v11, v11, v14, vcc")
    a(f"v_mov_b32 v12, {BIG}\nv_cmp_lt_u32 vcc, 1, v8\nv_cndmask_b32 v11, v11, v12, vcc")
    a("s_branch prep_kvgo")
    a.label("prep_kv0")
    a(f"v_lshlrev_b32 v10, 1, v3\nv_mov_b32 v11, {BIG}")
    a("s_branch prep_kvgo")
    a.label("prep_kv1")
    a(f"v_mov_b32 v10, {BIG}")
    a("v_mov_b32 v11, 0\nv_cmp_eq_u32 vcc, 1, v9\nv_cndmask_b32 v11, v11, 10, vcc")
    a("v_cmp_eq_u32 vcc, 2, v9\nv_cndmask_b32 v11, v11, 4, vcc")
    a("v_cmp_eq_u32 vcc, 3, v9\nv_cndmask_b32 v11, v11, 14, vcc")
    a("v_add_u32 v11, v11, v8\nv_lshlrev_b32 v11, 1, v11")
    a.label("prep_kvgo")
    a("v_mul_u32_u24 v12, 320, v4")
    a("v_add_u32 v10, v10, v12\nv_add_u32 v11, v11, v12")
    a(f"s_mul_i32 s38, s34, {5*32*40}")
    a(f"v_cmp_gt_u32 vcc, {BIG}, v10\ns_and_saveexec_b64 s[48:49], vcc")
    a("s_cbranch_execz prep_kv_skipk")
    gather(10, 12, 40, 38, 5, 32 * 40)
    a.label("prep_kv_skipk")
    a("s_mov_b64 exec, s[48:49]")
    a(f"v_cmp_gt_u32 vcc, {BIG}, v11\ns_and_saveexec_b64 s[48:49], vcc")
    a("s_cbranch_execz prep_kv_skipv")
    gather(11, 16, 40, 38, 5, 32 * 40)
    a.label("prep_kv_skipv")
    a("s_mov_b64 exec, s[48:49]")
    a(f"s_mul_i32 s44, s35, {SL*KB}\ns_mul_i32 s45, s34, {5*KB}\ns_add_u32 s44, s44, s45\ns_add_u32 s44, s44, {WST + FQ*KB}")
    a(f"s_mul_i32 s46, s35, 384\ns_add_u32 s46, s46, {CSQ + 5*64}")
    colsum_and_store(44, 1 * KB, 46)
    a.label("prep_w1")
    srd(a, 12, 30, 0, D * F * 2)
    a("s_sub_u32 s35, s2, 43")
    a("s_mul_i32 s36, s35, 2428\ns_lshr_b32 s36, s36, 16")
    a("s_mul_i32 s37, s36, 27\ns_sub_u32 s37, s35, s37")
    a("s_lshl_b32 s36, s36, 1")
    a("s_cmp_ge_u32 s37, 14\ns_cbranch_scc0 prep_w1a")
    a("s_add_u32 s36, s36, 1\ns_sub_u32 s37, s37, 14")
    a.label("prep_w1a")
    a("v_mul_u32_u24 v7, 27648, v4")
    a("s_lshl_b32 s39, s35, 5")
    a("v_lshl_add_u32 v7, v3, 1, v7\nv_add_u32 v7, s39, v7")
    a(f"s_mul_i32 s38, s34, {5*32*3456}")
    gather(7, 12, 3456, 38, 5, 32 * 3456)
    a(f"s_mul_i32 s44, s36, {SL*KB}\ns_mul_i32 s45, s34, {5*14*KB}\ns_add_u32 s44, s44, s45\ns_lshl_b32 s45, s37, 10\ns_add_u32 s44, s44, s45\ns_add_u32 s44, s44, {WST + F1*KB}")
    a(f"s_mul_i32 s46, s36, 896\ns_lshl_b32 s45, s37, 6\ns_add_u32 s46, s46, s45\ns_add_u32 s46, s46, {CS1}")
    colsum_and_store(44, 14 * KB, 46)
    a.label("prep_plain")
    a("s_sub_u32 s35, s2, 151\ns_lshl_b32 s35, s35, 2\ns_add_u32 s35, s35, s34")
    a("s_cmp_lt_u32 s35, 120\ns_cbranch_scc1 prep_wo")
    a("s_sub_u32 s35, s35, 120")
    a("s_cmp_ge_u32 s35, 280\ns_cbranch_scc1 prep_bias")
    srd(a, 12, 32, 0, F * D * 2)
    a(f"s_mov_b32 s50, {WST + F2*KB}\ns_mov_b32 s51, 6\ns_mov_b32 s52, 2")
    a("s_branch prep_pl2")
    a.label("prep_wo")
    srd(a, 12, 28, 0, D * D * 2)
    a(f"s_mov_b32 s50, {WST + FO*KB}\ns_mov_b32 s51, 2\ns_mov_b32 s52, 0")
    a.label("prep_pl2")
    a("s_mul_i32 s36, s35, 1639\ns_lshr_b32 s36, s36, 16")
    a("s_mul_i32 s37, s36, 40\ns_sub_u32 s37, s35, s37")
    a("s_mul_i32 s38, s37, 52429\ns_lshr_b32 s38, s38, 18")
    a("s_mul_i32 s39, s38, 5\ns_sub_u32 s39, s37, s39")
    a("v_mul_u32_u24 v7, 10240, v4")
    a("s_lshl_b32 s45, s37, 5")
    a("v_lshl_add_u32 v7, v3, 1, v7\nv_add_u32 v7, s45, v7")
    a(f"s_mul_i32 s44, s38, {SL*KB}\ns_add_u32 s44, s44, s50\ns_mul_i32 s45, s36, {40*KB}\ns_add_u32 s44, s44, s45\ns_lshl_b32 s45, s39, 10\ns_add_u32 s44, s44, s45")
    a(f"s_mul_i32 s38, s36, {8*32*1280}")
    gather(7, 12, 1280, 38, 8, 32 * 1280)
    pack(8)
    for f in range(8):
        if f >= 4:
            a(f"s_cmp_eq_u32 s36, s51\ns_cbranch_scc0 prep_st{f}")
            a(f"s_cmp_gt_u32 s52, {f-4}\ns_cbranch_scc0 prep_done")
            a.label(f"prep_st{f}")
        a(f"s_add_u32 s40, s44, {f*5*KB}")
        a(f"buffer_store_dwordx4 v[{32+4*f}:{35+4*f}], v5, s[8:11], s40 offen" + PSC)
    a.label("prep_done")
    a("s_waitcnt vmcnt(0)")
    a("s_endpgm")
    a.label("prep_bias")
    a("s_waitcnt vmcnt(0)")
    xstores()
    a("v_mov_b32 v8, 0\nv_mov_b32 v9, 0\nv_mov_b32 v10, 0\nv_mov_b32 v11, 0")
    a("v_lshlrev_b32 v6, 4, v0")
    nz = FLAG_BYTES // 4096
    for r in range(nz):
        a(f"s_mov_b32 s40, {FLAGS + r*4096}\nbuffer_store_dwordx4 v[8:11], v6, s[8:11], s40 offen")
    a("s_cmp_eq_u32 s35, 280\ns_cbranch_scc0 prep_done2")
    a("v_mov_b32 v7, 0")
    for idx in (32 + 6, 32 + 10, 32 + 12, 32 + 13):
        a(f"v_cmp_eq_u32 vcc, {idx}, v1\nv_cndmask_b32 v7, v7, 1.0, vcc")
    a("v_lshlrev_b32 v6, 2, v1\nv_cmp_gt_u32 vcc, 48, v1\ns_and_saveexec_b64 s[42:43], vcc")
    a(f"s_mov_b32 s40, {BKV}\nbuffer_store_dword v7, v6, s[8:11], s40 offen")
    a.label("prep_done2")
    a("s_waitcnt vmcnt(0)")
    a("s_endpgm")
    kernel_end(a, name)
    return a.out, descriptor(name, 144), (name, 256, 256, 1024)

VB, VA, VST, VSO, VONE, RES = 64, 144, 36, 44, 52, 246

class Prof:
    n = 0
LDTS = [False]
SEGTS = [False]
def ts(a, label, loader=False, seg=False):
    if not PROFILE: return
    if PROFLD != loader: return
    if PROFSEG != seg: return
    if Prof.n >= 26: return
    i = Prof.n; Prof.n += 1
    assert i < 26, i
    a(f"s_memtime s[98:99]\ns_waitcnt lgkmcnt(0)\ns_mov_b32 s{70+i}, s98")
    TSN.append(label)
TSN = []

def unpack2(a, dlo, dhi, src):
    a(f"v_lshlrev_b32 v{dlo}, 16, v{src}")
    a(f"v_and_b32 v{dhi}, 0xffff0000, v{src}")

uid = [0]
def newlab(p):
    uid[0] += 1
    return f"{p}_{uid[0]}"

def await_flags(a, mask, off_sgpr, vtmp=56):
    L, Dn = newlab("poll"), newlab("polld")
    a(f"v_lshlrev_b32 v{vtmp}, 2, v1")
    a(f"s_mov_b64 s[42:43], exec\ns_mov_b64 exec, {mask:#x}\ns_mov_b32 s44, 0")
    a.label(L)
    a(f"buffer_load_dword v{vtmp+1}, v{vtmp}, s[8:11], s{off_sgpr} offen sc1")
    a("s_add_u32 s44, s44, 1")
    a("s_waitcnt vmcnt(0)")
    a(f"v_cmp_eq_u32 vcc, 0, v{vtmp+1}")
    a(f"s_cmp_eq_u64 vcc, 0\ns_cbranch_scc1 {Dn}")
    a(f"s_cmp_gt_u32 s44, {SPIN_MAX}\ns_cbranch_scc1 {Dn}")
    a(("" if "nosleep" in sys.argv else "s_sleep 1\n") + f"s_branch {L}")
    a.label(Dn)
    a("s_mov_b64 exec, s[42:43]")

def set_flag(a, off_sgpr, vtmp=56, second=None):
    L1, L2 = newlab("sf"), newlab("sf")
    a("s_waitcnt vmcnt(0)")
    a(f"v_mov_b32 v{vtmp}, 0\nv_mov_b32 v{vtmp+1}, 1")
    a("s_mov_b64 s[42:43], exec\ns_mov_b64 exec, 1")
    a(f"s_cmp_eq_u32 s59, 1\ns_cbranch_scc1 {L1}")
    a(f"buffer_store_dword v{vtmp+1}, v{vtmp}, s[8:11], s{off_sgpr} offen sc1")
    if second is not None: a(f"buffer_store_dword v{vtmp+1}, v{vtmp}, s[8:11], s{second} offen sc1")
    a(f"s_branch {L2}")
    a.label(L1)
    a(f"buffer_store_dword v{vtmp+1}, v{vtmp}, s[8:11], s{off_sgpr} offen")
    if second is not None: a(f"buffer_store_dword v{vtmp+1}, v{vtmp}, s[8:11], s{second} offen")
    a.label(L2)
    a("s_mov_b64 exec, s[42:43]")

def xstore(a, text):
    L1, L2 = newlab("xs"), newlab("xs")
    a(f"s_cmp_eq_u32 s59, 1\ns_cbranch_scc1 {L1}")
    a(text.replace("@SC", "sc1"))
    a(f"s_branch {L2}")
    a.label(L1)
    a(text.replace("@SC", ""))
    a.label(L2)

def xf_off(a, dst, kind, extra_sgpr=None, extra_imm=0):
    a(f"s_lshl_b32 s{dst}, s37, 13\ns_lshl_b32 s45, s35, 8\ns_add_u32 s{dst}, s{dst}, s45")
    a(f"s_and_b32 s45, s34, 3\ns_lshl_b32 s45, s45, 6\ns_add_u32 s{dst}, s{dst}, s45")
    a(f"s_add_u32 s{dst}, s{dst}, {XF + kind*16384 + extra_imm}")
    if extra_sgpr is not None: a(f"s_add_u32 s{dst}, s{dst}, s{extra_sgpr}")

SIDES = [(224, 272), (512, 560)] if "noside" not in sys.argv else []
if "side32" in sys.argv: SIDES = [(224, 256), (512, 544)]
def is_side(f): return any(a_ <= f < b_ for a_, b_ in SIDES)
def rho(f):
    return f - sum(max(0, min(f, b_) - a_) for a_, b_ in SIDES)
def rho_inv(r):
    f = r
    for a_, b_ in SIDES:
        if f >= a_: f += b_ - a_
    return f
def lds_of(f):
    for a_, b_ in SIDES:
        if a_ <= f < b_: return KVL + (f - a_) * KB
    return (rho(f) % RING) * KB
SLR = rho(SL)
class Ring:
    def __init__(self):
        self.I = RING
        self.q = [f for f in range(0, RING, 16) for _ in range(4)]
        self.side = set()
    def drained(self): self.q = []
def loader_issue(a, frm, upto, ring=None):
    assert frm % 16 == 0 and upto % 16 == 0
    skip = None
    for r in range(frm, upto, 16):
        if r == SLP or (r > SLP and r == frm):
            skip = newlab("ldsk")
            a(f"s_cmp_eq_u32 s37, 1\ns_cbranch_scc1 {skip}")
        if SLR <= r < SLP: continue
        f = rho_inv(r % SLP)
        a(f"s_add_u32 m0, s69, {(r % RING) * KB}")
        a(f"s_add_u32 s44, s60, {f * KB}")
        for q in range(4):
            a(f"buffer_load_dwordx4 v5, s[8:11], s44 offen offset:{q*1024} lds")
            if ring is not None and r < SLP: ring.q.append(f)
    if skip: a.label(skip)

def side_issue(a, ring, k):
    a_, b_ = SIDES[k]
    for f in range(a_, b_, 16):
        a(f"s_add_u32 m0, s69, {KVL + (f - a_) * KB}")
        a(f"s_add_u32 s44, s60, {f * KB}")
        for q in range(4):
            a(f"buffer_load_dwordx4 v5, s[8:11], s44 offen offset:{q*1024} lds")
            ring.q.append(f)
    ring.side.add(k)

def ring_refill(a, ring, consumed, cap=None):
    c = SLP if consumed >= SL else rho(consumed)
    upto = (c + RING) // 16 * 16
    if cap is not None: upto = min(upto, (rho(cap) + 15) // 16 * 16)
    if upto > ring.I:
        loader_issue(a, ring.I, upto, ring)
        ring.I = upto

def loader_bp(a, ring, need, consumed, cap=None, refill=True):
    if need is not None:
        assert rho(need) <= ring.I, (need, ring.I)
        for k, (a_, b_) in enumerate(SIDES):
            if need > a_ and consumed < b_: assert k in ring.side, (need, k)
        last = -1
        for i, f in enumerate(ring.q):
            if f is not None and f < need: last = i
        if last >= 0:
            n = len(ring.q) - 1 - last
            a(f"s_waitcnt vmcnt({min(n,63)})")
            ring.q = ring.q[last + 1:]
    a("s_barrier")
    if refill: ring_refill(a, ring, consumed, cap)

def stats_finalize(a, accS, accQ, vRho, vMu, tmp, double_ln):
    t0, t1, t2, t3 = tmp, tmp + 1, tmp + 2, tmp + 3
    a(f"v_and_b32 v{t0}, 3, v1")
    a(f"v_mov_b32 v{t1}, v{accQ}")
    for r in (1, 2, 3):
        a(f"v_cmp_eq_u32 vcc, {r}, v{t0}")
        a(f"v_cndmask_b32 v{t1}, v{t1}, v{accQ+r}, vcc")
    a(f"v_lshrrev_b32 v{t2}, 2, v3\nv_lshlrev_b32 v{t2}, 4, v{t2}\nv_add_u32 v{t2}, v{t2}, v3\nv_lshlrev_b32 v{t2}, 2, v{t2}")
    a(f"ds_bpermute_b32 v{t1}, v{t2}, v{t1}")
    a(f"v_mul_f32 v{t0}, {f2u(1.0/D):#x}, v{accS}")
    a("s_waitcnt lgkmcnt(0)")
    a(f"v_mul_f32 v{t1}, {f2u(1.0/D):#x}, v{t1}")
    a(f"v_fma_f32 v{t1}, -v{t0}, v{t0}, v{t1}")
    a(f"v_max_f32 v{t1}, 0, v{t1}")
    a(f"v_add_f32 v{t2}, {f2u(1e-5):#x}, v{t1}")
    a(f"v_rsq_f32 v{t2}, v{t2}")
    if double_ln:
        a(f"v_mul_f32 v{t3}, v{t2}, v{t2}")
        a(f"v_mul_f32 v{t3}, v{t3}, v{t1}")
        a(f"v_add_f32 v{t3}, {f2u(1e-5):#x}, v{t3}")
        a(f"v_rsq_f32 v{t3}, v{t3}")
        a(f"v_mul_f32 v{t2}, v{t2}, v{t3}")
    a(f"v_mov_b32 v{vRho}, v{t2}")
    a(f"v_mul_f32 v{vMu}, v{t0}, v{t2}")

def set_bases(a, delta):
    a(f"s_and_b32 s45, s34, 1\ns_mul_i32 s44, s45, {delta*KB}\nv_add_u32 v6, s44, v5\nv_add_u32 v7, 0x10000, v6\nv_add_u32 v59, {KVL}, v6")
    a(f"s_xor_b32 s45, s45, 1\ns_mul_i32 s44, s45, {(RING-delta)*KB}\nv_add_u32 v2, s44, v5")
def rdA(a, f0, delta, reg):
    a0, a1 = lds_of(f0), lds_of(f0 + delta)
    if not is_side(f0) and not is_side(f0 + delta):
        if a1 - a0 == delta * KB:
            base = 6 if a0 < 65536 else 7
            return a.lg(f"ds_read_b128 v[{reg}:{reg+3}], v{base} offset:{a0 % 65536}")
        if a1 - a0 == (delta - RING) * KB:
            return a.lg(f"ds_read_b128 v[{reg}:{reg+3}], v2 offset:{a0 - (RING - delta) * KB}")
    if is_side(f0) and is_side(f0 + delta) and a1 - a0 == delta * KB:
        return a.lg(f"ds_read_b128 v[{reg}:{reg+3}], v59 offset:{a0 - KVL}")
    a(f"s_mov_b32 s44, {a1}\ns_bitcmp1_b32 s34, 0\ns_cselect_b32 s45, s44, {a0}\nv_add_u32 v58, s45, v5")
    return a.lg(f"ds_read_b128 v[{reg}:{reg+3}], v58")

def make_units(nA, segs, G):
    return [(i, t0, min(nA, t0 + G), si) for si, (i0, i1) in enumerate(segs) for i in range(i0, i1) for t0 in range(0, nA, G)]

def kloop2(a, fbase, span, delta, nA, segs, breg, acc0, acc1, stats, G, before=None, after=None, hook=None, D=1):
    units = make_units(nA, segs, G)
    NB = D + 1
    def rd(n, k):
        i, t0, t1, si = units[n]
        return rdA(a, fbase + i * span + t0 + k, delta, VA + ((n % NB) * G + k) * 4)
    def cnt(n): return units[n][2] - units[n][1]
    nbar = [0]
    def barrier():
        if hook: hook(nbar[0], False)
        a("s_barrier")
        if hook: hook(nbar[0], True)
        nbar[0] += 1
    barrier()
    seen = 0
    pend = {}
    for n in range(min(D, len(units))):
        if units[n][3] > seen: barrier(); seen = units[n][3]
        pend[n] = [rd(n, k) for k in range(cnt(n))]
    for n, u in enumerate(units):
        i, t0, t1, si = u
        nx = n + D if n + D < len(units) else None
        if nx is not None and units[nx][3] > seen:
            barrier(); seen = units[nx][3]
        if t0 == 0 and before: before(i)
        b0, b1 = breg(i)
        def m(d, A, B):
            c = "0" if i == 0 else f"v[{d}:{d+3}]"
            a(f"v_mfma_f32_16x16x32_bf16 v[{d}:{d+3}], v[{A}:{A+3}], v[{B}:{B+3}], {c}")
        nn = cnt(nx) if nx is not None else 0
        nxt = []
        for t in range(t0, t1):
            ra = VA + ((n % NB) * G + t - t0) * 4
            a.wait_lg(pend[n][t - t0])
            m(acc0 + 4 * t, ra, b0)
            if len(nxt) < nn: nxt.append(rd(nx, len(nxt)))
            m(acc1 + 4 * t, ra, b1)
            if len(nxt) < nn and (t - t0) % 2 == 0 and nn > (t1 - t0): nxt.append(rd(nx, len(nxt)))
        while len(nxt) < nn: nxt.append(rd(nx, len(nxt)))
        if stats and t1 == nA:
            m(VST, VONE, b0); m(VST + 4, b0, b0)
            if stats == 2: m(VSO, VONE, b1); m(VSO + 4, b1, b1)
        if nx is not None: pend[nx] = nxt
        if t1 == nA and after: after(i)

def loader_kloop2(a, ring, fbase, span, nA, segs, G, D=1, docap=False):
    units = make_units(nA, segs, G)
    cap = fbase + segs[-1][1] * span if docap else None
    loader_bp(a, ring, fbase + segs[0][1] * span, fbase, cap)
    seen = 0
    for n in range(min(D, len(units))):
        if units[n][3] > seen:
            seen = units[n][3]; loader_bp(a, ring, fbase + segs[seen][1] * span, fbase, cap)
    for n, u in enumerate(units):
        nx = n + D if n + D < len(units) else None
        if nx is not None and units[nx][3] > seen:
            seen = units[nx][3]
            loader_bp(a, ring, fbase + segs[seen][1] * span, fbase + u[0] * span, cap)

def store_tiles(a, srcs, ntiles, vaddr16, vaddr8, srd_, soff, imm_stride, sc, tmp=56):
    st = []
    i = 0
    while i < ntiles:
        if i + 1 < ntiles:
            t = tmp + 4 * ((i // 2) % 2)
            a(f"v_mov_b32 v{t}, v{srcs[i]}\nv_mov_b32 v{t+1}, v{srcs[i]+1}\nv_mov_b32 v{t+2}, v{srcs[i+1]}\nv_mov_b32 v{t+3}, v{srcs[i+1]+1}")
            a(f"v_permlane16_swap_b32 v{t}, v{t+2}\nv_permlane16_swap_b32 v{t+1}, v{t+3}")
            st.append(f"buffer_store_dwordx4 v[{t}:{t+3}], v{vaddr16}, s[{srd_}:{srd_+3}], {soff} offen offset:{i*imm_stride} {sc}")
            i += 2
        else:
            st.append(f"buffer_store_dwordx2 v[{srcs[i]}:{srcs[i]+1}], v{vaddr8}, s[{srd_}:{srd_+3}], {soff} offen offset:{i*imm_stride} {sc}")
            i += 1
    if sc == "@SC": xstore(a, "\n".join(st))
    else: a("\n".join(st))

def frag_addr(a, v16, v8, Tsgpr, tmp):
    a(f"v_lshrrev_b32 v{v8}, 1, v4\nv_lshlrev_b32 v{v8}, 8, v{v8}\nv_lshl_add_u32 v{v8}, v3, 4, v{v8}")
    a(f"s_lshl_b32 s45, s{Tsgpr}, 9\nv_add_u32 v{v8}, s45, v{v8}")
    a(f"v_and_b32 v{tmp}, 1, v4\nv_lshl_add_u32 v{v16}, v{tmp}, 9, v{v8}\nv_lshl_add_u32 v{v8}, v{tmp}, 3, v{v8}")

def code_prefetch(a, first, last, wave, nkb=32):
    L = newlab("cpf")
    a(f"s_cmp_eq_u32 s34, {wave}\ns_cbranch_scc0 {L}")
    a(f"s_getpc_b64 s[40:41]")
    here = newlab("pc"); a.label(here)
    a(f"s_sub_u32 s40, s40, {here}-{first}\ns_subb_u32 s41, s41, 0")
    a("v_lshlrev_b32 v8, 6, v1")
    for i in range(nkb // 4):
        a(f"global_load_dword v{10+i}, v8, s[40:41]")
        a("v_add_u32 v8, 4096, v8")
    a.label(L)

def gen_main():
    a = Asm(); name = "main_kernel"
    kernel_begin(a, name, 256)
    a("s_load_dwordx2 s[4:5], s[0:1], 96")
    a("s_load_dwordx2 s[6:7], s[0:1], 0")
    a("s_load_dwordx2 s[24:25], s[0:1], 56")
    a("s_load_dwordx4 s[28:31], s[0:1], 72")
    a("v_and_b32 v1, 63, v0")
    a("v_lshrrev_b32 v2, 6, v0")
    a("v_readfirstlane_b32 s34, v2")
    a("v_and_b32 v3, 15, v1\nv_lshrrev_b32 v4, 4, v1\nv_lshlrev_b32 v5, 4, v1")
    a("s_and_b32 s35, s2, 31\ns_lshr_b32 s36, s2, 5\ns_mov_b32 s37, 0")
    a("s_waitcnt lgkmcnt(0)")
    a("s_mov_b32 s26, s28\ns_mov_b32 s27, s29\ns_mov_b32 s28, s30\ns_mov_b32 s29, s31")
    srd(a, 8, 4, 0, WS_BYTES)
    a("s_lshl_b32 s67, s35, 2\ns_and_b32 s38, s34, 3\ns_add_u32 s67, s67, s38\ns_lshl_b32 s66, s67, 4\ns_xor_b32 s65, s67, 1\ns_mul_i32 s68, s36, 5")
    a(f"s_lshl_b32 s69, s38, 12\ns_mul_i32 s60, s36, {SL*KB}\ns_add_u32 s60, s60, s69\ns_add_u32 s60, s60, {WST}")
    a("s_mov_b32 s59, 0\ns_getreg_b32 s58, hwreg(HW_REG_XCC_ID, 0, 4)\ns_add_u32 s58, s58, 1")
    a("s_cmp_eq_u32 s34, 0\ns_cbranch_scc0 pro_x")
    a(f"s_lshl_b32 s40, s35, 5\ns_lshl_b32 s41, s36, 2\ns_add_u32 s40, s40, s41\ns_add_u32 s40, s40, {XID}\nv_mov_b32 v8, 0\nv_mov_b32 v9, s58")
    a("s_mov_b64 s[42:43], exec\ns_mov_b64 exec, 1\nbuffer_store_dword v9, v8, s[8:11], s40 offen sc1\ns_mov_b64 exec, s[42:43]")
    a.label("pro_x")
    ts(a, "start")
    if PROFOUT: a("s_memrealtime s[96:97]\ns_waitcnt lgkmcnt(0)")
    if "cpf" in sys.argv:
        code_prefetch(a, "main_kernel", "main_kernel_exit", 7)
    a("s_cmp_ge_u32 s34, 4\ns_cbranch_scc0 pro_c")
    loader_issue(a, 0, 32 if "lateW" in sys.argv else RING)
    a("s_branch pro_d")
    a.label("pro_c")
    a("v_add_u32 v6, s66, v3")
    a("v_mul_u32_u24 v56, 1280, v6\nv_lshl_add_u32 v56, v4, 3, v56\ns_mul_i32 s40, s36, 160\nv_add_u32 v56, s40, v56")
    srd(a, 12, 6, 0, XBYTES)
    for i in range(5):
        a(f"buffer_load_dwordx2 v[{RES+2*i}:{RES+2*i+1}], v56, s[12:15], 0 offen offset:{i*32}")
    a.label("pro_d")
    a.label("layer_top")
    ring = Ring()
    ld = Asm()
    def tile_offs(base_imm, layer_stride, tile_bytes, ksplit):
        a(f"s_mul_i32 s40, s67, {tile_bytes}\ns_mul_i32 s41, s65, {tile_bytes}")
        if layer_stride:
            a(f"s_mul_i32 s45, s37, {layer_stride}\ns_add_u32 s45, s45, {base_imm}")
        else:
            a(f"s_mov_b32 s45, {base_imm}")
        if ksplit:
            a("s_and_b32 s44, s34, 1\ns_lshl_b32 s44, s44, 10\ns_add_u32 s45, s45, s44")
        a("s_add_u32 s40, s40, s45\ns_add_u32 s41, s41, s45")
    class BL:
        def __init__(self, stride, nslots, sc="sc1"): self.stride, self.n, self.tag, self.cur, self.sc = stride, nslots, {}, 0, sc
        def regs(self, i): r = VB + 8 * (i % self.n); return (r, r + 4)
        def load(self, i):
            o = i * self.stride
            if o - self.cur > 4095 - 1023 * 0 or o - self.cur >= 4096:
                d = (o - self.cur) // 4096 * 4096
                a(f"s_add_u32 s40, s40, {d}\ns_add_u32 s41, s41, {d}"); self.cur += d
            r0, r1 = self.regs(i)
            if "noB" in sys.argv and i >= 2:
                self.tag[i] = a.nvm; return
            a.vm(f"buffer_load_dwordx4 v[{r0}:{r0+3}], v5, s[8:11], s40 offen offset:{o - self.cur} {self.sc}")
            self.tag[i] = a.vm(f"buffer_load_dwordx4 v[{r1}:{r1+3}], v5, s[8:11], s41 offen offset:{o - self.cur} {self.sc}")
    def flag_line(dst, kind, tile_sgpr=None, pair=False, layer_delta=0):
        a(f"s_lshl_b32 s{dst}, s37, 13")
        if pair: a(f"s_and_b32 s45, s67, -2\ns_lshl_b32 s45, s45, 6")
        else: a(f"s_lshl_b32 s45, s{tile_sgpr}, 6")
        a(f"s_add_u32 s{dst}, s{dst}, s45\ns_add_u32 s{dst}, s{dst}, {XF + kind*16384 + layer_delta}")
    def reduce_pair(acc0, acc1, NT, stats, t0=56, cbar=False):
        a(f"s_and_b32 s45, s34, 3\ns_lshl_b32 s44, s45, 13\ns_add_u32 s44, s44, {KVL}\nv_add_u32 v{t0}, s44, v5")
        for t in range(NT): a(f"ds_write_b128 v{t0}, v[{acc1+4*t}:{acc1+4*t+3}] offset:{t*1024}")
        if stats:
            a(f"ds_write_b128 v{t0}, v[{VSO}:{VSO+3}] offset:{6*1024}\nds_write_b128 v{t0}, v[{VSO+4}:{VSO+7}] offset:{7*1024}")
        a(f"s_xor_b32 s45, s45, 1\ns_lshl_b32 s44, s45, 13\ns_add_u32 s44, s44, {KVL}\nv_add_u32 v{t0+1}, s44, v5")
        a("s_waitcnt lgkmcnt(0)\ns_barrier")
        for t in range(NT): a(f"ds_read_b128 v[{VA+4*t}:{VA+4*t+3}], v{t0+1} offset:{t*1024}")
        if stats:
            a(f"ds_read_b128 v[{VSO}:{VSO+3}], v{t0+1} offset:{6*1024}\nds_read_b128 v[{VSO+4}:{VSO+7}], v{t0+1} offset:{7*1024}")
        a("s_waitcnt lgkmcnt(0)")
        if cbar: a("s_barrier")
        for t in range(NT * 4): a(f"v_add_f32 v{acc0+t}, v{acc0+t}, v{VA+t}")
        if stats:
            for t in range(8): a(f"v_add_f32 v{VST+t}, v{VST+t}, v{VSO+t}")
    ones = lambda: a("v_mov_b32 v52, 0x3f803f80\nv_mov_b32 v53, 0x3f803f80\nv_mov_b32 v54, 0x3f803f80\nv_mov_b32 v55, 0x3f803f80")
    DEP = 2 if 'dep1' not in sys.argv else 1
    A0, A1 = 204, 224
    a("s_cmp_ge_u32 s34, 4\ns_cbranch_scc1 ld_qkv")
    a.nvm = 0; a.nlg = 0
    a(f"s_mul_i32 s45, s36, 384\ns_add_u32 s45, s45, {CSQ}\nv_lshlrev_b32 v58, 4, v4")
    for i in range(6): a(f"buffer_load_dwordx4 v[{8+4*i}:{8+4*i+3}], v58, s[8:11], s45 offen offset:{i*64}")
    a(f"s_min_u32 s46, s36, 2\ns_lshl_b32 s46, s46, 6\ns_add_u32 s46, s46, {BKV}")
    a(f"buffer_load_dwordx4 v[32:35], v58, s[8:11], s46 offen")
    ones(); set_bases(a, 1)
    a("s_cmp_eq_u32 s37, 0\ns_cbranch_scc1 qkv_l0")
    flag_line(46, 3, pair=True, layer_delta=-8192)
    await_flags(a, 0x00FF00FF, 46)
    a.label("qkv_l0")
    ts(a, "qkv_ready")
    tile_offs(XF0, X2 - XF0, 20480, True)
    bl = BL(2048, 10)
    for i in range(10): bl.load(i)
    kloop2(a, FQ, 2, 1, 1, [(0, 10)], bl.regs, A0, A1, 2, 1, before=lambda i: a.wait_vm(bl.tag[i]), D=DEP)
    ld.label("ld_qkv")
    if "lateW" in sys.argv:
        ld("s_cmp_eq_u32 s37, 0\ns_cbranch_scc0 ld_qkv1\ns_waitcnt vmcnt(0)\ns_barrier")
        loader_issue(ld, 32, RING)
        ld("s_branch ld_qkv2")
        ld.label("ld_qkv1")
    loader_kloop2(ld, ring, FQ, 2, 1, [(0, 10)], 1, D=DEP)
    if "lateW" in sys.argv: ld.label("ld_qkv2")
    ts(a, "qkv_p1")
    reduce_pair(A0, A1, 1, True)
    ld("s_barrier")
    stats_finalize(a, VST, VST + 4, 60, 61, 56, False)
    qs = DH ** -0.5 * LOG2E
    a(f"v_mul_f32 v62, {f2u(qs):#x}, v60\nv_mul_f32 v63, {f2u(qs):#x}, v61")
    a("s_cmp_lt_u32 s36, 3\ns_cbranch_scc0 qkv_nokv")
    i = 5
    for r in range(4):
        a(f"v_fma_f32 v{48+r}, -v61, v{8+4*i+r}, v{32+r}")
        a(f"v_fma_f32 v{48+r}, v60, v{A0+r}, v{48+r}")
    a("v_cvt_pk_bf16_f32 v52, v48, v49\nv_cvt_pk_bf16_f32 v53, v50, v51")
    a("s_and_b32 s38, s34, 1")
    a(f"s_and_b32 s41, s34, 3\ns_lshl_b32 s41, s41, 10\ns_add_u32 s41, s41, {KVL + 32*KB}")
    a(f"s_lshr_b32 s47, s67, 1\ns_lshl_b32 s47, s47, 12\ns_mul_i32 s48, s37, {KVB[1]-KVB[0]}\ns_add_u32 s47, s47, s48\ns_add_u32 s47, s47, {KVB[0]}")
    def vwrite(rowoff, hstride):
        a(f"v_bfe_u32 v54, v3, 2, 1\nv_mul_u32_u24 v54, {hstride}, v54")
        a("v_bfe_u32 v55, v3, 3, 1\nv_lshl_add_u32 v54, v55, 3, v54")
        a("v_and_b32 v55, 3, v3\nv_lshl_add_u32 v54, v55, 1, v54")
        a(f"v_add3_u32 v54, v54, v{rowoff}, s41")
        a("ds_write_b16 v54, v52\nds_write_b16_d16_hi v54, v52 offset:16\nds_write_b16 v54, v53 offset:32\nds_write_b16_d16_hi v54, v53 offset:48")
    a("s_cmp_eq_u32 s36, 0\ns_cbranch_scc1 qkv_kvA")
    a("s_cmp_eq_u32 s36, 1\ns_cbranch_scc1 qkv_kvB")
    a("v_lshlrev_b32 v47, 3, v3\nv_add_u32 v47, s41, v47\nv_add_u32 v54, 128, v47\nv_cmp_eq_u32 vcc, 3, v4\nv_cndmask_b32 v47, v47, v54, vcc")
    a("v_cmp_eq_u32 vcc, 0, v4\nv_cmp_eq_u32 s[48:49], 3, v4\ns_or_b64 vcc, vcc, s[48:49]")
    a("s_and_saveexec_b64 s[50:51], vcc")
    a("ds_write_b64 v47, v[52:53]")
    a("s_andn2_b64 exec, s[50:51], exec")
    a("v_lshlrev_b32 v47, 6, v4\nv_add_u32 v47, 192, v47")
    vwrite(47, 128)
    a("s_mov_b64 exec, s[50:51]")
    a("v_and_b32 v47, 7, v1\nv_lshlrev_b32 v47, 4, v47\nv_bfe_u32 v54, v1, 3, 2")
    a("s_lshl_b32 s49, s38, 7\ns_add_u32 s49, s49, 1024\ns_lshl_b32 s50, s38, 10\ns_add_u32 s50, s50, 2304")
    a("v_mov_b32 v55, s49\ns_add_u32 s51, s49, 256\nv_mov_b32 v50, s51\nv_cmp_eq_u32 vcc, 1, v54\nv_cndmask_b32 v55, v55, v50, vcc")
    a("v_mov_b32 v50, s50\nv_cmp_eq_u32 vcc, 2, v54\nv_cndmask_b32 v55, v55, v50, vcc")
    a("s_add_u32 s51, s50, 512\nv_mov_b32 v50, s51\nv_cmp_eq_u32 vcc, 3, v54\nv_cndmask_b32 v55, v55, v50, vcc")
    a("v_add_u32 v47, v47, v55")
    if "zrows" in sys.argv:
        a("v_bfe_u32 v54, v1, 3, 1\nv_lshlrev_b32 v54, 9, v54\nv_and_b32 v55, 7, v1\nv_lshl_add_u32 v54, v55, 4, v54\ns_add_u32 s51, s50, 128\nv_add_u32 v54, s51, v54")
        a("v_cmp_le_u32 vcc, 32, v1\nv_cndmask_b32 v47, v47, v54, vcc")
        a("s_mov_b32 s52, 1")
    a("s_branch qkv_kvout")
    a.label("qkv_kvB")
    a("v_lshlrev_b32 v47, 6, v4")
    vwrite(47, 256)
    a("v_lshlrev_b32 v47, 4, v3\nv_and_b32 v54, 1, v4\nv_lshl_add_u32 v47, v54, 9, v47\ns_lshl_b32 s49, s38, 10\ns_add_u32 s49, s49, 2048\nv_add_u32 v47, s49, v47")
    a("s_branch qkv_kvout")
    a.label("qkv_kvA")
    a("v_lshrrev_b32 v47, 1, v4\nv_lshlrev_b32 v47, 8, v47\nv_lshl_add_u32 v47, v3, 4, v47\nv_and_b32 v54, 1, v4\nv_lshl_add_u32 v47, v54, 3, v47\nv_add_u32 v47, s41, v47")
    a("ds_write_b64 v47, v[52:53]")
    a("s_lshl_b32 s49, s38, 8\nv_lshlrev_b32 v47, 4, v3\nv_and_b32 v54, 1, v4\nv_lshl_add_u32 v47, v54, 9, v47\nv_add_u32 v47, s49, v47")
    a.label("qkv_kvout")
    a("v_add_u32 v54, s41, v5")
    a("s_waitcnt lgkmcnt(0)")
    a("s_mov_b64 s[50:51], exec\ns_mov_b64 exec, 0xffffffff")
    a("ds_read_b128 v[48:51], v54\ns_waitcnt lgkmcnt(0)")
    a("buffer_store_dwordx4 v[48:51], v47, s[8:11], s47 offen sc1")
    if "zrows" in sys.argv:
        a("s_cmp_eq_u32 s36, 2\ns_cbranch_scc0 qkv_nz\ns_mov_b32 exec_lo, 0\ns_mov_b32 exec_hi, 0xffff")
        a("v_mov_b32 v48, 0\nv_mov_b32 v49, 0\nv_mov_b32 v50, 0\nv_mov_b32 v51, 0\nbuffer_store_dwordx4 v[48:51], v47, s[8:11], s47 offen sc1")
        a.label("qkv_nz")
    a("s_mov_b64 exec, s[50:51]")
    a.label("qkv_nokv")
    ts(a, "qkv_kv")
    set_bases(a, 5)
    segs = [(0, 2), (2, 4), (4, 6), (6, 8), (8, 10)]
    def kvhook(si, after):
        if si != (3 if DEP == 2 else 2): return
        if not after:
            a("s_waitcnt vmcnt(0)")
        else:
            Lx = newlab("kvpub")
            a(f"s_cmp_eq_u32 s34, 0\ns_cbranch_scc0 {Lx}\ns_cmp_lt_u32 s36, 3\ns_cbranch_scc0 {Lx}")
            a(f"s_lshl_b32 s46, s37, 13\ns_lshr_b32 s45, s35, 3\ns_lshl_b32 s45, s45, 11\ns_add_u32 s46, s46, s45\ns_add_u32 s46, s46, {KVF}\nv_lshlrev_b32 v56, 8, v1\nv_mov_b32 v57, 1")
            a("s_mov_b64 s[42:43], exec\ns_mov_b64 exec, 0xff")
            a("buffer_atomic_add v57, v56, s[8:11], s46 offen")
            a("s_mov_b64 exec, s[42:43]")
            a.label(Lx)
    kloop2(a, FQ + 20, 10, 5, 5, segs, bl.regs, A0, A1, 0, 5, hook=kvhook, D=DEP)
    loader_kloop2(ld, ring, FQ + 20, 10, 5, segs, 5, D=DEP)
    ts(a, "qkv_kloop")
    KV0 = 32
    def K1(b): return KV0 + 16 * b
    def K2(b): return KV0 + 16 * b + 4
    def V1(b): return KV0 + 16 * b + 8
    def ldK(b):
        a(f"buffer_load_dwordx4 v[{K1(b)}:{K1(b)+3}], v5, s[8:11], s47 offen sc1")
        a(f"buffer_load_dwordx2 v[{K2(b)}:{K2(b)+1}], v170, s[8:11], s47 offen offset:1024 sc1")
    def ldV(b, h):
        a(f"buffer_load_dwordx4 v[{V1(b)+4*h}:{V1(b)+4*h+3}], v5, s[8:11], s47 offen offset:{2048+1024*h} sc1")
    def kv_poll_issue():
        a(f"s_and_b32 s38, s34, 3\ns_lshl_b32 s46, s37, 13\ns_lshl_b32 s45, s38, 11\ns_add_u32 s46, s46, s45\ns_and_b32 s45, s2, 7\ns_lshl_b32 s45, s45, 8\ns_add_u32 s46, s46, s45\ns_add_u32 s46, s46, {KVF}\nv_mov_b32 v175, 0")
        a("buffer_load_dword v176, v175, s[8:11], s46 offen sc1")
    def kv_poll_wait():
        Lp, Ld = newlab("kvp"), newlab("kvpd")
        a("s_mov_b32 s48, 0\nv_mov_b32 v175, 0")
        a.label(Lp)
        a("s_add_u32 s48, s48, 1\ns_waitcnt vmcnt(0)")
        a("v_readfirstlane_b32 s45, v176")
        a(f"s_cmp_ge_u32 s45, 24\ns_cbranch_scc1 {Ld}")
        a(f"s_cmp_gt_u32 s48, {SPIN_MAX}\ns_cbranch_scc1 {Ld}")
        a("s_sleep 1\nbuffer_load_dword v176, v175, s[8:11], s46 offen sc1")
        a(f"s_branch {Lp}")
        a.label(Ld)
    def kv_prologue():
        a(f"s_and_b32 s38, s34, 3\ns_mul_i32 s47, s37, {KVB[1]-KVB[0]}\ns_add_u32 s47, s47, {KVB[0]}\ns_lshl_b32 s48, s38, 16\ns_add_u32 s47, s47, s48")
        ldK(0); ldV(0, 0); ldV(0, 1)
        a("s_add_u32 s47, s47, 4096")
        ldK(1)
    a("v_lshlrev_b32 v170, 3, v1")
    kv_poll_issue()
    reduce_pair(A0, A1, 5, False, t0=194)
    ld("s_barrier")
    kv_poll_wait()
    kv_prologue()
    a("s_and_b32 s38, s34, 3\ns_lshl_b32 s38, s38, 4\nv_add_u32 v184, s38, v3\nv_mul_u32_u24 v184, 192, v184")
    a(f"v_add_u32 v184, {KVL + 36*KB}, v184")
    for i in range(5):
        for r in range(4):
            a(f"v_mul_f32 v{188+r}, v63, v{8+4*i+r}")
            a(f"v_fma_f32 v{188+r}, v62, v{A0+4*i+r}, -v{188+r}")
        a(f"v_cvt_pk_bf16_f32 v192, v188, v189\nv_cvt_pk_bf16_f32 v193, v190, v191")
        a(f"v_add_u32 v185, {4*i}, v4\nv_mul_u32_u24 v186, 52, v185\nv_lshrrev_b32 v186, 8, v186\nv_add_u32 v185, v185, v186\nv_lshl_add_u32 v185, v185, 3, v184")
        a("ds_write_b64 v185, v[192:193]")
    a("s_waitcnt lgkmcnt(0)")
    a("s_barrier")
    loader_bp(ld, ring, None, FO)
    ld("s_branch att_top")
    a.label("att_top")
    ts(a, "qkv_done")
    QB_, P, SA, SB, O = 8, 64, 72, 88, 104
    def Q1(i): return QB_ + 6 * i
    def Q2(i): return QB_ + 6 * i + 4
    a("v_and_b32 v6, 31, v1\nv_lshrrev_b32 v7, 5, v1\nv_lshlrev_b32 v170, 3, v1")
    a("s_cmp_ge_u32 s34, 4\ns_cbranch_scc0 att_q")
    kv_poll_issue()
    a.label("att_q")
    a("s_and_b32 s38, s34, 3\ns_lshr_b32 s39, s34, 2")
    a("v_lshrrev_b32 v171, 2, v6\nv_mul_u32_u24 v171, 192, v171\nv_and_b32 v172, 3, v6\nv_mul_u32_u24 v172, 48, v172\nv_add_u32 v171, v171, v172")
    for i in range(4):
        a(f"s_add_u32 s40, s38, {i}\ns_and_b32 s40, s40, 3\ns_lshl_b32 s41, s39, 2\ns_add_u32 s40, s40, s41\ns_mul_i32 s40, s40, {8*192}\ns_add_u32 s40, s40, {KVL + 36*KB}")
        a(f"v_add_u32 v173, s40, v171\nv_lshl_add_u32 v174, v7, 4, v173")
        a(f"ds_read_b128 v[{Q1(i)}:{Q1(i)+3}], v174\nds_read_b64 v[{Q2(i)}:{Q2(i)+1}], v173 offset:32")
    FLAGW = KVL + 48 * KB - 64
    a("s_mov_b32 s57, 0")
    a("s_waitcnt lgkmcnt(0)")
    a("v_cmp_eq_u32 vcc, 1, v7")
    for i in range(4):
        a(f"v_cndmask_b32 v{Q2(i)}, v{Q2(i)}, 0, vcc\nv_cndmask_b32 v{Q2(i)+1}, v{Q2(i)+1}, 0, vcc")
    a("s_cmp_ge_u32 s34, 4\ns_cbranch_scc0 att_go")
    kv_poll_wait()
    a.label("att_main")
    kv_prologue()
    a.label("att_go")
    ts(a, "kv_ready")
    for r in range(64): a(f"v_mov_b32 v{O+r}, 0")
    def qk1(Sd, b, i): a(f"v_mfma_f32_32x32x16_bf16 v[{Sd}:{Sd+15}], v[{K1(b)}:{K1(b)+3}], v[{Q1(i)}:{Q1(i)+3}], 0")
    def qk2(Sd, b, i): a(f"v_mfma_f32_32x32x8_bf16 v[{Sd}:{Sd+15}], v[{K2(b)}:{K2(b)+1}], v[{Q2(i)}:{Q2(i)+1}], v[{Sd}:{Sd+15}]")
    def pv(i, b, h): a(f"v_mfma_f32_32x32x16_bf16 v[{O+16*i}:{O+16*i+15}], v[{V1(b)+4*h}:{V1(b)+4*h+3}], v[{P+4*h}:{P+4*h+3}], v[{O+16*i}:{O+16*i+15}]")
    for r in range(4, 8): a(f"v_mov_b32 v{P+r}, 0\nv_mov_b32 v{V1(1)+r}, 0\nv_mov_b32 v{SB+8+r}, 0")
    a("s_waitcnt vmcnt(4)")
    qk1(SA, 0, 0); qk2(SA, 0, 0)
    a("s_mov_b32 s49, 0")
    a("s_cmp_eq_u32 s37, 0\ns_cbranch_scc0 att_nochk")
    a(f"s_lshl_b32 s46, s35, 5\ns_add_u32 s46, s46, {XID}")
    await_flags(a, 0xFF, 46, vtmp=175)
    a("s_mov_b64 s[42:43], exec\ns_mov_b64 exec, 0xff\nv_cmp_ne_u32 vcc, s58, v176\ns_cmp_eq_u64 vcc, 0\ns_cselect_b32 s59, 1, 0\ns_mov_b64 exec, s[42:43]")
    if "noxcd" in sys.argv: a("s_mov_b32 s59, 0")
    a.label("att_nochk")
    PFQ = int([x for x in sys.argv if x.startswith("pfq=")][0][4:]) if any(x.startswith("pfq=") for x in sys.argv) else 96
    PF = "nopf" not in sys.argv
    if PF:
        a(f"s_mul_i32 s88, s36, {SL*KB}\ns_lshr_b32 s45, s35, 3\ns_mul_i32 s45, s45, {PFQ*KB}\ns_add_u32 s88, s88, s45\ns_add_u32 s88, s88, {WST + 224*KB}")
        a(f"s_lshl_b32 s45, s34, 12\ns_add_u32 s88, s88, s45\ns_add_u32 s89, s88, 32768\ns_add_u32 s90, s88, 65536")
        if "nopfw" in sys.argv: a(f"s_mov_b32 s88, {KVB[0]}\ns_mov_b32 s89, s88\ns_mov_b32 s90, s88")
        a("s_and_b32 s40, s34, 3\ns_lshl_b32 s41, s35, 2\ns_add_u32 s40, s40, s41")
        a("s_cmp_ge_u32 s34, 4\ns_cbranch_scc1 dst_h")
        a(f"s_mul_i32 s41, s40, 20480\ns_mul_i32 s45, s36, 2560\ns_add_u32 s41, s41, s45")
        a(f"s_mul_i32 s91, s37, {OB[1]-OB[0]}\ns_add_u32 s91, s91, {OB[0]}\ns_add_u32 s91, s91, s41")
        a(f"s_mul_i32 s92, s37, {X1[1]-X1[0]}\ns_add_u32 s92, s92, {X1[0]}\ns_add_u32 s92, s92, s41")
        a(f"s_add_u32 s93, s41, {X2}\ns_mov_b32 s61, 3\ns_mov_b32 s62, 39")
        a("s_branch dst_d")
        a.label("dst_h")
        a("s_lshr_b32 s44, s36, 1\ns_mul_i32 s44, s44, 27\ns_and_b32 s45, s36, 1\ns_mul_i32 s45, s45, 14\ns_add_u32 s44, s44, s45\ns_lshl_b32 s44, s44, 9")
        a(f"s_mul_i32 s41, s40, 55296\ns_add_u32 s44, s44, s41\ns_mul_i32 s45, s37, {HB[1]-HB[0]}\ns_add_u32 s44, s44, s45\ns_add_u32 s91, s44, {HB[0]}")
        a("s_add_u32 s92, s91, 4096\ns_mov_b32 s93, s92\ns_mov_b32 s61, 4\ns_bitcmp1_b32 s36, 0\ns_cselect_b32 s62, 39, 47")
        a.label("dst_d")
        a("s_mov_b32 s94, s93\ns_mov_b32 s95, s93")
    if "noout" not in sys.argv:
        a("s_cmp_eq_u32 s37, 1\ns_cbranch_scc0 outpf_d\ns_cmp_ge_u32 s34, 4\ns_cbranch_scc0 outpf_d")
        srd(a, 16, 28, 0, XBYTES)
        a("v_add_u32 v179, s66, v3\nv_mul_u32_u24 v179, 1280, v179\nv_lshl_add_u32 v179, v4, 6, v179\ns_mul_i32 s40, s36, 160\ns_and_b32 s40, s40, -64\nv_add_u32 v179, s40, v179")
        a("buffer_load_dword v178, v179, s[16:19], 0 offen")
        a.label("outpf_d")
    a("s_nop 7")
    ts(a, "att_start")
    a.label("att_loop")
    if "altprio" in sys.argv:
        a("s_lshr_b32 s45, s34, 2\ns_add_u32 s45, s45, s49\ns_bitcmp1_b32 s45, 0\ns_cbranch_scc1 att_p1\ns_setprio 0\ns_branch att_p2")
        a.label("att_p1"); a("s_setprio 1"); a.label("att_p2")
    if "hiprio" in sys.argv:
        a("s_cmp_ge_u32 s34, 4\ns_cbranch_scc0 att_p2\ns_setprio 1"); a.label("att_p2")
    ex = lambda Sc, r: a(f"v_exp_f32 v{Sc+r}, v{Sc+r}")
    cv = lambda Sc, q: a(f"v_cvt_pk_bf16_f32 v{P+q}, v{Sc+2*q}, v{Sc+2*q+1}")
    for kk in range(2):
        b = kk
        for q in range(4):
            u = kk * 4 + q
            Sc, Sn = (SA, SB) if u % 2 == 0 else (SB, SA)
            pq, pb = (q - 1) % 4, (b if q > 0 else 1 - b)
            nq, nb = (q + 1) % 4, (b if q < 3 else 1 - b)
            if "altprio2" in sys.argv and q == 0:
                L1, L2 = newlab("ap"), newlab("ap")
                a(f"s_lshr_b32 s45, s34, 2\ns_bitcmp1_b32 s45, 0\ns_cbranch_scc1 {L1}\ns_setprio {kk}\ns_branch {L2}")
                a.label(L1); a(f"s_setprio {1-kk}"); a.label(L2)
            ex(Sc, 0); ex(Sc, 1); cv(Sn, 6); cv(Sn, 7); ex(Sc, 2); ex(Sc, 3)
            if q == 3: a(f"s_waitcnt vmcnt({3 if (PF and kk == 1) else 2})")
            qk1(Sn, nb, nq)
            ex(Sc, 4); ex(Sc, 5); cv(Sc, 0); cv(Sc, 1); ex(Sc, 6); ex(Sc, 7)
            qk2(Sn, nb, nq)
            if q == 3:
                a("s_add_u32 s47, s47, 4096")
                ldK(b)
                if PF and kk == 0:
                    a("s_mov_b32 m0, s49\ns_cmp_lt_u32 s49, s61\ns_cselect_b32 s63, 63, s62\ns_movrels_b32 s50, s88")
                    a("v_min_u32 v177, s63, v1\nv_lshlrev_b32 v177, 6, v177")
                    a("buffer_load_dword v178, v177, s[8:11], s50 offen")
            ex(Sc, 8); ex(Sc, 9); cv(Sc, 2); cv(Sc, 3); ex(Sc, 10); ex(Sc, 11)
            pv(pq, pb, 1)
            if q == 0: ldV(1 - b, 0)
            if q == 1: ldV(1 - b, 1)
            ex(Sc, 12); ex(Sc, 13); cv(Sc, 4); cv(Sc, 5); ex(Sc, 14); ex(Sc, 15)
            if q == 0: a(f"s_waitcnt vmcnt({4 if (PF and kk == 1) else 3})")
            pv(q, b, 0)
    a("s_add_u32 s49, s49, 1\ns_cmp_lt_u32 s49, 8\ns_cbranch_scc1 att_loop")
    a("s_setprio 0")
    cv(SB, 6); cv(SB, 7)
    pv(3, 1, 1)
    ts(a, "att_loop_end")
    a(f"s_mul_i32 s40, s34, {3*1536}\ns_add_u32 s40, s40, {KVL}\nv_add_u32 v171, s40, v5\nv_add_u32 v172, s40, v170\nv_add_u32 v172, 1024, v172")
    for r in (1, 2, 3):
        t = 72 + 8 * (r - 1)
        for q in range(5): a(f"v_cvt_pk_bf16_f32 v{t+q}, v{O+16*r+2*q}, v{O+16*r+2*q+1}")
        a(f"v_mov_b32 v{t+5}, v{O+16*r+10}")
        a(f"ds_write_b128 v171, v[{t}:{t+3}] offset:{(r-1)*1536}\nds_write_b64 v172, v[{t+4}:{t+5}] offset:{(r-1)*1536}")
    a(f"v_mov_b32 v175, {FLAGW}\nv_mov_b32 v176, 0\nds_write_b32 v175, v176")
    a("s_waitcnt lgkmcnt(0)\ns_barrier")
    for r in (1, 2, 3):
        t = 72 + 8 * (r - 1)
        a(f"s_sub_u32 s41, s38, {r}\ns_and_b32 s41, s41, 3\ns_lshl_b32 s45, s39, 2\ns_add_u32 s41, s41, s45\ns_mul_i32 s41, s41, {3*1536}\ns_add_u32 s41, s41, {KVL + (r-1)*1536}")
        a(f"v_add_u32 v171, s41, v5\nv_add_u32 v172, s41, v170")
        a(f"ds_read_b128 v[{t}:{t+3}], v171\nds_read_b64 v[{t+4}:{t+5}], v172 offset:1024")
    a("s_waitcnt vmcnt(0) lgkmcnt(0)")
    for r in (1, 2, 3):
        t = 72 + 8 * (r - 1)
        for q in range(5):
            unpack2(a, 173, 174, t + q)
            a(f"v_add_f32 v{O+2*q}, v{O+2*q}, v173\nv_add_f32 v{O+2*q+1}, v{O+2*q+1}, v174")
        a(f"v_add_f32 v{O+10}, v{O+10}, v{t+5}")
    a("s_cmp_eq_u32 s57, 1\ns_cbranch_scc1 att_fin")
    a("v_mov_b32 v173, 0")
    for r in range(10): a(f"v_fma_f32 v173, v{O+r}, 0, v173")
    a(f"v_cmp_lt_f32 vcc, {f2u(2.0**-60):#x}, v{O+10}")
    a(f"v_mov_b32 v174, {f2u(2.0**60):#x}\nv_cmp_gt_f32 s[40:41], v174, v{O+10}\ns_and_b64 vcc, vcc, s[40:41]")
    a("v_cmp_eq_f32 s[40:41], 0, v173\ns_and_b64 vcc, vcc, s[40:41]")
    if "forcefb" in sys.argv: a("s_mov_b64 vcc, 0")
    a("s_cmp_eq_u64 vcc, -1\ns_cbranch_scc1 att_okw")
    a(f"v_mov_b32 v175, {FLAGW}\nv_mov_b32 v176, 1\nds_write_b32 v175, v176\ns_waitcnt lgkmcnt(0)")
    a.label("att_okw")
    a("s_barrier")
    a(f"v_mov_b32 v175, {FLAGW}\nds_read_b32 v176, v175\ns_waitcnt lgkmcnt(0)\nv_readfirstlane_b32 s40, v176")
    a("s_cmp_eq_u32 s40, 0\ns_cbranch_scc0 att_fallback")
    a.label("att_fin")
    ts(a, "att_red")
    a(f"v_rcp_f32 v173, v{O+10}")
    for r in range(10): a(f"v_mul_f32 v{O+r}, v{O+r}, v173")
    for q in range(5): a(f"v_cvt_pk_bf16_f32 v{P+q}, v{O+2*q}, v{O+2*q+1}")
    a(f"s_mul_i32 s40, s34, 1280\ns_add_u32 s40, s40, {KVL + 36864}")
    a("v_lshrrev_b32 v171, 2, v6\nv_mul_u32_u24 v171, 160, v171\nv_and_b32 v172, 3, v6\nv_mul_u32_u24 v172, 40, v172\nv_mul_u32_u24 v173, 20, v7\nv_add3_u32 v171, v171, v172, v173")
    a("v_add_u32 v171, s40, v171")
    for q in range(5): a(f"ds_write_b32 v171, v{P+q} offset:{4*q}")
    a("v_and_b32 v172, 7, v1\nv_lshrrev_b32 v173, 3, v1")
    a("v_mul_u32_u24 v174, 160, v172\nv_lshl_add_u32 v174, v173, 4, v174\nv_add_u32 v174, s40, v174")
    a("s_waitcnt lgkmcnt(0)")
    a("ds_read_b128 v[72:75], v174\nds_read_b128 v[76:79], v174 offset:128")
    a("s_and_b32 s41, s34, 1\ns_lshl_b32 s41, s41, 7\nv_lshlrev_b32 v172, 4, v172\nv_lshl_add_u32 v172, v173, 8, v172\nv_add_u32 v172, s41, v172")
    a(f"s_lshl_b32 s41, s35, 2\ns_lshr_b32 s45, s34, 1\ns_add_u32 s48, s41, s45\ns_mul_i32 s41, s48, 20480\ns_mul_i32 s45, s36, 2560\ns_add_u32 s41, s41, s45\ns_mul_i32 s45, s37, {OB[1]-OB[0]}\ns_add_u32 s41, s41, s45\ns_add_u32 s41, s41, {OB[0]}")
    a("s_waitcnt lgkmcnt(0)")
    xstore(a, "buffer_store_dwordx4 v[72:75], v172, s[8:11], s41 offen @SC\ns_mov_b64 s[42:43], exec\ns_mov_b64 exec, 0xffff\nbuffer_store_dwordx4 v[76:79], v172, s[8:11], s41 offen offset:2048 @SC\ns_mov_b64 exec, s[42:43]")
    flag_line(46, 0, tile_sgpr=48)
    a("s_lshl_b32 s45, s36, 3\ns_add_u32 s46, s46, s45\ns_and_b32 s45, s34, 1\ns_lshl_b32 s45, s45, 2\ns_add_u32 s46, s46, s45")
    set_flag(a, 46, vtmp=175)
    ts(a, "att_done")
    a("s_cmp_ge_u32 s34, 4\ns_cbranch_scc1 ld_wo")
    a.nvm = 0; a.nlg = 0
    set_bases(a, 5)
    flag_line(46, 0, pair=True)
    await_flags(a, 0xFFFFFFFF, 46)
    ts(a, "wo_ready")
    tile_offs(OB[0], OB[1] - OB[0], 20480, True)
    bl = BL(2048, 10)
    for i in range(10): bl.load(i)
    segs = [(0, 5), (5, 10)]
    kloop2(a, FO, 10, 5, 5, segs, bl.regs, A0, A1, 0, 5, before=lambda i: a.wait_vm(bl.tag[i]), D=DEP)
    ld.label("ld_wo")
    ring.drained()
    loader_kloop2(ld, ring, FO, 10, 5, segs, 5, D=DEP, docap=('capwo' in sys.argv))
    ts(a, "wo_kloop")
    reduce_pair(A0, A1, 5, False, cbar=(bool(SIDES) and "latec" not in sys.argv))
    if SIDES:
        ld("s_barrier\ns_barrier")
        side_issue(ld, ring, 0); ring_refill(ld, ring, F1)
    else:
        loader_bp(ld, ring, None, F1)
    frag_addr(a, 60, 61, 68, 62)
    tile_offs(X1[0], X1[1] - X1[0], 20480, False)
    for i in range(5):
        unpack2(a, 48, 49, RES + 2 * i); unpack2(a, 50, 51, RES + 2 * i + 1)
        for r in range(4): a(f"v_add_f32 v{48+r}, v{48+r}, v{A0+4*i+r}")
        a(f"v_cvt_pk_bf16_f32 v{RES+2*i}, v48, v49\nv_cvt_pk_bf16_f32 v{RES+2*i+1}, v50, v51")
    store_tiles(a, [RES + 2 * i for i in range(5)], 5, 60, 61, 8, "s40", 512, "@SC", tmp=48)
    if SIDES and "latec" in sys.argv: a("s_barrier")
    flag_line(46, 1, tile_sgpr=67)
    a("s_lshl_b32 s45, s36, 2\ns_add_u32 s46, s46, s45")
    set_flag(a, 46)
    ts(a, "wo_done")
    a.nvm = 0; a.nlg = 0
    a("s_lshr_b32 s52, s36, 1\ns_mul_i32 s52, s52, 27\ns_and_b32 s53, s36, 1\ns_mul_i32 s53, s53, 14\ns_add_u32 s52, s52, s53")
    a("s_and_b32 s53, s34, 1\ns_mul_i32 s53, s53, 7\ns_add_u32 s52, s52, s53")
    srd(a, 20, 24, 0, F * 2)
    a("s_lshl_b32 s47, s52, 5\nv_lshlrev_b32 v60, 3, v4\nv_add_u32 v60, s47, v60")
    B1R = 232
    for i in range(7): a(f"buffer_load_dwordx2 v[{B1R+2*i}:{B1R+2*i+1}], v60, s[20:23], 0 offen offset:{i*32}")
    a(f"s_mul_i32 s45, s36, 896\ns_lshl_b32 s44, s53, 6\ns_add_u32 s45, s45, s44\ns_add_u32 s45, s45, {CS1}\nv_lshlrev_b32 v58, 4, v4")
    for i in range(7): a(f"buffer_load_dwordx4 v[{8+4*i}:{8+4*i+3}], v58, s[8:11], s45 offen offset:{i*64}")
    ones(); set_bases(a, 7)
    flag_line(46, 1, pair=True)
    await_flags(a, 0x00FF00FF, 46)
    ts(a, "fc1_ready")
    tile_offs(X1[0], X1[1] - X1[0], 20480, False)
    bl = BL(1024, 10, sc=('' if 'fc1plain' in sys.argv else 'sc1'))
    for i in range(10): bl.load(i)
    segs = [(2 * s_, 2 * s_ + 2) for s_ in range(10)]
    C0, C1 = 176, 204
    kloop2(a, F1, 14, 7, 7, segs, bl.regs, C0, C1, 1, 4, before=lambda i: a.wait_vm(bl.tag[i]),
           after=lambda i: bl.load(i + 10) if i + 10 < 20 else None)
    ld.label("ld_fc1")
    loader_kloop2(ld, ring, F1, 14, 7, segs, 4, docap=('capfc1' in sys.argv))
    ts(a, "fc1_kloop")
    stats_finalize(a, VST, VST + 4, 60, 61, 56, True)
    a(f"s_and_b32 s45, s34, 3\ns_lshl_b32 s44, s45, 9\ns_add_u32 s44, s44, {KVL}\nv_lshlrev_b32 v56, 3, v1\nv_add_u32 v57, s44, v56")
    a("ds_write_b64 v57, v[60:61]")
    a(f"s_xor_b32 s45, s45, 1\ns_lshl_b32 s44, s45, 9\ns_add_u32 s44, s44, {KVL}\nv_add_u32 v57, s44, v56")
    a("s_waitcnt lgkmcnt(0)\ns_barrier")
    a("ds_read_b64 v[62:63], v57")
    if SIDES:
        a("s_waitcnt lgkmcnt(0)\ns_barrier")
        ld("s_barrier\ns_barrier")
        side_issue(ld, ring, 1); ring_refill(ld, ring, F2)
    else:
        loader_bp(ld, ring, None, F2)
    frag_addr(a, 58, 59, 52, 56)
    tile_offs(HB[0], HB[1] - HB[0], 55296, False)
    c0 = -2.0 * math.sqrt(2.0 / math.pi) * LOG2E
    c1 = c0 * 0.044715
    a(f"v_mov_b32 v40, {f2u(c0):#x}\nv_mov_b32 v41, v40\nv_mov_b32 v42, {f2u(c1):#x}\nv_mov_b32 v43, v42\nv_mov_b32 v46, 1.0\nv_mov_b32 v47, 1.0")
    a("s_waitcnt lgkmcnt(0)")
    def gelu_tile(i, acc, dst):
        unpack2(a, 52, 53, B1R + 2 * i); unpack2(a, 54, 55, B1R + 2 * i + 1)
        for h in range(2): a(f"v_pk_fma_f32 v[{52+2*h}:{53+2*h}], v[38:39], v[{8+4*i+2*h}:{8+4*i+2*h+1}], v[{52+2*h}:{53+2*h}]")
        for h in range(2): a(f"v_pk_fma_f32 v[{52+2*h}:{53+2*h}], v[36:37], v[{acc+4*i+2*h}:{acc+4*i+2*h+1}], v[{52+2*h}:{53+2*h}]")
        for h in range(2): a(f"v_pk_mul_f32 v[{144+2*h}:{145+2*h}], v[{52+2*h}:{53+2*h}], v[{52+2*h}:{53+2*h}]")
        for h in range(2): a(f"v_pk_fma_f32 v[{144+2*h}:{145+2*h}], v[{144+2*h}:{145+2*h}], v[42:43], v[40:41]")
        for h in range(2): a(f"v_pk_mul_f32 v[{144+2*h}:{145+2*h}], v[{144+2*h}:{145+2*h}], v[{52+2*h}:{53+2*h}]")
        for r in range(4): a(f"v_exp_f32 v{144+r}, v{144+r}")
        for h in range(2): a(f"v_pk_add_f32 v[{144+2*h}:{145+2*h}], v[{144+2*h}:{145+2*h}], v[46:47]")
        for r in range(4): a(f"v_rcp_f32 v{144+r}, v{144+r}")
        for h in range(2): a(f"v_pk_mul_f32 v[{52+2*h}:{53+2*h}], v[{52+2*h}:{53+2*h}], v[{144+2*h}:{145+2*h}]")
        a(f"v_cvt_pk_bf16_f32 v{dst}, v52, v53\nv_cvt_pk_bf16_f32 v{dst+1}, v54, v55")
    for tilesel in range(2):
        acc, rho, mu, so = (C0, 60, 61, "s40") if tilesel == 0 else (C1, 62, 63, "s41")
        a(f"v_mov_b32 v36, v{rho}\nv_mov_b32 v37, v{rho}\nv_sub_f32 v38, 0, v{mu}\nv_mov_b32 v39, v38")
        for p in range(3):
            t = 152 + 4 * (p % 2)
            gelu_tile(2 * p, acc, t); gelu_tile(2 * p + 1, acc, t + 2)
            a(f"v_permlane16_swap_b32 v{t}, v{t+2}\nv_permlane16_swap_b32 v{t+1}, v{t+3}")
            xstore(a, f"buffer_store_dwordx4 v[{t}:{t+3}], v58, s[8:11], {so} offen offset:{p*1024} @SC")
        sk = newlab("fc1sk")
        a(f"s_and_b32 s45, s36, s34\ns_bitcmp1_b32 s45, 0\ns_cbranch_scc1 {sk}")
        gelu_tile(6, acc, 160)
        xstore(a, f"buffer_store_dwordx2 v[160:161], v59, s[8:11], {so} offen offset:3072 @SC")
        a.label(sk)
    flag_line(46, 2, tile_sgpr=67)
    flag_line(47, 2, tile_sgpr=65)
    a("s_lshl_b32 s45, s36, 3\ns_and_b32 s44, s34, 1\ns_lshl_b32 s44, s44, 2\ns_add_u32 s45, s45, s44\ns_add_u32 s46, s46, s45\ns_add_u32 s47, s47, s45")
    set_flag(a, 46, second=47)
    ts(a, "fc1_done")
    a.nvm = 0; a.nlg = 0
    srd(a, 20, 26, 0, D * 2)
    a("v_lshlrev_b32 v58, 3, v4\ns_mul_i32 s40, s36, 160\nv_add_u32 v58, s40, v58")
    for i in range(5): a(f"buffer_load_dwordx2 v[{8+2*i}:{9+2*i}], v58, s[20:23], 0 offen offset:{i*32}")
    set_bases(a, 5)
    flag_line(46, 2, pair=True)
    await_flags(a, 0xFFFFFFFF, 46)
    ts(a, "fc2_ready")
    tile_offs(HB[0], HB[1] - HB[0], 55296, True)
    bl = BL(2048, 10)
    for i in range(10): bl.load(i)
    segs = [(2 * s_, min(27, 2 * s_ + 2)) for s_ in range(14)]
    SEGTS[0] = True
    kloop2(a, F2, 10, 5, 5, segs, bl.regs, A0, A1, 0, 5, before=lambda i: a.wait_vm(bl.tag[i]),
           after=lambda i: bl.load(i + 10) if i + 10 < 27 else None, D=DEP)
    ld.label("ld_fc2")
    if any(x.startswith("wb") for x in sys.argv):
        Lw = newlab("wb")
        ld(f"s_cmp_eq_u32 s37, 1\ns_cbranch_scc0 {Lw}\ns_cmp_eq_u32 s34, 7\ns_cbranch_scc0 {Lw}")
        if "wb8" in sys.argv: ld(f"s_cmp_lt_u32 s2, 8\ns_cbranch_scc0 {Lw}")
        ld("buffer_wbl2 sc1")
        ld.label(Lw)
    loader_kloop2(ld, ring, F2, 10, 5, segs, 5, D=DEP, docap=('capfc2' in sys.argv))
    ts(a, "fc2_kloop")
    reduce_pair(A0, A1, 5, False)
    loader_bp(ld, ring, None, SL)
    assert ring.I == SLP + RING
    for i in range(5):
        unpack2(a, 48, 49, RES + 2 * i); unpack2(a, 50, 51, RES + 2 * i + 1)
        unpack2(a, 52, 53, 8 + 2 * i); unpack2(a, 54, 55, 8 + 2 * i + 1)
        for r in range(4): a(f"v_add_f32 v{52+r}, v{52+r}, v{A0+4*i+r}")
        for r in range(4): a(f"v_add_f32 v{48+r}, v{48+r}, v{52+r}")
        a(f"v_cvt_pk_bf16_f32 v{RES+2*i}, v48, v49\nv_cvt_pk_bf16_f32 v{RES+2*i+1}, v50, v51")
    a("s_cmp_eq_u32 s37, 0\ns_cbranch_scc0 fc2_last")
    frag_addr(a, 60, 61, 68, 62)
    tile_offs(X2, 0, 20480, False)
    store_tiles(a, [RES + 2 * i for i in range(5)], 5, 60, 61, 8, "s40", 512, "@SC", tmp=48)
    flag_line(46, 3, tile_sgpr=67)
    a("s_lshl_b32 s45, s36, 2\ns_add_u32 s46, s46, s45")
    set_flag(a, 46)
    a("s_branch fc2_fin")
    a.label("fc2_last")
    srd(a, 16, 28, 0, XBYTES)
    a("v_add_u32 v62, s66, v3\nv_mul_u32_u24 v60, 1280, v62\ns_mul_i32 s40, s36, 160\nv_add_u32 v60, s40, v60")
    a("v_lshl_add_u32 v61, v4, 3, v60")
    a("v_and_b32 v62, 1, v4\nv_lshl_add_u32 v60, v62, 5, v60\nv_lshrrev_b32 v62, 1, v4\nv_lshl_add_u32 v60, v62, 4, v60")
    store_tiles(a, [RES + 2 * i for i in range(5)], 5, 60, 61, 16, "0", 32, "", tmp=48)
    a.label("fc2_fin")
    ts(a, "fc2_done")
    a("s_branch layer_end")
    ld("s_branch layer_end")
    a.out += ld.out
    fbk = Asm()
    fbk.label("att_fallback")
    fbk("s_barrier")
    for i in range(4): fbk(f"v_mov_b32 v{181+i}, 0xff800000")
    fbk(f"s_mul_i32 s47, s37, {KVB[1]-KVB[0]}\ns_add_u32 s47, s47, {KVB[0]}\ns_lshl_b32 s48, s38, 16\ns_add_u32 s47, s47, s48\ns_mov_b32 s49, 0")
    fbk.label("fb_loop")
    fbk(f"buffer_load_dwordx4 v[{K1(0)}:{K1(0)+3}], v5, s[8:11], s47 offen sc1")
    fbk(f"buffer_load_dwordx2 v[{K2(0)}:{K2(0)+1}], v170, s[8:11], s47 offen offset:1024 sc1")
    fbk("s_waitcnt vmcnt(0)")
    for i in range(4):
        fbk(f"v_mfma_f32_32x32x16_bf16 v[{SA}:{SA+15}], v[{K1(0)}:{K1(0)+3}], v[{Q1(i)}:{Q1(i)+3}], 0")
        fbk(f"v_mfma_f32_32x32x8_bf16 v[{SA}:{SA+15}], v[{K2(0)}:{K2(0)+1}], v[{Q2(i)}:{Q2(i)+1}], v[{SA}:{SA+15}]")
        for r in range(0, 16, 2): fbk(f"v_max3_f32 v{181+i}, v{181+i}, v{SA+r}, v{SA+r+1}")
    fbk("s_add_u32 s47, s47, 4096\ns_add_u32 s49, s49, 1\ns_cmp_lt_u32 s49, 16\ns_cbranch_scc1 fb_loop")
    fbk("v_xor_b32 v171, 32, v1\nv_lshlrev_b32 v171, 2, v171")
    for i in range(4):
        fbk(f"ds_bpermute_b32 v172, v171, v{181+i}\ns_waitcnt lgkmcnt(0)\nv_max_f32 v{181+i}, v{181+i}, v172")
    fbk("v_lshlrev_b32 v171, 2, v6")
    for i in range(4):
        fbk(f"s_add_u32 s40, s38, {i}\ns_and_b32 s40, s40, 3\ns_lshl_b32 s41, s39, 2\ns_add_u32 s40, s40, s41\ns_lshl_b32 s40, s40, 9\ns_lshl_b32 s41, s38, 7\ns_add_u32 s41, s41, s40\ns_add_u32 s41, s41, {KVL}")
        fbk(f"v_add_u32 v172, s41, v171\nds_write_b32 v172, v{181+i}")
    fbk("s_waitcnt lgkmcnt(0)\ns_barrier")
    for i in range(4):
        fbk(f"s_add_u32 s40, s38, {i}\ns_and_b32 s40, s40, 3\ns_lshl_b32 s41, s39, 2\ns_add_u32 s40, s40, s41\ns_lshl_b32 s40, s40, 9\ns_add_u32 s40, s40, {KVL}")
        fbk(f"v_add_u32 v172, s40, v171\nds_read_b32 v173, v172\nds_read_b32 v174, v172 offset:128\nds_read_b32 v175, v172 offset:256\nds_read_b32 v176, v172 offset:384")
        fbk("s_waitcnt lgkmcnt(0)\nv_max_f32 v173, v173, v174\nv_max3_f32 v173, v173, v175, v176")
        fbk("v_sub_f32 v173, 0, v173\nv_cvt_pk_bf16_f32 v174, v173, v173\nv_lshlrev_b32 v175, 16, v174\nv_sub_f32 v175, v173, v175\nv_cvt_pk_bf16_f32 v176, v173, v175")
        fbk(f"v_cmp_eq_u32 vcc, 1, v7\nv_cndmask_b32 v{Q2(i)}, v{Q2(i)}, v176, vcc")
    fbk("s_mov_b32 s57, 1\ns_barrier\ns_branch att_main")
    a.out += fbk.out
    a.label("layer_end")
    if PROFILE:
        a(f"s_cmp_eq_u32 s34, {4 if PROFLD else 0}\ns_cbranch_scc0 prof_skip")
        a(f"s_lshl_b32 s40, s2, 8\ns_lshl_b32 s41, s37, 7\ns_add_u32 s40, s40, s41\ns_add_u32 s40, s40, {TSB}\nv_mov_b32 v8, 0\ns_mov_b64 s[42:43], exec\ns_mov_b64 exec, 1")
        for i in range(Prof.n):
            a(f"v_mov_b32 v9, s{70+i}\nbuffer_store_dword v9, v8, s[8:11], s40 offen offset:{4*i}\ns_nop 0")
        a("s_mov_b64 exec, s[42:43]")
        a.label("prof_skip")
    if PROFOUT:
        a("s_cmp_eq_u32 s34, 0\ns_cbranch_scc0 po_skip")
        a("s_cmp_eq_u32 s37, 0\ns_cbranch_scc0 po_l1")
        for i in range(1, Prof.n):
            a(f"s_sub_u32 s40, s{70+i}, s{70+i-1}\nv_writelane_b32 v0, s40, {i}")
        a("s_branch po_skip")
        a.label("po_l1")
        for i in range(1, Prof.n):
            a(f"s_sub_u32 s40, s{70+i}, s{70+i-1}\nv_writelane_b32 v0, s40, {24+i}")
        a.label("po_skip")
    a(f"s_add_u32 s37, s37, 1\ns_cmp_lt_u32 s37, 2\ns_cbranch_scc1 layer_top")
    if PROFOUT:
        a("s_waitcnt vmcnt(0)\ns_barrier\ns_cmp_eq_u32 s34, 0\ns_cbranch_scc0 po_end")
        srd(a, 16, 28, 0, XBYTES)
        a("s_memrealtime s[98:99]\ns_waitcnt lgkmcnt(0)\ns_sub_u32 s98, s98, s96\nv_writelane_b32 v0, s98, 47")
        a("v_cvt_f32_u32 v8, v0\nv_cvt_pk_bf16_f32 v8, v8, v8\nv_lshlrev_b32 v9, 1, v1")
        a(f"s_mul_i32 s40, s35, {64*1280}\ns_mul_i32 s41, s36, 160\ns_add_u32 s40, s40, s41")
        a("v_cmp_gt_u32 vcc, 48, v1\ns_and_saveexec_b64 s[42:43], vcc\nbuffer_store_short v8, v9, s[16:19], s40 offen\ns_mov_b64 exec, s[42:43]")
        a.label("po_end")
    a("s_waitcnt vmcnt(0)")
    a("s_endpgm")
    kernel_end(a, name)
    return a.out, descriptor(name, 256), (name, 256, 512, LDS_BYTES)

def build(path, kernels):
    hdr = []
    for k in kernels:
        name, grid, block, lds = k[2]
        hdr.append(f"; @launch kernel={name} grid=({grid},1,1) block=({block},1,1) lds={lds}")
    body = ['.amdgcn_target "amdgcn-amd-amdhsa--gfx950"', ".text"]
    descs = []
    nfix = 0
    for k in kernels:
        lines, n = fix_hazards(k[0])
        nfix += n
        body += lines
        descs.append(k[1])
    hdr += [
        "; Two launches. prep_kernel: re-lays the weights out as MFMA fragments in d_ws, column sums for the LayerNorm folding, x in fragment order, zeroes the hand-off flags.",
        "; main_kernel: persistent, 256 workgroups = 32 token groups (64 tokens) x 8 column slices; both layers run in one loop.",
        ";   phases per layer: K/V + Q projection, MQA attention, output projection, fc1+GELU, fc2 ; waves 0-3 compute, waves 4-7 stream the weights (LDS ring).",
        ";   LayerNorm is folded into the GEMM epilogues (row mean / variance from MFMA sums; the MLP applies both normalisations).",
        ";   softmax: exp2 of the raw scores; a run-time check of every row sum (range and finiteness) falls back to a pass with the true row max (att_fallback).",
        ";   hand-offs between workgroups: flags in d_ws; plain stores only when all 8 members of a group report the same XCC id, write-through (sc1) otherwise.",
    ]
    txt = "\n".join(hdr) + "\n" + "\n".join(body) + '\n.section .rodata,"a"\n' + "".join(".p2align 6\n" + d for d in descs)
    open(path, "w").write(txt)
    print("written", path, len(txt), "bytes; hazard nops at", nfix, "sites")

if __name__ == "__main__":
    out = [x for x in sys.argv[1:] if x.endswith(".s")]
    build(out[0] if out else "v10.s", [gen_prep(), gen_main()])
    json.dump(dict(WST=WST, CSQ=CSQ, BKV=BKV, CS1=CS1, KVB=KVB, KMAX=KMAX, OB=OB, X1=X1, X2=X2, HB=HB, TSB=TSB, XF=XF, KVF=KVF, TSN=TSN, ver=3, XF0=XF0), open("layout.json", "w"))
```

```python
import sys, math, json, struct
sys.path.insert(0, "gen")
from asmdsl import *

S, D, F, H, DH = 2048, 640, 1728, 32, 20
KB = 1024
PROFSEG = "profseg" in sys.argv
PROFOUT = "profout" in sys.argv
PROFILE = "prof" in sys.argv or "profld" in sys.argv or PROFSEG or PROFOUT
PROFLD = "profld" in sys.argv
off = 0
def alloc(n, align=4096):
    global off
    off = (off + align - 1) // align * align
    o = off; off += n; return o
SL = 770
RING = 112
SLP = 784
FQ, FO, F1, F2 = 0, 120, 220, 500
WST = alloc(8 * SL * KB + 16 * KB)
CSQ = alloc(8 * 96 * 4)
BKV = alloc(3 * 16 * 4)
CS1 = alloc(8 * 224 * 4)
FLAGS = alloc(16384 + 4 * 16384 + 4096, 4096)
KVF = FLAGS
XF = FLAGS + 16384
XID = FLAGS + 16384 + 4 * 16384
FLAG_BYTES = 16384 + 4 * 16384 + 4096
KVB = [alloc(64 * 4096), alloc(64 * 4096)]
KMAX = [alloc(1024), alloc(1024)]
OB = [alloc(S * D * 2), alloc(S * D * 2)]
X1 = [alloc(S * D * 2), alloc(S * D * 2)]
HB = [alloc(S * F * 2), alloc(S * F * 2)]
X2 = alloc(S * D * 2)
XF0 = alloc(S * D * 2)
TSB = alloc(256 * 64 * 4)
WS_BYTES = 268435456
XBYTES = S * D * 2
LOG2E = 1.4426950408889634
def f2u(x): return struct.unpack("<I", struct.pack("<f", x))[0]
KVL = RING * KB
LDS_BYTES = 160 * KB
SPIN_MAX = 200000

def srd(a, s, ptr_pair, off, nbytes):
    if off:
        a(f"s_add_u32 s{s}, s{ptr_pair}, {off}")
        a(f"s_addc_u32 s{s+1}, s{ptr_pair+1}, 0")
    else:
        a(f"s_mov_b32 s{s}, s{ptr_pair}")
        a(f"s_mov_b32 s{s+1}, s{ptr_pair+1}")
    a(f"s_mov_b32 s{s+2}, {nbytes}")
    a(f"s_mov_b32 s{s+3}, 0x20000")
def srd_dyn(a, s, ptr_pair, off_sgpr, nbytes):
    a(f"s_add_u32 s{s}, s{ptr_pair}, s{off_sgpr}")
    a(f"s_addc_u32 s{s+1}, s{ptr_pair+1}, 0")
    a(f"s_mov_b32 s{s+2}, {nbytes}")
    a(f"s_mov_b32 s{s+3}, 0x20000")

def kernel_begin(a, name, nwg):
    a(f".globl {name}")
    a(".p2align 8")
    a(f".type {name},@function")
    a.out.append(f"{name}:")
    a(f"s_cmp_ge_u32 s2, {nwg}")
    a(f"s_cbranch_scc1 {name}_exit")
def kernel_end(a, name):
    a.label(f"{name}_exit")
    a("s_endpgm")
def descriptor(name, vgpr, sgpr=102):
    vg = (vgpr + 7) // 8 * 8
    return f""".amdhsa_kernel {name}
  .amdhsa_next_free_vgpr {vg}
  .amdhsa_next_free_sgpr {sgpr}
  .amdhsa_accum_offset {min(vg,256)}
  .amdhsa_group_segment_fixed_size 0
  .amdhsa_kernarg_size 104
  .amdhsa_user_sgpr_count 2
  .amdhsa_user_sgpr_kernarg_segment_ptr 1
  .amdhsa_system_sgpr_workgroup_id_x 1
  .amdhsa_float_denorm_mode_32 3
  .amdhsa_float_denorm_mode_16_64 3
.end_amdhsa_kernel
"""

PSC = " sc1" if "psc1" in sys.argv else (" nt" if "pnt" in sys.argv else (" sc0 sc1" if "psc01" in sys.argv else ""))
def gen_prep():
    a = Asm(); name = "prep_kernel"
    kernel_begin(a, name, 256)
    a("s_load_dwordx2 s[52:53], s[0:1], 0")
    a("s_load_dwordx2 s[4:5], s[0:1], 96")
    a("s_load_dwordx2 s[6:7], s[0:1], 8")
    a("s_load_dwordx4 s[24:27], s[0:1], 16")
    a("s_load_dwordx2 s[28:29], s[0:1], 32")
    a("s_load_dwordx2 s[30:31], s[0:1], 48")
    a("s_load_dwordx2 s[32:33], s[0:1], 64")
    a("v_and_b32 v1, 63, v0")
    a("v_lshrrev_b32 v2, 6, v0")
    a("v_readfirstlane_b32 s34, v2")
    a("v_and_b32 v3, 15, v1")
    a("v_lshrrev_b32 v4, 4, v1")
    a("v_lshlrev_b32 v5, 4, v1")
    a("s_waitcnt lgkmcnt(0)")
    srd(a, 8, 4, 0, WS_BYTES)
    if "cpf2" in sys.argv:
        a("s_cmp_eq_u32 s34, 3\ns_cbranch_scc0 prep_cpf")
        a("s_getpc_b64 s[40:41]")
        a.label("prep_pc")
        a("s_add_u32 s40, s40, main_kernel-prep_pc\ns_addc_u32 s41, s41, 0")
        a("v_lshlrev_b32 v8, 6, v1")
        for i in range(8):
            a(f"global_load_dword v{110}, v8, s[40:41]")
            a("v_add_u32 v8, 4096, v8")
        a.label("prep_cpf")
    srd(a, 12, 52, 0, XBYTES)
    a("s_lshl_b32 s35, s2, 2\ns_add_u32 s35, s35, s34")
    a("v_mul_u32_u24 v7, 1280, v3\nv_lshl_add_u32 v7, v4, 4, v7")
    for q in range(3):
        a(f"s_add_u32 s36, s35, {q*1024}")
        a("s_mul_i32 s37, s36, 3277\ns_lshr_b32 s37, s37, 16")
        a("s_mul_i32 s38, s37, 20\ns_sub_u32 s38, s36, s38")
        a("s_mul_i32 s39, s37, 20480\ns_lshl_b32 s38, s38, 6\ns_add_u32 s39, s39, s38")
        a(f"buffer_load_dwordx4 v[{16+4*q}:{19+4*q}], v7, s[12:15], s39 offen")
        a(f"s_lshl_b32 s{54+q}, s36, 10\ns_add_u32 s{54+q}, s{54+q}, {XF0}")
    a("s_mov_b32 s57, s35")
    xs_n = [0]
    def xstores():
        L = f"prep_xd{xs_n[0]}"; xs_n[0] += 1
        for q in range(3):
            if q == 2: a(f"s_cmp_lt_u32 s57, 512\ns_cbranch_scc0 {L}")
            a(f"buffer_store_dwordx4 v[{16+4*q}:{19+4*q}], v5, s[8:11], s{54+q} offen" + PSC)
        a.label(L)
    a("s_cmp_ge_u32 s2, 252\ns_cbranch_scc0 prep_go")
    a("s_waitcnt vmcnt(0)")
    xstores()
    a("s_branch prep_done")
    a.label("prep_go")
    def gather(voff, srdn, rowbytes, soff_base_sgpr, nfr, ks_stride_bytes):
        for f in range(nfr):
            for jj in range(8):
                a(f"s_add_u32 s40, s{soff_base_sgpr}, {f*ks_stride_bytes + jj*rowbytes}")
                a(f"buffer_load_ushort v{64+8*f+jj}, v{voff}, s[{srdn}:{srdn+3}], s40 offen")
    def pack(nfr):
        a("s_waitcnt vmcnt(0)")
        xstores()
        for f in range(nfr):
            for q in range(4):
                a(f"v_lshl_or_b32 v{32+4*f+q}, v{64+8*f+2*q+1}, 16, v{64+8*f+2*q}")
    def colsum_and_store(dst_soff_sgpr, dst_ks_stride, cs_off_sgpr):
        a("v_mov_b32 v132, 0x3f803f80\nv_mov_b32 v133, 0x3f803f80\nv_mov_b32 v134, 0x3f803f80\nv_mov_b32 v135, 0x3f803f80")
        pack(5)
        for f in range(5):
            a(f"s_add_u32 s40, s{dst_soff_sgpr}, {f*dst_ks_stride}")
            a(f"buffer_store_dwordx4 v[{32+4*f}:{35+4*f}], v5, s[8:11], s40 offen" + PSC)
            a(f"v_mfma_f32_16x16x32_bf16 v[28:31], v[{32+4*f}:{35+4*f}], v[132:135], " + ("0" if f == 0 else "v[28:31]"))
        a("v_lshlrev_b32 v6, 4, v4")
        a("s_lshl_b32 s41, s34, 6")
        a("v_add_u32 v6, s41, v6")
        a("v_cmp_eq_u32 vcc, 0, v3")
        a("s_and_saveexec_b64 s[42:43], vcc")
        a("ds_write_b128 v6, v[28:31]")
        a("s_mov_b64 exec, s[42:43]")
        a("s_waitcnt lgkmcnt(0)")
        a("s_barrier")
        a("v_lshlrev_b32 v6, 2, v0")
        a("v_cmp_gt_u32 vcc, 16, v0")
        a("s_and_saveexec_b64 s[42:43], vcc")
        a(f"s_cbranch_execz {name}_exit")
        a("ds_read_b32 v7, v6\nds_read_b32 v8, v6 offset:64\nds_read_b32 v9, v6 offset:128\nds_read_b32 v10, v6 offset:192")
        a("s_waitcnt lgkmcnt(0)")
        a("v_add_f32 v7, v7, v8\nv_add_f32 v9, v9, v10\nv_add_f32 v7, v7, v9")
        a(f"buffer_store_dword v7, v6, s[8:11], s{cs_off_sgpr} offen")
        a("s_waitcnt vmcnt(0)")
        a("s_endpgm")
    a("s_cmp_lt_u32 s2, 40\ns_cbranch_scc1 prep_wq")
    a("s_cmp_lt_u32 s2, 43\ns_cbranch_scc1 prep_kv")
    a("s_cmp_lt_u32 s2, 151\ns_cbranch_scc1 prep_w1")
    a("s_branch prep_plain")
    a.label("prep_wq")
    srd(a, 12, 6, 0, D * D * 2)
    a("s_mul_i32 s35, s2, 52429\ns_lshr_b32 s35, s35, 18")
    a("s_mul_i32 s36, s35, 5\ns_sub_u32 s36, s2, s36")
    a("v_mul_u32_u24 v7, 10240, v4")
    a("s_lshl_b32 s37, s2, 5")
    a("v_lshl_add_u32 v7, v3, 1, v7\nv_add_u32 v7, s37, v7")
    a(f"s_mul_i32 s38, s34, {5*32*1280}")
    gather(7, 12, 1280, 38, 5, 32 * 1280)
    a(f"s_mul_i32 s44, s35, {SL*KB}\ns_mul_i32 s45, s34, {25*KB}\ns_add_u32 s44, s44, s45\ns_lshl_b32 s45, s36, 10\ns_add_u32 s44, s44, s45\ns_add_u32 s44, s44, {WST + (FQ+20)*KB}")
    a(f"s_mul_i32 s46, s35, 384\ns_lshl_b32 s45, s36, 6\ns_add_u32 s46, s46, s45\ns_add_u32 s46, s46, {CSQ}")
    colsum_and_store(44, 5 * KB, 46)
    a.label("prep_kv")
    srd(a, 12, 24, 0, D * DH * 2)
    srd(a, 16, 26, 0, D * DH * 2)
    a("s_sub_u32 s35, s2, 40")
    for r in range(64, 104): a(f"v_mov_b32 v{r}, 0")
    BIG = 0x40000000
    a("v_and_b32 v8, 3, v3\nv_lshrrev_b32 v9, 2, v3")
    a("s_cmp_eq_u32 s35, 0\ns_cbranch_scc1 prep_kv0")
    a("s_cmp_eq_u32 s35, 1\ns_cbranch_scc1 prep_kv1")
    a(f"v_mov_b32 v10, {BIG}\nv_mov_b32 v11, {BIG}")
    a("v_lshlrev_b32 v12, 1, v3\nv_add_u32 v12, 32, v12")
    a("v_cmp_gt_u32 vcc, 4, v3\nv_cndmask_b32 v10, v10, v12, vcc")
    a("v_lshlrev_b32 v12, 1, v8")
    a("v_add_u32 v13, 16, v12\nv_add_u32 v14, 36, v12")
    a("v_cmp_eq_u32 vcc, 1, v9\nv_cndmask_b32 v11, v11, v13, vcc")
    a("v_cmp_eq_u32 vcc, 2, v9\nv_cndmask_b32 v11, v11, v14, vcc")
    a(f"v_mov_b32 v12, {BIG}\nv_cmp_lt_u32 vcc, 1, v8\nv_cndmask_b32 v11, v11, v12, vcc")
    a("s_branch prep_kvgo")
    a.label("prep_kv0")
    a(f"v_lshlrev_b32 v10, 1, v3\nv_mov_b32 v11, {BIG}")
    a("s_branch prep_kvgo")
    a.label("prep_kv1")
    a(f"v_mov_b32 v10, {BIG}")
    a("v_mov_b32 v11, 0\nv_cmp_eq_u32 vcc, 1, v9\nv_cndmask_b32 v11, v11, 10, vcc")
    a("v_cmp_eq_u32 vcc, 2, v9\nv_cndmask_b32 v11, v11, 4, vcc")
    a("v_cmp_eq_u32 vcc, 3, v9\nv_cndmask_b32 v11, v11, 14, vcc")
    a("v_add_u32 v11, v11, v8\nv_lshlrev_b32 v11, 1, v11")
    a.label("prep_kvgo")
    a("v_mul_u32_u24 v12, 320, v4")
    a("v_add_u32 v10, v10, v12\nv_add_u32 v11, v11, v12")
    a(f"s_mul_i32 s38, s34, {5*32*40}")
    a(f"v_cmp_gt_u32 vcc, {BIG}, v10\ns_and_saveexec_b64 s[48:49], vcc")
    a("s_cbranch_execz prep_kv_skipk")
    gather(10, 12, 40, 38, 5, 32 * 40)
    a.label("prep_kv_skipk")
    a("s_mov_b64 exec, s[48:49]")
    a(f"v_cmp_gt_u32 vcc, {BIG}, v11\ns_and_saveexec_b64 s[48:49], vcc")
    a("s_cbranch_execz prep_kv_skipv")
    gather(11, 16, 40, 38, 5, 32 * 40)
    a.label("prep_kv_skipv")
    a("s_mov_b64 exec, s[48:49]")
    a(f"s_mul_i32 s44, s35, {SL*KB}\ns_mul_i32 s45, s34, {5*KB}\ns_add_u32 s44, s44, s45\ns_add_u32 s44, s44, {WST + FQ*KB}")
    a(f"s_mul_i32 s46, s35, 384\ns_add_u32 s46, s46, {CSQ + 5*64}")
    colsum_and_store(44, 1 * KB, 46)
    a.label("prep_w1")
    srd(a, 12, 30, 0, D * F * 2)
    a("s_sub_u32 s35, s2, 43")
    a("s_mul_i32 s36, s35, 2428\ns_lshr_b32 s36, s36, 16")
    a("s_mul_i32 s37, s36, 27\ns_sub_u32 s37, s35, s37")
    a("s_lshl_b32 s36, s36, 1")
    a("s_cmp_ge_u32 s37, 14\ns_cbranch_scc0 prep_w1a")
    a("s_add_u32 s36, s36, 1\ns_sub_u32 s37, s37, 14")
    a.label("prep_w1a")
    a("v_mul_u32_u24 v7, 27648, v4")
    a("s_lshl_b32 s39, s35, 5")
    a("v_lshl_add_u32 v7, v3, 1, v7\nv_add_u32 v7, s39, v7")
    a(f"s_mul_i32 s38, s34, {5*32*3456}")
    gather(7, 12, 3456, 38, 5, 32 * 3456)
    a(f"s_mul_i32 s44, s36, {SL*KB}\ns_mul_i32 s45, s34, {5*14*KB}\ns_add_u32 s44, s44, s45\ns_lshl_b32 s45, s37, 10\ns_add_u32 s44, s44, s45\ns_add_u32 s44, s44, {WST + F1*KB}")
    a(f"s_mul_i32 s46, s36, 896\ns_lshl_b32 s45, s37, 6\ns_add_u32 s46, s46, s45\ns_add_u32 s46, s46, {CS1}")
    colsum_and_store(44, 14 * KB, 46)
    a.label("prep_plain")
    a("s_sub_u32 s35, s2, 151\ns_lshl_b32 s35, s35, 2\ns_add_u32 s35, s35, s34")
    a("s_cmp_lt_u32 s35, 120\ns_cbranch_scc1 prep_wo")
    a("s_sub_u32 s35, s35, 120")
    a("s_cmp_ge_u32 s35, 280\ns_cbranch_scc1 prep_bias")
    srd(a, 12, 32, 0, F * D * 2)
    a(f"s_mov_b32 s50, {WST + F2*KB}\ns_mov_b32 s51, 6\ns_mov_b32 s52, 2")
    a("s_branch prep_pl2")
    a.label("prep_wo")
    srd(a, 12, 28, 0, D * D * 2)
    a(f"s_mov_b32 s50, {WST + FO*KB}\ns_mov_b32 s51, 2\ns_mov_b32 s52, 0")
    a.label("prep_pl2")
    a("s_mul_i32 s36, s35, 1639\ns_lshr_b32 s36, s36, 16")
    a("s_mul_i32 s37, s36, 40\ns_sub_u32 s37, s35, s37")
    a("s_mul_i32 s38, s37, 52429\ns_lshr_b32 s38, s38, 18")
    a("s_mul_i32 s39, s38, 5\ns_sub_u32 s39, s37, s39")
    a("v_mul_u32_u24 v7, 10240, v4")
    a("s_lshl_b32 s45, s37, 5")
    a("v_lshl_add_u32 v7, v3, 1, v7\nv_add_u32 v7, s45, v7")
    a(f"s_mul_i32 s44, s38, {SL*KB}\ns_add_u32 s44, s44, s50\ns_mul_i32 s45, s36, {40*KB}\ns_add_u32 s44, s44, s45\ns_lshl_b32 s45, s39, 10\ns_add_u32 s44, s44, s45")
    a(f"s_mul_i32 s38, s36, {8*32*1280}")
    gather(7, 12, 1280, 38, 8, 32 * 1280)
    pack(8)
    for f in range(8):
        if f >= 4:
            a(f"s_cmp_eq_u32 s36, s51\ns_cbranch_scc0 prep_st{f}")
            a(f"s_cmp_gt_u32 s52, {f-4}\ns_cbranch_scc0 prep_done")
            a.label(f"prep_st{f}")
        a(f"s_add_u32 s40, s44, {f*5*KB}")
        a(f"buffer_store_dwordx4 v[{32+4*f}:{35+4*f}], v5, s[8:11], s40 offen" + PSC)
    a.label("prep_done")
    a("s_waitcnt vmcnt(0)")
    a("s_endpgm")
    a.label("prep_bias")
    a("s_waitcnt vmcnt(0)")
    xstores()
    a("v_mov_b32 v8, 0\nv_mov_b32 v9, 0\nv_mov_b32 v10, 0\nv_mov_b32 v11, 0")
    a("v_lshlrev_b32 v6, 4, v0")
    nz = FLAG_BYTES // 4096
    for r in range(nz):
        a(f"s_mov_b32 s40, {FLAGS + r*4096}\nbuffer_store_dwordx4 v[8:11], v6, s[8:11], s40 offen")
    a("s_cmp_eq_u32 s35, 280\ns_cbranch_scc0 prep_done2")
    a("v_mov_b32 v7, 0")
    for idx in (32 + 6, 32 + 10, 32 + 12, 32 + 13):
        a(f"v_cmp_eq_u32 vcc, {idx}, v1\nv_cndmask_b32 v7, v7, 1.0, vcc")
    a("v_lshlrev_b32 v6, 2, v1\nv_cmp_gt_u32 vcc, 48, v1\ns_and_saveexec_b64 s[42:43], vcc")
    a(f"s_mov_b32 s40, {BKV}\nbuffer_store_dword v7, v6, s[8:11], s40 offen")
    a.label("prep_done2")
    a("s_waitcnt vmcnt(0)")
    a("s_endpgm")
    kernel_end(a, name)
    return a.out, descriptor(name, 144), (name, 256, 256, 1024)

VB, VA, VST, VSO, VONE, RES = 64, 144, 36, 44, 52, 246

class Prof:
    n = 0
LDTS = [False]
SEGTS = [False]
def ts(a, label, loader=False, seg=False):
    if not PROFILE: return
    if PROFLD != loader: return
    if PROFSEG != seg: return
    if Prof.n >= 26: return
    i = Prof.n; Prof.n += 1
    assert i < 26, i
    a(f"s_memtime s[98:99]\ns_waitcnt lgkmcnt(0)\ns_mov_b32 s{70+i}, s98")
    TSN.append(label)
TSN = []

def unpack2(a, dlo, dhi, src):
    a(f"v_lshlrev_b32 v{dlo}, 16, v{src}")
    a(f"v_and_b32 v{dhi}, 0xffff0000, v{src}")

uid = [0]
def newlab(p):
    uid[0] += 1
    return f"{p}_{uid[0]}"

def await_flags(a, mask, off_sgpr, vtmp=56):
    L, Dn = newlab("poll"), newlab("polld")
    a(f"v_lshlrev_b32 v{vtmp}, 2, v1")
    a(f"s_mov_b64 s[42:43], exec\ns_mov_b64 exec, {mask:#x}\ns_mov_b32 s44, 0")
    a.label(L)
    a(f"buffer_load_dword v{vtmp+1}, v{vtmp}, s[8:11], s{off_sgpr} offen sc1")
    a("s_add_u32 s44, s44, 1")
    a("s_waitcnt vmcnt(0)")
    a(f"v_cmp_eq_u32 vcc, 0, v{vtmp+1}")
    a(f"s_cmp_eq_u64 vcc, 0\ns_cbranch_scc1 {Dn}")
    a(f"s_cmp_gt_u32 s44, {SPIN_MAX}\ns_cbranch_scc1 {Dn}")
    a(("" if "nosleep" in sys.argv else "s_sleep 1\n") + f"s_branch {L}")
    a.label(Dn)
    a("s_mov_b64 exec, s[42:43]")

def set_flag(a, off_sgpr, vtmp=56, second=None):
    L1, L2 = newlab("sf"), newlab("sf")
    a("s_waitcnt vmcnt(0)")
    a(f"v_mov_b32 v{vtmp}, 0\nv_mov_b32 v{vtmp+1}, 1")
    a("s_mov_b64 s[42:43], exec\ns_mov_b64 exec, 1")
    a(f"s_cmp_eq_u32 s59, 1\ns_cbranch_scc1 {L1}")
    a(f"buffer_store_dword v{vtmp+1}, v{vtmp}, s[8:11], s{off_sgpr} offen sc1")
    if second is not None: a(f"buffer_store_dword v{vtmp+1}, v{vtmp}, s[8:11], s{second} offen sc1")
    a(f"s_branch {L2}")
    a.label(L1)
    a(f"buffer_store_dword v{vtmp+1}, v{vtmp}, s[8:11], s{off_sgpr} offen")
    if second is not None: a(f"buffer_store_dword v{vtmp+1}, v{vtmp}, s[8:11], s{second} offen")
    a.label(L2)
    a("s_mov_b64 exec, s[42:43]")

def xstore(a, text):
    L1, L2 = newlab("xs"), newlab("xs")
    a(f"s_cmp_eq_u32 s59, 1\ns_cbranch_scc1 {L1}")
    a(text.replace("@SC", "sc1"))
    a(f"s_branch {L2}")
    a.label(L1)
    a(text.replace("@SC", ""))
    a.label(L2)

def xf_off(a, dst, kind, extra_sgpr=None, extra_imm=0):
    a(f"s_lshl_b32 s{dst}, s37, 13\ns_lshl_b32 s45, s35, 8\ns_add_u32 s{dst}, s{dst}, s45")
    a(f"s_and_b32 s45, s34, 3\ns_lshl_b32 s45, s45, 6\ns_add_u32 s{dst}, s{dst}, s45")
    a(f"s_add_u32 s{dst}, s{dst}, {XF + kind*16384 + extra_imm}")
    if extra_sgpr is not None: a(f"s_add_u32 s{dst}, s{dst}, s{extra_sgpr}")

SIDES = [(224, 272), (512, 560)] if "noside" not in sys.argv else []
if "side32" in sys.argv: SIDES = [(224, 256), (512, 544)]
def is_side(f): return any(a_ <= f < b_ for a_, b_ in SIDES)
def rho(f):
    return f - sum(max(0, min(f, b_) - a_) for a_, b_ in SIDES)
def rho_inv(r):
    f = r
    for a_, b_ in SIDES:
        if f >= a_: f += b_ - a_
    return f
def lds_of(f):
    for a_, b_ in SIDES:
        if a_ <= f < b_: return KVL + (f - a_) * KB
    return (rho(f) % RING) * KB
SLR = rho(SL)
class Ring:
    def __init__(self):
        self.I = RING
        self.q = [f for f in range(0, RING, 16) for _ in range(4)]
        self.side = set()
    def drained(self): self.q = []
def loader_issue(a, frm, upto, ring=None):
    assert frm % 16 == 0 and upto % 16 == 0
    skip = None
    for r in range(frm, upto, 16):
        if r == SLP or (r > SLP and r == frm):
            skip = newlab("ldsk")
            a(f"s_cmp_eq_u32 s37, 1\ns_cbranch_scc1 {skip}")
        if SLR <= r < SLP: continue
        f = rho_inv(r % SLP)
        a(f"s_add_u32 m0, s69, {(r % RING) * KB}")
        a(f"s_add_u32 s44, s60, {f * KB}")
        for q in range(4):
            a(f"buffer_load_dwordx4 v5, s[8:11], s44 offen offset:{q*1024} lds")
            if ring is not None and r < SLP: ring.q.append(f)
    if skip: a.label(skip)

def side_issue(a, ring, k):
    a_, b_ = SIDES[k]
    for f in range(a_, b_, 16):
        a(f"s_add_u32 m0, s69, {KVL + (f - a_) * KB}")
        a(f"s_add_u32 s44, s60, {f * KB}")
        for q in range(4):
            a(f"buffer_load_dwordx4 v5, s[8:11], s44 offen offset:{q*1024} lds")
            ring.q.append(f)
    ring.side.add(k)

def ring_refill(a, ring, consumed, cap=None):
    c = SLP if consumed >= SL else rho(consumed)
    upto = (c + RING) // 16 * 16
    if cap is not None: upto = min(upto, (rho(cap) + 15) // 16 * 16)
    if upto > ring.I:
        loader_issue(a, ring.I, upto, ring)
        ring.I = upto

def loader_bp(a, ring, need, consumed, cap=None, refill=True):
    if need is not None:
        assert rho(need) <= ring.I, (need, ring.I)
        for k, (a_, b_) in enumerate(SIDES):
            if need > a_ and consumed < b_: assert k in ring.side, (need, k)
        last = -1
        for i, f in enumerate(ring.q):
            if f is not None and f < need: last = i
        if last >= 0:
            n = len(ring.q) - 1 - last
            a(f"s_waitcnt vmcnt({min(n,63)})")
            ring.q = ring.q[last + 1:]
    a("s_barrier")
    if refill: ring_refill(a, ring, consumed, cap)

def stats_finalize(a, accS, accQ, vRho, vMu, tmp, double_ln):
    t0, t1, t2, t3 = tmp, tmp + 1, tmp + 2, tmp + 3
    a(f"v_and_b32 v{t0}, 3, v1")
    a(f"v_mov_b32 v{t1}, v{accQ}")
    for r in (1, 2, 3):
        a(f"v_cmp_eq_u32 vcc, {r}, v{t0}")
        a(f"v_cndmask_b32 v{t1}, v{t1}, v{accQ+r}, vcc")
    a(f"v_lshrrev_b32 v{t2}, 2, v3\nv_lshlrev_b32 v{t2}, 4, v{t2}\nv_add_u32 v{t2}, v{t2}, v3\nv_lshlrev_b32 v{t2}, 2, v{t2}")
    a(f"ds_bpermute_b32 v{t1}, v{t2}, v{t1}")
    a(f"v_mul_f32 v{t0}, {f2u(1.0/D):#x}, v{accS}")
    a("s_waitcnt lgkmcnt(0)")
    a(f"v_mul_f32 v{t1}, {f2u(1.0/D):#x}, v{t1}")
    a(f"v_fma_f32 v{t1}, -v{t0}, v{t0}, v{t1}")
    a(f"v_max_f32 v{t1}, 0, v{t1}")
    a(f"v_add_f32 v{t2}, {f2u(1e-5):#x}, v{t1}")
    a(f"v_rsq_f32 v{t2}, v{t2}")
    if double_ln:
        a(f"v_mul_f32 v{t3}, v{t2}, v{t2}")
        a(f"v_mul_f32 v{t3}, v{t3}, v{t1}")
        a(f"v_add_f32 v{t3}, {f2u(1e-5):#x}, v{t3}")
        a(f"v_rsq_f32 v{t3}, v{t3}")
        a(f"v_mul_f32 v{t2}, v{t2}, v{t3}")
    a(f"v_mov_b32 v{vRho}, v{t2}")
    a(f"v_mul_f32 v{vMu}, v{t0}, v{t2}")

def set_bases(a, delta):
    a(f"s_and_b32 s45, s34, 1\ns_mul_i32 s44, s45, {delta*KB}\nv_add_u32 v6, s44, v5\nv_add_u32 v7, 0x10000, v6\nv_add_u32 v59, {KVL}, v6")
    a(f"s_xor_b32 s45, s45, 1\ns_mul_i32 s44, s45, {(RING-delta)*KB}\nv_add_u32 v2, s44, v5")
def rdA(a, f0, delta, reg):
    a0, a1 = lds_of(f0), lds_of(f0 + delta)
    if not is_side(f0) and not is_side(f0 + delta):
        if a1 - a0 == delta * KB:
            base = 6 if a0 < 65536 else 7
            return a.lg(f"ds_read_b128 v[{reg}:{reg+3}], v{base} offset:{a0 % 65536}")
        if a1 - a0 == (delta - RING) * KB:
            return a.lg(f"ds_read_b128 v[{reg}:{reg+3}], v2 offset:{a0 - (RING - delta) * KB}")
    if is_side(f0) and is_side(f0 + delta) and a1 - a0 == delta * KB:
        return a.lg(f"ds_read_b128 v[{reg}:{reg+3}], v59 offset:{a0 - KVL}")
    a(f"s_mov_b32 s44, {a1}\ns_bitcmp1_b32 s34, 0\ns_cselect_b32 s45, s44, {a0}\nv_add_u32 v58, s45, v5")
    return a.lg(f"ds_read_b128 v[{reg}:{reg+3}], v58")

def make_units(nA, segs, G):
    return [(i, t0, min(nA, t0 + G), si) for si, (i0, i1) in enumerate(segs) for i in range(i0, i1) for t0 in range(0, nA, G)]

def kloop2(a, fbase, span, delta, nA, segs, breg, acc0, acc1, stats, G, before=None, after=None, hook=None, D=1):
    units = make_units(nA, segs, G)
    NB = D + 1
    def rd(n, k):
        i, t0, t1, si = units[n]
        return rdA(a, fbase + i * span + t0 + k, delta, VA + ((n % NB) * G + k) * 4)
    def cnt(n): return units[n][2] - units[n][1]
    nbar = [0]
    def barrier():
        if hook: hook(nbar[0], False)
        a("s_barrier")
        if hook: hook(nbar[0], True)
        nbar[0] += 1
    barrier()
    seen = 0
    pend = {}
    for n in range(min(D, len(units))):
        if units[n][3] > seen: barrier(); seen = units[n][3]
        pend[n] = [rd(n, k) for k in range(cnt(n))]
    for n, u in enumerate(units):
        i, t0, t1, si = u
        nx = n + D if n + D < len(units) else None
        if nx is not None and units[nx][3] > seen:
            barrier(); seen = units[nx][3]
        if t0 == 0 and before: before(i)
        b0, b1 = breg(i)
        def m(d, A, B):
            c = "0" if i == 0 else f"v[{d}:{d+3}]"
            a(f"v_mfma_f32_16x16x32_bf16 v[{d}:{d+3}], v[{A}:{A+3}], v[{B}:{B+3}], {c}")
        nn = cnt(nx) if nx is not None else 0
        nxt = []
        for t in range(t0, t1):
            ra = VA + ((n % NB) * G + t - t0) * 4
            a.wait_lg(pend[n][t - t0])
            m(acc0 + 4 * t, ra, b0)
            if len(nxt) < nn: nxt.append(rd(nx, len(nxt)))
            m(acc1 + 4 * t, ra, b1)
            if len(nxt) < nn and (t - t0) % 2 == 0 and nn > (t1 - t0): nxt.append(rd(nx, len(nxt)))
        while len(nxt) < nn: nxt.append(rd(nx, len(nxt)))
        if stats and t1 == nA:
            m(VST, VONE, b0); m(VST + 4, b0, b0)
            if stats == 2: m(VSO, VONE, b1); m(VSO + 4, b1, b1)
        if nx is not None: pend[nx] = nxt
        if t1 == nA and after: after(i)

def loader_kloop2(a, ring, fbase, span, nA, segs, G, D=1, docap=False):
    units = make_units(nA, segs, G)
    cap = fbase + segs[-1][1] * span if docap else None
    loader_bp(a, ring, fbase + segs[0][1] * span, fbase, cap)
    seen = 0
    for n in range(min(D, len(units))):
        if units[n][3] > seen:
            seen = units[n][3]; loader_bp(a, ring, fbase + segs[seen][1] * span, fbase, cap)
    for n, u in enumerate(units):
        nx = n + D if n + D < len(units) else None
        if nx is not None and units[nx][3] > seen:
            seen = units[nx][3]
            loader_bp(a, ring, fbase + segs[seen][1] * span, fbase + u[0] * span, cap)

def store_tiles(a, srcs, ntiles, vaddr16, vaddr8, srd_, soff, imm_stride, sc, tmp=56):
    st = []
    i = 0
    while i < ntiles:
        if i + 1 < ntiles:
            t = tmp + 4 * ((i // 2) % 2)
            a(f"v_mov_b32 v{t}, v{srcs[i]}\nv_mov_b32 v{t+1}, v{srcs[i]+1}\nv_mov_b32 v{t+2}, v{srcs[i+1]}\nv_mov_b32 v{t+3}, v{srcs[i+1]+1}")
            a(f"v_permlane16_swap_b32 v{t}, v{t+2}\nv_permlane16_swap_b32 v{t+1}, v{t+3}")
            st.append(f"buffer_store_dwordx4 v[{t}:{t+3}], v{vaddr16}, s[{srd_}:{srd_+3}], {soff} offen offset:{i*imm_stride} {sc}")
            i += 2
        else:
            st.append(f"buffer_store_dwordx2 v[{srcs[i]}:{srcs[i]+1}], v{vaddr8}, s[{srd_}:{srd_+3}], {soff} offen offset:{i*imm_stride} {sc}")
            i += 1
    if sc == "@SC": xstore(a, "\n".join(st))
    else: a("\n".join(st))

def frag_addr(a, v16, v8, Tsgpr, tmp):
    a(f"v_lshrrev_b32 v{v8}, 1, v4\nv_lshlrev_b32 v{v8}, 8, v{v8}\nv_lshl_add_u32 v{v8}, v3, 4, v{v8}")
    a(f"s_lshl_b32 s45, s{Tsgpr}, 9\nv_add_u32 v{v8}, s45, v{v8}")
    a(f"v_and_b32 v{tmp}, 1, v4\nv_lshl_add_u32 v{v16}, v{tmp}, 9, v{v8}\nv_lshl_add_u32 v{v8}, v{tmp}, 3, v{v8}")

def code_prefetch(a, first, last, wave, nkb=32):
    L = newlab("cpf")
    a(f"s_cmp_eq_u32 s34, {wave}\ns_cbranch_scc0 {L}")
    a(f"s_getpc_b64 s[40:41]")
    here = newlab("pc"); a.label(here)
    a(f"s_sub_u32 s40, s40, {here}-{first}\ns_subb_u32 s41, s41, 0")
    a("v_lshlrev_b32 v8, 6, v1")
    for i in range(nkb // 4):
        a(f"global_load_dword v{10+i}, v8, s[40:41]")
        a("v_add_u32 v8, 4096, v8")
    a.label(L)

def gen_main():
    a = Asm(); name = "main_kernel"
    kernel_begin(a, name, 256)
    a("s_load_dwordx2 s[4:5], s[0:1], 96")
    a("s_load_dwordx2 s[6:7], s[0:1], 0")
    a("s_load_dwordx2 s[24:25], s[0:1], 56")
    a("s_load_dwordx4 s[28:31], s[0:1], 72")
    a("v_and_b32 v1, 63, v0")
    a("v_lshrrev_b32 v2, 6, v0")
    a("v_readfirstlane_b32 s34, v2")
    a("v_and_b32 v3, 15, v1\nv_lshrrev_b32 v4, 4, v1\nv_lshlrev_b32 v5, 4, v1")
    a("s_and_b32 s35, s2, 31\ns_lshr_b32 s36, s2, 5\ns_mov_b32 s37, 0")
    a("s_waitcnt lgkmcnt(0)")
    a("s_mov_b32 s26, s28\ns_mov_b32 s27, s29\ns_mov_b32 s28, s30\ns_mov_b32 s29, s31")
    srd(a, 8, 4, 0, WS_BYTES)
    a("s_lshl_b32 s67, s35, 2\ns_and_b32 s38, s34, 3\ns_add_u32 s67, s67, s38\ns_lshl_b32 s66, s67, 4\ns_xor_b32 s65, s67, 1\ns_mul_i32 s68, s36, 5")
    a(f"s_lshl_b32 s69, s38, 12\ns_mul_i32 s60, s36, {SL*KB}\ns_add_u32 s60, s60, s69\ns_add_u32 s60, s60, {WST}")
    a("s_mov_b32 s59, 0\ns_getreg_b32 s58, hwreg(HW_REG_XCC_ID, 0, 4)\ns_add_u32 s58, s58, 1")
    a("s_cmp_eq_u32 s34, 0\ns_cbranch_scc0 pro_x")
    a(f"s_lshl_b32 s40, s35, 5\ns_lshl_b32 s41, s36, 2\ns_add_u32 s40, s40, s41\ns_add_u32 s40, s40, {XID}\nv_mov_b32 v8, 0\nv_mov_b32 v9, s58")
    a("s_mov_b64 s[42:43], exec\ns_mov_b64 exec, 1\nbuffer_store_dword v9, v8, s[8:11], s40 offen sc1\ns_mov_b64 exec, s[42:43]")
    a.label("pro_x")
    ts(a, "start")
    if PROFOUT: a("s_memrealtime s[96:97]\ns_waitcnt lgkmcnt(0)")
    if "cpf" in sys.argv:
        code_prefetch(a, "main_kernel", "main_kernel_exit", 7)
    a("s_cmp_ge_u32 s34, 4\ns_cbranch_scc0 pro_c")
    loader_issue(a, 0, 32 if "lateW" in sys.argv else RING)
    a("s_branch pro_d")
    a.label("pro_c")
    a("v_add_u32 v6, s66, v3")
    a("v_mul_u32_u24 v56, 1280, v6\nv_lshl_add_u32 v56, v4, 3, v56\ns_mul_i32 s40, s36, 160\nv_add_u32 v56, s40, v56")
    srd(a, 12, 6, 0, XBYTES)
    for i in range(5):
        a(f"buffer_load_dwordx2 v[{RES+2*i}:{RES+2*i+1}], v56, s[12:15], 0 offen offset:{i*32}")
    a.label("pro_d")
    a.label("layer_top")
    ring = Ring()
    ld = Asm()
    def tile_offs(base_imm, layer_stride, tile_bytes, ksplit):
        a(f"s_mul_i32 s40, s67, {tile_bytes}\ns_mul_i32 s41, s65, {tile_bytes}")
        if layer_stride:
            a(f"s_mul_i32 s45, s37, {layer_stride}\ns_add_u32 s45, s45, {base_imm}")
        else:
            a(f"s_mov_b32 s45, {base_imm}")
        if ksplit:
            a("s_and_b32 s44, s34, 1\ns_lshl_b32 s44, s44, 10\ns_add_u32 s45, s45, s44")
        a("s_add_u32 s40, s40, s45\ns_add_u32 s41, s41, s45")
    class BL:
        def __init__(self, stride, nslots, sc="sc1", extra=()):
            self.bases = [VB + 8 * k for k in range(nslots)] + list(extra)
            self.stride, self.n, self.tag, self.cur, self.sc = stride, len(self.bases), {}, 0, sc
        def regs(self, i): r = self.bases[i % self.n]; return (r, r + 4)
        def load(self, i):
            o = i * self.stride
            if o - self.cur > 4095 - 1023 * 0 or o - self.cur >= 4096:
                d = (o - self.cur) // 4096 * 4096
                a(f"s_add_u32 s40, s40, {d}\ns_add_u32 s41, s41, {d}"); self.cur += d
            r0, r1 = self.regs(i)
            if "noB" in sys.argv and i >= 2:
                self.tag[i] = a.nvm; return
            a.vm(f"buffer_load_dwordx4 v[{r0}:{r0+3}], v5, s[8:11], s40 offen offset:{o - self.cur} {self.sc}")
            self.tag[i] = a.vm(f"buffer_load_dwordx4 v[{r1}:{r1+3}], v5, s[8:11], s41 offen offset:{o - self.cur} {self.sc}")
    def flag_line(dst, kind, tile_sgpr=None, pair=False, layer_delta=0):
        a(f"s_lshl_b32 s{dst}, s37, 13")
        if pair: a(f"s_and_b32 s45, s67, -2\ns_lshl_b32 s45, s45, 6")
        else: a(f"s_lshl_b32 s45, s{tile_sgpr}, 6")
        a(f"s_add_u32 s{dst}, s{dst}, s45\ns_add_u32 s{dst}, s{dst}, {XF + kind*16384 + layer_delta}")
    def reduce_pair(acc0, acc1, NT, stats, t0=56, cbar=False):
        a(f"s_and_b32 s45, s34, 3\ns_lshl_b32 s44, s45, 13\ns_add_u32 s44, s44, {KVL}\nv_add_u32 v{t0}, s44, v5")
        for t in range(NT): a(f"ds_write_b128 v{t0}, v[{acc1+4*t}:{acc1+4*t+3}] offset:{t*1024}")
        if stats:
            a(f"ds_write_b128 v{t0}, v[{VSO}:{VSO+3}] offset:{6*1024}\nds_write_b128 v{t0}, v[{VSO+4}:{VSO+7}] offset:{7*1024}")
        a(f"s_xor_b32 s45, s45, 1\ns_lshl_b32 s44, s45, 13\ns_add_u32 s44, s44, {KVL}\nv_add_u32 v{t0+1}, s44, v5")
        a("s_waitcnt lgkmcnt(0)\ns_barrier")
        for t in range(NT): a(f"ds_read_b128 v[{VA+4*t}:{VA+4*t+3}], v{t0+1} offset:{t*1024}")
        if stats:
            a(f"ds_read_b128 v[{VSO}:{VSO+3}], v{t0+1} offset:{6*1024}\nds_read_b128 v[{VSO+4}:{VSO+7}], v{t0+1} offset:{7*1024}")
        a("s_waitcnt lgkmcnt(0)")
        if cbar: a("s_barrier")
        for t in range(NT * 4): a(f"v_add_f32 v{acc0+t}, v{acc0+t}, v{VA+t}")
        if stats:
            for t in range(8): a(f"v_add_f32 v{VST+t}, v{VST+t}, v{VSO+t}")
    ones = lambda: a("v_mov_b32 v52, 0x3f803f80\nv_mov_b32 v53, 0x3f803f80\nv_mov_b32 v54, 0x3f803f80\nv_mov_b32 v55, 0x3f803f80")
    DEP = 2 if 'dep1' not in sys.argv else 1
    A0, A1 = 204, 224
    a("s_cmp_ge_u32 s34, 4\ns_cbranch_scc1 ld_qkv")
    a.nvm = 0; a.nlg = 0
    a(f"s_mul_i32 s45, s36, 384\ns_add_u32 s45, s45, {CSQ}\nv_lshlrev_b32 v58, 4, v4")
    for i in range(6): a(f"buffer_load_dwordx4 v[{8+4*i}:{8+4*i+3}], v58, s[8:11], s45 offen offset:{i*64}")
    a(f"s_min_u32 s46, s36, 2\ns_lshl_b32 s46, s46, 6\ns_add_u32 s46, s46, {BKV}")
    a(f"buffer_load_dwordx4 v[32:35], v58, s[8:11], s46 offen")
    ones(); set_bases(a, 1)
    a("s_cmp_eq_u32 s37, 0\ns_cbranch_scc1 qkv_l0")
    flag_line(46, 3, pair=True, layer_delta=-8192)
    await_flags(a, 0x00FF00FF, 46)
    a.label("qkv_l0")
    ts(a, "qkv_ready")
    tile_offs(XF0, X2 - XF0, 20480, True)
    bl = BL(2048, 10)
    for i in range(10): bl.load(i)
    kloop2(a, FQ, 2, 1, 1, [(0, 10)], bl.regs, A0, A1, 2, 1, before=lambda i: a.wait_vm(bl.tag[i]), D=DEP)
    ld.label("ld_qkv")
    if "lateW" in sys.argv:
        ld("s_cmp_eq_u32 s37, 0\ns_cbranch_scc0 ld_qkv1\ns_waitcnt vmcnt(0)\ns_barrier")
        loader_issue(ld, 32, RING)
        ld("s_branch ld_qkv2")
        ld.label("ld_qkv1")
    loader_kloop2(ld, ring, FQ, 2, 1, [(0, 10)], 1, D=DEP)
    if "lateW" in sys.argv: ld.label("ld_qkv2")
    ts(a, "qkv_p1")
    reduce_pair(A0, A1, 1, True)
    ld("s_barrier")
    stats_finalize(a, VST, VST + 4, 60, 61, 56, False)
    qs = DH ** -0.5 * LOG2E
    a(f"v_mul_f32 v62, {f2u(qs):#x}, v60\nv_mul_f32 v63, {f2u(qs):#x}, v61")
    a("s_cmp_lt_u32 s36, 3\ns_cbranch_scc0 qkv_nokv")
    i = 5
    for r in range(4):
        a(f"v_fma_f32 v{48+r}, -v61, v{8+4*i+r}, v{32+r}")
        a(f"v_fma_f32 v{48+r}, v60, v{A0+r}, v{48+r}")
    a("v_cvt_pk_bf16_f32 v52, v48, v49\nv_cvt_pk_bf16_f32 v53, v50, v51")
    a("s_and_b32 s38, s34, 1")
    a(f"s_and_b32 s41, s34, 3\ns_lshl_b32 s41, s41, 10\ns_add_u32 s41, s41, {KVL + 32*KB}")
    a(f"s_lshr_b32 s47, s67, 1\ns_lshl_b32 s47, s47, 12\ns_mul_i32 s48, s37, {KVB[1]-KVB[0]}\ns_add_u32 s47, s47, s48\ns_add_u32 s47, s47, {KVB[0]}")
    def vwrite(rowoff, hstride):
        a(f"v_bfe_u32 v54, v3, 2, 1\nv_mul_u32_u24 v54, {hstride}, v54")
        a("v_bfe_u32 v55, v3, 3, 1\nv_lshl_add_u32 v54, v55, 3, v54")
        a("v_and_b32 v55, 3, v3\nv_lshl_add_u32 v54, v55, 1, v54")
        a(f"v_add3_u32 v54, v54, v{rowoff}, s41")
        a("ds_write_b16 v54, v52\nds_write_b16_d16_hi v54, v52 offset:16\nds_write_b16 v54, v53 offset:32\nds_write_b16_d16_hi v54, v53 offset:48")
    a("s_cmp_eq_u32 s36, 0\ns_cbranch_scc1 qkv_kvA")
    a("s_cmp_eq_u32 s36, 1\ns_cbranch_scc1 qkv_kvB")
    a("v_lshlrev_b32 v47, 3, v3\nv_add_u32 v47, s41, v47\nv_add_u32 v54, 128, v47\nv_cmp_eq_u32 vcc, 3, v4\nv_cndmask_b32 v47, v47, v54, vcc")
    a("v_cmp_eq_u32 vcc, 0, v4\nv_cmp_eq_u32 s[48:49], 3, v4\ns_or_b64 vcc, vcc, s[48:49]")
    a("s_and_saveexec_b64 s[50:51], vcc")
    a("ds_write_b64 v47, v[52:53]")
    a("s_andn2_b64 exec, s[50:51], exec")
    a("v_lshlrev_b32 v47, 6, v4\nv_add_u32 v47, 192, v47")
    vwrite(47, 128)
    a("s_mov_b64 exec, s[50:51]")
    a("v_and_b32 v47, 7, v1\nv_lshlrev_b32 v47, 4, v47\nv_bfe_u32 v54, v1, 3, 2")
    a("s_lshl_b32 s49, s38, 7\ns_add_u32 s49, s49, 1024\ns_lshl_b32 s50, s38, 10\ns_add_u32 s50, s50, 2304")
    a("v_mov_b32 v55, s49\ns_add_u32 s51, s49, 256\nv_mov_b32 v50, s51\nv_cmp_eq_u32 vcc, 1, v54\nv_cndmask_b32 v55, v55, v50, vcc")
    a("v_mov_b32 v50, s50\nv_cmp_eq_u32 vcc, 2, v54\nv_cndmask_b32 v55, v55, v50, vcc")
    a("s_add_u32 s51, s50, 512\nv_mov_b32 v50, s51\nv_cmp_eq_u32 vcc, 3, v54\nv_cndmask_b32 v55, v55, v50, vcc")
    a("v_add_u32 v47, v47, v55")
    if "zrows" in sys.argv:
        a("v_bfe_u32 v54, v1, 3, 1\nv_lshlrev_b32 v54, 9, v54\nv_and_b32 v55, 7, v1\nv_lshl_add_u32 v54, v55, 4, v54\ns_add_u32 s51, s50, 128\nv_add_u32 v54, s51, v54")
        a("v_cmp_le_u32 vcc, 32, v1\nv_cndmask_b32 v47, v47, v54, vcc")
        a("s_mov_b32 s52, 1")
    a("s_branch qkv_kvout")
    a.label("qkv_kvB")
    a("v_lshlrev_b32 v47, 6, v4")
    vwrite(47, 256)
    a("v_lshlrev_b32 v47, 4, v3\nv_and_b32 v54, 1, v4\nv_lshl_add_u32 v47, v54, 9, v47\ns_lshl_b32 s49, s38, 10\ns_add_u32 s49, s49, 2048\nv_add_u32 v47, s49, v47")
    a("s_branch qkv_kvout")
    a.label("qkv_kvA")
    a("v_lshrrev_b32 v47, 1, v4\nv_lshlrev_b32 v47, 8, v47\nv_lshl_add_u32 v47, v3, 4, v47\nv_and_b32 v54, 1, v4\nv_lshl_add_u32 v47, v54, 3, v47\nv_add_u32 v47, s41, v47")
    a("ds_write_b64 v47, v[52:53]")
    a("s_lshl_b32 s49, s38, 8\nv_lshlrev_b32 v47, 4, v3\nv_and_b32 v54, 1, v4\nv_lshl_add_u32 v47, v54, 9, v47\nv_add_u32 v47, s49, v47")
    a.label("qkv_kvout")
    a("v_add_u32 v54, s41, v5")
    a("s_waitcnt lgkmcnt(0)")
    a("s_mov_b64 s[50:51], exec\ns_mov_b64 exec, 0xffffffff")
    a("ds_read_b128 v[48:51], v54\ns_waitcnt lgkmcnt(0)")
    a("buffer_store_dwordx4 v[48:51], v47, s[8:11], s47 offen sc1")
    if "zrows" in sys.argv:
        a("s_cmp_eq_u32 s36, 2\ns_cbranch_scc0 qkv_nz\ns_mov_b32 exec_lo, 0\ns_mov_b32 exec_hi, 0xffff")
        a("v_mov_b32 v48, 0\nv_mov_b32 v49, 0\nv_mov_b32 v50, 0\nv_mov_b32 v51, 0\nbuffer_store_dwordx4 v[48:51], v47, s[8:11], s47 offen sc1")
        a.label("qkv_nz")
    a("s_mov_b64 exec, s[50:51]")
    a.label("qkv_nokv")
    ts(a, "qkv_kv")
    set_bases(a, 5)
    segs = [(0, 2), (2, 4), (4, 6), (6, 8), (8, 10)]
    def kvhook(si, after):
        if si != (3 if DEP == 2 else 2): return
        if not after:
            a("s_waitcnt vmcnt(0)")
        else:
            Lx = newlab("kvpub")
            a(f"s_cmp_eq_u32 s34, 0\ns_cbranch_scc0 {Lx}\ns_cmp_lt_u32 s36, 3\ns_cbranch_scc0 {Lx}")
            a(f"s_lshl_b32 s46, s37, 13\ns_lshr_b32 s45, s35, 3\ns_lshl_b32 s45, s45, 11\ns_add_u32 s46, s46, s45\ns_add_u32 s46, s46, {KVF}\nv_lshlrev_b32 v56, 8, v1\nv_mov_b32 v57, 1")
            a("s_mov_b64 s[42:43], exec\ns_mov_b64 exec, 0xff")
            a("buffer_atomic_add v57, v56, s[8:11], s46 offen")
            a("s_mov_b64 exec, s[42:43]")
            a.label(Lx)
    kloop2(a, FQ + 20, 10, 5, 5, segs, bl.regs, A0, A1, 0, 5, hook=kvhook, D=DEP)
    loader_kloop2(ld, ring, FQ + 20, 10, 5, segs, 5, D=DEP)
    ts(a, "qkv_kloop")
    KV0 = 32
    def K1(b): return KV0 + 16 * b
    def K2(b): return KV0 + 16 * b + 4
    def V1(b): return KV0 + 16 * b + 8
    def ldK(b):
        a(f"buffer_load_dwordx4 v[{K1(b)}:{K1(b)+3}], v5, s[8:11], s47 offen sc1")
        a(f"buffer_load_dwordx2 v[{K2(b)}:{K2(b)+1}], v170, s[8:11], s47 offen offset:1024 sc1")
    def ldV(b, h):
        a(f"buffer_load_dwordx4 v[{V1(b)+4*h}:{V1(b)+4*h+3}], v5, s[8:11], s47 offen offset:{2048+1024*h} sc1")
    def kv_poll_issue():
        a(f"s_and_b32 s38, s34, 3\ns_lshl_b32 s46, s37, 13\ns_lshl_b32 s45, s38, 11\ns_add_u32 s46, s46, s45\ns_and_b32 s45, s2, 7\ns_lshl_b32 s45, s45, 8\ns_add_u32 s46, s46, s45\ns_add_u32 s46, s46, {KVF}\nv_mov_b32 v175, 0")
        a("buffer_load_dword v176, v175, s[8:11], s46 offen sc1")
    def kv_poll_wait():
        Lp, Ld = newlab("kvp"), newlab("kvpd")
        a("s_mov_b32 s48, 0\nv_mov_b32 v175, 0")
        a.label(Lp)
        a("s_add_u32 s48, s48, 1\ns_waitcnt vmcnt(0)")
        a("v_readfirstlane_b32 s45, v176")
        a(f"s_cmp_ge_u32 s45, 24\ns_cbranch_scc1 {Ld}")
        a(f"s_cmp_gt_u32 s48, {SPIN_MAX}\ns_cbranch_scc1 {Ld}")
        a("s_sleep 1\nbuffer_load_dword v176, v175, s[8:11], s46 offen sc1")
        a(f"s_branch {Lp}")
        a.label(Ld)
    def kv_prologue():
        a(f"s_and_b32 s38, s34, 3\ns_mul_i32 s47, s37, {KVB[1]-KVB[0]}\ns_add_u32 s47, s47, {KVB[0]}\ns_lshl_b32 s48, s38, 16\ns_add_u32 s47, s47, s48")
        ldK(0); ldV(0, 0); ldV(0, 1)
        a("s_add_u32 s47, s47, 4096")
        ldK(1)
    a("v_lshlrev_b32 v170, 3, v1")
    kv_poll_issue()
    reduce_pair(A0, A1, 5, False, t0=194)
    ld("s_barrier")
    kv_poll_wait()
    kv_prologue()
    a("s_and_b32 s38, s34, 3\ns_lshl_b32 s38, s38, 4\nv_add_u32 v184, s38, v3\nv_mul_u32_u24 v184, 192, v184")
    a(f"v_add_u32 v184, {KVL + 36*KB}, v184")
    for i in range(5):
        for r in range(4):
            a(f"v_mul_f32 v{188+r}, v63, v{8+4*i+r}")
            a(f"v_fma_f32 v{188+r}, v62, v{A0+4*i+r}, -v{188+r}")
        a(f"v_cvt_pk_bf16_f32 v192, v188, v189\nv_cvt_pk_bf16_f32 v193, v190, v191")
        a(f"v_add_u32 v185, {4*i}, v4\nv_mul_u32_u24 v186, 52, v185\nv_lshrrev_b32 v186, 8, v186\nv_add_u32 v185, v185, v186\nv_lshl_add_u32 v185, v185, 3, v184")
        a("ds_write_b64 v185, v[192:193]")
    a("s_waitcnt lgkmcnt(0)")
    a("s_barrier")
    loader_bp(ld, ring, None, FO)
    ld("s_branch att_top")
    a.label("att_top")
    ts(a, "qkv_done")
    QB_, P, SA, SB, O = 8, 64, 72, 88, 104
    def Q1(i): return QB_ + 6 * i
    def Q2(i): return QB_ + 6 * i + 4
    a("v_and_b32 v6, 31, v1\nv_lshrrev_b32 v7, 5, v1\nv_lshlrev_b32 v170, 3, v1")
    a("s_cmp_ge_u32 s34, 4\ns_cbranch_scc0 att_q")
    kv_poll_issue()
    a.label("att_q")
    a("s_and_b32 s38, s34, 3\ns_lshr_b32 s39, s34, 2")
    a("v_lshrrev_b32 v171, 2, v6\nv_mul_u32_u24 v171, 192, v171\nv_and_b32 v172, 3, v6\nv_mul_u32_u24 v172, 48, v172\nv_add_u32 v171, v171, v172")
    for i in range(4):
        a(f"s_add_u32 s40, s38, {i}\ns_and_b32 s40, s40, 3\ns_lshl_b32 s41, s39, 2\ns_add_u32 s40, s40, s41\ns_mul_i32 s40, s40, {8*192}\ns_add_u32 s40, s40, {KVL + 36*KB}")
        a(f"v_add_u32 v173, s40, v171\nv_lshl_add_u32 v174, v7, 4, v173")
        a(f"ds_read_b128 v[{Q1(i)}:{Q1(i)+3}], v174\nds_read_b64 v[{Q2(i)}:{Q2(i)+1}], v173 offset:32")
    FLAGW = KVL + 48 * KB - 64
    a("s_mov_b32 s57, 0")
    a("s_waitcnt lgkmcnt(0)")
    a("v_cmp_eq_u32 vcc, 1, v7")
    for i in range(4):
        a(f"v_cndmask_b32 v{Q2(i)}, v{Q2(i)}, 0, vcc\nv_cndmask_b32 v{Q2(i)+1}, v{Q2(i)+1}, 0, vcc")
    a("s_cmp_ge_u32 s34, 4\ns_cbranch_scc0 att_go")
    kv_poll_wait()
    a.label("att_main")
    kv_prologue()
    a.label("att_go")
    ts(a, "kv_ready")
    for r in range(64): a(f"v_mov_b32 v{O+r}, 0")
    def qk1(Sd, b, i): a(f"v_mfma_f32_32x32x16_bf16 v[{Sd}:{Sd+15}], v[{K1(b)}:{K1(b)+3}], v[{Q1(i)}:{Q1(i)+3}], 0")
    def qk2(Sd, b, i): a(f"v_mfma_f32_32x32x8_bf16 v[{Sd}:{Sd+15}], v[{K2(b)}:{K2(b)+1}], v[{Q2(i)}:{Q2(i)+1}], v[{Sd}:{Sd+15}]")
    def pv(i, b, h): a(f"v_mfma_f32_32x32x16_bf16 v[{O+16*i}:{O+16*i+15}], v[{V1(b)+4*h}:{V1(b)+4*h+3}], v[{P+4*h}:{P+4*h+3}], v[{O+16*i}:{O+16*i+15}]")
    for r in range(4, 8): a(f"v_mov_b32 v{P+r}, 0\nv_mov_b32 v{V1(1)+r}, 0\nv_mov_b32 v{SB+8+r}, 0")
    a("s_waitcnt vmcnt(4)")
    qk1(SA, 0, 0); qk2(SA, 0, 0)
    a("s_mov_b32 s49, 0")
    a("s_cmp_eq_u32 s37, 0\ns_cbranch_scc0 att_nochk")
    a(f"s_lshl_b32 s46, s35, 5\ns_add_u32 s46, s46, {XID}")
    await_flags(a, 0xFF, 46, vtmp=175)
    a("s_mov_b64 s[42:43], exec\ns_mov_b64 exec, 0xff\nv_cmp_ne_u32 vcc, s58, v176\ns_cmp_eq_u64 vcc, 0\ns_cselect_b32 s59, 1, 0\ns_mov_b64 exec, s[42:43]")
    if "noxcd" in sys.argv: a("s_mov_b32 s59, 0")
    a.label("att_nochk")
    PFQ = int([x for x in sys.argv if x.startswith("pfq=")][0][4:]) if any(x.startswith("pfq=") for x in sys.argv) else 96
    PF = "nopf" not in sys.argv
    if PF:
        a(f"s_mul_i32 s88, s36, {SL*KB}\ns_lshr_b32 s45, s35, 3\ns_mul_i32 s45, s45, {PFQ*KB}\ns_add_u32 s88, s88, s45\ns_add_u32 s88, s88, {WST + 224*KB}")
        a(f"s_lshl_b32 s45, s34, 12\ns_add_u32 s88, s88, s45\ns_add_u32 s89, s88, 32768\ns_add_u32 s90, s88, 65536")
        if "nopfw" in sys.argv: a(f"s_mov_b32 s88, {KVB[0]}\ns_mov_b32 s89, s88\ns_mov_b32 s90, s88")
        a("s_and_b32 s40, s34, 3\ns_lshl_b32 s41, s35, 2\ns_add_u32 s40, s40, s41")
        a("s_cmp_ge_u32 s34, 4\ns_cbranch_scc1 dst_h")
        a(f"s_mul_i32 s41, s40, 20480\ns_mul_i32 s45, s36, 2560\ns_add_u32 s41, s41, s45")
        a(f"s_mul_i32 s91, s37, {OB[1]-OB[0]}\ns_add_u32 s91, s91, {OB[0]}\ns_add_u32 s91, s91, s41")
        a(f"s_mul_i32 s92, s37, {X1[1]-X1[0]}\ns_add_u32 s92, s92, {X1[0]}\ns_add_u32 s92, s92, s41")
        a(f"s_add_u32 s93, s41, {X2}\ns_mov_b32 s61, 3\ns_mov_b32 s62, 39")
        a("s_branch dst_d")
        a.label("dst_h")
        a("s_lshr_b32 s44, s36, 1\ns_mul_i32 s44, s44, 27\ns_and_b32 s45, s36, 1\ns_mul_i32 s45, s45, 14\ns_add_u32 s44, s44, s45\ns_lshl_b32 s44, s44, 9")
        a(f"s_mul_i32 s41, s40, 55296\ns_add_u32 s44, s44, s41\ns_mul_i32 s45, s37, {HB[1]-HB[0]}\ns_add_u32 s44, s44, s45\ns_add_u32 s91, s44, {HB[0]}")
        a("s_add_u32 s92, s91, 4096\ns_mov_b32 s93, s92\ns_mov_b32 s61, 4\ns_bitcmp1_b32 s36, 0\ns_cselect_b32 s62, 39, 47")
        a.label("dst_d")
        a("s_mov_b32 s94, s93\ns_mov_b32 s95, s93")
    if "noout" not in sys.argv:
        a("s_cmp_eq_u32 s37, 1\ns_cbranch_scc0 outpf_d\ns_cmp_ge_u32 s34, 4\ns_cbranch_scc0 outpf_d")
        srd(a, 16, 28, 0, XBYTES)
        a("v_add_u32 v179, s66, v3\nv_mul_u32_u24 v179, 1280, v179\nv_lshl_add_u32 v179, v4, 6, v179\ns_mul_i32 s40, s36, 160\ns_and_b32 s40, s40, -64\nv_add_u32 v179, s40, v179")
        a("buffer_load_dword v178, v179, s[16:19], 0 offen")
        a.label("outpf_d")
    a("s_nop 7")
    ts(a, "att_start")
    a.label("att_loop")
    if "altprio" in sys.argv:
        a("s_lshr_b32 s45, s34, 2\ns_add_u32 s45, s45, s49\ns_bitcmp1_b32 s45, 0\ns_cbranch_scc1 att_p1\ns_setprio 0\ns_branch att_p2")
        a.label("att_p1"); a("s_setprio 1"); a.label("att_p2")
    if "hiprio" in sys.argv:
        a("s_cmp_ge_u32 s34, 4\ns_cbranch_scc0 att_p2\ns_setprio 1"); a.label("att_p2")
    ex = lambda Sc, r: a(f"v_exp_f32 v{Sc+r}, v{Sc+r}")
    cv = lambda Sc, q: a(f"v_cvt_pk_bf16_f32 v{P+q}, v{Sc+2*q}, v{Sc+2*q+1}")
    for kk in range(2):
        b = kk
        for q in range(4):
            u = kk * 4 + q
            Sc, Sn = (SA, SB) if u % 2 == 0 else (SB, SA)
            pq, pb = (q - 1) % 4, (b if q > 0 else 1 - b)
            nq, nb = (q + 1) % 4, (b if q < 3 else 1 - b)
            if "altprio2" in sys.argv and q == 0:
                L1, L2 = newlab("ap"), newlab("ap")
                a(f"s_lshr_b32 s45, s34, 2\ns_bitcmp1_b32 s45, 0\ns_cbranch_scc1 {L1}\ns_setprio {kk}\ns_branch {L2}")
                a.label(L1); a(f"s_setprio {1-kk}"); a.label(L2)
            ex(Sc, 0); ex(Sc, 1); cv(Sn, 6); cv(Sn, 7); ex(Sc, 2); ex(Sc, 3)
            if q == 3: a(f"s_waitcnt vmcnt({3 if (PF and kk == 1) else 2})")
            qk1(Sn, nb, nq)
            ex(Sc, 4); ex(Sc, 5); cv(Sc, 0); cv(Sc, 1); ex(Sc, 6); ex(Sc, 7)
            qk2(Sn, nb, nq)
            if q == 3:
                a("s_add_u32 s47, s47, 4096")
                ldK(b)
                if PF and kk == 0:
                    a("s_mov_b32 m0, s49\ns_cmp_lt_u32 s49, s61\ns_cselect_b32 s63, 63, s62\ns_movrels_b32 s50, s88")
                    a("v_min_u32 v177, s63, v1\nv_lshlrev_b32 v177, 6, v177")
                    a("buffer_load_dword v178, v177, s[8:11], s50 offen")
            ex(Sc, 8); ex(Sc, 9); cv(Sc, 2); cv(Sc, 3); ex(Sc, 10); ex(Sc, 11)
            pv(pq, pb, 1)
            if q == 0: ldV(1 - b, 0)
            if q == 1: ldV(1 - b, 1)
            ex(Sc, 12); ex(Sc, 13); cv(Sc, 4); cv(Sc, 5); ex(Sc, 14); ex(Sc, 15)
            if q == 0: a(f"s_waitcnt vmcnt({4 if (PF and kk == 1) else 3})")
            pv(q, b, 0)
    a("s_add_u32 s49, s49, 1\ns_cmp_lt_u32 s49, 8\ns_cbranch_scc1 att_loop")
    a("s_setprio 0")
    cv(SB, 6); cv(SB, 7)
    pv(3, 1, 1)
    ts(a, "att_loop_end")
    a(f"s_mul_i32 s40, s34, {3*1536}\ns_add_u32 s40, s40, {KVL}\nv_add_u32 v171, s40, v5\nv_add_u32 v172, s40, v170\nv_add_u32 v172, 1024, v172")
    for r in (1, 2, 3):
        t = 72 + 8 * (r - 1)
        for q in range(5): a(f"v_cvt_pk_bf16_f32 v{t+q}, v{O+16*r+2*q}, v{O+16*r+2*q+1}")
        a(f"v_mov_b32 v{t+5}, v{O+16*r+10}")
        a(f"ds_write_b128 v171, v[{t}:{t+3}] offset:{(r-1)*1536}\nds_write_b64 v172, v[{t+4}:{t+5}] offset:{(r-1)*1536}")
    a(f"v_mov_b32 v175, {FLAGW}\nv_mov_b32 v176, 0\nds_write_b32 v175, v176")
    a("s_waitcnt lgkmcnt(0)\ns_barrier")
    for r in (1, 2, 3):
        t = 72 + 8 * (r - 1)
        a(f"s_sub_u32 s41, s38, {r}\ns_and_b32 s41, s41, 3\ns_lshl_b32 s45, s39, 2\ns_add_u32 s41, s41, s45\ns_mul_i32 s41, s41, {3*1536}\ns_add_u32 s41, s41, {KVL + (r-1)*1536}")
        a(f"v_add_u32 v171, s41, v5\nv_add_u32 v172, s41, v170")
        a(f"ds_read_b128 v[{t}:{t+3}], v171\nds_read_b64 v[{t+4}:{t+5}], v172 offset:1024")
    a("s_waitcnt vmcnt(0) lgkmcnt(0)")
    for r in (1, 2, 3):
        t = 72 + 8 * (r - 1)
        for q in range(5):
            unpack2(a, 173, 174, t + q)
            a(f"v_add_f32 v{O+2*q}, v{O+2*q}, v173\nv_add_f32 v{O+2*q+1}, v{O+2*q+1}, v174")
        a(f"v_add_f32 v{O+10}, v{O+10}, v{t+5}")
    a("s_cmp_eq_u32 s57, 1\ns_cbranch_scc1 att_fin")
    a("v_mov_b32 v173, 0")
    for r in range(10): a(f"v_fma_f32 v173, v{O+r}, 0, v173")
    a(f"v_cmp_lt_f32 vcc, {f2u(2.0**-60):#x}, v{O+10}")
    a(f"v_mov_b32 v174, {f2u(2.0**60):#x}\nv_cmp_gt_f32 s[40:41], v174, v{O+10}\ns_and_b64 vcc, vcc, s[40:41]")
    a("v_cmp_eq_f32 s[40:41], 0, v173\ns_and_b64 vcc, vcc, s[40:41]")
    if "forcefb" in sys.argv: a("s_mov_b64 vcc, 0")
    a("s_cmp_eq_u64 vcc, -1\ns_cbranch_scc1 att_okw")
    a(f"v_mov_b32 v175, {FLAGW}\nv_mov_b32 v176, 1\nds_write_b32 v175, v176\ns_waitcnt lgkmcnt(0)")
    a.label("att_okw")
    a("s_barrier")
    a(f"v_mov_b32 v175, {FLAGW}\nds_read_b32 v176, v175\ns_waitcnt lgkmcnt(0)\nv_readfirstlane_b32 s40, v176")
    a("s_cmp_eq_u32 s40, 0\ns_cbranch_scc0 att_fallback")
    a.label("att_fin")
    ts(a, "att_red")
    a(f"v_rcp_f32 v173, v{O+10}")
    for r in range(10): a(f"v_mul_f32 v{O+r}, v{O+r}, v173")
    for q in range(5): a(f"v_cvt_pk_bf16_f32 v{P+q}, v{O+2*q}, v{O+2*q+1}")
    a(f"s_mul_i32 s40, s34, 1280\ns_add_u32 s40, s40, {KVL + 36864}")
    a("v_lshrrev_b32 v171, 2, v6\nv_mul_u32_u24 v171, 160, v171\nv_and_b32 v172, 3, v6\nv_mul_u32_u24 v172, 40, v172\nv_mul_u32_u24 v173, 20, v7\nv_add3_u32 v171, v171, v172, v173")
    a("v_add_u32 v171, s40, v171")
    for q in range(5): a(f"ds_write_b32 v171, v{P+q} offset:{4*q}")
    a("v_and_b32 v172, 7, v1\nv_lshrrev_b32 v173, 3, v1")
    a("v_mul_u32_u24 v174, 160, v172\nv_lshl_add_u32 v174, v173, 4, v174\nv_add_u32 v174, s40, v174")
    a("s_waitcnt lgkmcnt(0)")
    a("ds_read_b128 v[72:75], v174\nds_read_b128 v[76:79], v174 offset:128")
    a("s_and_b32 s41, s34, 1\ns_lshl_b32 s41, s41, 7\nv_lshlrev_b32 v172, 4, v172\nv_lshl_add_u32 v172, v173, 8, v172\nv_add_u32 v172, s41, v172")
    a(f"s_lshl_b32 s41, s35, 2\ns_lshr_b32 s45, s34, 1\ns_add_u32 s48, s41, s45\ns_mul_i32 s41, s48, 20480\ns_mul_i32 s45, s36, 2560\ns_add_u32 s41, s41, s45\ns_mul_i32 s45, s37, {OB[1]-OB[0]}\ns_add_u32 s41, s41, s45\ns_add_u32 s41, s41, {OB[0]}")
    a("s_waitcnt lgkmcnt(0)")
    xstore(a, "buffer_store_dwordx4 v[72:75], v172, s[8:11], s41 offen @SC\ns_mov_b64 s[42:43], exec\ns_mov_b64 exec, 0xffff\nbuffer_store_dwordx4 v[76:79], v172, s[8:11], s41 offen offset:2048 @SC\ns_mov_b64 exec, s[42:43]")
    flag_line(46, 0, tile_sgpr=48)
    a("s_lshl_b32 s45, s36, 3\ns_add_u32 s46, s46, s45\ns_and_b32 s45, s34, 1\ns_lshl_b32 s45, s45, 2\ns_add_u32 s46, s46, s45")
    set_flag(a, 46, vtmp=175)
    ts(a, "att_done")
    a("s_cmp_ge_u32 s34, 4\ns_cbranch_scc1 ld_wo")
    a.nvm = 0; a.nlg = 0
    set_bases(a, 5)
    flag_line(46, 0, pair=True)
    await_flags(a, 0xFFFFFFFF, 46)
    ts(a, "wo_ready")
    tile_offs(OB[0], OB[1] - OB[0], 20480, True)
    bl = BL(2048, 10)
    for i in range(10): bl.load(i)
    segs = [(0, 5), (5, 10)]
    kloop2(a, FO, 10, 5, 5, segs, bl.regs, A0, A1, 0, 5, before=lambda i: a.wait_vm(bl.tag[i]), D=DEP)
    ld.label("ld_wo")
    ring.drained()
    loader_kloop2(ld, ring, FO, 10, 5, segs, 5, D=DEP, docap=('capwo' in sys.argv))
    ts(a, "wo_kloop")
    reduce_pair(A0, A1, 5, False, cbar=(bool(SIDES) and "latec" not in sys.argv))
    if SIDES:
        ld("s_barrier\ns_barrier")
        side_issue(ld, ring, 0); ring_refill(ld, ring, F1)
    else:
        loader_bp(ld, ring, None, F1)
    frag_addr(a, 60, 61, 68, 62)
    tile_offs(X1[0], X1[1] - X1[0], 20480, False)
    for i in range(5):
        unpack2(a, 48, 49, RES + 2 * i); unpack2(a, 50, 51, RES + 2 * i + 1)
        for r in range(4): a(f"v_add_f32 v{48+r}, v{48+r}, v{A0+4*i+r}")
        a(f"v_cvt_pk_bf16_f32 v{RES+2*i}, v48, v49\nv_cvt_pk_bf16_f32 v{RES+2*i+1}, v50, v51")
    store_tiles(a, [RES + 2 * i for i in range(5)], 5, 60, 61, 8, "s40", 512, "@SC", tmp=48)
    if SIDES and "latec" in sys.argv: a("s_barrier")
    flag_line(46, 1, tile_sgpr=67)
    a("s_lshl_b32 s45, s36, 2\ns_add_u32 s46, s46, s45")
    set_flag(a, 46)
    ts(a, "wo_done")
    a.nvm = 0; a.nlg = 0
    a("s_lshr_b32 s52, s36, 1\ns_mul_i32 s52, s52, 27\ns_and_b32 s53, s36, 1\ns_mul_i32 s53, s53, 14\ns_add_u32 s52, s52, s53")
    a("s_and_b32 s53, s34, 1\ns_mul_i32 s53, s53, 7\ns_add_u32 s52, s52, s53")
    srd(a, 20, 24, 0, F * 2)
    a("s_lshl_b32 s47, s52, 5\nv_lshlrev_b32 v60, 3, v4\nv_add_u32 v60, s47, v60")
    B1R = 232
    for i in range(7): a(f"buffer_load_dwordx2 v[{B1R+2*i}:{B1R+2*i+1}], v60, s[20:23], 0 offen offset:{i*32}")
    a(f"s_mul_i32 s45, s36, 896\ns_lshl_b32 s44, s53, 6\ns_add_u32 s45, s45, s44\ns_add_u32 s45, s45, {CS1}\nv_lshlrev_b32 v58, 4, v4")
    for i in range(7): a(f"buffer_load_dwordx4 v[{8+4*i}:{8+4*i+3}], v58, s[8:11], s45 offen offset:{i*64}")
    ones(); set_bases(a, 7)
    flag_line(46, 1, pair=True)
    await_flags(a, 0x00FF00FF, 46)
    ts(a, "fc1_ready")
    tile_offs(X1[0], X1[1] - X1[0], 20480, False)
    bl = BL(1024, 10, sc=('' if 'fc1plain' in sys.argv else 'sc1'))
    for i in range(10): bl.load(i)
    segs = [(2 * s_, 2 * s_ + 2) for s_ in range(10)]
    C0, C1 = 176, 204
    kloop2(a, F1, 14, 7, 7, segs, bl.regs, C0, C1, 1, 4, before=lambda i: a.wait_vm(bl.tag[i]),
           after=lambda i: bl.load(i + 10) if i + 10 < 20 else None)
    ld.label("ld_fc1")
    loader_kloop2(ld, ring, F1, 14, 7, segs, 4, docap=('capfc1' in sys.argv))
    ts(a, "fc1_kloop")
    stats_finalize(a, VST, VST + 4, 60, 61, 56, True)
    a(f"s_and_b32 s45, s34, 3\ns_lshl_b32 s44, s45, 9\ns_add_u32 s44, s44, {KVL}\nv_lshlrev_b32 v56, 3, v1\nv_add_u32 v57, s44, v56")
    a("ds_write_b64 v57, v[60:61]")
    a(f"s_xor_b32 s45, s45, 1\ns_lshl_b32 s44, s45, 9\ns_add_u32 s44, s44, {KVL}\nv_add_u32 v57, s44, v56")
    a("s_waitcnt lgkmcnt(0)\ns_barrier")
    a("ds_read_b64 v[62:63], v57")
    if SIDES:
        a("s_waitcnt lgkmcnt(0)\ns_barrier")
        ld("s_barrier\ns_barrier")
        side_issue(ld, ring, 1); ring_refill(ld, ring, F2)
    else:
        loader_bp(ld, ring, None, F2)
    frag_addr(a, 58, 59, 52, 56)
    tile_offs(HB[0], HB[1] - HB[0], 55296, False)
    c0 = -2.0 * math.sqrt(2.0 / math.pi) * LOG2E
    c1 = c0 * 0.044715
    a(f"v_mov_b32 v40, {f2u(c0):#x}\nv_mov_b32 v41, v40\nv_mov_b32 v42, {f2u(c1):#x}\nv_mov_b32 v43, v42\nv_mov_b32 v46, 1.0\nv_mov_b32 v47, 1.0")
    a("s_waitcnt lgkmcnt(0)")
    def gelu_tile(i, acc, dst):
        unpack2(a, 52, 53, B1R + 2 * i); unpack2(a, 54, 55, B1R + 2 * i + 1)
        for h in range(2): a(f"v_pk_fma_f32 v[{52+2*h}:{53+2*h}], v[38:39], v[{8+4*i+2*h}:{8+4*i+2*h+1}], v[{52+2*h}:{53+2*h}]")
        for h in range(2): a(f"v_pk_fma_f32 v[{52+2*h}:{53+2*h}], v[36:37], v[{acc+4*i+2*h}:{acc+4*i+2*h+1}], v[{52+2*h}:{53+2*h}]")
        for h in range(2): a(f"v_pk_mul_f32 v[{144+2*h}:{145+2*h}], v[{52+2*h}:{53+2*h}], v[{52+2*h}:{53+2*h}]")
        for h in range(2): a(f"v_pk_fma_f32 v[{144+2*h}:{145+2*h}], v[{144+2*h}:{145+2*h}], v[42:43], v[40:41]")
        for h in range(2): a(f"v_pk_mul_f32 v[{144+2*h}:{145+2*h}], v[{144+2*h}:{145+2*h}], v[{52+2*h}:{53+2*h}]")
        for r in range(4): a(f"v_exp_f32 v{144+r}, v{144+r}")
        for h in range(2): a(f"v_pk_add_f32 v[{144+2*h}:{145+2*h}], v[{144+2*h}:{145+2*h}], v[46:47]")
        for r in range(4): a(f"v_rcp_f32 v{144+r}, v{144+r}")
        for h in range(2): a(f"v_pk_mul_f32 v[{52+2*h}:{53+2*h}], v[{52+2*h}:{53+2*h}], v[{144+2*h}:{145+2*h}]")
        a(f"v_cvt_pk_bf16_f32 v{dst}, v52, v53\nv_cvt_pk_bf16_f32 v{dst+1}, v54, v55")
    for tilesel in range(2):
        acc, rho, mu, so = (C0, 60, 61, "s40") if tilesel == 0 else (C1, 62, 63, "s41")
        a(f"v_mov_b32 v36, v{rho}\nv_mov_b32 v37, v{rho}\nv_sub_f32 v38, 0, v{mu}\nv_mov_b32 v39, v38")
        for p in range(3):
            t = 152 + 4 * (p % 2)
            gelu_tile(2 * p, acc, t); gelu_tile(2 * p + 1, acc, t + 2)
            a(f"v_permlane16_swap_b32 v{t}, v{t+2}\nv_permlane16_swap_b32 v{t+1}, v{t+3}")
            xstore(a, f"buffer_store_dwordx4 v[{t}:{t+3}], v58, s[8:11], {so} offen offset:{p*1024} @SC")
        sk = newlab("fc1sk")
        a(f"s_and_b32 s45, s36, s34\ns_bitcmp1_b32 s45, 0\ns_cbranch_scc1 {sk}")
        gelu_tile(6, acc, 160)
        xstore(a, f"buffer_store_dwordx2 v[160:161], v59, s[8:11], {so} offen offset:3072 @SC")
        a.label(sk)
    flag_line(46, 2, tile_sgpr=67)
    flag_line(47, 2, tile_sgpr=65)
    a("s_lshl_b32 s45, s36, 3\ns_and_b32 s44, s34, 1\ns_lshl_b32 s44, s44, 2\ns_add_u32 s45, s45, s44\ns_add_u32 s46, s46, s45\ns_add_u32 s47, s47, s45")
    set_flag(a, 46, second=47)
    ts(a, "fc1_done")
    a.nvm = 0; a.nlg = 0
    srd(a, 20, 26, 0, D * 2)
    a("v_lshlrev_b32 v58, 3, v4\ns_mul_i32 s40, s36, 160\nv_add_u32 v58, s40, v58")
    for i in range(5): a(f"buffer_load_dwordx2 v[{8+2*i}:{9+2*i}], v58, s[20:23], 0 offen offset:{i*32}")
    set_bases(a, 5)
    flag_line(46, 2, pair=True)
    await_flags(a, 0xFFFFFFFF, 46)
    ts(a, "fc2_ready")
    tile_offs(HB[0], HB[1] - HB[0], 55296, True)
    bl = BL(2048, 10, extra=((184, 192, 20, 28, 36, 44) if 'bigB' in sys.argv else ()))
    for i in range(bl.n): bl.load(i)
    segs = [(2 * s_, min(27, 2 * s_ + 2)) for s_ in range(14)]
    SEGTS[0] = True
    kloop2(a, F2, 10, 5, 5, segs, bl.regs, A0, A1, 0, 5, before=lambda i: a.wait_vm(bl.tag[i]),
           after=lambda i: bl.load(i + bl.n) if i + bl.n < 27 else None, D=DEP)
    ld.label("ld_fc2")
    if any(x.startswith("wb") for x in sys.argv):
        Lw = newlab("wb")
        ld(f"s_cmp_eq_u32 s37, 1\ns_cbranch_scc0 {Lw}\ns_cmp_eq_u32 s34, 7\ns_cbranch_scc0 {Lw}")
        if "wb8" in sys.argv: ld(f"s_cmp_lt_u32 s2, 8\ns_cbranch_scc0 {Lw}")
        ld("buffer_wbl2 sc1")
        ld.label(Lw)
    loader_kloop2(ld, ring, F2, 10, 5, segs, 5, D=DEP, docap=('capfc2' in sys.argv))
    ts(a, "fc2_kloop")
    reduce_pair(A0, A1, 5, False)
    loader_bp(ld, ring, None, SL)
    assert ring.I == SLP + RING
    for i in range(5):
        unpack2(a, 48, 49, RES + 2 * i); unpack2(a, 50, 51, RES + 2 * i + 1)
        unpack2(a, 52, 53, 8 + 2 * i); unpack2(a, 54, 55, 8 + 2 * i + 1)
        for r in range(4): a(f"v_add_f32 v{52+r}, v{52+r}, v{A0+4*i+r}")
        for r in range(4): a(f"v_add_f32 v{48+r}, v{48+r}, v{52+r}")
        a(f"v_cvt_pk_bf16_f32 v{RES+2*i}, v48, v49\nv_cvt_pk_bf16_f32 v{RES+2*i+1}, v50, v51")
    a("s_cmp_eq_u32 s37, 0\ns_cbranch_scc0 fc2_last")
    frag_addr(a, 60, 61, 68, 62)
    tile_offs(X2, 0, 20480, False)
    store_tiles(a, [RES + 2 * i for i in range(5)], 5, 60, 61, 8, "s40", 512, "@SC", tmp=48)
    flag_line(46, 3, tile_sgpr=67)
    a("s_lshl_b32 s45, s36, 2\ns_add_u32 s46, s46, s45")
    set_flag(a, 46)
    a("s_branch fc2_fin")
    a.label("fc2_last")
    srd(a, 16, 28, 0, XBYTES)
    a("v_add_u32 v62, s66, v3\nv_mul_u32_u24 v60, 1280, v62\ns_mul_i32 s40, s36, 160\nv_add_u32 v60, s40, v60")
    a("v_lshl_add_u32 v61, v4, 3, v60")
    a("v_and_b32 v62, 1, v4\nv_lshl_add_u32 v60, v62, 5, v60\nv_lshrrev_b32 v62, 1, v4\nv_lshl_add_u32 v60, v62, 4, v60")
    store_tiles(a, [RES + 2 * i for i in range(5)], 5, 60, 61, 16, "0", 32, "", tmp=48)
    a.label("fc2_fin")
    ts(a, "fc2_done")
    a("s_branch layer_end")
    ld("s_branch layer_end")
    a.out += ld.out
    fbk = Asm()
    fbk.label("att_fallback")
    fbk("s_barrier")
    for i in range(4): fbk(f"v_mov_b32 v{181+i}, 0xff800000")
    fbk(f"s_mul_i32 s47, s37, {KVB[1]-KVB[0]}\ns_add_u32 s47, s47, {KVB[0]}\ns_lshl_b32 s48, s38, 16\ns_add_u32 s47, s47, s48\ns_mov_b32 s49, 0")
    fbk.label("fb_loop")
    fbk(f"buffer_load_dwordx4 v[{K1(0)}:{K1(0)+3}], v5, s[8:11], s47 offen sc1")
    fbk(f"buffer_load_dwordx2 v[{K2(0)}:{K2(0)+1}], v170, s[8:11], s47 offen offset:1024 sc1")
    fbk("s_waitcnt vmcnt(0)")
    for i in range(4):
        fbk(f"v_mfma_f32_32x32x16_bf16 v[{SA}:{SA+15}], v[{K1(0)}:{K1(0)+3}], v[{Q1(i)}:{Q1(i)+3}], 0")
        fbk(f"v_mfma_f32_32x32x8_bf16 v[{SA}:{SA+15}], v[{K2(0)}:{K2(0)+1}], v[{Q2(i)}:{Q2(i)+1}], v[{SA}:{SA+15}]")
        for r in range(0, 16, 2): fbk(f"v_max3_f32 v{181+i}, v{181+i}, v{SA+r}, v{SA+r+1}")
    fbk("s_add_u32 s47, s47, 4096\ns_add_u32 s49, s49, 1\ns_cmp_lt_u32 s49, 16\ns_cbranch_scc1 fb_loop")
    fbk("v_xor_b32 v171, 32, v1\nv_lshlrev_b32 v171, 2, v171")
    for i in range(4):
        fbk(f"ds_bpermute_b32 v172, v171, v{181+i}\ns_waitcnt lgkmcnt(0)\nv_max_f32 v{181+i}, v{181+i}, v172")
    fbk("v_lshlrev_b32 v171, 2, v6")
    for i in range(4):
        fbk(f"s_add_u32 s40, s38, {i}\ns_and_b32 s40, s40, 3\ns_lshl_b32 s41, s39, 2\ns_add_u32 s40, s40, s41\ns_lshl_b32 s40, s40, 9\ns_lshl_b32 s41, s38, 7\ns_add_u32 s41, s41, s40\ns_add_u32 s41, s41, {KVL}")
        fbk(f"v_add_u32 v172, s41, v171\nds_write_b32 v172, v{181+i}")
    fbk("s_waitcnt lgkmcnt(0)\ns_barrier")
    for i in range(4):
        fbk(f"s_add_u32 s40, s38, {i}\ns_and_b32 s40, s40, 3\ns_lshl_b32 s41, s39, 2\ns_add_u32 s40, s40, s41\ns_lshl_b32 s40, s40, 9\ns_add_u32 s40, s40, {KVL}")
        fbk(f"v_add_u32 v172, s40, v171\nds_read_b32 v173, v172\nds_read_b32 v174, v172 offset:128\nds_read_b32 v175, v172 offset:256\nds_read_b32 v176, v172 offset:384")
        fbk("s_waitcnt lgkmcnt(0)\nv_max_f32 v173, v173, v174\nv_max3_f32 v173, v173, v175, v176")
        fbk("v_sub_f32 v173, 0, v173\nv_cvt_pk_bf16_f32 v174, v173, v173\nv_lshlrev_b32 v175, 16, v174\nv_sub_f32 v175, v173, v175\nv_cvt_pk_bf16_f32 v176, v173, v175")
        fbk(f"v_cmp_eq_u32 vcc, 1, v7\nv_cndmask_b32 v{Q2(i)}, v{Q2(i)}, v176, vcc")
    fbk("s_mov_b32 s57, 1\ns_barrier\ns_branch att_main")
    a.out += fbk.out
    a.label("layer_end")
    if PROFILE:
        a(f"s_cmp_eq_u32 s34, {4 if PROFLD else 0}\ns_cbranch_scc0 prof_skip")
        a(f"s_lshl_b32 s40, s2, 8\ns_lshl_b32 s41, s37, 7\ns_add_u32 s40, s40, s41\ns_add_u32 s40, s40, {TSB}\nv_mov_b32 v8, 0\ns_mov_b64 s[42:43], exec\ns_mov_b64 exec, 1")
        for i in range(Prof.n):
            a(f"v_mov_b32 v9, s{70+i}\nbuffer_store_dword v9, v8, s[8:11], s40 offen offset:{4*i}\ns_nop 0")
        a("s_mov_b64 exec, s[42:43]")
        a.label("prof_skip")
    if PROFOUT:
        a("s_cmp_eq_u32 s34, 0\ns_cbranch_scc0 po_skip")
        a("s_cmp_eq_u32 s37, 0\ns_cbranch_scc0 po_l1")
        for i in range(1, Prof.n):
            a(f"s_sub_u32 s40, s{70+i}, s{70+i-1}\nv_writelane_b32 v0, s40, {i}")
        a("s_branch po_skip")
        a.label("po_l1")
        for i in range(1, Prof.n):
            a(f"s_sub_u32 s40, s{70+i}, s{70+i-1}\nv_writelane_b32 v0, s40, {24+i}")
        a.label("po_skip")
    a(f"s_add_u32 s37, s37, 1\ns_cmp_lt_u32 s37, 2\ns_cbranch_scc1 layer_top")
    if PROFOUT:
        a("s_waitcnt vmcnt(0)\ns_barrier\ns_cmp_eq_u32 s34, 0\ns_cbranch_scc0 po_end")
        srd(a, 16, 28, 0, XBYTES)
        a("s_memrealtime s[98:99]\ns_waitcnt lgkmcnt(0)\ns_sub_u32 s98, s98, s96\nv_writelane_b32 v0, s98, 47")
        a("v_cvt_f32_u32 v8, v0\nv_cvt_pk_bf16_f32 v8, v8, v8\nv_lshlrev_b32 v9, 1, v1")
        a(f"s_mul_i32 s40, s35, {64*1280}\ns_mul_i32 s41, s36, 160\ns_add_u32 s40, s40, s41")
        a("v_cmp_gt_u32 vcc, 48, v1\ns_and_saveexec_b64 s[42:43], vcc\nbuffer_store_short v8, v9, s[16:19], s40 offen\ns_mov_b64 exec, s[42:43]")
        a.label("po_end")
    a("s_waitcnt vmcnt(0)")
    a("s_endpgm")
    kernel_end(a, name)
    return a.out, descriptor(name, 256), (name, 256, 512, LDS_BYTES)

def build(path, kernels):
    hdr = []
    for k in kernels:
        name, grid, block, lds = k[2]
        hdr.append(f"; @launch kernel={name} grid=({grid},1,1) block=({block},1,1) lds={lds}")
    body = ['.amdgcn_target "amdgcn-amd-amdhsa--gfx950"', ".text"]
    descs = []
    nfix = 0
    for k in kernels:
        lines, n = fix_hazards(k[0])
        nfix += n
        body += lines
        descs.append(k[1])
    hdr += [
        "; Two launches. prep_kernel: re-lays the weights out as MFMA fragments in d_ws, column sums for the LayerNorm folding, x in fragment order, zeroes the hand-off flags.",
        "; main_kernel: persistent, 256 workgroups = 32 token groups (64 tokens) x 8 column slices; both layers run in one loop.",
        ";   phases per layer: K/V + Q projection, MQA attention, output projection, fc1+GELU, fc2 ; waves 0-3 compute, waves 4-7 stream the weights (LDS ring).",
        ";   LayerNorm is folded into the GEMM epilogues (row mean / variance from MFMA sums; the MLP applies both normalisations).",
        ";   softmax: exp2 of the raw scores; a run-time check of every row sum (range and finiteness) falls back to a pass with the true row max (att_fallback).",
        ";   hand-offs between workgroups: flags in d_ws; plain stores only when all 8 members of a group report the same XCC id, write-through (sc1) otherwise.",
    ]
    txt = "\n".join(hdr) + "\n" + "\n".join(body) + '\n.section .rodata,"a"\n' + "".join(".p2align 6\n" + d for d in descs)
    open(path, "w").write(txt)
    print("written", path, len(txt), "bytes; hazard nops at", nfix, "sites")

if __name__ == "__main__":
    out = [x for x in sys.argv[1:] if x.endswith(".s")]
    build(out[0] if out else "v10.s", [gen_prep(), gen_main()])
    json.dump(dict(WST=WST, CSQ=CSQ, BKV=BKV, CS1=CS1, KVB=KVB, KMAX=KMAX, OB=OB, X1=X1, X2=X2, HB=HB, TSB=TSB, XF=XF, KVF=KVF, TSN=TSN, ver=3, XF0=XF0), open("layout.json", "w"))
```
